```python
import torch

def _softmax(x, axis=-1):
    return torch.softmax(x, dim=axis)
def _gelu(x):
    return torch.nn.functional.gelu(x, approximate="tanh")
def _silu(x):
    return torch.nn.functional.silu(x)
def _sigmoid(x):
    return torch.sigmoid(x)
def _layernorm(x, axis=-1, eps=1e-5):
    m = x.mean(dim=axis, keepdim=True)
    v = x.var(dim=axis, keepdim=True, unbiased=False)
    return (x - m) / torch.sqrt(v + eps)
def _scatter_add(tgt, idx, src, axis=0):
    return tgt.clone().index_add_(axis, idx, src)
def _segment_sum(src, seg, n):
    out = torch.zeros((n,) + src.shape[1:], dtype=src.dtype)
    return out.index_add_(0, seg, src)
def _pad(x, pw):
    flat = tuple(v for pair in reversed(pw) for v in pair)
    return torch.nn.functional.pad(x, flat)

kernel_name = 'concat_heads__gqa_block_cached__gqa_block_cached__near_ridge'

def setup_inputs():

    _w = (lambda a: (lambda t: t.to(torch.bfloat16) if t.is_floating_point() else t)(torch.as_tensor(a)))
    def _A_setup():
        B, Sq, D = 8, 48, 1024
        Hq, Hkv, Sk, Dh = 32, 4, 1024, 128
        assert Hq % Hkv == 0, (Hq, Hkv)
        return {
            "x": _w((lambda *s: torch.randn(*s, dtype=torch.bfloat16) * 0.8)(B, Sq, D)),
            "k_cache": _w((lambda *s: torch.randn(*s, dtype=torch.bfloat16) * 0.8)(B, Hkv, Sk, Dh)),
            "v_cache": _w((lambda *s: torch.randn(*s, dtype=torch.bfloat16) * 0.05)(B, Hkv, Sk, Dh)),
            "wq": _w((lambda *s: torch.randn(*s, dtype=torch.bfloat16) * 0.8)(D, Hq * Dh) * (D ** -0.5)),
            "wo": _w((lambda *s: torch.randn(*s, dtype=torch.bfloat16) * 0.05)(Hq * Dh, D) * ((Hq * Dh) ** -0.5)),
        }
    _A_in = _A_setup()

    def _B_setup():
        B, Sq, D = 8, 48, 1024
        Hq, Hkv, Sk, Dh = 32, 4, 1024, 128
        assert Hq % Hkv == 0, (Hq, Hkv)
        return {
            "x": _w((lambda *s: torch.randn(*s, dtype=torch.bfloat16) * 0.8)(B, Sq, D)),
            "k_cache": _w((lambda *s: torch.randn(*s, dtype=torch.bfloat16) * 0.8)(B, Hkv, Sk, Dh)),
            "v_cache": _w((lambda *s: torch.randn(*s, dtype=torch.bfloat16) * 0.05)(B, Hkv, Sk, Dh)),
            "wq": _w((lambda *s: torch.randn(*s, dtype=torch.bfloat16) * 0.8)(D, Hq * Dh) * (D ** -0.5)),
            "wo": _w((lambda *s: torch.randn(*s, dtype=torch.bfloat16) * 0.05)(Hq * Dh, D) * ((Hq * Dh) ** -0.5)),
        }
    _B_in = _B_setup()

    return {
        "A_x": _A_in["x"],
        "A_k_cache": _A_in["k_cache"],
        "A_v_cache": _A_in["v_cache"],
        "A_wq": _A_in["wq"],
        "A_wo": _A_in["wo"],
        "B_x": _B_in["x"],
        "B_k_cache": _B_in["k_cache"],
        "B_v_cache": _B_in["v_cache"],
        "B_wq": _B_in["wq"],
        "B_wo": _B_in["wo"],
    }

def reference(A_x, A_k_cache, A_v_cache, A_wq, A_wo, B_x, B_k_cache, B_v_cache, B_wq, B_wo):
    def _A_ref(x, k_cache, v_cache, wq, wo):
        B, Sq, D = x.shape
        Hq, Dh = 32, 128
        Hkv = k_cache.shape[1]
        rep = Hq // Hkv
        q = (lambda x, *d: x.permute(*d))((x @ wq).reshape(B, Sq, Hq, Dh), 0, 2, 1, 3)
        k = (lambda x, n, axis: torch.repeat_interleave(x, n, dim=axis))(k_cache, rep, axis=1)
        v = (lambda x, n, axis: torch.repeat_interleave(x, n, dim=axis))(v_cache, rep, axis=1)
        scores = torch.einsum("bhqd,bhkd->bhqk", q, k) * (Dh ** -0.5)
        p = _softmax(scores, axis=-1)
        o = torch.einsum("bhqk,bhkd->bhqd", p, v)
        return (lambda x, *d: x.permute(*d))(o, 0, 2, 1, 3).reshape(B, Sq, Hq * Dh) @ wo

    def _B_ref(x, k_cache, v_cache, wq, wo):
        B, Sq, D = x.shape
        Hq, Dh = 32, 128
        Hkv = k_cache.shape[1]
        rep = Hq // Hkv
        q = (lambda x, *d: x.permute(*d))((x @ wq).reshape(B, Sq, Hq, Dh), 0, 2, 1, 3)
        k = (lambda x, n, axis: torch.repeat_interleave(x, n, dim=axis))(k_cache, rep, axis=1)
        v = (lambda x, n, axis: torch.repeat_interleave(x, n, dim=axis))(v_cache, rep, axis=1)
        scores = torch.einsum("bhqd,bhkd->bhqk", q, k) * (Dh ** -0.5)
        p = _softmax(scores, axis=-1)
        o = torch.einsum("bhqk,bhkd->bhqd", p, v)
        return (lambda x, *d: x.permute(*d))(o, 0, 2, 1, 3).reshape(B, Sq, Hq * Dh) @ wo

    a = _A_ref(A_x, A_k_cache, A_v_cache, A_wq, A_wo)
    b = _B_ref(B_x, B_k_cache, B_v_cache, B_wq, B_wo)
    return torch.concatenate([a, b], axis=-1)
```

```python
import re

def vr(a, n=1):
    return f"v{a}" if n == 1 else f"v[{a}:{a+n-1}]"
def sr(a, n=1):
    return f"s{a}" if n == 1 else f"s[{a}:{a+n-1}]"

_REG = re.compile(r"^(v|s|a)(?:(\d+)|\[(\d+):(\d+)\])$")
def regs_of(op):
    op = op.strip()
    neg = op.startswith("-")
    if neg: op = op[1:]
    if op.startswith("abs(") or op.startswith("|"):
        op = op.strip("|").replace("abs(", "").rstrip(")")
    m = _REG.match(op)
    if m:
        k = m.group(1)
        if m.group(2) is not None:
            return {(k, int(m.group(2)))}
        return {(k, i) for i in range(int(m.group(3)), int(m.group(4)) + 1)}
    if op in ("vcc", "vcc_lo", "vcc_hi"): return {("vcc", 0)}
    if op == "m0": return {("m0", 0)}
    if op in ("exec", "exec_lo", "exec_hi"): return {("exec", 0)}
    return set()

TRANS = ("v_exp_f32", "v_log_f32", "v_rcp_f32", "v_rsq_f32", "v_sqrt_f32", "v_sin_f32", "v_cos_f32")

class Ins:
    __slots__ = ("text", "op", "dst", "src", "kind", "passes", "srcC", "srcAB", "is_label", "ws")
    def __init__(self, text):
        self.text = text
        self.is_label = text.rstrip().endswith(":")
        self.dst = set(); self.src = set(); self.kind = "other"; self.passes = 0
        self.srcC = set(); self.srcAB = set(); self.ws = 1; self.op = ""
        if self.is_label or text.strip().startswith(";") or text.strip().startswith(".") or not text.strip():
            self.kind = "meta"; self.ws = 0
            return
        t = text.split(";")[0].strip()
        parts = t.split(None, 1)
        op = parts[0]; self.op = op
        rest = parts[1] if len(parts) > 1 else ""
        rest = re.sub(r"\s+(op_sel|op_sel_hi|neg_lo|neg_hi):\[[^\]]*\]", "", rest)
        ops = [o.strip() for o in rest.split(",")] if rest else []
        if ops:
            last = ops[-1].split()
            ops[-1] = last[0] if last else ""
            mods = last[1:]
        else:
            mods = []
        R = [regs_of(o) for o in ops]
        if op == "s_nop":
            self.kind = "nop"; self.ws = int(ops[0], 0) + 1
        elif op.startswith("v_mfma"):
            self.kind = "mfma"
            self.passes = 8 if "32x32x16" in op else 4
            self.dst = R[0]; self.srcAB = R[1] | R[2]; self.srcC = R[3]; self.src = self.srcAB | self.srcC
        elif op.startswith("v_cmp"):
            self.kind = "valu"; self.dst = R[0]; self.src = set().union(*R[1:])
        elif op.startswith("v_readfirstlane") or op.startswith("v_readlane"):
            self.kind = "valu_rl"; self.dst = R[0]; self.src = set().union(*R[1:])
        elif op.startswith("v_permlane"):
            self.kind = "permlane"; self.dst = R[0] | R[1]; self.src = R[0] | R[1]
        elif op.startswith("v_"):
            self.kind = "trans" if op.replace("_e32", "").replace("_e64", "") in TRANS else "valu"
            self.dst = R[0]; self.src = set().union(*R[1:]) if len(R) > 1 else set()
            if op.startswith("v_fmac") or op.startswith("v_pk_fmac") or op.startswith("v_dot2c"):
                self.src |= R[0]
            if op.startswith("v_cndmask") and len(R) == 3: self.src |= {("vcc", 0)}
            if "_co_" in op:
                self.dst |= R[1]; self.src = set().union(*R[2:])
            if "dpp" in " ".join(mods) or "row_" in " ".join(mods) or "quad_perm" in rest: self.kind = "dpp"
        elif op.startswith("buffer_load") or op.startswith("global_load"):
            self.kind = "vmem"
            if "lds" in mods:
                self.src = set().union(*R) | {("m0", 0)}; self.kind = "vmem_lds"
            else:
                self.dst = R[0]; self.src = set().union(*R[1:])
        elif op.startswith("buffer_store") or op.startswith("global_store") or op.startswith("buffer_atomic") or op.startswith("global_atomic"):
            self.kind = "vmem_st"; self.src = set().union(*R)
            if "sc0" in mods and "atomic" in op: self.dst = R[0]
        elif op.startswith("buffer_"):
            self.kind = "vmem_misc"
        elif op.startswith("ds_read") or op.startswith("ds_bpermute") or op.startswith("ds_swizzle"):
            self.kind = "ds"; self.dst = R[0]; self.src = set().union(*R[1:])
        elif op.startswith("ds_write") or op.startswith("ds_add") or op.startswith("ds_max"):
            self.kind = "ds_st"; self.src = set().union(*R)
        elif op.startswith("s_load") or op.startswith("s_memtime") or op.startswith("s_memrealtime") or op.startswith("s_getpc"):
            self.kind = "smem"; self.dst = R[0]; self.src = set().union(*R[1:]) if len(R) > 1 else set()
        elif op.startswith("s_cmp") or op.startswith("s_cbranch") or op.startswith("s_branch") or op in ("s_barrier", "s_waitcnt", "s_endpgm", "s_sleep", "s_setprio"):
            self.kind = "salu_nodst"; self.src = set().union(*R) if R else set()
        elif op.startswith("s_"):
            self.kind = "salu"; self.dst = R[0] if R else set(); self.src = set().union(*R[1:]) if len(R) > 1 else set()
            if "saveexec" in op: self.dst |= {("exec", 0)}
        else:
            raise ValueError("unknown instr: " + text)

def required_gap(p, c):
    need = 0
    pv = {r for r in p.dst if r[0] in ("v", "a")}
    ps = {r for r in p.dst if r[0] in ("s", "vcc")}
    valu_like = ("valu", "trans", "valu_rl", "permlane", "dpp")
    cv_src = {r for r in c.src if r[0] in ("v", "a")}
    cv_dst = {r for r in c.dst if r[0] in ("v", "a")}
    if p.kind in valu_like:
        if c.kind == "mfma" and pv & c.src: need = max(need, 2)
        if c.kind == "permlane" and pv & c.src: need = max(need, 2)
        if c.kind == "dpp" and pv & c.src: need = max(need, 2)
        if c.kind == "valu_rl" and pv & cv_src: need = max(need, 1)
        if p.kind == "trans" and c.kind in valu_like + ("mfma",) and pv & c.src and c.kind != "trans": need = max(need, 1)
        if p.kind == "trans" and c.kind == "trans" and pv & c.src: need = max(need, 1)
        if ps:
            cs = {r for r in c.src if r[0] in ("s", "vcc")}
            if c.kind in valu_like and ps & cs:
                need = max(need, 4 if c.kind == "valu_rl" else 2)
            if c.kind in ("vmem", "vmem_lds", "vmem_st") and ps & cs: need = max(need, 5)
            if c.kind in ("salu", "salu_nodst", "smem") and ps & cs: need = max(need, 1)
        if ("exec", 0) in p.dst and c.kind == "mfma": need = max(need, 4)
    if p.kind == "salu" and ("m0", 0) in p.dst and c.kind == "vmem_lds": need = max(need, 1)
    if p.kind == "salu" and ("exec", 0) in p.dst and c.kind in ("dpp",): need = max(need, 5)
    if p.kind == "mfma":
        P = p.passes
        tbl_rd = {4: 8, 8: 12}[P]
        tbl_ovl = {4: 6, 8: 10}[P]
        tbl_war = {4: 3, 8: 7}[P]
        if c.kind == "mfma":
            if p.dst & c.srcAB: need = max(need, tbl_rd)
            if p.dst & c.srcC:
                if p.dst == c.srcC and p.passes == c.passes: pass
                else: need = max(need, tbl_ovl)
            if p.dst & c.dst and not (p.dst == c.dst and p.dst == c.srcC and p.passes == c.passes):
                need = max(need, tbl_rd)
        else:
            if p.dst & (cv_src | cv_dst): need = max(need, tbl_rd)
            if c.kind in valu_like and p.srcC & cv_dst: need = max(need, tbl_war)
    if p.kind == "vmem_st" and ("x4" in p.op or "x3" in p.op):
        data = {r for r in p.src if r[0] == "v"}
        if cv_dst & data and c.kind in valu_like + ("mfma",): need = max(need, 2)
        elif cv_dst & data: need = max(need, 1)
    return need

class Asm:
    def __init__(self):
        self.lines = []
        self.nlabel = 0
    def __call__(self, text):
        for l in text.split("\n"):
            l = l.strip()
            if l: self.lines.append(l)
        return self
    def label(self, name): self.lines.append(name + ":")
    def newlabel(self, base="L"):
        self.nlabel += 1
        return f"{base}_{self.nlabel}"
    def comment(self, c): self.lines.append("; " + c)
    def finalize(self, window=24):
        out = []
        for l in self.lines:
            c = Ins(l)
            if c.kind != "meta":
                dist = 0; need = 0
                for p in reversed(out):
                    if p.kind == "meta": continue
                    g = required_gap(p, c)
                    if g > dist: need = max(need, g - dist)
                    dist += p.ws
                    if dist >= window: break
                while need > 0:
                    k = min(need, 16)
                    out.append(Ins(f"s_nop {k-1}"))
                    need -= k
            out.append(c)
        res = []
        for i in out:
            if i.is_label or i.text.startswith(".") : res.append(i.text)
            else: res.append("    " + i.text)
        return "\n".join(res) + "\n"

def kernel_text(name, body, vgpr, sgpr=102, accum=None):
    accum = accum if accum is not None else (vgpr + 3) // 4 * 4
    head = f""".globl {name}
.p2align 8
.type {name},@function
{name}:
{body}
"""
    desc = f""".amdhsa_kernel {name}
  .amdhsa_next_free_vgpr {vgpr}
  .amdhsa_next_free_sgpr {sgpr}
  .amdhsa_accum_offset {accum}
  .amdhsa_group_segment_fixed_size 0
  .amdhsa_kernarg_size 104
  .amdhsa_user_sgpr_count 2
  .amdhsa_user_sgpr_kernarg_segment_ptr 1
  .amdhsa_system_sgpr_workgroup_id_x 1
.end_amdhsa_kernel
"""
    return head, desc
```

```python
import sys, math, struct
from asmlib import *

def f2u(x): return struct.unpack("<I", struct.pack("<f", x))[0]

OPT = dict(stamps=False, stamp_off=16 << 20, dbg_q=False, nt_miss=False)

AREA = 40960
C_SCALE = (128 ** -0.5) * math.log2(math.e)
T_LOG2 = 8.0

def load_ptrs(a):
    a("""
    s_load_dwordx16 s[48:63], s[0:1], 0
    s_load_dwordx8 s[64:71], s[0:1], 64
    s_load_dwordx2 s[72:73], s[0:1], 96
    """)

def srd(a, base, lo_a, lo_b, nbytes, sel=True):
    if sel:
        a(f"s_cselect_b32 s{base}, s{lo_a}, s{lo_b}")
        a(f"s_cselect_b32 s{base+1}, s{lo_a+1}, s{lo_b+1}")
    else:
        a(f"s_mov_b32 s{base}, s{lo_a}")
        a(f"s_mov_b32 s{base+1}, s{lo_a+1}")
    a(f"s_mov_b32 s{base+2}, {nbytes}")
    a(f"s_mov_b32 s{base+3}, 0x00020000")

def stamp(a, idx):
    if not OPT["stamps"]: return
    a(f"s_memrealtime s[{80+2*idx}:{81+2*idx}]")

def stamp_flush(a, n, tmpv, wave_sreg, kidx):
    if not OPT["stamps"]: return
    a(f"s_waitcnt lgkmcnt(0)")
    a(f"s_lshl_b32 s3, s2, 4")
    a(f"s_add_u32 s3, s3, s{wave_sreg}")
    a(f"s_lshl_b32 s3, s3, 7")
    a(f"s_add_u32 s3, s3, {OPT['stamp_off'] + kidx * (1 << 20)}")
    a(f"v_mov_b32 v{tmpv+2}, s3")
    for i in range(n):
        a(f"v_mov_b32 v{tmpv}, s{80+2*i}")
        a(f"v_mov_b32 v{tmpv+1}, s{81+2*i}")
        a(f"buffer_store_dwordx2 v[{tmpv}:{tmpv+1}], v{tmpv+2}, s[24:27], 0 offen offset:{8*i}")
        a("s_waitcnt vmcnt(0)")

NT = lambda: "nt " if OPT["nt_miss"] else ""

def gen_k1():
    a = Asm()
    S_W, S_BLK, S_G, S_B, S_HP, S_KQ, S_QT = 28, 29, 30, 31, 32, 33, 34
    S_C, S_NC, S_TC = 35, 36, 37
    S_T0, S_T1, S_T2, S_T3 = 41, 42, 43, 44
    S_WQB, S_XB, S_KVB = 45, 46, 47
    S_CNT, S_SLOT = 75, 78
    S_RET = 38
    V_O, V_Q, V_S, V_F, V_KA, V_VA = 0, 64, 96, 112, 144, 152
    V_M, V_L, V_NMC, V_THR, V_T0, V_T1, V_T2, V_LANE, V_DOFF = 156, 157, 158, 159, 160, 161, 162, 163, 164

    a("s_cmp_ge_u32 s2, 256")
    a("s_cbranch_scc1 L_k1_end")
    stamp(a, 0)
    load_ptrs(a)
    a(f"""
    v_lshrrev_b32 v1, 6, v0
    s_and_b32 s3, s2, 7
    s_lshr_b32 s{S_BLK}, s3, 2
    v_readfirstlane_b32 s{S_W}, v1
    s_and_b32 s{S_G}, s3, 3
    s_lshr_b32 s3, s2, 3
    s_lshr_b32 s{S_B}, s3, 2
    s_and_b32 s{S_HP}, s3, 3
    v_and_b32 v{V_LANE}, 63, v0
    v_mov_b32 v{V_DOFF}, 0
    v_mov_b32 v{V_DOFF+1}, 0
    v_mov_b32 v{V_DOFF+2}, 0
    v_mov_b32 v{V_DOFF+3}, 0
    s_and_b32 s{S_KQ}, s{S_W}, 3
    s_lshr_b32 s{S_QT}, s{S_W}, 2
    s_mov_b32 s{S_C}, {f2u(C_SCALE)}
    s_mov_b32 s{S_NC}, {f2u(-C_SCALE)}
    s_mov_b32 s{S_TC}, {f2u(T_LOG2 / C_SCALE)}
    s_lshl_b32 s{S_WQB}, s{S_G}, 11
    s_lshl_b32 s3, s{S_HP}, 9
    s_add_u32 s{S_WQB}, s{S_WQB}, s3
    s_mul_i32 s{S_XB}, s{S_B}, {48*2048}
    s_lshl_b32 s3, s{S_B}, 2
    s_add_u32 s3, s3, s{S_G}
    s_lshl_b32 s{S_KVB}, s3, 18
    s_lshl_b32 s3, s{S_KQ}, 16
    s_add_u32 s{S_KVB}, s{S_KVB}, s3
    s_cmp_eq_u32 s{S_BLK}, 0
    s_waitcnt lgkmcnt(0)
    """)
    srd(a, 8, 48, 58, 8*48*1024*2)
    srd(a, 12, 54, 64, 1024*4096*2)
    srd(a, 16, 50, 60, 8*4*1024*128*2)
    srd(a, 20, 52, 62, 8*4*1024*128*2)
    srd(a, 24, 72, 72, 1 << 28, sel=False)
    a(f"s_cmp_lt_u32 s{S_W}, 4")
    a("s_cbranch_scc1 L_p1_compute")

    L = V_LANE
    a(f"""
    s_sub_u32 s{S_T0}, s{S_W}, 4
    v_lshrrev_b32 v5, 5, v{L}
    v_and_b32 v6, 31, v{L}
    s_and_b32 s{S_T1}, s{S_T0}, 1
    s_lshl_b32 s{S_T1}, s{S_T1}, 2
    v_or_b32 v7, s{S_T1}, v5
    v_lshlrev_b32 v8, 1, v7
    v_xor_b32 v8, v8, v6
    v_lshlrev_b32 v8, 4, v8
    v_lshlrev_b32 v9, 13, v5
    v_add_u32 v2, v9, v8
    v_or_b32 v7, 2, v7
    v_lshlrev_b32 v8, 1, v7
    v_xor_b32 v8, v8, v6
    v_lshlrev_b32 v8, 4, v8
    v_add_u32 v3, v9, v8
    s_mul_i32 s{S_T1}, s{S_T0}, 6
    v_lshrrev_b32 v5, 3, v{L}
    v_add_u32 v5, s{S_T1}, v5
    v_lshrrev_b32 v6, 1, v5
    v_xor_b32 v6, v6, v{L}
    v_and_b32 v6, 7, v6
    v_lshlrev_b32 v6, 4, v6
    v_lshlrev_b32 v5, 11, v5
    v_add_u32 v4, v5, v6
    s_lshl_b32 s{S_T2}, s{S_T0}, 16
    s_add_u32 s{S_WQB}, s{S_WQB}, s{S_T2}
    s_lshl_b32 s{S_T2}, s{S_T0}, 12
    s_mul_i32 s{S_T3}, s{S_T0}, 768
    s_add_u32 s{S_T3}, s{S_T3}, 32768
    """)
    def issue_tile():
        a(f"""
        s_add_u32 s3, s{S_CNT}, s{S_B}
        s_and_b32 s3, s3, 7
        s_and_b32 s76, s{S_CNT}, 8
        s_or_b32 s3, s3, s76
        s_lshl_b32 s76, s3, 19
        s_add_u32 s76, s76, s{S_WQB}
        s_add_u32 s77, s{S_SLOT}, s{S_T2}
        """)
        for q in range(4):
            a(f"s_add_u32 m0, s77, {q*1024}")
            if q: a(f"s_add_u32 s76, s76, {2*8192}")
            a(f"buffer_load_dwordx4 v{2 + (q & 1)}, s[12:15], s76 offen lds")
        a(f"""
        s_lshl_b32 s76, s3, 7
        s_add_u32 s76, s76, s{S_XB}
        s_add_u32 m0, s{S_SLOT}, s{S_T3}
        s_mov_b32 exec_hi, 0xffff
        buffer_load_dwordx4 v4, s[8:11], s76 offen lds
        s_mov_b32 exec_hi, -1
        """)
    a(f"s_mov_b32 s{S_CNT}, 0")
    a(f"s_mov_b32 s{S_SLOT}, 0")
    issue_tile()
    a(f"s_mov_b32 s{S_CNT}, 1")
    a(f"s_mov_b32 s{S_SLOT}, {AREA}")
    issue_tile()
    a(f"s_mov_b32 s{S_CNT}, 2")
    a(f"s_mov_b32 s{S_SLOT}, {2*AREA}")
    a(f"""
    v_lshrrev_b32 v5, 4, v{L}
    v_and_b32 v6, 15, v{L}
    v_lshlrev_b32 v7, 8, v5
    s_cmp_eq_u32 s{S_QT}, 1
    s_cbranch_scc0 L_voff_v
    v_xor_b32 v8, v6, v5
    v_lshlrev_b32 v9, 4, v8
    v_add_u32 v{V_DOFF}, v7, v9
    v_xor_b32 v9, 64, v9
    v_add_u32 v{V_DOFF+1}, v7, v9
    v_xor_b32 v9, 0xc0, v9
    v_add_u32 v{V_DOFF+2}, v7, v9
    v_xor_b32 v9, 64, v9
    v_add_u32 v{V_DOFF+3}, v7, v9
    s_branch L_voff_done
    L_voff_v:
    v_lshlrev_b32 v8, 2, v5
    v_xor_b32 v8, v8, v6
    v_lshlrev_b32 v8, 4, v8
    v_add_u32 v{V_DOFF}, v7, v8
    L_voff_done:
    """)
    a.label("L_p1_ld_loop")
    a("s_waitcnt vmcnt(5)")
    a("s_barrier")
    issue_tile()
    a(f"""
    s_add_u32 s{S_SLOT}, s{S_SLOT}, {AREA}
    s_cmp_eq_u32 s{S_SLOT}, {3*AREA}
    s_cselect_b32 s{S_SLOT}, 0, s{S_SLOT}
    s_add_u32 s{S_CNT}, s{S_CNT}, 1
    s_cmp_lt_u32 s{S_CNT}, 16
    s_cbranch_scc1 L_p1_ld_loop
    """)

    def tile_soff(step, dst):
        a(f"""
        s_add_u32 s{dst}, s{S_HP}, {step}
        s_and_b32 s{dst}, s{dst}, 3
        s_or_b32 s{dst}, s{dst}, {step & 4}
        s_lshl_b32 s{dst}, s{dst}, 13
        s_add_u32 s{dst}, s{dst}, s{S_KVB}
        """)
    def issue_k(step):
        tile_soff(step, 76)
        a(f"s_mul_i32 s77, s{S_KQ}, {AREA}")
        a(f"s_add_u32 m0, s77, {(step % 3) * 8192}")
        for q in range(8):
            if q == 4:
                a(f"s_add_u32 m0, s77, {(step % 3) * 8192 + 4096}")
                a(f"s_add_u32 s76, s76, 4096")
            a(f"buffer_load_dwordx4 v{V_DOFF + (q & 3)}, s[16:19], s76 offen offset:{(q & 3) * 1024} lds")
    def issue_v(step):
        tile_soff(step, 76)
        a(f"s_mul_i32 s77, s{S_KQ}, {AREA}")
        a(f"s_add_u32 m0, s77, {24576 + (step % 2) * 8192}")
        for q in range(8):
            if q == 4:
                a(f"s_add_u32 m0, s77, {24576 + (step % 2) * 8192 + 4096}")
                a(f"s_add_u32 s76, s76, 4096")
            a(f"buffer_load_dwordx4 v{V_DOFF}, s[20:23], s76 offen offset:{(q & 3) * 1024} lds")
    def call_early_if(kq):
        lab = a.newlabel("L_ne")
        a(f"s_cmp_eq_u32 s{S_KQ}, {kq}")
        a(f"s_cbranch_scc0 {lab}")
        a(f"s_call_b64 s[{S_RET}:{S_RET+1}], L_early")
        a.label(lab)
    a("s_waitcnt vmcnt(5)")
    call_early_if(3)
    a("s_barrier")
    call_early_if(1)
    a(f"""
    s_and_b32 s3, s{S_KQ}, 1
    s_cmp_eq_u32 s3, 1
    s_cbranch_scc1 L_w15_early
    s_waitcnt vmcnt(0)
    s_branch L_w15_done
    L_w15_early:
    s_cmp_eq_u32 s{S_QT}, 1
    s_cbranch_scc1 L_w15_k
    s_waitcnt vmcnt(8)
    s_branch L_w15_done
    L_w15_k:
    s_waitcnt vmcnt(16)
    L_w15_done:
    """)
    a("s_barrier")
    call_early_if(2)
    a("s_barrier")
    call_early_if(0)
    a("s_branch L_p1_join")
    a.label("L_early")
    a(f"s_cmp_eq_u32 s{S_QT}, 1")
    a("s_cbranch_scc0 L_early_v")
    issue_k(0)
    issue_k(1)
    a(f"s_setpc_b64 s[{S_RET}:{S_RET+1}]")
    a.label("L_early_v")
    issue_v(0)
    a(f"s_setpc_b64 s[{S_RET}:{S_RET+1}]")

    a.label("L_p1_compute")
    P_ACC, P_A, P_B, P_WA, P_XA = 0, 48, 80, 104, 108
    a(f"""
    v_lshrrev_b32 v110, 4, v{L}
    v_and_b32 v111, 15, v{L}
    v_lshrrev_b32 v112, 2, v111
    v_and_b32 v113, 3, v111
    v_lshlrev_b32 v114, 3, v110
    v_add_u32 v114, v114, v112
    v_lshlrev_b32 v114, 9, v114
    v_lshlrev_b32 v113, 3, v113
    v_add_u32 v114, v114, v113
    v_and_b32 v115, 1, v110
    v_lshlrev_b32 v115, 2, v115
    v_or_b32 v115, v115, v112
    s_lshl_b32 s{S_T0}, s{S_W}, 2
    """)
    for dt in range(4):
        a(f"s_add_u32 s{S_T1}, s{S_T0}, {dt}")
        a(f"v_xor_b32 v116, s{S_T1}, v115")
        a(f"v_lshlrev_b32 v116, 5, v116")
        a(f"v_add_u32 v{P_WA+dt}, v114, v116")
    a(f"""
    v_lshrrev_b32 v112, 1, v111
    v_xor_b32 v112, v112, v110
    v_lshlrev_b32 v112, 4, v112
    v_lshlrev_b32 v113, 7, v111
    v_add_u32 v112, v112, v113
    v_add_u32 v{P_XA}, 32768, v112
    v_xor_b32 v{P_XA+1}, 64, v{P_XA}
    """)
    for i in range(48):
        a(f"v_mov_b32 v{P_ACC+i}, 0")
    a(f"s_mov_b32 s{S_CNT}, 0")
    a(f"s_mov_b32 s{S_SLOT}, 0")
    a.label("L_p1_c_loop")
    a("s_barrier")
    def rd_ks(ks):
        for dt in range(4):
            for hf in range(2):
                r = P_A + ks*16 + dt*4 + hf*2
                a(f"ds_read_b64_tr_b16 v[{r}:{r+1}], v{P_WA+dt} offset:{ks*16384 + hf*2048}")
    def rd_x(ks):
        for st in range(3):
            r = P_B + ks*12 + st*4
            a(f"ds_read_b128 v[{r}:{r+3}], v{P_XA+ks} offset:{st*2048}")
    def mm(ks):
        for dt in range(4):
            for st in range(3):
                ac = P_ACC + (dt*3+st)*4
                ra = P_A + ks*16 + dt*4; rb = P_B + ks*12 + st*4
                a(f"v_mfma_f32_16x16x32_bf16 v[{ac}:{ac+3}], v[{ra}:{ra+3}], v[{rb}:{rb+3}], v[{ac}:{ac+3}]")
    rd_x(0); rd_ks(0); rd_x(1)
    a("s_waitcnt lgkmcnt(3)")
    rd_ks(1)
    mm(0)
    a("s_waitcnt lgkmcnt(0)")
    a(f"""
    s_add_u32 s{S_SLOT}, s{S_SLOT}, 1
    s_cmp_eq_u32 s{S_SLOT}, 3
    s_cselect_b32 s{S_SLOT}, 0, s{S_SLOT}
    s_mov_b32 s3, {AREA}
    s_cselect_b32 s3, {(-2*AREA) & 0xffffffff}, s3
    """)
    for r in list(range(P_WA, P_WA+4)) + [P_XA, P_XA+1]:
        a(f"v_add_u32 v{r}, s3, v{r}")
    mm(1)
    a(f"""
    s_add_u32 s{S_CNT}, s{S_CNT}, 1
    s_cmp_lt_u32 s{S_CNT}, 16
    s_cbranch_scc1 L_p1_c_loop
    s_barrier
    """)
    a(f"""
    v_lshrrev_b32 v110, 4, v{L}
    v_and_b32 v111, 15, v{L}
    v_lshlrev_b32 v112, 8, v111
    v_and_b32 v113, 1, v110
    v_lshlrev_b32 v113, 3, v113
    v_add_u32 v112, v112, v113
    v_lshrrev_b32 v113, 1, v110
    s_and_b32 s{S_T0}, s{S_W}, 1
    s_lshl_b32 s{S_T0}, s{S_T0}, 3
    v_add_u32 v113, s{S_T0}, v113
    s_lshr_b32 s{S_T1}, s{S_W}, 1
    s_cmp_eq_u32 s{S_T1}, 0
    s_mov_b32 s76, {2*AREA+16384+4096}
    s_mov_b32 s77, {3*AREA+16384}
    s_mov_b32 s78, {3*AREA+16384+4096}
    s_cselect_b32 s76, {1*AREA+16384}, s76
    s_cselect_b32 s77, {1*AREA+16384+4096}, s77
    s_cselect_b32 s78, {2*AREA+16384}, s78
    """)
    for dt in range(4):
        a(f"v_add_u32 v114, {2*dt}, v113")
        a(f"v_xor_b32 v114, v114, v111")
        a(f"v_lshlrev_b32 v114, 4, v114")
        a(f"v_add_u32 v114, v114, v112")
        for st in range(3):
            ac = P_ACC + (dt*3+st)*4
            a(f"v_cvt_pk_bf16_f32 v116, v{ac}, v{ac+1}")
            a(f"v_cvt_pk_bf16_f32 v117, v{ac+2}, v{ac+3}")
            a(f"v_add_u32 v115, s{76+st}, v114")
            a(f"ds_write_b64 v115, v[116:117]")
            a("s_nop 0")
    a("s_waitcnt lgkmcnt(0)")

    a.label("L_p1_join")
    a("s_barrier")
    stamp(a, 1)
    a(f"""
    v_and_b32 v{V_T0}, 31, v{L}
    v_lshlrev_b32 v{V_T0}, 8, v{V_T0}
    v_lshrrev_b32 v{V_T1}, 5, v{L}
    v_and_b32 v{V_T2}, 15, v{L}
    v_xor_b32 v{V_T1}, v{V_T1}, v{V_T2}
    v_lshlrev_b32 v{V_T1}, 4, v{V_T1}
    v_add_u32 v{V_T0}, v{V_T0}, v{V_T1}
    s_add_u32 s3, s{S_QT}, 1
    s_mul_i32 s3, s3, {AREA}
    s_add_u32 s3, s3, 16384
    s_mul_i32 s76, s{S_KQ}, {AREA}
    """)
    for st8 in range(8):
        a(f"v_xor_b32 v{V_T1}, {st8 << 5}, v{V_T0}")
        a(f"v_add_u32 v{V_T2}, s3, v{V_T1}")
        a(f"v_add_u32 v{V_KA+st8}, s76, v{V_T1}")
        a(f"ds_read_b128 v[{V_Q+4*st8}:{V_Q+4*st8+3}], v{V_T2}")
    a(f"""
    v_lshrrev_b32 v{V_T0}, 5, v{L}
    v_lshlrev_b32 v{V_T0}, 2, v{V_T0}
    v_bfe_u32 v{V_T1}, v{L}, 2, 2
    v_add_u32 v{V_T0}, v{V_T0}, v{V_T1}
    v_lshlrev_b32 v{V_T0}, 8, v{V_T0}
    v_bfe_u32 v{V_T2}, v{L}, 4, 1
    v_lshlrev_b32 v{V_T2}, 5, v{V_T2}
    v_add_u32 v{V_T0}, v{V_T0}, v{V_T2}
    v_and_b32 v{V_T2}, 3, v{L}
    v_lshlrev_b32 v{V_T2}, 3, v{V_T2}
    v_add_u32 v{V_T0}, v{V_T0}, v{V_T2}
    s_add_u32 s76, s76, 24576
    v_add_u32 v{V_T0}, s76, v{V_T0}
    """)
    for dt in range(4):
        a(f"v_xor_b32 v{V_T2}, {dt}, v{V_T1}")
        a(f"v_lshlrev_b32 v{V_T2}, 6, v{V_T2}")
        a(f"v_add_u32 v{V_VA+dt}, v{V_T0}, v{V_T2}")
    for i in range(64):
        a(f"v_mov_b32 v{V_O+i}, 0")
    a(f"""
    v_mov_b32 v{V_M}, 0xff800000
    v_mov_b32 v{V_THR}, 0xff800000
    v_mov_b32 v{V_L}, 0
    v_mov_b32 v{V_NMC}, 0
    s_waitcnt lgkmcnt(0)
    """)
    if OPT["dbg_q"]:
        a(f"""
        s_mul_i32 s3, s2, 12
        s_add_u32 s3, s3, s{S_W}
        s_lshl_b32 s3, s3, 13
        s_add_u32 s3, s3, {32 << 20}
        v_lshlrev_b32 v{V_T0}, 4, v{L}
        """)
        for st8 in range(8):
            a(f"buffer_store_dwordx4 v[{V_Q+4*st8}:{V_Q+4*st8+3}], v{V_T0}, s[24:27], s3 offen")
            a(f"s_add_u32 s3, s3, 1024")
        a("s_waitcnt vmcnt(0)")

    for step in range(8):
        lab = f"L_s{step}"
        a(f"s_cmp_eq_u32 s{S_QT}, 1")
        a(f"s_cbranch_scc0 {lab}_nk")
        a(f"s_waitcnt vmcnt({8 if step < 7 else 0})")
        a.label(f"{lab}_nk")
        a(f"s_cmp_eq_u32 s{S_QT}, 2")
        a(f"s_cbranch_scc0 {lab}_nv")
        a(f"s_waitcnt vmcnt(0)")
        a.label(f"{lab}_nv")
        a("s_barrier")
        ks = (step % 3) * 8192
        for st8 in range(8):
            a(f"ds_read_b128 v[{V_F+4*st8}:{V_F+4*st8+3}], v{V_KA+st8} offset:{ks}")
        if step + 2 < 8:
            a(f"s_cmp_eq_u32 s{S_QT}, 1")
            a(f"s_cbranch_scc0 {lab}_nk2")
            issue_k(step + 2)
            a.label(f"{lab}_nk2")
        if step + 1 < 8:
            a(f"s_cmp_eq_u32 s{S_QT}, 2")
            a(f"s_cbranch_scc0 {lab}_nv2")
            issue_v(step + 1)
            a.label(f"{lab}_nv2")
        vs = (step % 2) * 8192
        def rd_v(f):
            t, dt = f // 4, f % 4
            for hf in range(2):
                r = V_F + 4*f + 2*hf
                a(f"ds_read_b64_tr_b16 v[{r}:{r+1}], v{V_VA+dt} offset:{vs + (16*t + 8*hf)*256}")
        for st8 in range(8):
            a(f"s_waitcnt lgkmcnt({7 - st8 if st8 < 2 else min(15, 7 - st8 + 2*(st8-1))})")
            c = "0" if st8 == 0 else f"v[{V_S}:{V_S+15}]"
            a(f"v_mfma_f32_32x32x16_bf16 v[{V_S}:{V_S+15}], v[{V_F+4*st8}:{V_F+4*st8+3}], v[{V_Q+4*st8}:{V_Q+4*st8+3}], {c}")
            if st8 >= 1:
                rd_v(st8 - 1)
        rd_v(7)
        S = V_S
        a(f"v_max3_f32 v{V_T0}, v{S}, v{S+1}, v{S+2}")
        a(f"v_max3_f32 v{V_T1}, v{S+3}, v{S+4}, v{S+5}")
        a(f"v_max3_f32 v{V_T0}, v{V_T0}, v{S+6}, v{S+7}")
        a(f"v_max3_f32 v{V_T1}, v{V_T1}, v{S+8}, v{S+9}")
        a(f"v_max3_f32 v{V_T0}, v{V_T0}, v{S+10}, v{S+11}")
        a(f"v_max3_f32 v{V_T1}, v{V_T1}, v{S+12}, v{S+13}")
        a(f"v_max3_f32 v{V_T0}, v{V_T0}, v{S+14}, v{S+15}")
        a(f"v_max_f32 v{V_T0}, v{V_T0}, v{V_T1}")
        a(f"v_mov_b32 v{V_T1}, v{V_T0}")
        a(f"v_permlane32_swap_b32 v{V_T0}, v{V_T1}")
        a(f"v_max_f32 v{V_T0}, v{V_T0}, v{V_T1}")
        a(f"v_cmp_gt_f32 vcc, v{V_T0}, v{V_THR}")
        a(f"s_cbranch_vccz {lab}_nr")
        a(f"s_call_b64 s[{S_RET}:{S_RET+1}], L_rescale")
        a.label(f"{lab}_nr")
        for half in range(2):
            for i in range(8*half, 8*half+8):
                a(f"v_fma_f32 v{S+i}, v{S+i}, s{S_C}, v{V_NMC}")
            for i in range(8*half, 8*half+8):
                a(f"v_exp_f32 v{S+i}, v{S+i}")
            for i in range(8*half, 8*half+8):
                a(f"v_add_f32 v{V_L}, v{V_L}, v{S+i}")
            for j in range(4*half, 4*half+4):
                a(f"v_cvt_pk_bf16_f32 v{S+j+ (0)}, v{S+2*j}, v{S+2*j+1}") if half == 0 else None
            if half == 1:
                for j in range(4, 8):
                    a(f"v_cvt_pk_bf16_f32 v{S+j}, v{S+2*j}, v{S+2*j+1}")
            t = half
            for dt in range(4):
                f = t*4 + dt
                a(f"s_waitcnt lgkmcnt({min(15, 2*(7-f))})")
                o = V_O + 16*dt
                a(f"v_mfma_f32_32x32x16_bf16 v[{o}:{o+15}], v[{V_F+4*f}:{V_F+4*f+3}], v[{S+4*t}:{S+4*t+3}], v[{o}:{o+15}]")
    stamp(a, 2)
    a(f"""
    v_mov_b32 v{V_T0}, v{V_L}
    v_mov_b32 v{V_T1}, v{V_L}
    v_permlane32_swap_b32 v{V_T0}, v{V_T1}
    v_add_f32 v{V_L}, v{V_T0}, v{V_T1}
    s_barrier
    """)
    STATS = 147456
    a(f"""
    v_and_b32 v{V_T0}, 31, v{L}
    v_lshlrev_b32 v{V_T0}, 3, v{V_T0}
    s_lshl_b32 s3, s{S_QT}, 10
    s_add_u32 s3, s3, {STATS}
    v_add_u32 v{V_T0}, s3, v{V_T0}
    s_lshl_b32 s76, s{S_KQ}, 8
    v_add_u32 v{V_T1}, s76, v{V_T0}
    ds_write_b64 v{V_T1}, v[{V_M}:{V_L}]
    s_waitcnt lgkmcnt(0)
    s_barrier
    """)
    F = V_F
    for j in range(4):
        a(f"ds_read_b64 v[{F+2*j}:{F+2*j+1}], v{V_T0} offset:{j*256}")
    a("s_waitcnt lgkmcnt(0)")
    a(f"""
    v_max3_f32 v{F+8}, v{F}, v{F+2}, v{F+4}
    v_max_f32 v{F+8}, v{F+8}, v{F+6}
    """)
    for j in range(4):
        a(f"v_sub_f32 v{F+9+j}, v{F+2*j}, v{F+8}")
        a(f"v_mul_f32 v{F+9+j}, s{S_C}, v{F+9+j}")
        a(f"v_exp_f32 v{F+9+j}, v{F+9+j}")
    a(f"v_mul_f32 v{F+13}, v{F+9}, v{F+1}")
    for j in range(1, 4):
        a(f"v_fma_f32 v{F+13}, v{F+9+j}, v{F+2*j+1}, v{F+13}")
    a(f"""
    v_rcp_f32 v{F+13}, v{F+13}
    v_sub_f32 v{F+14}, v{V_M}, v{F+8}
    v_mul_f32 v{F+14}, s{S_C}, v{F+14}
    v_exp_f32 v{F+14}, v{F+14}
    v_mul_f32 v{F+14}, v{F+14}, v{F+13}
    """)
    for i in range(64):
        a(f"v_mul_f32 v{V_O+i}, v{F+14}, v{V_O+i}")
    a(f"v_lshlrev_b32 v{V_T0}, 4, v{L}")
    for d in range(1, 4):
        a(f"""
        s_add_u32 s3, s{S_KQ}, {d}
        s_and_b32 s3, s3, 3
        s_lshl_b32 s76, s{S_QT}, 2
        s_add_u32 s76, s76, s3
        s_mul_i32 s76, s76, 3
        s_add_u32 s76, s76, {3-d}
        s_lshl_b32 s76, s76, 12
        v_add_u32 v{V_T1}, s76, v{V_T0}
        """)
        done = a.newlabel("L_xw")
        for dt in range(4):
            nx = a.newlabel("L_xwn")
            a(f"s_cmp_eq_u32 s3, {dt}")
            a(f"s_cbranch_scc0 {nx}")
            for rq in range(4):
                r = V_O + 16*dt + 4*rq
                a(f"ds_write_b128 v{V_T1}, v[{r}:{r+3}] offset:{rq*1024}")
            a(f"s_branch {done}")
            a.label(nx)
        a.label(done)
    done = a.newlabel("L_own")
    for dt in range(4):
        nx = a.newlabel("L_ownn")
        a(f"s_cmp_eq_u32 s{S_KQ}, {dt}")
        a(f"s_cbranch_scc0 {nx}")
        for i in range(16):
            a(f"v_mov_b32 v{F+i}, v{V_O+16*dt+i}")
        a(f"s_branch {done}")
        a.label(nx)
    a.label(done)
    a("s_waitcnt lgkmcnt(0)")
    a("s_barrier")
    a(f"""
    s_lshl_b32 s76, s{S_QT}, 2
    s_add_u32 s76, s76, s{S_KQ}
    s_mul_i32 s76, s76, {3*4096}
    v_add_u32 v{V_T1}, s76, v{V_T0}
    """)
    for sl in range(3):
        for rq in range(4):
            r = V_O + 16*sl + 4*rq
            a(f"ds_read_b128 v[{r}:{r+3}], v{V_T1} offset:{sl*4096 + rq*1024}")
    for sl in range(3):
        a(f"s_waitcnt lgkmcnt({8 - 4*sl})")
        for i in range(16):
            a(f"v_add_f32 v{F+i}, v{F+i}, v{V_O+16*sl+i}")
    a(f"""
    v_and_b32 v{V_T0}, 31, v{L}
    s_lshl_b32 s3, s{S_QT}, 5
    v_add_u32 v{V_T0}, s3, v{V_T0}
    v_cmp_le_u32 vcc, 48, v{V_T0}
    v_subrev_u32 v{V_T1}, 48, v{V_T0}
    v_cndmask_b32 v{V_T0}, v{V_T0}, v{V_T1}, vcc
    v_mov_b32 v{V_T2}, 0
    v_mov_b32 v{V_M}, {4*3*1024}
    v_cndmask_b32 v{V_T2}, v{V_T2}, v{V_M}, vcc
    v_lshrrev_b32 v{V_T1}, 4, v{V_T0}
    v_lshlrev_b32 v{V_T1}, 10, v{V_T1}
    v_add_u32 v{V_T2}, v{V_T2}, v{V_T1}
    v_and_b32 v{V_T0}, 15, v{V_T0}
    v_lshlrev_b32 v{V_T0}, 4, v{V_T0}
    v_add_u32 v{V_T2}, v{V_T2}, v{V_T0}
    v_lshrrev_b32 v{V_T0}, 5, v{L}
    v_lshlrev_b32 v{V_T0}, 3, v{V_T0}
    v_add_u32 v{V_T2}, v{V_T2}, v{V_T0}
    s_lshl_b32 s3, s{S_BLK}, 3
    s_add_u32 s3, s3, s{S_B}
    s_lshl_b32 s3, s3, 5
    s_lshl_b32 s76, s{S_G}, 3
    s_add_u32 s3, s3, s76
    s_lshl_b32 s76, s{S_HP}, 1
    s_add_u32 s3, s3, s76
    s_lshl_b32 s3, s3, 2
    s_add_u32 s3, s3, s{S_KQ}
    s_mul_i32 s3, s3, 3072
    """)
    for rq in range(4):
        a(f"v_cvt_pk_bf16_f32 v{V_O+2*rq}, v{F+4*rq}, v{F+4*rq+1}")
        a(f"v_cvt_pk_bf16_f32 v{V_O+2*rq+1}, v{F+4*rq+2}, v{F+4*rq+3}")
    for rq in range(4):
        a(f"buffer_store_dwordx2 v[{V_O+2*rq}:{V_O+2*rq+1}], v{V_T2}, s[24:27], s3 offen offset:{rq*256}")
    stamp(a, 3)
    stamp_flush(a, 4, 100, S_W, 0)
    a("s_endpgm")
    a.label("L_rescale")
    a(f"""
    v_max_f32 v{V_T1}, v{V_M}, v{V_T0}
    v_sub_f32 v{V_T2}, v{V_M}, v{V_T1}
    v_mul_f32 v{V_T2}, s{S_C}, v{V_T2}
    v_exp_f32 v{V_T2}, v{V_T2}
    v_mov_b32 v{V_M}, v{V_T1}
    v_mul_f32 v{V_NMC}, s{S_NC}, v{V_T1}
    v_add_f32 v{V_THR}, s{S_TC}, v{V_T1}
    v_mul_f32 v{V_L}, v{V_L}, v{V_T2}
    """)
    for i in range(64):
        a(f"v_mul_f32 v{V_O+i}, v{V_T2}, v{V_O+i}")
    a("s_nop 1")
    a(f"s_setpc_b64 s[{S_RET}:{S_RET+1}]")
    a.label("L_k1_end")
    a("s_endpgm")
    return a

def gen_k2():
    a = Asm()
    S_W, S_BLK, S_NQ, S_B, S_NT = 28, 29, 30, 31, 32
    S_WOB, S_OB, S_LB, S_KS = 45, 46, 47, 44
    L = 100
    ACC, FA, FB, WA, DOFF = 0, 48, 64, 88, 96
    a("s_cmp_ge_u32 s2, 256")
    a("s_cbranch_scc1 L_k2_end")
    stamp(a, 0)
    load_ptrs(a)
    a(f"""
    v_lshrrev_b32 v1, 6, v0
    s_and_b32 s3, s2, 7
    s_lshr_b32 s{S_BLK}, s3, 2
    v_readfirstlane_b32 s{S_W}, v1
    s_and_b32 s{S_NQ}, s3, 3
    s_lshr_b32 s3, s2, 3
    s_lshr_b32 s{S_B}, s3, 2
    s_and_b32 s{S_NT}, s3, 3
    v_and_b32 v{L}, 63, v0
    s_lshl_b32 s{S_WOB}, s{S_NQ}, 9
    s_lshl_b32 s3, s{S_NT}, 7
    s_add_u32 s{S_WOB}, s{S_WOB}, s3
    s_lshl_b32 s3, s{S_BLK}, 3
    s_add_u32 s3, s3, s{S_B}
    s_mul_i32 s{S_OB}, s3, {128*3072}
    s_lshl_b32 s{S_LB}, s{S_W}, 13
    s_cmp_eq_u32 s{S_BLK}, 0
    s_waitcnt lgkmcnt(0)
    """)
    srd(a, 12, 56, 66, 4096*1024*2)
    srd(a, 24, 72, 72, 1 << 28, sel=False)
    srd(a, 16, 68, 68, 8*48*2048*2, sel=False)
    a(f"""
    v_lshrrev_b32 v2, 3, v{L}
    v_lshlrev_b32 v2, 11, v2
    v_bfe_u32 v3, v{L}, 4, 1
    v_lshlrev_b32 v3, 1, v3
    v_and_b32 v4, 7, v{L}
    v_xor_b32 v3, v3, v4
    v_lshlrev_b32 v3, 4, v3
    v_add_u32 v{DOFF}, v2, v3
    v_xor_b32 v3, 64, v3
    v_add_u32 v{DOFF+1}, v2, v3
    v_lshlrev_b32 v{DOFF+2}, 4, v{L}
    """)
    a(f"""
    v_lshrrev_b32 v2, 4, v{L}
    v_bfe_u32 v3, v{L}, 2, 2
    v_lshlrev_b32 v4, 3, v2
    v_add_u32 v4, v4, v3
    v_lshlrev_b32 v4, 7, v4
    v_and_b32 v5, 3, v{L}
    v_lshlrev_b32 v5, 3, v5
    v_add_u32 v4, v4, v5
    v_add_u32 v4, s{S_LB}, v4
    v_lshrrev_b32 v3, 1, v3
    v_and_b32 v2, 1, v2
    v_lshlrev_b32 v2, 1, v2
    v_or_b32 v3, v3, v2
    """)
    for u in range(4):
        a(f"v_xor_b32 v5, {u}, v3")
        a(f"v_lshlrev_b32 v5, 5, v5")
        a(f"v_add_u32 v{WA+u}, v4, v5")
    for i in range(48):
        a(f"v_mov_b32 v{ACC+i}, 0")
    def issue(it_sreg_expr, buf):
        a(f"""
        s_lshl_b32 s3, s{S_B}, 1
        s_add_u32 s3, s3, s{S_KS}
        s_and_b32 s3, s3, 15
        s_lshl_b32 s3, s3, 3
        s_add_u32 s3, s3, s{S_W}
        s_lshl_b32 s76, s3, 16
        s_add_u32 s76, s76, s{S_WOB}
        s_mul_i32 s77, s3, 3072
        s_add_u32 s77, s77, s{S_OB}
        """)
        for q in range(4):
            a(f"s_add_u32 m0, s{S_LB}, {buf*4096 + q*1024}")
            if q: a(f"s_add_u32 s76, s76, {8*2048}")
            a(f"buffer_load_dwordx4 v{DOFF + (q & 1)}, s[12:15], s76 offen lds")
        for st in range(3):
            r = FB + buf*12 + st*4
            a(f"buffer_load_dwordx4 v[{r}:{r+3}], v{DOFF+2}, s[24:27], s77 offen offset:{st*1024}")
    def compute(buf):
        for u in range(4):
            for hf in range(2):
                r = FA + u*4 + hf*2
                a(f"ds_read_b64_tr_b16 v[{r}:{r+1}], v{WA+u} offset:{buf*4096 + hf*512}")
        for u in range(4):
            a(f"s_waitcnt lgkmcnt({6 - 2*u})")
            for st in range(3):
                ac = ACC + (u*3+st)*4
                rb = FB + buf*12 + st*4
                a(f"v_mfma_f32_16x16x32_bf16 v[{ac}:{ac+3}], v[{FA+u*4}:{FA+u*4+3}], v[{rb}:{rb+3}], v[{ac}:{ac+3}]")
    a(f"s_mov_b32 s{S_KS}, 0")
    issue(None, 0)
    a(f"s_mov_b32 s{S_KS}, 1")
    a.label("L_k2_loop")
    issue(None, 1)
    a("s_waitcnt vmcnt(7)")
    compute(0)
    a(f"s_add_u32 s{S_KS}, s{S_KS}, 1")
    a(f"s_cmp_lt_u32 s{S_KS}, 16")
    a("s_cbranch_scc0 L_k2_last")
    issue(None, 0)
    a("s_waitcnt vmcnt(7)")
    compute(1)
    a(f"s_add_u32 s{S_KS}, s{S_KS}, 1")
    a("s_branch L_k2_loop")
    a.label("L_k2_last")
    a("s_waitcnt vmcnt(0)")
    compute(1)
    stamp(a, 1)
    a("s_barrier")
    a(f"""
    s_mul_i32 s3, s{S_W}, 12288
    v_lshlrev_b32 v{FA}, 4, v{L}
    v_add_u32 v{FA+1}, s3, v{FA}
    """)
    for t in range(12):
        a(f"ds_write_b128 v{FA+1}, v[{ACC+4*t}:{ACC+4*t+3}] offset:{t*1024}")
    a("s_waitcnt lgkmcnt(0)")
    a("s_barrier")
    a(f"s_cmp_ge_u32 s{S_W}, 6")
    a("s_cbranch_scc1 L_k2_fin")
    a(f"s_lshl_b32 s3, s{S_W}, 11")
    a(f"v_add_u32 v{FA+1}, s3, v{FA}")
    for tt in range(2):
        for j in range(8):
            r = ACC + j*4
            off = j*12288 + tt*1024
            if off > 65535:
                a(f"v_add_u32 v{FA+2}, {j*12288}, v{FA+1}")
                a(f"ds_read_b128 v[{r}:{r+3}], v{FA+2} offset:{tt*1024}")
            else:
                a(f"ds_read_b128 v[{r}:{r+3}], v{FA+1} offset:{off}")
        a("s_waitcnt lgkmcnt(0)")
        for j in range(1, 8):
            for i in range(4):
                a(f"v_add_f32 v{ACC+i}, v{ACC+i}, v{ACC+4*j+i}")
        a(f"""
        s_lshl_b32 s76, s{S_W}, 1
        s_add_u32 s76, s76, {tt}
        s_mul_i32 s77, s76, 43
        s_lshr_b32 s77, s77, 7
        s_mul_i32 s78, s77, 3
        s_sub_u32 s78, s76, s78
        """)
        a(f"""
        s_mul_i32 s79, s{S_B}, 48
        s_lshl_b32 s78, s78, 4
        s_add_u32 s79, s79, s78
        s_lshl_b32 s79, s79, 12
        s_lshl_b32 s78, s{S_BLK}, 11
        s_add_u32 s79, s79, s78
        s_add_u32 s79, s79, s{S_WOB}
        s_lshl_b32 s77, s77, 5
        s_add_u32 s79, s79, s77
        v_and_b32 v{FB}, 15, v{L}
        v_lshlrev_b32 v{FB}, 12, v{FB}
        v_lshrrev_b32 v{FB+1}, 4, v{L}
        v_lshlrev_b32 v{FB+1}, 3, v{FB+1}
        v_add_u32 v{FB}, v{FB}, v{FB+1}
        v_cvt_pk_bf16_f32 v{FB+2}, v{ACC}, v{ACC+1}
        v_cvt_pk_bf16_f32 v{FB+3}, v{ACC+2}, v{ACC+3}
        buffer_store_dwordx2 v[{FB+2}:{FB+3}], v{FB}, s[16:19], s79 offen
        """)
    a.label("L_k2_fin")
    stamp(a, 2)
    stamp_flush(a, 3, 104, S_W, 1)
    a.label("L_k2_end")
    a("s_endpgm")
    return a

def build():
    k1 = gen_k1().finalize()
    k2 = gen_k2().finalize()
    h1, d1 = kernel_text("gqa_attn_kernel", k1, 168)
    h2, d2 = kernel_text("gqa_oproj_kernel", k2, 112)
    hdr = open("concat_heads__gqa_block_cached__gqa_block_cached__near_ridge.s.ref").read().split("; Override")[0]
    txt = hdr
    txt += "; @launch kernel=gqa_attn_kernel grid=(256,1,1) block=(768,1,1) lds=163840\n"
    txt += "; @launch kernel=gqa_oproj_kernel grid=(256,1,1) block=(512,1,1) lds=98304\n"
    txt += '.amdgcn_target "amdgcn-amd-amdhsa--gfx950"\n.text\n' + h1 + h2
    txt += '.section .rodata,"a"\n.p2align 6\n' + d1 + ".p2align 6\n" + d2
    return txt

if __name__ == "__main__":
    out = sys.argv[1] if len(sys.argv) > 1 else "concat_heads__gqa_block_cached__gqa_block_cached__near_ridge.s"
    for kv in sys.argv[2:]:
        k, v = kv.split("=")
        OPT[k] = int(v, 0) if v.lstrip("-").replace("x","").isalnum() else v
    open(out, "w").write(build())
    print("wrote", out)
```

```python
import sys, math, struct
from asmlib import *

def f2u(x): return struct.unpack("<I", struct.pack("<f", x))[0]

OPT = dict(stamps=False, stamp_off=16 << 20, dbg_q=False, nt_miss=False)

AREA = 40960
C_SCALE = (128 ** -0.5) * math.log2(math.e)
T_LOG2 = 8.0

def load_ptrs(a):
    a("""
    s_load_dwordx16 s[48:63], s[0:1], 0
    s_load_dwordx8 s[64:71], s[0:1], 64
    s_load_dwordx2 s[72:73], s[0:1], 96
    """)

def srd(a, base, lo_a, lo_b, nbytes, sel=True):
    if sel:
        a(f"s_cselect_b32 s{base}, s{lo_a}, s{lo_b}")
        a(f"s_cselect_b32 s{base+1}, s{lo_a+1}, s{lo_b+1}")
    else:
        a(f"s_mov_b32 s{base}, s{lo_a}")
        a(f"s_mov_b32 s{base+1}, s{lo_a+1}")
    a(f"s_mov_b32 s{base+2}, {nbytes}")
    a(f"s_mov_b32 s{base+3}, 0x00020000")

def stamp(a, idx):
    if not OPT["stamps"]: return
    a(f"s_memrealtime s[{80+2*idx}:{81+2*idx}]")

def stamp_flush(a, n, tmpv, wave_sreg, kidx):
    if not OPT["stamps"]: return
    a(f"s_waitcnt lgkmcnt(0)")
    a(f"s_lshl_b32 s3, s2, 4")
    a(f"s_add_u32 s3, s3, s{wave_sreg}")
    a(f"s_lshl_b32 s3, s3, 7")
    a(f"s_add_u32 s3, s3, {OPT['stamp_off'] + kidx * (1 << 20)}")
    a(f"v_mov_b32 v{tmpv+2}, s3")
    for i in range(n):
        a(f"v_mov_b32 v{tmpv}, s{80+2*i}")
        a(f"v_mov_b32 v{tmpv+1}, s{81+2*i}")
        a(f"buffer_store_dwordx2 v[{tmpv}:{tmpv+1}], v{tmpv+2}, s[24:27], 0 offen offset:{8*i}")
        a("s_waitcnt vmcnt(0)")

def trace(a, vreg, idx_imm=None, idx_sreg=None):
    if not OPT.get("trace"): return
    a("s_memtime s[92:93]")
    a("s_waitcnt lgkmcnt(0)")
    if idx_imm is not None:
        a(f"v_writelane_b32 v{vreg}, s92, {idx_imm}")
    else:
        a(f"s_mov_b32 m0, s{idx_sreg}")
        a("s_nop 3")
        a(f"v_writelane_b32 v{vreg}, s92, m0")

def trace_dump(a, vreg, tmpv, wave_sreg, lane_v, region):
    if not OPT.get("trace"): return
    a(f"s_lshl_b32 s3, s2, 4")
    a(f"s_add_u32 s3, s3, s{wave_sreg}")
    a(f"s_lshl_b32 s3, s3, 8")
    a(f"s_add_u32 s3, s3, {(24 << 20) + region * (1 << 20)}")
    a(f"v_lshlrev_b32 v{tmpv}, 2, v{lane_v}")
    a(f"buffer_store_dword v{vreg}, v{tmpv}, s[24:27], s3 offen")
    a("s_waitcnt vmcnt(0)")

NT = lambda: "nt " if OPT["nt_miss"] else ""

def gen_k1():
    a = Asm()
    S_W, S_BLK, S_G, S_B, S_HP, S_KQ, S_QT = 28, 29, 30, 31, 32, 33, 34
    S_C, S_NC, S_TC = 35, 36, 37
    S_T0, S_T1, S_T2, S_T3 = 41, 42, 43, 44
    S_WQB, S_XB, S_KVB = 45, 46, 47
    S_CNT, S_SLOT = 75, 78
    S_RET = 38
    V_O, V_Q, V_S, V_F, V_KA, V_VA = 0, 64, 96, 112, 144, 152
    V_M, V_L, V_NMC, V_THR, V_T0, V_T1, V_T2, V_LANE, V_DOFF = 156, 157, 158, 159, 160, 161, 162, 163, 164

    a("s_cmp_ge_u32 s2, 256")
    a("s_cbranch_scc1 L_k1_end")
    stamp(a, 0)
    if OPT["stamps"]: a("s_memtime s[88:89]")
    load_ptrs(a)
    a(f"""
    v_lshrrev_b32 v1, 6, v0
    s_and_b32 s3, s2, 7
    s_lshr_b32 s{S_BLK}, s3, 2
    v_readfirstlane_b32 s{S_W}, v1
    s_and_b32 s{S_G}, s3, 3
    s_lshr_b32 s3, s2, 3
    s_lshr_b32 s{S_B}, s3, 2
    s_and_b32 s{S_HP}, s3, 3
    v_and_b32 v{V_LANE}, 63, v0
    v_mov_b32 v{V_DOFF}, 0
    v_mov_b32 v{V_DOFF+1}, 0
    v_mov_b32 v{V_DOFF+2}, 0
    v_mov_b32 v{V_DOFF+3}, 0
    s_and_b32 s{S_KQ}, s{S_W}, 3
    s_lshr_b32 s{S_QT}, s{S_W}, 2
    s_mov_b32 s{S_C}, {f2u(C_SCALE)}
    s_mov_b32 s{S_NC}, {f2u(-C_SCALE)}
    s_mov_b32 s{S_TC}, {f2u(T_LOG2 / C_SCALE)}
    s_lshl_b32 s{S_WQB}, s{S_G}, 11
    s_lshl_b32 s3, s{S_HP}, 9
    s_add_u32 s{S_WQB}, s{S_WQB}, s3
    s_mul_i32 s{S_XB}, s{S_B}, {48*2048}
    s_lshl_b32 s3, s{S_B}, 2
    s_add_u32 s3, s3, s{S_G}
    s_lshl_b32 s{S_KVB}, s3, 18
    s_lshl_b32 s3, s{S_KQ}, 16
    s_add_u32 s{S_KVB}, s{S_KVB}, s3
    s_cmp_eq_u32 s{S_BLK}, 0
    s_waitcnt lgkmcnt(0)
    """)
    srd(a, 8, 48, 58, 8*48*1024*2)
    srd(a, 12, 54, 64, 1024*4096*2)
    srd(a, 16, 50, 60, 8*4*1024*128*2)
    srd(a, 20, 52, 62, 8*4*1024*128*2)
    srd(a, 24, 72, 72, 1 << 28, sel=False)
    a(f"s_cmp_lt_u32 s{S_W}, 4")
    a("s_cbranch_scc1 L_p1_compute")

    L = V_LANE
    a(f"""
    s_sub_u32 s{S_T0}, s{S_W}, 4
    v_lshrrev_b32 v5, 5, v{L}
    v_and_b32 v6, 31, v{L}
    s_and_b32 s{S_T1}, s{S_T0}, 1
    s_lshl_b32 s{S_T1}, s{S_T1}, 2
    v_or_b32 v7, s{S_T1}, v5
    v_lshlrev_b32 v8, 1, v7
    v_xor_b32 v8, v8, v6
    v_lshlrev_b32 v8, 4, v8
    v_lshlrev_b32 v9, 13, v5
    v_add_u32 v2, v9, v8
    v_or_b32 v7, 2, v7
    v_lshlrev_b32 v8, 1, v7
    v_xor_b32 v8, v8, v6
    v_lshlrev_b32 v8, 4, v8
    v_add_u32 v3, v9, v8
    s_mul_i32 s{S_T1}, s{S_T0}, 6
    v_lshrrev_b32 v5, 3, v{L}
    v_add_u32 v5, s{S_T1}, v5
    v_lshrrev_b32 v6, 1, v5
    v_xor_b32 v6, v6, v{L}
    v_and_b32 v6, 7, v6
    v_lshlrev_b32 v6, 4, v6
    v_lshlrev_b32 v5, 11, v5
    v_add_u32 v4, v5, v6
    s_lshl_b32 s{S_T2}, s{S_T0}, 16
    s_add_u32 s{S_WQB}, s{S_WQB}, s{S_T2}
    s_lshl_b32 s{S_T2}, s{S_T0}, 12
    s_mul_i32 s{S_T3}, s{S_T0}, 768
    s_add_u32 s{S_T3}, s{S_T3}, 32768
    """)
    def issue_tile():
        a(f"""
        s_add_u32 s3, s{S_CNT}, s{S_B}
        s_and_b32 s3, s3, 7
        s_and_b32 s76, s{S_CNT}, 8
        s_or_b32 s3, s3, s76
        s_lshl_b32 s76, s3, 19
        s_add_u32 s76, s76, s{S_WQB}
        s_add_u32 s77, s{S_SLOT}, s{S_T2}
        """)
        for q in range(4):
            a(f"s_add_u32 m0, s77, {q*1024}")
            if q: a(f"s_add_u32 s76, s76, {2*8192}")
            a(f"buffer_load_dwordx4 v{2 + (q & 1)}, s[12:15], s76 offen {NT()}lds")
        a(f"""
        s_lshl_b32 s76, s3, 7
        s_add_u32 s76, s76, s{S_XB}
        s_add_u32 m0, s{S_SLOT}, s{S_T3}
        s_mov_b32 exec_hi, 0xffff
        buffer_load_dwordx4 v4, s[8:11], s76 offen {NT()}lds
        s_mov_b32 exec_hi, -1
        """)
    a(f"s_mov_b32 s{S_CNT}, 0")
    a(f"s_mov_b32 s{S_SLOT}, 0")
    issue_tile()
    a(f"s_mov_b32 s{S_CNT}, 1")
    a(f"s_mov_b32 s{S_SLOT}, {AREA}")
    issue_tile()
    a(f"s_mov_b32 s{S_CNT}, 2")
    a(f"s_mov_b32 s{S_SLOT}, {2*AREA}")
    a(f"""
    v_lshrrev_b32 v5, 4, v{L}
    v_and_b32 v6, 15, v{L}
    v_lshlrev_b32 v7, 8, v5
    s_cmp_eq_u32 s{S_QT}, 1
    s_cbranch_scc0 L_voff_v
    v_xor_b32 v8, v6, v5
    v_lshlrev_b32 v9, 4, v8
    v_add_u32 v{V_DOFF}, v7, v9
    v_xor_b32 v9, 64, v9
    v_add_u32 v{V_DOFF+1}, v7, v9
    v_xor_b32 v9, 0xc0, v9
    v_add_u32 v{V_DOFF+2}, v7, v9
    v_xor_b32 v9, 64, v9
    v_add_u32 v{V_DOFF+3}, v7, v9
    s_branch L_voff_done
    L_voff_v:
    v_lshlrev_b32 v8, 2, v5
    v_xor_b32 v8, v8, v6
    v_lshlrev_b32 v8, 4, v8
    v_add_u32 v{V_DOFF}, v7, v8
    L_voff_done:
    """)
    a.label("L_p1_ld_loop")
    a("s_waitcnt vmcnt(5)")
    trace(a, 120, idx_sreg=S_CNT)
    a("s_barrier")
    if OPT.get("trace"): a(f"s_add_u32 s94, s{S_CNT}, 16")
    trace(a, 120, idx_sreg=94)
    issue_tile()
    if OPT.get("trace"): a(f"s_add_u32 s94, s{S_CNT}, 32")
    trace(a, 120, idx_sreg=94)
    a(f"""
    s_add_u32 s{S_SLOT}, s{S_SLOT}, {AREA}
    s_cmp_eq_u32 s{S_SLOT}, {3*AREA}
    s_cselect_b32 s{S_SLOT}, 0, s{S_SLOT}
    s_add_u32 s{S_CNT}, s{S_CNT}, 1
    s_cmp_lt_u32 s{S_CNT}, 16
    s_cbranch_scc1 L_p1_ld_loop
    """)

    def tile_soff(step, dst):
        a(f"""
        s_add_u32 s{dst}, s{S_HP}, {step}
        s_and_b32 s{dst}, s{dst}, 3
        s_or_b32 s{dst}, s{dst}, {step & 4}
        s_lshl_b32 s{dst}, s{dst}, 13
        s_add_u32 s{dst}, s{dst}, s{S_KVB}
        """)
    def issue_k(step):
        tile_soff(step, 76)
        a(f"s_mul_i32 s77, s{S_KQ}, {AREA}")
        a(f"s_add_u32 m0, s77, {(step % 3) * 8192}")
        for q in range(8):
            if q == 4:
                a(f"s_add_u32 m0, s77, {(step % 3) * 8192 + 4096}")
                a(f"s_add_u32 s76, s76, 4096")
            a(f"buffer_load_dwordx4 v{V_DOFF + (q & 3)}, s[16:19], s76 offen offset:{(q & 3) * 1024} {NT()}lds")
    def issue_v(step):
        tile_soff(step, 76)
        a(f"s_mul_i32 s77, s{S_KQ}, {AREA}")
        a(f"s_add_u32 m0, s77, {24576 + (step % 2) * 8192}")
        for q in range(8):
            if q == 4:
                a(f"s_add_u32 m0, s77, {24576 + (step % 2) * 8192 + 4096}")
                a(f"s_add_u32 s76, s76, 4096")
            a(f"buffer_load_dwordx4 v{V_DOFF}, s[20:23], s76 offen offset:{(q & 3) * 1024} {NT()}lds")
    def call_early_if(kq):
        lab = a.newlabel("L_ne")
        a(f"s_cmp_eq_u32 s{S_KQ}, {kq}")
        a(f"s_cbranch_scc0 {lab}")
        a(f"s_call_b64 s[{S_RET}:{S_RET+1}], L_early")
        a.label(lab)
    a("s_waitcnt vmcnt(5)")
    call_early_if(3)
    a("s_barrier")
    call_early_if(1)
    a(f"""
    s_and_b32 s3, s{S_KQ}, 1
    s_cmp_eq_u32 s3, 1
    s_cbranch_scc1 L_w15_early
    s_waitcnt vmcnt(0)
    s_branch L_w15_done
    L_w15_early:
    s_cmp_eq_u32 s{S_QT}, 1
    s_cbranch_scc1 L_w15_k
    s_waitcnt vmcnt(8)
    s_branch L_w15_done
    L_w15_k:
    s_waitcnt vmcnt(16)
    L_w15_done:
    """)
    a("s_barrier")
    call_early_if(2)
    a("s_barrier")
    call_early_if(0)
    a("s_branch L_p1_join")
    a.label("L_early")
    a(f"s_cmp_eq_u32 s{S_QT}, 1")
    a("s_cbranch_scc0 L_early_v")
    issue_k(0)
    issue_k(1)
    a(f"s_setpc_b64 s[{S_RET}:{S_RET+1}]")
    a.label("L_early_v")
    issue_v(0)
    a(f"s_setpc_b64 s[{S_RET}:{S_RET+1}]")

    a.label("L_p1_compute")
    P_ACC, P_A, P_B, P_WA, P_XA = 0, 48, 80, 104, 108
    a(f"""
    v_lshrrev_b32 v110, 4, v{L}
    v_and_b32 v111, 15, v{L}
    v_lshrrev_b32 v112, 2, v111
    v_and_b32 v113, 3, v111
    v_lshlrev_b32 v114, 3, v110
    v_add_u32 v114, v114, v112
    v_lshlrev_b32 v114, 9, v114
    v_lshlrev_b32 v113, 3, v113
    v_add_u32 v114, v114, v113
    v_and_b32 v115, 1, v110
    v_lshlrev_b32 v115, 2, v115
    v_or_b32 v115, v115, v112
    s_lshl_b32 s{S_T0}, s{S_W}, 2
    """)
    for dt in range(4):
        a(f"s_add_u32 s{S_T1}, s{S_T0}, {dt}")
        a(f"v_xor_b32 v116, s{S_T1}, v115")
        a(f"v_lshlrev_b32 v116, 5, v116")
        a(f"v_add_u32 v{P_WA+dt}, v114, v116")
    a(f"""
    v_lshrrev_b32 v112, 1, v111
    v_xor_b32 v112, v112, v110
    v_lshlrev_b32 v112, 4, v112
    v_lshlrev_b32 v113, 7, v111
    v_add_u32 v112, v112, v113
    v_add_u32 v{P_XA}, 32768, v112
    v_xor_b32 v{P_XA+1}, 64, v{P_XA}
    """)
    for i in range(48):
        a(f"v_mov_b32 v{P_ACC+i}, 0")
    a(f"s_mov_b32 s{S_CNT}, 0")
    a(f"s_mov_b32 s{S_SLOT}, 0")
    a.label("L_p1_c_loop")
    trace(a, 120, idx_sreg=S_CNT)
    a("s_barrier")
    if OPT.get("trace"): a(f"s_add_u32 s94, s{S_CNT}, 16")
    trace(a, 120, idx_sreg=94)
    def rd_ks(ks):
        for dt in range(4):
            for hf in range(2):
                r = P_A + ks*16 + dt*4 + hf*2
                a(f"ds_read_b64_tr_b16 v[{r}:{r+1}], v{P_WA+dt} offset:{ks*16384 + hf*2048}")
    def rd_x(ks):
        for st in range(3):
            r = P_B + ks*12 + st*4
            a(f"ds_read_b128 v[{r}:{r+3}], v{P_XA+ks} offset:{st*2048}")
    def mm(ks):
        for dt in range(4):
            for st in range(3):
                ac = P_ACC + (dt*3+st)*4
                ra = P_A + ks*16 + dt*4; rb = P_B + ks*12 + st*4
                a(f"v_mfma_f32_16x16x32_bf16 v[{ac}:{ac+3}], v[{ra}:{ra+3}], v[{rb}:{rb+3}], v[{ac}:{ac+3}]")
    rd_x(0); rd_ks(0); rd_x(1)
    a("s_waitcnt lgkmcnt(3)")
    rd_ks(1)
    mm(0)
    a("s_waitcnt lgkmcnt(0)")
    a(f"""
    s_add_u32 s{S_SLOT}, s{S_SLOT}, 1
    s_cmp_eq_u32 s{S_SLOT}, 3
    s_cselect_b32 s{S_SLOT}, 0, s{S_SLOT}
    s_mov_b32 s3, {AREA}
    s_cselect_b32 s3, {(-2*AREA) & 0xffffffff}, s3
    """)
    for r in list(range(P_WA, P_WA+4)) + [P_XA, P_XA+1]:
        a(f"v_add_u32 v{r}, s3, v{r}")
    mm(1)
    a(f"""
    s_add_u32 s{S_CNT}, s{S_CNT}, 1
    s_cmp_lt_u32 s{S_CNT}, 16
    s_cbranch_scc1 L_p1_c_loop
    s_barrier
    """)
    a(f"""
    v_lshrrev_b32 v110, 4, v{L}
    v_and_b32 v111, 15, v{L}
    v_lshlrev_b32 v112, 8, v111
    v_and_b32 v113, 1, v110
    v_lshlrev_b32 v113, 3, v113
    v_add_u32 v112, v112, v113
    v_lshrrev_b32 v113, 1, v110
    s_and_b32 s{S_T0}, s{S_W}, 1
    s_lshl_b32 s{S_T0}, s{S_T0}, 3
    v_add_u32 v113, s{S_T0}, v113
    s_lshr_b32 s{S_T1}, s{S_W}, 1
    s_cmp_eq_u32 s{S_T1}, 0
    s_mov_b32 s76, {2*AREA+16384+4096}
    s_mov_b32 s77, {3*AREA+16384}
    s_mov_b32 s78, {3*AREA+16384+4096}
    s_cselect_b32 s76, {1*AREA+16384}, s76
    s_cselect_b32 s77, {1*AREA+16384+4096}, s77
    s_cselect_b32 s78, {2*AREA+16384}, s78
    """)
    for dt in range(4):
        a(f"v_add_u32 v114, {2*dt}, v113")
        a(f"v_xor_b32 v114, v114, v111")
        a(f"v_lshlrev_b32 v114, 4, v114")
        a(f"v_add_u32 v114, v114, v112")
        for st in range(3):
            ac = P_ACC + (dt*3+st)*4
            a(f"v_cvt_pk_bf16_f32 v116, v{ac}, v{ac+1}")
            a(f"v_cvt_pk_bf16_f32 v117, v{ac+2}, v{ac+3}")
            a(f"v_add_u32 v115, s{76+st}, v114")
            a(f"ds_write_b64 v115, v[116:117]")
            a("s_nop 0")
    a("s_waitcnt lgkmcnt(0)")

    a.label("L_p1_join")
    trace(a, 120, idx_imm=60)
    a("s_barrier")
    trace(a, 120, idx_imm=61)
    trace_dump(a, 120, 121, S_W, V_LANE, 0)
    stamp(a, 1)
    a(f"""
    v_and_b32 v{V_T0}, 31, v{L}
    v_lshlrev_b32 v{V_T0}, 8, v{V_T0}
    v_lshrrev_b32 v{V_T1}, 5, v{L}
    v_and_b32 v{V_T2}, 15, v{L}
    v_xor_b32 v{V_T1}, v{V_T1}, v{V_T2}
    v_lshlrev_b32 v{V_T1}, 4, v{V_T1}
    v_add_u32 v{V_T0}, v{V_T0}, v{V_T1}
    s_add_u32 s3, s{S_QT}, 1
    s_mul_i32 s3, s3, {AREA}
    s_add_u32 s3, s3, 16384
    s_mul_i32 s76, s{S_KQ}, {AREA}
    """)
    for st8 in range(8):
        a(f"v_xor_b32 v{V_T1}, {st8 << 5}, v{V_T0}")
        a(f"v_add_u32 v{V_T2}, s3, v{V_T1}")
        a(f"v_add_u32 v{V_KA+st8}, s76, v{V_T1}")
        a(f"ds_read_b128 v[{V_Q+4*st8}:{V_Q+4*st8+3}], v{V_T2}")
    a(f"""
    v_lshrrev_b32 v{V_T0}, 5, v{L}
    v_lshlrev_b32 v{V_T0}, 2, v{V_T0}
    v_bfe_u32 v{V_T1}, v{L}, 2, 2
    v_add_u32 v{V_T0}, v{V_T0}, v{V_T1}
    v_lshlrev_b32 v{V_T0}, 8, v{V_T0}
    v_bfe_u32 v{V_T2}, v{L}, 4, 1
    v_lshlrev_b32 v{V_T2}, 5, v{V_T2}
    v_add_u32 v{V_T0}, v{V_T0}, v{V_T2}
    v_and_b32 v{V_T2}, 3, v{L}
    v_lshlrev_b32 v{V_T2}, 3, v{V_T2}
    v_add_u32 v{V_T0}, v{V_T0}, v{V_T2}
    s_add_u32 s76, s76, 24576
    v_add_u32 v{V_T0}, s76, v{V_T0}
    """)
    for dt in range(4):
        a(f"v_xor_b32 v{V_T2}, {dt}, v{V_T1}")
        a(f"v_lshlrev_b32 v{V_T2}, 6, v{V_T2}")
        a(f"v_add_u32 v{V_VA+dt}, v{V_T0}, v{V_T2}")
    for i in range(64):
        a(f"v_mov_b32 v{V_O+i}, 0")
    a(f"""
    v_mov_b32 v{V_M}, 0xff800000
    v_mov_b32 v{V_THR}, 0xff800000
    v_mov_b32 v{V_L}, 0
    v_mov_b32 v{V_NMC}, 0
    s_waitcnt lgkmcnt(0)
    """)
    if OPT["dbg_q"]:
        a(f"""
        s_mul_i32 s3, s2, 12
        s_add_u32 s3, s3, s{S_W}
        s_lshl_b32 s3, s3, 13
        s_add_u32 s3, s3, {32 << 20}
        v_lshlrev_b32 v{V_T0}, 4, v{L}
        """)
        for st8 in range(8):
            a(f"buffer_store_dwordx4 v[{V_Q+4*st8}:{V_Q+4*st8+3}], v{V_T0}, s[24:27], s3 offen")
            a(f"s_add_u32 s3, s3, 1024")
        a("s_waitcnt vmcnt(0)")

    def tr2(idx):
        if not OPT.get("trace"): return
        lb = a.newlabel("L_tr")
        a(f"s_cmp_eq_u32 s{S_QT}, 1")
        a(f"s_cbranch_scc1 {lb}")
        trace(a, 167, idx_imm=idx)
        a.label(lb)
    for step in range(8):
        lab = f"L_s{step}"
        a(f"s_cmp_eq_u32 s{S_QT}, 1")
        a(f"s_cbranch_scc0 {lab}_nk")
        a(f"s_waitcnt vmcnt({8 if step < 7 else 0})")
        a.label(f"{lab}_nk")
        a(f"s_cmp_eq_u32 s{S_QT}, 2")
        a(f"s_cbranch_scc0 {lab}_nv")
        a(f"s_waitcnt vmcnt(0)")
        a.label(f"{lab}_nv")
        tr2(4*step)
        a("s_barrier")
        tr2(4*step+1)
        ks = (step % 3) * 8192
        for st8 in range(8):
            a(f"ds_read_b128 v[{V_F+4*st8}:{V_F+4*st8+3}], v{V_KA+st8} offset:{ks}")
        if step + 2 < 8:
            a(f"s_cmp_eq_u32 s{S_QT}, 1")
            a(f"s_cbranch_scc0 {lab}_nk2")
            issue_k(step + 2)
            a.label(f"{lab}_nk2")
        if step + 1 < 8:
            a(f"s_cmp_eq_u32 s{S_QT}, 2")
            a(f"s_cbranch_scc0 {lab}_nv2")
            issue_v(step + 1)
            a.label(f"{lab}_nv2")
        vs = (step % 2) * 8192
        def rd_v(f):
            t, dt = f // 4, f % 4
            for hf in range(2):
                r = V_F + 4*f + 2*hf
                a(f"ds_read_b64_tr_b16 v[{r}:{r+1}], v{V_VA+dt} offset:{vs + (16*t + 8*hf)*256}")
        for st8 in range(8):
            a(f"s_waitcnt lgkmcnt({7 - st8 if st8 < 2 else min(15, 7 - st8 + 2*(st8-1))})")
            c = "0" if st8 == 0 else f"v[{V_S}:{V_S+15}]"
            a(f"v_mfma_f32_32x32x16_bf16 v[{V_S}:{V_S+15}], v[{V_F+4*st8}:{V_F+4*st8+3}], v[{V_Q+4*st8}:{V_Q+4*st8+3}], {c}")
            if st8 >= 1:
                rd_v(st8 - 1)
        rd_v(7)
        tr2(4*step+2)
        S = V_S
        a(f"v_max3_f32 v{V_T0}, v{S}, v{S+1}, v{S+2}")
        a(f"v_max3_f32 v{V_T1}, v{S+3}, v{S+4}, v{S+5}")
        a(f"v_max3_f32 v{V_T0}, v{V_T0}, v{S+6}, v{S+7}")
        a(f"v_max3_f32 v{V_T1}, v{V_T1}, v{S+8}, v{S+9}")
        a(f"v_max3_f32 v{V_T0}, v{V_T0}, v{S+10}, v{S+11}")
        a(f"v_max3_f32 v{V_T1}, v{V_T1}, v{S+12}, v{S+13}")
        a(f"v_max3_f32 v{V_T0}, v{V_T0}, v{S+14}, v{S+15}")
        a(f"v_max_f32 v{V_T0}, v{V_T0}, v{V_T1}")
        a(f"v_mov_b32 v{V_T1}, v{V_T0}")
        a(f"v_permlane32_swap_b32 v{V_T0}, v{V_T1}")
        a(f"v_max_f32 v{V_T0}, v{V_T0}, v{V_T1}")
        a(f"v_cmp_gt_f32 vcc, v{V_T0}, v{V_THR}")
        a(f"s_cbranch_vccz {lab}_nr")
        a(f"s_call_b64 s[{S_RET}:{S_RET+1}], L_rescale")
        a.label(f"{lab}_nr")
        for half in range(2):
            for i in range(8*half, 8*half+8):
                a(f"v_fma_f32 v{S+i}, v{S+i}, s{S_C}, v{V_NMC}")
            for i in range(8*half, 8*half+8):
                a(f"v_exp_f32 v{S+i}, v{S+i}")
            for i in range(8*half, 8*half+8):
                a(f"v_add_f32 v{V_L}, v{V_L}, v{S+i}")
            for j in range(4*half, 4*half+4):
                a(f"v_cvt_pk_bf16_f32 v{S+j+ (0)}, v{S+2*j}, v{S+2*j+1}") if half == 0 else None
            if half == 1:
                for j in range(4, 8):
                    a(f"v_cvt_pk_bf16_f32 v{S+j}, v{S+2*j}, v{S+2*j+1}")
            t = half
            for dt in range(4):
                f = t*4 + dt
                a(f"s_waitcnt lgkmcnt({min(15, 2*(7-f))})")
                o = V_O + 16*dt
                a(f"v_mfma_f32_32x32x16_bf16 v[{o}:{o+15}], v[{V_F+4*f}:{V_F+4*f+3}], v[{S+4*t}:{S+4*t+3}], v[{o}:{o+15}]")
    stamp(a, 2)
    tr2(32)
    a(f"""
    v_mov_b32 v{V_T0}, v{V_L}
    v_mov_b32 v{V_T1}, v{V_L}
    v_permlane32_swap_b32 v{V_T0}, v{V_T1}
    v_add_f32 v{V_L}, v{V_T0}, v{V_T1}
    s_barrier
    """)
    STATS = 147456
    a(f"""
    v_and_b32 v{V_T0}, 31, v{L}
    v_lshlrev_b32 v{V_T0}, 3, v{V_T0}
    s_lshl_b32 s3, s{S_QT}, 10
    s_add_u32 s3, s3, {STATS}
    v_add_u32 v{V_T0}, s3, v{V_T0}
    s_lshl_b32 s76, s{S_KQ}, 8
    v_add_u32 v{V_T1}, s76, v{V_T0}
    ds_write_b64 v{V_T1}, v[{V_M}:{V_L}]
    s_waitcnt lgkmcnt(0)
    s_barrier
    """)
    F = V_F
    for j in range(4):
        a(f"ds_read_b64 v[{F+2*j}:{F+2*j+1}], v{V_T0} offset:{j*256}")
    a("s_waitcnt lgkmcnt(0)")
    a(f"""
    v_max3_f32 v{F+8}, v{F}, v{F+2}, v{F+4}
    v_max_f32 v{F+8}, v{F+8}, v{F+6}
    """)
    for j in range(4):
        a(f"v_sub_f32 v{F+9+j}, v{F+2*j}, v{F+8}")
        a(f"v_mul_f32 v{F+9+j}, s{S_C}, v{F+9+j}")
        a(f"v_exp_f32 v{F+9+j}, v{F+9+j}")
    a(f"v_mul_f32 v{F+13}, v{F+9}, v{F+1}")
    for j in range(1, 4):
        a(f"v_fma_f32 v{F+13}, v{F+9+j}, v{F+2*j+1}, v{F+13}")
    a(f"""
    v_rcp_f32 v{F+13}, v{F+13}
    v_sub_f32 v{F+14}, v{V_M}, v{F+8}
    v_mul_f32 v{F+14}, s{S_C}, v{F+14}
    v_exp_f32 v{F+14}, v{F+14}
    v_mul_f32 v{F+14}, v{F+14}, v{F+13}
    """)
    for i in range(64):
        a(f"v_mul_f32 v{V_O+i}, v{F+14}, v{V_O+i}")
    a(f"v_lshlrev_b32 v{V_T0}, 4, v{L}")
    for d in range(1, 4):
        a(f"""
        s_add_u32 s3, s{S_KQ}, {d}
        s_and_b32 s3, s3, 3
        s_lshl_b32 s76, s{S_QT}, 2
        s_add_u32 s76, s76, s3
        s_mul_i32 s76, s76, 3
        s_add_u32 s76, s76, {3-d}
        s_lshl_b32 s76, s76, 12
        v_add_u32 v{V_T1}, s76, v{V_T0}
        """)
        done = a.newlabel("L_xw")
        for dt in range(4):
            nx = a.newlabel("L_xwn")
            a(f"s_cmp_eq_u32 s3, {dt}")
            a(f"s_cbranch_scc0 {nx}")
            for rq in range(4):
                r = V_O + 16*dt + 4*rq
                a(f"ds_write_b128 v{V_T1}, v[{r}:{r+3}] offset:{rq*1024}")
            a(f"s_branch {done}")
            a.label(nx)
        a.label(done)
    done = a.newlabel("L_own")
    for dt in range(4):
        nx = a.newlabel("L_ownn")
        a(f"s_cmp_eq_u32 s{S_KQ}, {dt}")
        a(f"s_cbranch_scc0 {nx}")
        for i in range(16):
            a(f"v_mov_b32 v{F+i}, v{V_O+16*dt+i}")
        a(f"s_branch {done}")
        a.label(nx)
    a.label(done)
    a("s_waitcnt lgkmcnt(0)")
    a("s_barrier")
    a(f"""
    s_lshl_b32 s76, s{S_QT}, 2
    s_add_u32 s76, s76, s{S_KQ}
    s_mul_i32 s76, s76, {3*4096}
    v_add_u32 v{V_T1}, s76, v{V_T0}
    """)
    for sl in range(3):
        for rq in range(4):
            r = V_O + 16*sl + 4*rq
            a(f"ds_read_b128 v[{r}:{r+3}], v{V_T1} offset:{sl*4096 + rq*1024}")
    for sl in range(3):
        a(f"s_waitcnt lgkmcnt({8 - 4*sl})")
        for i in range(16):
            a(f"v_add_f32 v{F+i}, v{F+i}, v{V_O+16*sl+i}")
    a(f"""
    v_and_b32 v{V_T0}, 31, v{L}
    s_lshl_b32 s3, s{S_QT}, 5
    v_add_u32 v{V_T0}, s3, v{V_T0}
    v_cmp_le_u32 vcc, 48, v{V_T0}
    v_subrev_u32 v{V_T1}, 48, v{V_T0}
    v_cndmask_b32 v{V_T0}, v{V_T0}, v{V_T1}, vcc
    v_mov_b32 v{V_T2}, 0
    v_mov_b32 v{V_M}, {4*3*1024}
    v_cndmask_b32 v{V_T2}, v{V_T2}, v{V_M}, vcc
    v_lshrrev_b32 v{V_T1}, 4, v{V_T0}
    v_lshlrev_b32 v{V_T1}, 10, v{V_T1}
    v_add_u32 v{V_T2}, v{V_T2}, v{V_T1}
    v_and_b32 v{V_T0}, 15, v{V_T0}
    v_lshlrev_b32 v{V_T0}, 4, v{V_T0}
    v_add_u32 v{V_T2}, v{V_T2}, v{V_T0}
    v_lshrrev_b32 v{V_T0}, 5, v{L}
    v_lshlrev_b32 v{V_T0}, 3, v{V_T0}
    v_add_u32 v{V_T2}, v{V_T2}, v{V_T0}
    s_lshl_b32 s3, s{S_BLK}, 3
    s_add_u32 s3, s3, s{S_B}
    s_lshl_b32 s3, s3, 5
    s_lshl_b32 s76, s{S_G}, 3
    s_add_u32 s3, s3, s76
    s_lshl_b32 s76, s{S_HP}, 1
    s_add_u32 s3, s3, s76
    s_lshl_b32 s3, s3, 2
    s_add_u32 s3, s3, s{S_KQ}
    s_mul_i32 s3, s3, 3072
    """)
    for rq in range(4):
        a(f"v_cvt_pk_bf16_f32 v{V_O+2*rq}, v{F+4*rq}, v{F+4*rq+1}")
        a(f"v_cvt_pk_bf16_f32 v{V_O+2*rq+1}, v{F+4*rq+2}, v{F+4*rq+3}")
    for rq in range(4):
        a(f"buffer_store_dwordx2 v[{V_O+2*rq}:{V_O+2*rq+1}], v{V_T2}, s[24:27], s3 offen offset:{rq*256}")
    stamp(a, 3)
    tr2(33)
    trace_dump(a, 167, 100, S_W, V_LANE, 1)
    if OPT["stamps"]: a("s_memtime s[90:91]")
    stamp_flush(a, 6, 100, S_W, 0)
    a("s_endpgm")
    a.label("L_rescale")
    a(f"""
    v_max_f32 v{V_T1}, v{V_M}, v{V_T0}
    v_sub_f32 v{V_T2}, v{V_M}, v{V_T1}
    v_mul_f32 v{V_T2}, s{S_C}, v{V_T2}
    v_exp_f32 v{V_T2}, v{V_T2}
    v_mov_b32 v{V_M}, v{V_T1}
    v_mul_f32 v{V_NMC}, s{S_NC}, v{V_T1}
    v_add_f32 v{V_THR}, s{S_TC}, v{V_T1}
    v_mul_f32 v{V_L}, v{V_L}, v{V_T2}
    """)
    for i in range(64):
        a(f"v_mul_f32 v{V_O+i}, v{V_T2}, v{V_O+i}")
    a("s_nop 1")
    a(f"s_setpc_b64 s[{S_RET}:{S_RET+1}]")
    a.label("L_k1_end")
    a("s_endpgm")
    return a

def gen_k2():
    a = Asm()
    S_W, S_BLK, S_NQ, S_B, S_NT = 28, 29, 30, 31, 32
    S_WOB, S_OB, S_LB, S_KS = 45, 46, 47, 44
    L = 100
    ACC, FA, FB, WA, DOFF = 0, 48, 64, 88, 96
    a("s_cmp_ge_u32 s2, 256")
    a("s_cbranch_scc1 L_k2_end")
    stamp(a, 0)
    load_ptrs(a)
    a(f"""
    v_lshrrev_b32 v1, 6, v0
    s_and_b32 s3, s2, 7
    s_lshr_b32 s{S_BLK}, s3, 2
    v_readfirstlane_b32 s{S_W}, v1
    s_and_b32 s{S_NQ}, s3, 3
    s_lshr_b32 s3, s2, 3
    s_lshr_b32 s{S_B}, s3, 2
    s_and_b32 s{S_NT}, s3, 3
    v_and_b32 v{L}, 63, v0
    s_lshl_b32 s{S_WOB}, s{S_NQ}, 9
    s_lshl_b32 s3, s{S_NT}, 7
    s_add_u32 s{S_WOB}, s{S_WOB}, s3
    s_lshl_b32 s3, s{S_BLK}, 3
    s_add_u32 s3, s3, s{S_B}
    s_mul_i32 s{S_OB}, s3, {128*3072}
    s_lshl_b32 s{S_LB}, s{S_W}, 13
    s_cmp_eq_u32 s{S_BLK}, 0
    s_waitcnt lgkmcnt(0)
    """)
    srd(a, 12, 56, 66, 4096*1024*2)
    srd(a, 24, 72, 72, 1 << 28, sel=False)
    srd(a, 16, 68, 68, 8*48*2048*2, sel=False)
    a(f"""
    v_lshrrev_b32 v2, 3, v{L}
    v_lshlrev_b32 v2, 11, v2
    v_bfe_u32 v3, v{L}, 4, 1
    v_lshlrev_b32 v3, 1, v3
    v_and_b32 v4, 7, v{L}
    v_xor_b32 v3, v3, v4
    v_lshlrev_b32 v3, 4, v3
    v_add_u32 v{DOFF}, v2, v3
    v_xor_b32 v3, 64, v3
    v_add_u32 v{DOFF+1}, v2, v3
    v_lshlrev_b32 v{DOFF+2}, 4, v{L}
    """)
    a(f"""
    v_lshrrev_b32 v2, 4, v{L}
    v_bfe_u32 v3, v{L}, 2, 2
    v_lshlrev_b32 v4, 3, v2
    v_add_u32 v4, v4, v3
    v_lshlrev_b32 v4, 7, v4
    v_and_b32 v5, 3, v{L}
    v_lshlrev_b32 v5, 3, v5
    v_add_u32 v4, v4, v5
    v_add_u32 v4, s{S_LB}, v4
    v_lshrrev_b32 v3, 1, v3
    v_and_b32 v2, 1, v2
    v_lshlrev_b32 v2, 1, v2
    v_or_b32 v3, v3, v2
    """)
    for u in range(4):
        a(f"v_xor_b32 v5, {u}, v3")
        a(f"v_lshlrev_b32 v5, 5, v5")
        a(f"v_add_u32 v{WA+u}, v4, v5")
    for i in range(48):
        a(f"v_mov_b32 v{ACC+i}, 0")
    def issue(it_sreg_expr, buf):
        a(f"""
        s_lshl_b32 s3, s{S_B}, 1
        s_add_u32 s3, s3, s{S_KS}
        s_and_b32 s3, s3, 15
        s_lshl_b32 s3, s3, 3
        s_add_u32 s3, s3, s{S_W}
        s_lshl_b32 s76, s3, 16
        s_add_u32 s76, s76, s{S_WOB}
        s_mul_i32 s77, s3, 3072
        s_add_u32 s77, s77, s{S_OB}
        """)
        for q in range(4):
            a(f"s_add_u32 m0, s{S_LB}, {buf*4096 + q*1024}")
            if q: a(f"s_add_u32 s76, s76, {8*2048}")
            a(f"buffer_load_dwordx4 v{DOFF + (q & 1)}, s[12:15], s76 offen {NT()}lds")
        for st in range(3):
            r = FB + buf*12 + st*4
            a(f"buffer_load_dwordx4 v[{r}:{r+3}], v{DOFF+2}, s[24:27], s77 offen offset:{st*1024}")
    def compute(buf):
        for u in range(4):
            for hf in range(2):
                r = FA + u*4 + hf*2
                a(f"ds_read_b64_tr_b16 v[{r}:{r+1}], v{WA+u} offset:{buf*4096 + hf*512}")
        for u in range(4):
            a(f"s_waitcnt lgkmcnt({6 - 2*u})")
            for st in range(3):
                ac = ACC + (u*3+st)*4
                rb = FB + buf*12 + st*4
                a(f"v_mfma_f32_16x16x32_bf16 v[{ac}:{ac+3}], v[{FA+u*4}:{FA+u*4+3}], v[{rb}:{rb+3}], v[{ac}:{ac+3}]")
    a(f"s_mov_b32 s{S_KS}, 0")
    issue(None, 0)
    a(f"s_mov_b32 s{S_KS}, 1")
    a.label("L_k2_loop")
    issue(None, 1)
    a("s_waitcnt vmcnt(7)")
    compute(0)
    a(f"s_add_u32 s{S_KS}, s{S_KS}, 1")
    a(f"s_cmp_lt_u32 s{S_KS}, 16")
    a("s_cbranch_scc0 L_k2_last")
    issue(None, 0)
    a("s_waitcnt vmcnt(7)")
    compute(1)
    a(f"s_add_u32 s{S_KS}, s{S_KS}, 1")
    a("s_branch L_k2_loop")
    a.label("L_k2_last")
    a("s_waitcnt vmcnt(0)")
    compute(1)
    stamp(a, 1)
    a("s_barrier")
    a(f"""
    s_mul_i32 s3, s{S_W}, 12288
    v_lshlrev_b32 v{FA}, 4, v{L}
    v_add_u32 v{FA+1}, s3, v{FA}
    """)
    for t in range(12):
        a(f"ds_write_b128 v{FA+1}, v[{ACC+4*t}:{ACC+4*t+3}] offset:{t*1024}")
    a("s_waitcnt lgkmcnt(0)")
    a("s_barrier")
    a(f"s_cmp_ge_u32 s{S_W}, 6")
    a("s_cbranch_scc1 L_k2_fin")
    a(f"s_lshl_b32 s3, s{S_W}, 11")
    a(f"v_add_u32 v{FA+1}, s3, v{FA}")
    for tt in range(2):
        for j in range(8):
            r = ACC + j*4
            off = j*12288 + tt*1024
            if off > 65535:
                a(f"v_add_u32 v{FA+2}, {j*12288}, v{FA+1}")
                a(f"ds_read_b128 v[{r}:{r+3}], v{FA+2} offset:{tt*1024}")
            else:
                a(f"ds_read_b128 v[{r}:{r+3}], v{FA+1} offset:{off}")
        a("s_waitcnt lgkmcnt(0)")
        for j in range(1, 8):
            for i in range(4):
                a(f"v_add_f32 v{ACC+i}, v{ACC+i}, v{ACC+4*j+i}")
        a(f"""
        s_lshl_b32 s76, s{S_W}, 1
        s_add_u32 s76, s76, {tt}
        s_mul_i32 s77, s76, 43
        s_lshr_b32 s77, s77, 7
        s_mul_i32 s78, s77, 3
        s_sub_u32 s78, s76, s78
        """)
        a(f"""
        s_mul_i32 s79, s{S_B}, 48
        s_lshl_b32 s78, s78, 4
        s_add_u32 s79, s79, s78
        s_lshl_b32 s79, s79, 12
        s_lshl_b32 s78, s{S_BLK}, 11
        s_add_u32 s79, s79, s78
        s_add_u32 s79, s79, s{S_WOB}
        s_lshl_b32 s77, s77, 5
        s_add_u32 s79, s79, s77
        v_and_b32 v{FB}, 15, v{L}
        v_lshlrev_b32 v{FB}, 12, v{FB}
        v_lshrrev_b32 v{FB+1}, 4, v{L}
        v_lshlrev_b32 v{FB+1}, 3, v{FB+1}
        v_add_u32 v{FB}, v{FB}, v{FB+1}
        v_cvt_pk_bf16_f32 v{FB+2}, v{ACC}, v{ACC+1}
        v_cvt_pk_bf16_f32 v{FB+3}, v{ACC+2}, v{ACC+3}
        buffer_store_dwordx2 v[{FB+2}:{FB+3}], v{FB}, s[16:19], s79 offen
        """)
    a.label("L_k2_fin")
    stamp(a, 2)
    stamp_flush(a, 3, 104, S_W, 1)
    a.label("L_k2_end")
    a("s_endpgm")
    return a

def build():
    k1 = gen_k1().finalize()
    k2 = gen_k2().finalize()
    h1, d1 = kernel_text("gqa_attn_kernel", k1, 168)
    h2, d2 = kernel_text("gqa_oproj_kernel", k2, 112)
    hdr = open("concat_heads__gqa_block_cached__gqa_block_cached__near_ridge.s.ref").read().split("; Override")[0]
    txt = hdr
    txt += "; @launch kernel=gqa_attn_kernel grid=(256,1,1) block=(768,1,1) lds=163840\n"
    txt += "; @launch kernel=gqa_oproj_kernel grid=(256,1,1) block=(512,1,1) lds=98304\n"
    txt += '.amdgcn_target "amdgcn-amd-amdhsa--gfx950"\n.text\n' + h1 + h2
    txt += '.section .rodata,"a"\n.p2align 6\n' + d1 + ".p2align 6\n" + d2
    return txt

if __name__ == "__main__":
    out = sys.argv[1] if len(sys.argv) > 1 else "concat_heads__gqa_block_cached__gqa_block_cached__near_ridge.s"
    for kv in sys.argv[2:]:
        k, v = kv.split("=")
        OPT[k] = int(v, 0) if v.lstrip("-").replace("x","").isalnum() else v
    open(out, "w").write(build())
    print("wrote", out)
```

```python
import sys, math, struct
from asmlib import *

def f2u(x): return struct.unpack("<I", struct.pack("<f", x))[0]

OPT = dict(stamps=False, stamp_off=16 << 20, dbg_q=False, nt_miss=False)

AREA = 40960
C_SCALE = (128 ** -0.5) * math.log2(math.e)
T_LOG2 = 8.0

def load_ptrs(a):
    a("""
    s_load_dwordx16 s[48:63], s[0:1], 0
    s_load_dwordx8 s[64:71], s[0:1], 64
    s_load_dwordx2 s[72:73], s[0:1], 96
    """)

def srd(a, base, lo_a, lo_b, nbytes, sel=True):
    if sel:
        a(f"s_cselect_b32 s{base}, s{lo_a}, s{lo_b}")
        a(f"s_cselect_b32 s{base+1}, s{lo_a+1}, s{lo_b+1}")
    else:
        a(f"s_mov_b32 s{base}, s{lo_a}")
        a(f"s_mov_b32 s{base+1}, s{lo_a+1}")
    a(f"s_mov_b32 s{base+2}, {nbytes}")
    a(f"s_mov_b32 s{base+3}, 0x00020000")

def stamp(a, idx):
    if not OPT["stamps"]: return
    a(f"s_memrealtime s[{80+2*idx}:{81+2*idx}]")

def stamp_flush(a, n, tmpv, wave_sreg, kidx):
    if not OPT["stamps"]: return
    a(f"s_waitcnt lgkmcnt(0)")
    a(f"s_lshl_b32 s3, s2, 4")
    a(f"s_add_u32 s3, s3, s{wave_sreg}")
    a(f"s_lshl_b32 s3, s3, 7")
    a(f"s_add_u32 s3, s3, {OPT['stamp_off'] + kidx * (1 << 20)}")
    a(f"v_mov_b32 v{tmpv+2}, s3")
    for i in range(n):
        a(f"v_mov_b32 v{tmpv}, s{80+2*i}")
        a(f"v_mov_b32 v{tmpv+1}, s{81+2*i}")
        a(f"buffer_store_dwordx2 v[{tmpv}:{tmpv+1}], v{tmpv+2}, s[24:27], 0 offen offset:{8*i}")
        a("s_waitcnt vmcnt(0)")

def trace(a, vreg, idx_imm=None, idx_sreg=None):
    if not OPT.get("trace"): return
    a("s_memtime s[92:93]")
    a("s_waitcnt lgkmcnt(0)")
    if idx_imm is not None:
        a(f"v_writelane_b32 v{vreg}, s92, {idx_imm}")
    else:
        a(f"s_mov_b32 m0, s{idx_sreg}")
        a("s_nop 3")
        a(f"v_writelane_b32 v{vreg}, s92, m0")

def trace_dump(a, vreg, tmpv, wave_sreg, lane_v, region):
    if not OPT.get("trace"): return
    a(f"s_lshl_b32 s3, s2, 4")
    a(f"s_add_u32 s3, s3, s{wave_sreg}")
    a(f"s_lshl_b32 s3, s3, 8")
    a(f"s_add_u32 s3, s3, {(24 << 20) + region * (1 << 20)}")
    a(f"v_lshlrev_b32 v{tmpv}, 2, v{lane_v}")
    a(f"buffer_store_dword v{vreg}, v{tmpv}, s[24:27], s3 offen")
    a("s_waitcnt vmcnt(0)")

NT = lambda: "nt " if OPT["nt_miss"] else ""
NT2 = lambda: "nt " if OPT.get("nt2") else ""

def gen_k1():
    a = Asm()
    S_W, S_BLK, S_G, S_B, S_HP, S_KQ, S_QT = 28, 29, 30, 31, 32, 33, 34
    S_C, S_NC, S_TC = 35, 36, 37
    S_T0, S_T1, S_T2, S_T3 = 41, 42, 43, 44
    S_WQB, S_XB, S_KVB = 45, 46, 47
    S_CNT, S_SLOT = 75, 78
    S_RET = 38
    V_O, V_Q, V_S, V_F, V_KA, V_VA = 0, 64, 96, 112, 144, 152
    V_M, V_L, V_NMC, V_THR, V_T0, V_T1, V_T2, V_LANE, V_DOFF = 156, 157, 158, 159, 160, 161, 162, 163, 164

    a("s_cmp_ge_u32 s2, 256")
    a("s_cbranch_scc1 L_k1_end")
    stamp(a, 0)
    if OPT["stamps"]: a("s_memtime s[88:89]")
    load_ptrs(a)
    a(f"""
    v_lshrrev_b32 v1, 6, v0
    s_and_b32 s3, s2, 7
    s_lshr_b32 s{S_BLK}, s3, 2
    v_readfirstlane_b32 s{S_W}, v1
    s_and_b32 s{S_G}, s3, 3
    s_lshr_b32 s3, s2, 3
    s_lshr_b32 s{S_B}, s3, 2
    s_and_b32 s{S_HP}, s3, 3
    v_and_b32 v{V_LANE}, 63, v0
    v_mov_b32 v{V_DOFF}, 0
    v_mov_b32 v{V_DOFF+1}, 0
    v_mov_b32 v{V_DOFF+2}, 0
    v_mov_b32 v{V_DOFF+3}, 0
    s_and_b32 s{S_KQ}, s{S_W}, 3
    s_lshr_b32 s{S_QT}, s{S_W}, 2
    s_mov_b32 s{S_C}, {f2u(C_SCALE)}
    s_mov_b32 s{S_NC}, {f2u(-C_SCALE)}
    s_mov_b32 s{S_TC}, {f2u(T_LOG2 / C_SCALE)}
    s_lshl_b32 s{S_WQB}, s{S_G}, 11
    s_lshl_b32 s3, s{S_HP}, 9
    s_add_u32 s{S_WQB}, s{S_WQB}, s3
    s_mul_i32 s{S_XB}, s{S_B}, {48*2048}
    s_lshl_b32 s3, s{S_B}, 2
    s_add_u32 s3, s3, s{S_G}
    s_lshl_b32 s{S_KVB}, s3, 18
    s_lshl_b32 s3, s{S_KQ}, 16
    s_add_u32 s{S_KVB}, s{S_KVB}, s3
    s_cmp_eq_u32 s{S_BLK}, 0
    s_waitcnt lgkmcnt(0)
    """)
    srd(a, 8, 48, 58, 8*48*1024*2)
    srd(a, 12, 54, 64, 1024*4096*2)
    srd(a, 16, 50, 60, 8*4*1024*128*2)
    srd(a, 20, 52, 62, 8*4*1024*128*2)
    srd(a, 24, 72, 72, 1 << 28, sel=False)
    a(f"s_cmp_lt_u32 s{S_W}, 4")
    a("s_cbranch_scc1 L_p1_compute")

    L = V_LANE
    a(f"""
    s_sub_u32 s{S_T0}, s{S_W}, 4
    v_lshrrev_b32 v5, 5, v{L}
    v_and_b32 v6, 31, v{L}
    s_and_b32 s{S_T1}, s{S_T0}, 1
    s_lshl_b32 s{S_T1}, s{S_T1}, 2
    v_or_b32 v7, s{S_T1}, v5
    v_lshlrev_b32 v8, 1, v7
    v_xor_b32 v8, v8, v6
    v_lshlrev_b32 v8, 4, v8
    v_lshlrev_b32 v9, 13, v5
    v_add_u32 v2, v9, v8
    v_or_b32 v7, 2, v7
    v_lshlrev_b32 v8, 1, v7
    v_xor_b32 v8, v8, v6
    v_lshlrev_b32 v8, 4, v8
    v_add_u32 v3, v9, v8
    s_mul_i32 s{S_T1}, s{S_T0}, 6
    v_lshrrev_b32 v5, 3, v{L}
    v_add_u32 v5, s{S_T1}, v5
    v_lshrrev_b32 v6, 1, v5
    v_xor_b32 v6, v6, v{L}
    v_and_b32 v6, 7, v6
    v_lshlrev_b32 v6, 4, v6
    v_lshlrev_b32 v5, 11, v5
    v_add_u32 v4, v5, v6
    s_lshl_b32 s{S_T2}, s{S_T0}, 16
    s_add_u32 s{S_WQB}, s{S_WQB}, s{S_T2}
    s_lshl_b32 s{S_T2}, s{S_T0}, 12
    s_mul_i32 s{S_T3}, s{S_T0}, 768
    s_add_u32 s{S_T3}, s{S_T3}, 32768
    """)
    def issue_tile():
        a(f"""
        s_add_u32 s3, s{S_CNT}, s{S_B}
        s_and_b32 s3, s3, 7
        s_and_b32 s76, s{S_CNT}, 8
        s_or_b32 s3, s3, s76
        s_lshl_b32 s76, s3, 19
        s_add_u32 s76, s76, s{S_WQB}
        s_add_u32 s77, s{S_SLOT}, s{S_T2}
        """)
        for q in range(4):
            a(f"s_add_u32 m0, s77, {q*1024}")
            if q: a(f"s_add_u32 s76, s76, {2*8192}")
            a(f"buffer_load_dwordx4 v{2 + (q & 1)}, s[12:15], s76 offen {NT()}lds")
        a(f"""
        s_lshl_b32 s76, s3, 7
        s_add_u32 s76, s76, s{S_XB}
        s_add_u32 m0, s{S_SLOT}, s{S_T3}
        s_mov_b32 exec_hi, 0xffff
        buffer_load_dwordx4 v4, s[8:11], s76 offen {NT()}lds
        s_mov_b32 exec_hi, -1
        """)
    a(f"s_mov_b32 s{S_CNT}, 0")
    a(f"s_mov_b32 s{S_SLOT}, 0")
    issue_tile()
    a(f"s_mov_b32 s{S_CNT}, 1")
    a(f"s_mov_b32 s{S_SLOT}, {AREA}")
    issue_tile()
    a(f"s_mov_b32 s{S_CNT}, 2")
    a(f"s_mov_b32 s{S_SLOT}, {2*AREA}")
    a(f"""
    v_lshrrev_b32 v5, 4, v{L}
    v_and_b32 v6, 15, v{L}
    v_lshlrev_b32 v7, 8, v5
    s_cmp_eq_u32 s{S_QT}, 1
    s_cbranch_scc0 L_voff_v
    v_xor_b32 v8, v6, v5
    v_lshlrev_b32 v9, 4, v8
    v_add_u32 v{V_DOFF}, v7, v9
    v_xor_b32 v9, 64, v9
    v_add_u32 v{V_DOFF+1}, v7, v9
    v_xor_b32 v9, 0xc0, v9
    v_add_u32 v{V_DOFF+2}, v7, v9
    v_xor_b32 v9, 64, v9
    v_add_u32 v{V_DOFF+3}, v7, v9
    s_branch L_voff_done
    L_voff_v:
    v_lshlrev_b32 v8, 2, v5
    v_xor_b32 v8, v8, v6
    v_lshlrev_b32 v8, 4, v8
    v_add_u32 v{V_DOFF}, v7, v8
    L_voff_done:
    """)
    a.label("L_p1_ld_loop")
    a("s_waitcnt vmcnt(5)")
    trace(a, 120, idx_sreg=S_CNT)
    a("s_barrier")
    if OPT.get("trace"): a(f"s_add_u32 s94, s{S_CNT}, 16")
    trace(a, 120, idx_sreg=94)
    issue_tile()
    if OPT.get("trace"): a(f"s_add_u32 s94, s{S_CNT}, 32")
    trace(a, 120, idx_sreg=94)
    a(f"""
    s_add_u32 s{S_SLOT}, s{S_SLOT}, {AREA}
    s_cmp_eq_u32 s{S_SLOT}, {3*AREA}
    s_cselect_b32 s{S_SLOT}, 0, s{S_SLOT}
    s_add_u32 s{S_CNT}, s{S_CNT}, 1
    s_cmp_lt_u32 s{S_CNT}, 16
    s_cbranch_scc1 L_p1_ld_loop
    """)

    def tile_soff(step, dst):
        a(f"""
        s_add_u32 s{dst}, s{S_HP}, {step}
        s_and_b32 s{dst}, s{dst}, 3
        s_or_b32 s{dst}, s{dst}, {step & 4}
        s_lshl_b32 s{dst}, s{dst}, 13
        s_add_u32 s{dst}, s{dst}, s{S_KVB}
        """)
    def issue_k(step):
        tile_soff(step, 76)
        a(f"s_mul_i32 s77, s{S_KQ}, {AREA}")
        a(f"s_add_u32 m0, s77, {(step % 3) * 8192}")
        for q in range(8):
            if q == 4:
                a(f"s_add_u32 m0, s77, {(step % 3) * 8192 + 4096}")
                a(f"s_add_u32 s76, s76, 4096")
            a(f"buffer_load_dwordx4 v{V_DOFF + (q & 3)}, s[16:19], s76 offen offset:{(q & 3) * 1024} {NT()}lds")
    def issue_v(step):
        tile_soff(step, 76)
        a(f"s_mul_i32 s77, s{S_KQ}, {AREA}")
        a(f"s_add_u32 m0, s77, {24576 + (step % 2) * 8192}")
        for q in range(8):
            if q == 4:
                a(f"s_add_u32 m0, s77, {24576 + (step % 2) * 8192 + 4096}")
                a(f"s_add_u32 s76, s76, 4096")
            a(f"buffer_load_dwordx4 v{V_DOFF}, s[20:23], s76 offen offset:{(q & 3) * 1024} {NT()}lds")
    def call_early_if(kq):
        lab = a.newlabel("L_ne")
        a(f"s_cmp_eq_u32 s{S_KQ}, {kq}")
        a(f"s_cbranch_scc0 {lab}")
        a(f"s_call_b64 s[{S_RET}:{S_RET+1}], L_early")
        a.label(lab)
    a("s_waitcnt vmcnt(5)")
    call_early_if(3)
    a("s_barrier")
    call_early_if(1)
    a(f"""
    s_and_b32 s3, s{S_KQ}, 1
    s_cmp_eq_u32 s3, 1
    s_cbranch_scc1 L_w15_early
    s_waitcnt vmcnt(0)
    s_branch L_w15_done
    L_w15_early:
    s_cmp_eq_u32 s{S_QT}, 1
    s_cbranch_scc1 L_w15_k
    s_waitcnt vmcnt(8)
    s_branch L_w15_done
    L_w15_k:
    s_waitcnt vmcnt(16)
    L_w15_done:
    """)
    a("s_barrier")
    call_early_if(2)
    a("s_barrier")
    call_early_if(0)
    a("s_branch L_p1_join")
    a.label("L_early")
    a(f"s_cmp_eq_u32 s{S_QT}, 1")
    a("s_cbranch_scc0 L_early_v")
    issue_k(0)
    issue_k(1)
    a(f"s_setpc_b64 s[{S_RET}:{S_RET+1}]")
    a.label("L_early_v")
    issue_v(0)
    a(f"s_setpc_b64 s[{S_RET}:{S_RET+1}]")

    a.label("L_p1_compute")
    P_ACC, P_A, P_B, P_WA, P_XA = 0, 48, 80, 104, 108
    a(f"""
    v_lshrrev_b32 v110, 4, v{L}
    v_and_b32 v111, 15, v{L}
    v_lshrrev_b32 v112, 2, v111
    v_and_b32 v113, 3, v111
    v_lshlrev_b32 v114, 3, v110
    v_add_u32 v114, v114, v112
    v_lshlrev_b32 v114, 9, v114
    v_lshlrev_b32 v113, 3, v113
    v_add_u32 v114, v114, v113
    v_and_b32 v115, 1, v110
    v_lshlrev_b32 v115, 2, v115
    v_or_b32 v115, v115, v112
    s_lshl_b32 s{S_T0}, s{S_W}, 2
    """)
    for dt in range(4):
        a(f"s_add_u32 s{S_T1}, s{S_T0}, {dt}")
        a(f"v_xor_b32 v116, s{S_T1}, v115")
        a(f"v_lshlrev_b32 v116, 5, v116")
        a(f"v_add_u32 v{P_WA+dt}, v114, v116")
    a(f"""
    v_lshrrev_b32 v112, 1, v111
    v_xor_b32 v112, v112, v110
    v_lshlrev_b32 v112, 4, v112
    v_lshlrev_b32 v113, 7, v111
    v_add_u32 v112, v112, v113
    v_add_u32 v{P_XA}, 32768, v112
    v_xor_b32 v{P_XA+1}, 64, v{P_XA}
    """)
    for i in range(48):
        a(f"v_mov_b32 v{P_ACC+i}, 0")
    a(f"s_mov_b32 s{S_CNT}, 0")
    a(f"s_mov_b32 s{S_SLOT}, 0")
    a.label("L_p1_c_loop")
    trace(a, 120, idx_sreg=S_CNT)
    a("s_barrier")
    if OPT.get("trace"): a(f"s_add_u32 s94, s{S_CNT}, 16")
    trace(a, 120, idx_sreg=94)
    def rd_ks(ks):
        for dt in range(4):
            for hf in range(2):
                r = P_A + ks*16 + dt*4 + hf*2
                a(f"ds_read_b64_tr_b16 v[{r}:{r+1}], v{P_WA+dt} offset:{ks*16384 + hf*2048}")
    def rd_x(ks):
        for st in range(3):
            r = P_B + ks*12 + st*4
            a(f"ds_read_b128 v[{r}:{r+3}], v{P_XA+ks} offset:{st*2048}")
    def mm(ks):
        for dt in range(4):
            for st in range(3):
                ac = P_ACC + (dt*3+st)*4
                ra = P_A + ks*16 + dt*4; rb = P_B + ks*12 + st*4
                a(f"v_mfma_f32_16x16x32_bf16 v[{ac}:{ac+3}], v[{ra}:{ra+3}], v[{rb}:{rb+3}], v[{ac}:{ac+3}]")
    rd_x(0); rd_ks(0); rd_x(1)
    a("s_waitcnt lgkmcnt(3)")
    rd_ks(1)
    mm(0)
    a("s_waitcnt lgkmcnt(0)")
    a(f"""
    s_add_u32 s{S_SLOT}, s{S_SLOT}, 1
    s_cmp_eq_u32 s{S_SLOT}, 3
    s_cselect_b32 s{S_SLOT}, 0, s{S_SLOT}
    s_mov_b32 s3, {AREA}
    s_cselect_b32 s3, {(-2*AREA) & 0xffffffff}, s3
    """)
    for r in list(range(P_WA, P_WA+4)) + [P_XA, P_XA+1]:
        a(f"v_add_u32 v{r}, s3, v{r}")
    mm(1)
    a(f"""
    s_add_u32 s{S_CNT}, s{S_CNT}, 1
    s_cmp_lt_u32 s{S_CNT}, 16
    s_cbranch_scc1 L_p1_c_loop
    s_barrier
    """)
    a(f"""
    v_lshrrev_b32 v110, 4, v{L}
    v_and_b32 v111, 15, v{L}
    v_lshlrev_b32 v112, 8, v111
    v_and_b32 v113, 1, v110
    v_lshlrev_b32 v113, 3, v113
    v_add_u32 v112, v112, v113
    v_lshrrev_b32 v113, 1, v110
    s_and_b32 s{S_T0}, s{S_W}, 1
    s_lshl_b32 s{S_T0}, s{S_T0}, 3
    v_add_u32 v113, s{S_T0}, v113
    s_lshr_b32 s{S_T1}, s{S_W}, 1
    s_cmp_eq_u32 s{S_T1}, 0
    s_mov_b32 s76, {2*AREA+16384+4096}
    s_mov_b32 s77, {3*AREA+16384}
    s_mov_b32 s78, {3*AREA+16384+4096}
    s_cselect_b32 s76, {1*AREA+16384}, s76
    s_cselect_b32 s77, {1*AREA+16384+4096}, s77
    s_cselect_b32 s78, {2*AREA+16384}, s78
    """)
    for dt in range(4):
        a(f"v_add_u32 v114, {2*dt}, v113")
        a(f"v_xor_b32 v114, v114, v111")
        a(f"v_lshlrev_b32 v114, 4, v114")
        a(f"v_add_u32 v114, v114, v112")
        for st in range(3):
            ac = P_ACC + (dt*3+st)*4
            a(f"v_cvt_pk_bf16_f32 v116, v{ac}, v{ac+1}")
            a(f"v_cvt_pk_bf16_f32 v117, v{ac+2}, v{ac+3}")
            a(f"v_add_u32 v115, s{76+st}, v114")
            a(f"ds_write_b64 v115, v[116:117]")
            a("s_nop 0")
    a("s_waitcnt lgkmcnt(0)")

    a.label("L_p1_join")
    trace(a, 120, idx_imm=60)
    a("s_barrier")
    trace(a, 120, idx_imm=61)
    trace_dump(a, 120, 121, S_W, V_LANE, 0)
    stamp(a, 1)
    a(f"""
    v_and_b32 v{V_T0}, 31, v{L}
    v_lshlrev_b32 v{V_T0}, 8, v{V_T0}
    v_lshrrev_b32 v{V_T1}, 5, v{L}
    v_and_b32 v{V_T2}, 15, v{L}
    v_xor_b32 v{V_T1}, v{V_T1}, v{V_T2}
    v_lshlrev_b32 v{V_T1}, 4, v{V_T1}
    v_add_u32 v{V_T0}, v{V_T0}, v{V_T1}
    s_add_u32 s3, s{S_QT}, 1
    s_mul_i32 s3, s3, {AREA}
    s_add_u32 s3, s3, 16384
    s_mul_i32 s76, s{S_KQ}, {AREA}
    """)
    for st8 in range(8):
        a(f"v_xor_b32 v{V_T1}, {st8 << 5}, v{V_T0}")
        a(f"v_add_u32 v{V_T2}, s3, v{V_T1}")
        a(f"v_add_u32 v{V_KA+st8}, s76, v{V_T1}")
        a(f"ds_read_b128 v[{V_Q+4*st8}:{V_Q+4*st8+3}], v{V_T2}")
    a(f"""
    v_lshrrev_b32 v{V_T0}, 5, v{L}
    v_lshlrev_b32 v{V_T0}, 2, v{V_T0}
    v_bfe_u32 v{V_T1}, v{L}, 2, 2
    v_add_u32 v{V_T0}, v{V_T0}, v{V_T1}
    v_lshlrev_b32 v{V_T0}, 8, v{V_T0}
    v_bfe_u32 v{V_T2}, v{L}, 4, 1
    v_lshlrev_b32 v{V_T2}, 5, v{V_T2}
    v_add_u32 v{V_T0}, v{V_T0}, v{V_T2}
    v_and_b32 v{V_T2}, 3, v{L}
    v_lshlrev_b32 v{V_T2}, 3, v{V_T2}
    v_add_u32 v{V_T0}, v{V_T0}, v{V_T2}
    s_add_u32 s76, s76, 24576
    v_add_u32 v{V_T0}, s76, v{V_T0}
    """)
    for dt in range(4):
        a(f"v_xor_b32 v{V_T2}, {dt}, v{V_T1}")
        a(f"v_lshlrev_b32 v{V_T2}, 6, v{V_T2}")
        a(f"v_add_u32 v{V_VA+dt}, v{V_T0}, v{V_T2}")
    for i in range(64):
        a(f"v_mov_b32 v{V_O+i}, 0")
    a(f"""
    v_mov_b32 v{V_M}, 0xff800000
    v_mov_b32 v{V_THR}, 0xff800000
    v_mov_b32 v{V_L}, 0
    v_mov_b32 v{V_NMC}, 0
    s_waitcnt lgkmcnt(0)
    """)
    if OPT["dbg_q"]:
        a(f"""
        s_mul_i32 s3, s2, 12
        s_add_u32 s3, s3, s{S_W}
        s_lshl_b32 s3, s3, 13
        s_add_u32 s3, s3, {32 << 20}
        v_lshlrev_b32 v{V_T0}, 4, v{L}
        """)
        for st8 in range(8):
            a(f"buffer_store_dwordx4 v[{V_Q+4*st8}:{V_Q+4*st8+3}], v{V_T0}, s[24:27], s3 offen")
            a(f"s_add_u32 s3, s3, 1024")
        a("s_waitcnt vmcnt(0)")

    def tr2(idx):
        if not OPT.get("trace"): return
        lb = a.newlabel("L_tr")
        a(f"s_cmp_eq_u32 s{S_QT}, 1")
        a(f"s_cbranch_scc1 {lb}")
        trace(a, 167, idx_imm=idx)
        a.label(lb)
    for step in range(8):
        lab = f"L_s{step}"
        a(f"s_cmp_eq_u32 s{S_QT}, 1")
        a(f"s_cbranch_scc0 {lab}_nk")
        a(f"s_waitcnt vmcnt({8 if step < 7 else 0})")
        a.label(f"{lab}_nk")
        a(f"s_cmp_eq_u32 s{S_QT}, 2")
        a(f"s_cbranch_scc0 {lab}_nv")
        a(f"s_waitcnt vmcnt(0)")
        a.label(f"{lab}_nv")
        tr2(4*step)
        a("s_barrier")
        tr2(4*step+1)
        ks = (step % 3) * 8192
        for st8 in range(8):
            a(f"ds_read_b128 v[{V_F+4*st8}:{V_F+4*st8+3}], v{V_KA+st8} offset:{ks}")
        if step + 2 < 8:
            a(f"s_cmp_eq_u32 s{S_QT}, 1")
            a(f"s_cbranch_scc0 {lab}_nk2")
            issue_k(step + 2)
            a.label(f"{lab}_nk2")
        if step + 1 < 8:
            a(f"s_cmp_eq_u32 s{S_QT}, 2")
            a(f"s_cbranch_scc0 {lab}_nv2")
            issue_v(step + 1)
            a.label(f"{lab}_nv2")
        vs = (step % 2) * 8192
        def rd_v(f):
            t, dt = f // 4, f % 4
            for hf in range(2):
                r = V_F + 4*f + 2*hf
                a(f"ds_read_b64_tr_b16 v[{r}:{r+1}], v{V_VA+dt} offset:{vs + (16*t + 8*hf)*256}")
        for st8 in range(8):
            a(f"s_waitcnt lgkmcnt({7 - st8 if st8 < 2 else min(15, 7 - st8 + 2*(st8-1))})")
            c = "0" if st8 == 0 else f"v[{V_S}:{V_S+15}]"
            a(f"v_mfma_f32_32x32x16_bf16 v[{V_S}:{V_S+15}], v[{V_F+4*st8}:{V_F+4*st8+3}], v[{V_Q+4*st8}:{V_Q+4*st8+3}], {c}")
            if st8 >= 1:
                rd_v(st8 - 1)
        rd_v(7)
        tr2(4*step+2)
        S = V_S
        a(f"v_max3_f32 v{V_T0}, v{S}, v{S+1}, v{S+2}")
        a(f"v_max3_f32 v{V_T1}, v{S+3}, v{S+4}, v{S+5}")
        a(f"v_max3_f32 v{V_T0}, v{V_T0}, v{S+6}, v{S+7}")
        a(f"v_max3_f32 v{V_T1}, v{V_T1}, v{S+8}, v{S+9}")
        a(f"v_max3_f32 v{V_T0}, v{V_T0}, v{S+10}, v{S+11}")
        a(f"v_max3_f32 v{V_T1}, v{V_T1}, v{S+12}, v{S+13}")
        a(f"v_max3_f32 v{V_T0}, v{V_T0}, v{S+14}, v{S+15}")
        a(f"v_max_f32 v{V_T0}, v{V_T0}, v{V_T1}")
        a(f"v_mov_b32 v{V_T1}, v{V_T0}")
        a(f"v_permlane32_swap_b32 v{V_T0}, v{V_T1}")
        a(f"v_max_f32 v{V_T0}, v{V_T0}, v{V_T1}")
        a(f"v_cmp_gt_f32 vcc, v{V_T0}, v{V_THR}")
        a(f"s_cbranch_vccz {lab}_nr")
        a(f"s_call_b64 s[{S_RET}:{S_RET+1}], L_rescale")
        a.label(f"{lab}_nr")
        for half in range(2):
            for i in range(8*half, 8*half+8):
                a(f"v_fma_f32 v{S+i}, v{S+i}, s{S_C}, v{V_NMC}")
            for i in range(8*half, 8*half+8):
                a(f"v_exp_f32 v{S+i}, v{S+i}")
            for i in range(8*half, 8*half+8):
                a(f"v_add_f32 v{V_L}, v{V_L}, v{S+i}")
            for j in range(4*half, 4*half+4):
                a(f"v_cvt_pk_bf16_f32 v{S+j+ (0)}, v{S+2*j}, v{S+2*j+1}") if half == 0 else None
            if half == 1:
                for j in range(4, 8):
                    a(f"v_cvt_pk_bf16_f32 v{S+j}, v{S+2*j}, v{S+2*j+1}")
            t = half
            for dt in range(4):
                f = t*4 + dt
                a(f"s_waitcnt lgkmcnt({min(15, 2*(7-f))})")
                o = V_O + 16*dt
                a(f"v_mfma_f32_32x32x16_bf16 v[{o}:{o+15}], v[{V_F+4*f}:{V_F+4*f+3}], v[{S+4*t}:{S+4*t+3}], v[{o}:{o+15}]")
    stamp(a, 2)
    tr2(32)
    a(f"""
    v_mov_b32 v{V_T0}, v{V_L}
    v_mov_b32 v{V_T1}, v{V_L}
    v_permlane32_swap_b32 v{V_T0}, v{V_T1}
    v_add_f32 v{V_L}, v{V_T0}, v{V_T1}
    s_barrier
    """)
    STATS = 147456
    a(f"""
    v_and_b32 v{V_T0}, 31, v{L}
    v_lshlrev_b32 v{V_T0}, 3, v{V_T0}
    s_lshl_b32 s3, s{S_QT}, 10
    s_add_u32 s3, s3, {STATS}
    v_add_u32 v{V_T0}, s3, v{V_T0}
    s_lshl_b32 s76, s{S_KQ}, 8
    v_add_u32 v{V_T1}, s76, v{V_T0}
    ds_write_b64 v{V_T1}, v[{V_M}:{V_L}]
    s_waitcnt lgkmcnt(0)
    s_barrier
    """)
    F = V_F
    for j in range(4):
        a(f"ds_read_b64 v[{F+2*j}:{F+2*j+1}], v{V_T0} offset:{j*256}")
    a("s_waitcnt lgkmcnt(0)")
    a(f"""
    v_max3_f32 v{F+8}, v{F}, v{F+2}, v{F+4}
    v_max_f32 v{F+8}, v{F+8}, v{F+6}
    """)
    for j in range(4):
        a(f"v_sub_f32 v{F+9+j}, v{F+2*j}, v{F+8}")
        a(f"v_mul_f32 v{F+9+j}, s{S_C}, v{F+9+j}")
        a(f"v_exp_f32 v{F+9+j}, v{F+9+j}")
    a(f"v_mul_f32 v{F+13}, v{F+9}, v{F+1}")
    for j in range(1, 4):
        a(f"v_fma_f32 v{F+13}, v{F+9+j}, v{F+2*j+1}, v{F+13}")
    a(f"""
    v_rcp_f32 v{F+13}, v{F+13}
    v_sub_f32 v{F+14}, v{V_M}, v{F+8}
    v_mul_f32 v{F+14}, s{S_C}, v{F+14}
    v_exp_f32 v{F+14}, v{F+14}
    v_mul_f32 v{F+14}, v{F+14}, v{F+13}
    """)
    for i in range(64):
        a(f"v_mul_f32 v{V_O+i}, v{F+14}, v{V_O+i}")
    a(f"v_lshlrev_b32 v{V_T0}, 4, v{L}")
    for d in range(1, 4):
        a(f"""
        s_add_u32 s3, s{S_KQ}, {d}
        s_and_b32 s3, s3, 3
        s_lshl_b32 s76, s{S_QT}, 2
        s_add_u32 s76, s76, s3
        s_mul_i32 s76, s76, 3
        s_add_u32 s76, s76, {3-d}
        s_lshl_b32 s76, s76, 12
        v_add_u32 v{V_T1}, s76, v{V_T0}
        """)
        done = a.newlabel("L_xw")
        for dt in range(4):
            nx = a.newlabel("L_xwn")
            a(f"s_cmp_eq_u32 s3, {dt}")
            a(f"s_cbranch_scc0 {nx}")
            for rq in range(4):
                r = V_O + 16*dt + 4*rq
                a(f"ds_write_b128 v{V_T1}, v[{r}:{r+3}] offset:{rq*1024}")
            a(f"s_branch {done}")
            a.label(nx)
        a.label(done)
    done = a.newlabel("L_own")
    for dt in range(4):
        nx = a.newlabel("L_ownn")
        a(f"s_cmp_eq_u32 s{S_KQ}, {dt}")
        a(f"s_cbranch_scc0 {nx}")
        for i in range(16):
            a(f"v_mov_b32 v{F+i}, v{V_O+16*dt+i}")
        a(f"s_branch {done}")
        a.label(nx)
    a.label(done)
    a("s_waitcnt lgkmcnt(0)")
    a("s_barrier")
    a(f"""
    s_lshl_b32 s76, s{S_QT}, 2
    s_add_u32 s76, s76, s{S_KQ}
    s_mul_i32 s76, s76, {3*4096}
    v_add_u32 v{V_T1}, s76, v{V_T0}
    """)
    for sl in range(3):
        for rq in range(4):
            r = V_O + 16*sl + 4*rq
            a(f"ds_read_b128 v[{r}:{r+3}], v{V_T1} offset:{sl*4096 + rq*1024}")
    for sl in range(3):
        a(f"s_waitcnt lgkmcnt({8 - 4*sl})")
        for i in range(16):
            a(f"v_add_f32 v{F+i}, v{F+i}, v{V_O+16*sl+i}")
    a(f"""
    v_and_b32 v{V_T0}, 31, v{L}
    s_lshl_b32 s3, s{S_QT}, 5
    v_add_u32 v{V_T0}, s3, v{V_T0}
    v_cmp_le_u32 vcc, 48, v{V_T0}
    v_subrev_u32 v{V_T1}, 48, v{V_T0}
    v_cndmask_b32 v{V_T0}, v{V_T0}, v{V_T1}, vcc
    v_mov_b32 v{V_T2}, 0
    v_mov_b32 v{V_M}, {4*3*1024}
    v_cndmask_b32 v{V_T2}, v{V_T2}, v{V_M}, vcc
    v_lshrrev_b32 v{V_T1}, 4, v{V_T0}
    v_lshlrev_b32 v{V_T1}, 10, v{V_T1}
    v_add_u32 v{V_T2}, v{V_T2}, v{V_T1}
    v_and_b32 v{V_T0}, 15, v{V_T0}
    v_lshlrev_b32 v{V_T0}, 4, v{V_T0}
    v_add_u32 v{V_T2}, v{V_T2}, v{V_T0}
    v_lshrrev_b32 v{V_T0}, 5, v{L}
    v_lshlrev_b32 v{V_T0}, 3, v{V_T0}
    v_add_u32 v{V_T2}, v{V_T2}, v{V_T0}
    s_lshl_b32 s3, s{S_BLK}, 3
    s_add_u32 s3, s3, s{S_B}
    s_lshl_b32 s3, s3, 5
    s_lshl_b32 s76, s{S_G}, 3
    s_add_u32 s3, s3, s76
    s_lshl_b32 s76, s{S_HP}, 1
    s_add_u32 s3, s3, s76
    s_lshl_b32 s3, s3, 2
    s_add_u32 s3, s3, s{S_KQ}
    s_mul_i32 s3, s3, 3072
    """)
    for rq in range(4):
        a(f"v_cvt_pk_bf16_f32 v{V_O+2*rq}, v{F+4*rq}, v{F+4*rq+1}")
        a(f"v_cvt_pk_bf16_f32 v{V_O+2*rq+1}, v{F+4*rq+2}, v{F+4*rq+3}")
    for rq in range(4):
        a(f"buffer_store_dwordx2 v[{V_O+2*rq}:{V_O+2*rq+1}], v{V_T2}, s[24:27], s3 offen offset:{rq*256}")
    stamp(a, 3)
    tr2(33)
    trace_dump(a, 167, 100, S_W, V_LANE, 1)
    if OPT["stamps"]: a("s_memtime s[90:91]")
    stamp_flush(a, 6, 100, S_W, 0)
    a("s_endpgm")
    a.label("L_rescale")
    a(f"""
    v_max_f32 v{V_T1}, v{V_M}, v{V_T0}
    v_sub_f32 v{V_T2}, v{V_M}, v{V_T1}
    v_mul_f32 v{V_T2}, s{S_C}, v{V_T2}
    v_exp_f32 v{V_T2}, v{V_T2}
    v_mov_b32 v{V_M}, v{V_T1}
    v_mul_f32 v{V_NMC}, s{S_NC}, v{V_T1}
    v_add_f32 v{V_THR}, s{S_TC}, v{V_T1}
    v_mul_f32 v{V_L}, v{V_L}, v{V_T2}
    """)
    for i in range(64):
        a(f"v_mul_f32 v{V_O+i}, v{V_T2}, v{V_O+i}")
    a("s_nop 1")
    a(f"s_setpc_b64 s[{S_RET}:{S_RET+1}]")
    a.label("L_k1_end")
    a("s_endpgm")
    return a

def gen_k2():
    a = Asm()
    S_W, S_BLK, S_NQ, S_B, S_NT = 28, 29, 30, 31, 32
    S_WOB, S_OB, S_LB, S_KS = 45, 46, 47, 44
    L = 100
    ACC, FA, FB, WA, DOFF = 0, 48, 64, 88, 96
    a("s_cmp_ge_u32 s2, 256")
    a("s_cbranch_scc1 L_k2_end")
    stamp(a, 0)
    load_ptrs(a)
    a(f"""
    v_lshrrev_b32 v1, 6, v0
    s_and_b32 s3, s2, 7
    s_lshr_b32 s{S_BLK}, s3, 2
    v_readfirstlane_b32 s{S_W}, v1
    s_and_b32 s{S_NQ}, s3, 3
    s_lshr_b32 s3, s2, 3
    s_lshr_b32 s{S_B}, s3, 2
    s_and_b32 s{S_NT}, s3, 3
    v_and_b32 v{L}, 63, v0
    s_lshl_b32 s{S_WOB}, s{S_NQ}, 9
    s_lshl_b32 s3, s{S_NT}, 7
    s_add_u32 s{S_WOB}, s{S_WOB}, s3
    s_lshl_b32 s3, s{S_BLK}, 3
    s_add_u32 s3, s3, s{S_B}
    s_mul_i32 s{S_OB}, s3, {128*3072}
    s_lshl_b32 s{S_LB}, s{S_W}, 13
    s_cmp_eq_u32 s{S_BLK}, 0
    s_waitcnt lgkmcnt(0)
    """)
    srd(a, 12, 56, 66, 4096*1024*2)
    srd(a, 24, 72, 72, 1 << 28, sel=False)
    srd(a, 16, 68, 68, 8*48*2048*2, sel=False)
    a(f"""
    v_lshrrev_b32 v2, 3, v{L}
    v_lshlrev_b32 v2, 11, v2
    v_bfe_u32 v3, v{L}, 4, 1
    v_lshlrev_b32 v3, 1, v3
    v_and_b32 v4, 7, v{L}
    v_xor_b32 v3, v3, v4
    v_lshlrev_b32 v3, 4, v3
    v_add_u32 v{DOFF}, v2, v3
    v_xor_b32 v3, 64, v3
    v_add_u32 v{DOFF+1}, v2, v3
    v_lshlrev_b32 v{DOFF+2}, 4, v{L}
    """)
    a(f"""
    v_lshrrev_b32 v2, 4, v{L}
    v_bfe_u32 v3, v{L}, 2, 2
    v_lshlrev_b32 v4, 3, v2
    v_add_u32 v4, v4, v3
    v_lshlrev_b32 v4, 7, v4
    v_and_b32 v5, 3, v{L}
    v_lshlrev_b32 v5, 3, v5
    v_add_u32 v4, v4, v5
    v_add_u32 v4, s{S_LB}, v4
    v_lshrrev_b32 v3, 1, v3
    v_and_b32 v2, 1, v2
    v_lshlrev_b32 v2, 1, v2
    v_or_b32 v3, v3, v2
    """)
    for u in range(4):
        a(f"v_xor_b32 v5, {u}, v3")
        a(f"v_lshlrev_b32 v5, 5, v5")
        a(f"v_add_u32 v{WA+u}, v4, v5")
    for i in range(48):
        a(f"v_mov_b32 v{ACC+i}, 0")
    def issue(it_sreg_expr, buf):
        a(f"""
        s_lshl_b32 s3, s{S_B}, 1
        s_add_u32 s3, s3, s{S_KS}
        s_and_b32 s3, s3, 15
        s_lshl_b32 s3, s3, 3
        s_add_u32 s3, s3, s{S_W}
        s_lshl_b32 s76, s3, 16
        s_add_u32 s76, s76, s{S_WOB}
        s_mul_i32 s77, s3, 3072
        s_add_u32 s77, s77, s{S_OB}
        """)
        for q in range(4):
            a(f"s_add_u32 m0, s{S_LB}, {buf*4096 + q*1024}")
            if q: a(f"s_add_u32 s76, s76, {8*2048}")
            a(f"buffer_load_dwordx4 v{DOFF + (q & 1)}, s[12:15], s76 offen {NT2()}lds")
        for st in range(3):
            r = FB + buf*12 + st*4
            a(f"buffer_load_dwordx4 v[{r}:{r+3}], v{DOFF+2}, s[24:27], s77 offen offset:{st*1024}")
    def compute(buf):
        for u in range(4):
            for hf in range(2):
                r = FA + u*4 + hf*2
                a(f"ds_read_b64_tr_b16 v[{r}:{r+1}], v{WA+u} offset:{buf*4096 + hf*512}")
        for u in range(4):
            a(f"s_waitcnt lgkmcnt({6 - 2*u})")
            for st in range(3):
                ac = ACC + (u*3+st)*4
                rb = FB + buf*12 + st*4
                a(f"v_mfma_f32_16x16x32_bf16 v[{ac}:{ac+3}], v[{FA+u*4}:{FA+u*4+3}], v[{rb}:{rb+3}], v[{ac}:{ac+3}]")
    a(f"s_mov_b32 s{S_KS}, 0")
    issue(None, 0)
    a(f"s_mov_b32 s{S_KS}, 1")
    a.label("L_k2_loop")
    issue(None, 1)
    a("s_waitcnt vmcnt(7)")
    compute(0)
    a(f"s_add_u32 s{S_KS}, s{S_KS}, 1")
    a(f"s_cmp_lt_u32 s{S_KS}, 16")
    a("s_cbranch_scc0 L_k2_last")
    issue(None, 0)
    a("s_waitcnt vmcnt(7)")
    compute(1)
    a(f"s_add_u32 s{S_KS}, s{S_KS}, 1")
    a("s_branch L_k2_loop")
    a.label("L_k2_last")
    a("s_waitcnt vmcnt(0)")
    compute(1)
    stamp(a, 1)
    a("s_barrier")
    a(f"""
    s_mul_i32 s3, s{S_W}, 12288
    v_lshlrev_b32 v{FA}, 4, v{L}
    v_add_u32 v{FA+1}, s3, v{FA}
    """)
    for t in range(12):
        a(f"ds_write_b128 v{FA+1}, v[{ACC+4*t}:{ACC+4*t+3}] offset:{t*1024}")
    a("s_waitcnt lgkmcnt(0)")
    a("s_barrier")
    a(f"s_cmp_ge_u32 s{S_W}, 6")
    a("s_cbranch_scc1 L_k2_fin")
    a(f"s_lshl_b32 s3, s{S_W}, 11")
    a(f"v_add_u32 v{FA+1}, s3, v{FA}")
    for tt in range(2):
        for j in range(8):
            r = ACC + j*4
            off = j*12288 + tt*1024
            if off > 65535:
                a(f"v_add_u32 v{FA+2}, {j*12288}, v{FA+1}")
                a(f"ds_read_b128 v[{r}:{r+3}], v{FA+2} offset:{tt*1024}")
            else:
                a(f"ds_read_b128 v[{r}:{r+3}], v{FA+1} offset:{off}")
        a("s_waitcnt lgkmcnt(0)")
        for j in range(1, 8):
            for i in range(4):
                a(f"v_add_f32 v{ACC+i}, v{ACC+i}, v{ACC+4*j+i}")
        a(f"""
        s_lshl_b32 s76, s{S_W}, 1
        s_add_u32 s76, s76, {tt}
        s_mul_i32 s77, s76, 43
        s_lshr_b32 s77, s77, 7
        s_mul_i32 s78, s77, 3
        s_sub_u32 s78, s76, s78
        """)
        a(f"""
        s_mul_i32 s79, s{S_B}, 48
        s_lshl_b32 s78, s78, 4
        s_add_u32 s79, s79, s78
        s_lshl_b32 s79, s79, 12
        s_lshl_b32 s78, s{S_BLK}, 11
        s_add_u32 s79, s79, s78
        s_add_u32 s79, s79, s{S_WOB}
        s_lshl_b32 s77, s77, 5
        s_add_u32 s79, s79, s77
        v_and_b32 v{FB}, 15, v{L}
        v_lshlrev_b32 v{FB}, 12, v{FB}
        v_lshrrev_b32 v{FB+1}, 4, v{L}
        v_lshlrev_b32 v{FB+1}, 3, v{FB+1}
        v_add_u32 v{FB}, v{FB}, v{FB+1}
        v_cvt_pk_bf16_f32 v{FB+2}, v{ACC}, v{ACC+1}
        v_cvt_pk_bf16_f32 v{FB+3}, v{ACC+2}, v{ACC+3}
        buffer_store_dwordx2 v[{FB+2}:{FB+3}], v{FB}, s[16:19], s79 offen
        """)
    a.label("L_k2_fin")
    stamp(a, 2)
    stamp_flush(a, 3, 104, S_W, 1)
    a.label("L_k2_end")
    a("s_endpgm")
    return a

def gen_probe(aux):
    a = Asm()
    a("s_cmp_ge_u32 s2, 256")
    a("s_cbranch_scc1 L_pr_end")
    load_ptrs(a)
    a("""
    v_lshlrev_b32 v1, 4, v0
    s_lshl_b32 s3, s2, 15
    s_waitcnt lgkmcnt(0)
    """)
    n = 0
    for p in (50, 52, 54, 56, 60, 62, 64, 66):
        a(f"s_mov_b32 s8, s{p}")
        a(f"s_mov_b32 s9, s{p+1}")
        a(f"s_mov_b32 s10, {8 << 20}")
        a(f"s_mov_b32 s11, 0x00020000")
        for i in range(8):
            r = 8 + 4 * (n % 16); n += 1
            a(f"s_add_u32 s12, s3, {i*4096}")
            a(f"buffer_load_dwordx4 v[{r}:{r+3}], v1, s[8:11], s12 offen {aux}")
            a("s_waitcnt vmcnt(12)")
    a("s_waitcnt vmcnt(0)")
    a.label("L_pr_end")
    a("s_endpgm")
    return a

def build():
    k1 = gen_k1().finalize()
    k2 = gen_k2().finalize()
    h1, d1 = kernel_text("gqa_attn_kernel", k1, 168)
    h2, d2 = kernel_text("gqa_oproj_kernel", k2, 112)
    hdr = open("concat_heads__gqa_block_cached__gqa_block_cached__near_ridge.s.ref").read().split("; Override")[0]
    txt = hdr
    hp = dp = ""
    if OPT.get("probe") is not None:
        kp = gen_probe("nt" if OPT["probe"] == 1 else "").finalize()
        hp, dp = kernel_text("probe_kernel", kp, 80)
        dp = ".p2align 6\n" + dp
        txt += "; @launch kernel=probe_kernel grid=(256,1,1) block=(256,1,1) lds=0\n"
    txt += "; @launch kernel=gqa_attn_kernel grid=(256,1,1) block=(768,1,1) lds=163840\n"
    txt += "; @launch kernel=gqa_oproj_kernel grid=(256,1,1) block=(512,1,1) lds=98304\n"
    txt += '.amdgcn_target "amdgcn-amd-amdhsa--gfx950"\n.text\n' + h1 + h2 + hp
    txt += '.section .rodata,"a"\n.p2align 6\n' + d1 + ".p2align 6\n" + d2 + dp
    return txt

if __name__ == "__main__":
    out = sys.argv[1] if len(sys.argv) > 1 else "concat_heads__gqa_block_cached__gqa_block_cached__near_ridge.s"
    for kv in sys.argv[2:]:
        k, v = kv.split("=")
        OPT[k] = int(v, 0) if v.lstrip("-").replace("x","").isalnum() else v
    open(out, "w").write(build())
    print("wrote", out)
```

```python
import sys, math, struct
from asmlib import *
import gen as G1
from gen import f2u, load_ptrs, srd, AREA, C_SCALE, T_LOG2

OPT = G1.OPT
stamp, stamp_flush, trace, trace_dump = G1.stamp, G1.stamp_flush, G1.trace, G1.trace_dump
NT = G1.NT

def gen_k1():
    a = Asm()
    S_W, S_BLK, S_G, S_B, S_HP, S_KQ, S_QT = 28, 29, 30, 31, 32, 33, 34
    S_C, S_NC, S_TC = 35, 36, 37
    S_RET = 38
    S_SLOW = 50
    T_HI, T_LO = 16.0, 64.0
    S_T0, S_T1, S_T2, S_T3 = 41, 42, 43, 44
    S_WQB, S_XB, S_KVB = 45, 46, 47
    S_CNT, S_SLOT = 75, 78
    V_O, V_Q, V_S, V_F, V_KA, V_VA = 0, 64, 96, 112, 144, 152
    V_M, V_L, V_NMC, V_THR, V_T0, V_T1, V_T2, V_LANE, V_DOFF = 156, 157, 158, 159, 160, 161, 162, 163, 164
    L = V_LANE

    a("s_cmp_ge_u32 s2, 256")
    a("s_cbranch_scc1 L_k1_end")
    stamp(a, 0)
    if OPT["stamps"]: a("s_memtime s[88:89]")
    load_ptrs(a)
    if OPT.get("trace"):
        a("v_mov_b32 v120, 0")
        a("v_mov_b32 v167, 0")
        trace(a, 120, idx_imm=63)
    a(f"""
    v_lshrrev_b32 v1, 6, v0
    v_and_b32 v{L}, 63, v0
    s_and_b32 s3, s2, 7
    v_readfirstlane_b32 s{S_W}, v1
    s_lshr_b32 s{S_BLK}, s3, 2
    s_and_b32 s{S_G}, s3, 3
    s_lshr_b32 s3, s2, 3
    s_lshr_b32 s{S_B}, s3, 2
    s_and_b32 s{S_HP}, s3, 3
    s_and_b32 s{S_KQ}, s{S_W}, 3
    s_lshr_b32 s{S_QT}, s{S_W}, 2
    s_lshl_b32 s{S_WQB}, s{S_G}, 11
    s_lshl_b32 s3, s{S_HP}, 9
    s_add_u32 s{S_WQB}, s{S_WQB}, s3
    s_mul_i32 s{S_XB}, s{S_B}, {48*2048}
    s_cmp_ge_u32 s{S_W}, 8
    s_cbranch_scc1 L_p1_compute
    """)
    a(f"""
    v_lshrrev_b32 v5, 5, v{L}
    v_and_b32 v6, 31, v{L}
    s_and_b32 s{S_T1}, s{S_W}, 1
    s_lshl_b32 s{S_T1}, s{S_T1}, 2
    v_or_b32 v7, s{S_T1}, v5
    v_lshlrev_b32 v8, 1, v7
    v_xor_b32 v8, v8, v6
    v_lshlrev_b32 v8, 4, v8
    v_lshlrev_b32 v9, 13, v5
    v_add_u32 v2, v9, v8
    v_xor_b32 v8, 64, v8
    v_add_u32 v3, v9, v8
    s_mul_i32 s{S_T1}, s{S_W}, 6
    v_lshrrev_b32 v5, 3, v{L}
    v_add_u32 v5, s{S_T1}, v5
    v_lshrrev_b32 v6, 1, v5
    v_xor_b32 v6, v6, v{L}
    v_and_b32 v6, 7, v6
    v_lshlrev_b32 v6, 4, v6
    v_lshlrev_b32 v5, 11, v5
    v_add_u32 v4, v5, v6
    s_lshl_b32 s{S_T2}, s{S_W}, 16
    s_add_u32 s{S_WQB}, s{S_WQB}, s{S_T2}
    s_lshl_b32 s{S_T2}, s{S_W}, 12
    s_mul_i32 s{S_T3}, s{S_W}, 768
    s_add_u32 s{S_T3}, s{S_T3}, 32768
    s_cmp_eq_u32 s{S_BLK}, 0
    s_waitcnt lgkmcnt(0)
    """)
    srd(a, 8, 48, 58, 8*48*1024*2)
    srd(a, 12, 54, 64, 1024*4096*2)
    def issue_tile():
        a(f"""
        s_add_u32 s3, s{S_CNT}, s{S_B}
        s_and_b32 s3, s3, 7
        s_and_b32 s76, s{S_CNT}, 8
        s_or_b32 s3, s3, s76
        s_lshl_b32 s76, s3, 19
        s_add_u32 s76, s76, s{S_WQB}
        s_add_u32 s77, s{S_SLOT}, s{S_T2}
        """)
        for q in range(4):
            a(f"s_add_u32 m0, s77, {q*1024}")
            if q: a(f"s_add_u32 s76, s76, {2*8192}")
            a(f"buffer_load_dwordx4 v{2 + (q & 1)}, s[12:15], s76 offen {NT()}lds")
        a(f"""
        s_lshl_b32 s76, s3, 7
        s_add_u32 s76, s76, s{S_XB}
        s_add_u32 m0, s{S_SLOT}, s{S_T3}
        s_mov_b32 exec_hi, 0xffff
        buffer_load_dwordx4 v4, s[8:11], s76 offen {NT()}lds
        s_mov_b32 exec_hi, -1
        """)
    a(f"s_mov_b32 s{S_CNT}, 0")
    a(f"s_mov_b32 s{S_SLOT}, 0")
    issue_tile()
    a(f"s_mov_b32 s{S_CNT}, 1")
    a(f"s_mov_b32 s{S_SLOT}, {AREA}")
    issue_tile()
    a(f"s_mov_b32 s{S_CNT}, 2")
    a(f"s_mov_b32 s{S_SLOT}, {2*AREA}")
    a(f"s_cmp_eq_u32 s{S_BLK}, 0")
    srd(a, 16, 50, 60, 8*4*1024*128*2)
    srd(a, 20, 52, 62, 8*4*1024*128*2)
    srd(a, 24, 72, 72, 1 << 28, sel=False)
    a(f"""
    s_lshl_b32 s3, s{S_B}, 2
    s_add_u32 s3, s3, s{S_G}
    s_lshl_b32 s{S_KVB}, s3, 18
    s_lshl_b32 s3, s{S_KQ}, 16
    s_add_u32 s{S_KVB}, s{S_KVB}, s3
    v_lshrrev_b32 v5, 4, v{L}
    v_and_b32 v6, 15, v{L}
    v_lshlrev_b32 v7, 8, v5
    v_xor_b32 v8, v6, v5
    v_lshlrev_b32 v9, 4, v8
    v_add_u32 v{V_DOFF}, v7, v9
    v_xor_b32 v9, 64, v9
    v_add_u32 v{V_DOFF+1}, v7, v9
    v_xor_b32 v9, 0xc0, v9
    v_add_u32 v{V_DOFF+2}, v7, v9
    v_xor_b32 v9, 64, v9
    v_add_u32 v{V_DOFF+3 if not OPT.get("trace") else V_T2}, v7, v9
    s_cmp_eq_u32 s{S_QT}, 0
    s_cbranch_scc1 L_voff_done
    v_lshlrev_b32 v8, 2, v5
    v_xor_b32 v8, v8, v6
    v_lshlrev_b32 v8, 4, v8
    v_add_u32 v{V_DOFF}, v7, v8
    L_voff_done:
    """)
    a.label("L_p1_ld_loop")
    a("s_waitcnt vmcnt(5)")
    trace(a, 120, idx_sreg=S_CNT)
    a("s_barrier")
    if OPT.get("trace"): a(f"s_add_u32 s94, s{S_CNT}, 16")
    trace(a, 120, idx_sreg=94)
    issue_tile()
    if OPT.get("trace"): a(f"s_add_u32 s94, s{S_CNT}, 32")
    trace(a, 120, idx_sreg=94)
    a(f"""
    s_add_u32 s{S_SLOT}, s{S_SLOT}, {AREA}
    s_cmp_eq_u32 s{S_SLOT}, {3*AREA}
    s_cselect_b32 s{S_SLOT}, 0, s{S_SLOT}
    s_add_u32 s{S_CNT}, s{S_CNT}, 1
    s_cmp_lt_u32 s{S_CNT}, 16
    s_cbranch_scc1 L_p1_ld_loop
    """)
    def tile_soff(step, dst):
        a(f"""
        s_add_u32 s{dst}, s{S_HP}, {step}
        s_and_b32 s{dst}, s{dst}, 3
        s_or_b32 s{dst}, s{dst}, {step & 4}
        s_lshl_b32 s{dst}, s{dst}, 13
        s_add_u32 s{dst}, s{dst}, s{S_KVB}
        """)
    def dma8(step, lds_off, voff_fn, srdb):
        tile_soff(step, 76)
        a(f"s_mul_i32 s77, s{S_KQ}, {AREA}")
        a(f"s_add_u32 m0, s77, {lds_off}")
        for q in range(8):
            if q == 4:
                a(f"s_add_u32 m0, s77, {lds_off + 4096}")
                a(f"s_add_u32 s76, s76, 4096")
            a(f"buffer_load_dwordx4 v{voff_fn(q)}, s[{srdb}:{srdb+3}], s76 offen offset:{(q & 3) * 1024} {NT()}lds")
    def issue_k(step):
        if OPT.get("trace"):
            a(f"v_xor_b32 v{V_T2}, 64, v{V_DOFF+2}")
            dma8(step, (step % 3) * 8192, lambda q: (V_DOFF + (q & 3)) if (q & 3) != 3 else V_T2, 16)
        else:
            dma8(step, (step % 3) * 8192, lambda q: V_DOFF + (q & 3), 16)
    def issue_v(step): dma8(step, 24576 + (step % 2) * 8192, lambda q: V_DOFF, 20)
    def call_early_if(kq):
        lab = a.newlabel("L_ne")
        a(f"s_cmp_eq_u32 s{S_KQ}, {kq}")
        a(f"s_cbranch_scc0 {lab}")
        a(f"s_call_b64 s[{S_RET}:{S_RET+1}], L_early")
        a.label(lab)
    a("s_waitcnt vmcnt(5)")
    call_early_if(3)
    a("s_barrier")
    call_early_if(1)
    a(f"""
    s_and_b32 s3, s{S_KQ}, 1
    s_cmp_eq_u32 s3, 1
    s_cbranch_scc1 L_w15_early
    s_waitcnt vmcnt(0)
    s_branch L_w15_done
    L_w15_early:
    s_cmp_eq_u32 s{S_QT}, 0
    s_cbranch_scc1 L_w15_k
    s_waitcnt vmcnt(8)
    s_branch L_w15_done
    L_w15_k:
    s_waitcnt vmcnt(16)
    L_w15_done:
    """)
    a("s_barrier")
    call_early_if(2)
    a("s_barrier")
    call_early_if(0)
    a("s_branch L_p1_join")
    a.label("L_early")
    a(f"s_cmp_eq_u32 s{S_QT}, 0")
    a("s_cbranch_scc0 L_early_v")
    issue_k(0)
    issue_k(1)
    a(f"s_setpc_b64 s[{S_RET}:{S_RET+1}]")
    a.label("L_early_v")
    issue_v(0)
    a(f"s_setpc_b64 s[{S_RET}:{S_RET+1}]")

    a.label("L_p1_compute")
    P_ACC, P_A, P_B, P_WA, P_XA = 0, 48, 80, 104, 108
    a(f"""
    v_lshrrev_b32 v110, 4, v{L}
    v_and_b32 v111, 15, v{L}
    v_lshrrev_b32 v112, 2, v111
    v_and_b32 v113, 3, v111
    v_lshlrev_b32 v114, 3, v110
    v_add_u32 v114, v114, v112
    v_lshlrev_b32 v114, 9, v114
    v_lshlrev_b32 v113, 3, v113
    v_add_u32 v114, v114, v113
    v_and_b32 v115, 1, v110
    v_lshlrev_b32 v115, 2, v115
    v_or_b32 v115, v115, v112
    s_lshl_b32 s{S_T0}, s{S_KQ}, 2
    """)
    for dt in range(4):
        a(f"s_add_u32 s{S_T1}, s{S_T0}, {dt}")
        a(f"v_xor_b32 v116, s{S_T1}, v115")
        a(f"v_lshlrev_b32 v116, 5, v116")
        a(f"v_add_u32 v{P_WA+dt}, v114, v116")
    a(f"""
    v_lshrrev_b32 v112, 1, v111
    v_xor_b32 v112, v112, v110
    v_lshlrev_b32 v112, 4, v112
    v_lshlrev_b32 v113, 7, v111
    v_add_u32 v112, v112, v113
    v_add_u32 v{P_XA}, 32768, v112
    v_xor_b32 v{P_XA+1}, 64, v{P_XA}
    """)
    for i in range(48):
        a(f"v_mov_b32 v{P_ACC+i}, 0")
    for i in range(4):
        a(f"v_mov_b32 v{V_DOFF+i}, 0")
    a(f"s_waitcnt lgkmcnt(0)")
    srd(a, 24, 72, 72, 1 << 28, sel=False)
    a(f"s_cmp_eq_u32 s{S_BLK}, 0")
    srd(a, 16, 50, 60, 8*4*1024*128*2)
    srd(a, 20, 52, 62, 8*4*1024*128*2)
    a(f"s_mov_b32 s{S_KVB}, 0")
    a(f"s_mov_b32 s{S_CNT}, 0")
    a(f"s_mov_b32 s{S_SLOT}, 0")
    def rd_ks(ks):
        for dt in range(4):
            for hf in range(2):
                r = P_A + ks*16 + dt*4 + hf*2
                a(f"ds_read_b64_tr_b16 v[{r}:{r+1}], v{P_WA+dt} offset:{ks*16384 + hf*2048}")
    def rd_x(ks):
        for st in range(3):
            r = P_B + ks*12 + st*4
            a(f"ds_read_b128 v[{r}:{r+3}], v{P_XA+ks} offset:{st*2048}")
    def mm(ks):
        for dt in range(4):
            for st in range(3):
                ac = P_ACC + (dt*3+st)*4
                ra = P_A + ks*16 + dt*4; rb = P_B + ks*12 + st*4
                a(f"v_mfma_f32_16x16x32_bf16 v[{ac}:{ac+3}], v[{ra}:{ra+3}], v[{rb}:{rb+3}], v[{ac}:{ac+3}]")
    a.label("L_p1_c_loop")
    trace(a, 120, idx_sreg=S_CNT)
    a("s_barrier")
    if OPT.get("trace"): a(f"s_add_u32 s94, s{S_CNT}, 16")
    trace(a, 120, idx_sreg=94)
    rd_x(0); rd_ks(0)
    a(f"s_cmp_eq_u32 s{S_CNT}, 0")
    a("s_cbranch_scc1 L_p1_c_skip")
    mm(1)
    a.label("L_p1_c_skip")
    rd_x(1); rd_ks(1)
    a("s_waitcnt lgkmcnt(11)")
    mm(0)
    a(f"""
    s_add_u32 s{S_SLOT}, s{S_SLOT}, 1
    s_cmp_eq_u32 s{S_SLOT}, 3
    s_cselect_b32 s{S_SLOT}, 0, s{S_SLOT}
    s_mov_b32 s3, {AREA}
    s_cselect_b32 s3, {(-2*AREA) & 0xffffffff}, s3
    """)
    for r in list(range(P_WA, P_WA+4)) + [P_XA, P_XA+1]:
        a(f"v_add_u32 v{r}, s3, v{r}")
    a(f"""
    s_add_u32 s{S_CNT}, s{S_CNT}, 1
    s_cmp_lt_u32 s{S_CNT}, 16
    s_waitcnt lgkmcnt(0)
    s_cbranch_scc1 L_p1_c_loop
    s_barrier
    """)
    mm(1)
    a(f"""
    s_mov_b32 s{S_C}, {f2u(C_SCALE)}
    v_lshrrev_b32 v110, 4, v{L}
    v_and_b32 v111, 15, v{L}
    v_lshlrev_b32 v112, 8, v111
    v_and_b32 v113, 1, v110
    v_lshlrev_b32 v113, 3, v113
    v_add_u32 v112, v112, v113
    v_lshrrev_b32 v113, 1, v110
    s_and_b32 s{S_T0}, s{S_KQ}, 1
    s_lshl_b32 s{S_T0}, s{S_T0}, 3
    v_add_u32 v113, s{S_T0}, v113
    s_lshr_b32 s{S_T1}, s{S_KQ}, 1
    s_cmp_eq_u32 s{S_T1}, 0
    s_mov_b32 s76, {2*AREA+16384+4096}
    s_mov_b32 s77, {3*AREA+16384}
    s_mov_b32 s78, {3*AREA+16384+4096}
    s_cselect_b32 s76, {1*AREA+16384}, s76
    s_cselect_b32 s77, {1*AREA+16384+4096}, s77
    s_cselect_b32 s78, {2*AREA+16384}, s78
    """)
    for dt in range(4):
        a(f"v_add_u32 v114, {2*dt}, v113")
        a(f"v_xor_b32 v114, v114, v111")
        a(f"v_lshlrev_b32 v114, 4, v114")
        a(f"v_add_u32 v114, v114, v112")
        for st in range(3):
            ac = P_ACC + (dt*3+st)*4
            t = 116 + 2*(st & 1)
            for e in range(4): a(f"v_mul_f32 v{ac+e}, s{S_C}, v{ac+e}")
            a(f"v_cvt_pk_bf16_f32 v{t}, v{ac}, v{ac+1}")
            a(f"v_cvt_pk_bf16_f32 v{t+1}, v{ac+2}, v{ac+3}")
            a(f"v_add_u32 v{123+st}, s{76+st}, v114")
            a(f"ds_write_b64 v{123+st}, v[{t}:{t+1}]")
    a("s_waitcnt lgkmcnt(0)")

    a.label("L_p1_join")
    trace(a, 120, idx_imm=60)
    a("s_barrier")
    trace(a, 120, idx_imm=61)
    trace_dump(a, 120, 121, S_W, V_LANE, 0)
    if OPT.get("trace"): a("v_mov_b32 v167, 0")
    stamp(a, 1)
    a(f"""
    s_mov_b32 s{S_TC}, {f2u(T_HI)}
    s_mov_b32 s{S_NC}, {f2u(-T_LO)}
    s_mov_b64 s[{S_SLOW}:{S_SLOW+1}], 0
    v_and_b32 v{V_T0}, 31, v{L}
    v_lshlrev_b32 v{V_T0}, 8, v{V_T0}
    v_lshrrev_b32 v{V_T1}, 5, v{L}
    v_and_b32 v{V_T2}, 15, v{L}
    v_xor_b32 v{V_T1}, v{V_T1}, v{V_T2}
    v_lshlrev_b32 v{V_T1}, 4, v{V_T1}
    v_add_u32 v{V_T0}, v{V_T0}, v{V_T1}
    s_add_u32 s3, s{S_QT}, 1
    s_mul_i32 s3, s3, {AREA}
    s_add_u32 s3, s3, 16384
    s_mul_i32 s76, s{S_KQ}, {AREA}
    """)
    for st8 in range(8):
        a(f"v_xor_b32 v{V_T1}, {st8 << 5}, v{V_T0}")
        a(f"v_add_u32 v{V_F+st8}, s3, v{V_T1}")
        a(f"v_add_u32 v{V_KA+st8}, s76, v{V_T1}")
        a(f"ds_read_b128 v[{V_Q+4*st8}:{V_Q+4*st8+3}], v{V_F+st8}")
    a(f"""
    v_lshrrev_b32 v{V_T0}, 5, v{L}
    v_lshlrev_b32 v{V_T0}, 2, v{V_T0}
    v_bfe_u32 v{V_T1}, v{L}, 2, 2
    v_add_u32 v{V_T0}, v{V_T0}, v{V_T1}
    v_lshlrev_b32 v{V_T0}, 8, v{V_T0}
    v_bfe_u32 v{V_T2}, v{L}, 4, 1
    v_lshlrev_b32 v{V_T2}, 5, v{V_T2}
    v_add_u32 v{V_T0}, v{V_T0}, v{V_T2}
    v_and_b32 v{V_T2}, 3, v{L}
    v_lshlrev_b32 v{V_T2}, 3, v{V_T2}
    v_add_u32 v{V_T0}, v{V_T0}, v{V_T2}
    s_add_u32 s76, s76, 24576
    v_add_u32 v{V_T0}, s76, v{V_T0}
    """)
    for j in range(4):
        a(f"s_add_u32 s3, s{S_KQ}, {j}")
        a(f"s_and_b32 s3, s3, 3")
        a(f"v_xor_b32 v{V_T2}, s3, v{V_T1}")
        a(f"v_lshlrev_b32 v{V_T2}, 6, v{V_T2}")
        a(f"v_add_u32 v{V_VA+j}, v{V_T0}, v{V_T2}")
    for i in range(64):
        a(f"v_mov_b32 v{V_O+i}, 0")
    a(f"""
    v_mov_b32 v{V_M}, 0
    v_mov_b32 v{V_THR}, s{S_TC}
    v_mov_b32 v{V_L}, 0
    s_waitcnt lgkmcnt(0)
    """)

    S = V_S
    def tr2(idx):
        lt = OPT.get("lt")
        if lt and idx < 36:
            i, k = idx // 4, idx % 4
            if (lt == 1 and k == 1) or (lt == 2 and k == 0) or (lt == 3 and k == 2):
                a(f"s_memtime s[{80+2*i}:{81+2*i}]")
        if lt and idx == 41: a("s_memtime s[98:99]")
        if lt and idx == 40: a("s_memtime s[100:101]")
        if not OPT.get("trace"): return
        trace(a, 120 if False else 167, idx_imm=idx)
    def rd_k(step, st8):
        a(f"ds_read_b128 v[{V_F+4*st8}:{V_F+4*st8+3}], v{V_KA+st8} offset:{(step % 3) * 8192}")
    def rd_v(step, f):
        t, j = f // 4, f % 4
        for hf in range(2):
            r = V_F + 4*f + 2*hf
            a(f"ds_read_b64_tr_b16 v[{r}:{r+1}], v{V_VA+j} offset:{(step % 2) * 8192 + (16*t + 8*hf)*256}")
    def qk(step, pending_k):
        for st8 in range(8):
            a(f"s_waitcnt lgkmcnt({7 - st8 if st8 < 2 else min(15, 7 - st8 + 2*(st8-1))})")
            c = "0" if st8 == 0 else f"v[{S}:{S+15}]"
            a(f"v_mfma_f32_32x32x16_bf16 v[{S}:{S+15}], v[{V_F+4*st8}:{V_F+4*st8+3}], v[{V_Q+4*st8}:{V_Q+4*st8+3}], {c}")
            if st8 >= 1: rd_v(step, st8 - 1)
        rd_v(step, 7)
    def softmax_half(half):
        for i in range(8*half, 8*half+8):
            a(f"v_exp_f32 v{S+i}, v{S+i}")
        for i in range(8*half, 8*half+8):
            a(f"v_add_f32 v{V_L}, v{V_L}, v{S+i}")
        for j in range(4*half, 4*half+4):
            a(f"v_cvt_pk_bf16_f32 v{S+j}, v{S+2*j}, v{S+2*j+1}")
    def softmax_max(lab, first=False):
        a(f"v_max3_f32 v{V_T0}, v{S}, v{S+1}, v{S+2}")
        a(f"v_max3_f32 v{V_T1}, v{S+3}, v{S+4}, v{S+5}")
        a(f"v_max3_f32 v{V_T0}, v{V_T0}, v{S+6}, v{S+7}")
        a(f"v_max3_f32 v{V_T1}, v{V_T1}, v{S+8}, v{S+9}")
        a(f"v_max3_f32 v{V_T0}, v{V_T0}, v{S+10}, v{S+11}")
        a(f"v_max3_f32 v{V_T1}, v{V_T1}, v{S+12}, v{S+13}")
        a(f"v_max3_f32 v{V_T0}, v{V_T0}, v{S+14}, v{S+15}")
        a(f"v_max_f32 v{V_T0}, v{V_T0}, v{V_T1}")
        a(f"v_mov_b32 v{V_T1}, v{V_T0}")
        a(f"v_permlane32_swap_b32 v{V_T0}, v{V_T1}")
        a(f"v_max_f32 v{V_T0}, v{V_T0}, v{V_T1}")
        a(f"v_cmp_gt_f32 vcc, v{V_T0}, v{V_THR}")
        if first:
            a(f"v_cmp_gt_f32 s[52:53], s{S_NC}, v{V_T0}")
            a(f"s_or_b64 vcc, vcc, s[52:53]")
        a(f"s_or_b64 s[52:53], vcc, s[{S_SLOW}:{S_SLOW+1}]")
        a(f"s_cbranch_scc0 {lab}")
        a(f"s_call_b64 s[{S_RET}:{S_RET+1}], L_slow{'_first' if first else ''}")
        a.label(lab)
    def pv_mfma(f):
        t, j = f // 4, f % 4
        o = V_O + 16*j
        a(f"v_mfma_f32_32x32x16_bf16 v[{o}:{o+15}], v[{V_F+4*f}:{V_F+4*f+3}], v[{S+4*t}:{S+4*t+3}], v[{o}:{o+15}]")
    def pv_then_k(next_step):
        for f in range(8):
            pv_mfma(f)
            if next_step is not None and f >= 1: rd_k(next_step, f - 1)
        if next_step is not None: rd_k(next_step, 7)

    PR = OPT.get("prio", 1)
    def prio(p):
        if PR: a(f"s_setprio {p}")
    a(f"s_cmp_eq_u32 s{S_QT}, 1")
    a("s_cbranch_scc1 L_typeA")
    a(f"s_cmp_eq_u32 s{S_QT}, 2")
    a("s_cbranch_scc1 L_typeC")
    for i in range(8):
        a(f"s_waitcnt vmcnt({8 if i < 7 else 0})")
        tr2(4*i)
        a("s_barrier")
        tr2(4*i+1)
        prio(1)
        if i == 0:
            for st8 in range(8): rd_k(0, st8)
        else:
            pv_then_k(i)
        if i + 2 < 8: issue_k(i + 2)
        qk(i, 0)
        tr2(4*i+2)
        prio(2)
        softmax_max(f"L_D{i}", first=(i == 0))
        softmax_half(0); softmax_half(1)
        a("s_waitcnt lgkmcnt(0)")
    tr2(32)
    a("s_barrier")
    pv_then_k(None)
    a("s_branch L_merge")
    a.label("L_typeA")
    for i in range(8):
        a(f"s_waitcnt vmcnt(0)")
        tr2(4*i)
        a("s_barrier")
        tr2(4*i+1)
        prio(3)
        for st8 in range(8): rd_k(i, st8)
        if i + 1 < 8: issue_v(i + 1)
        qk(i, 0)
        tr2(4*i+2)
        prio(2)
        softmax_max(f"L_A{i}", first=(i == 0))
        softmax_half(0); softmax_half(1)
        prio(0)
        for f in range(8):
            a(f"s_waitcnt lgkmcnt({min(15, 2*(7-f))})")
            pv_mfma(f)
    tr2(32)
    a("s_barrier")
    a("s_branch L_merge")
    a.label("L_typeC")
    for i in range(9):
        tr2(4*i)
        a("s_barrier")
        tr2(4*i+1)
        prio(2)
        if i == 0:
            for st8 in range(8): rd_k(0, st8)
        else:
            softmax_max(f"L_C{i}", first=(i == 1))
            softmax_half(0); softmax_half(1)
            pv_then_k(i if i < 8 else None)
        if i < 8:
            prio(1)
            qk(i, 0)
            a("s_waitcnt lgkmcnt(0)")
    a.label("L_merge")
    prio(0)
    stamp(a, 2)
    tr2(40)
    F = V_F
    def mt(i):
        if OPT.get("lt") == 4: a(f"s_memtime s[{80+2*i}:{81+2*i}]")
    mt(0)
    a(f"""
    v_mov_b32 v{V_T0}, v{V_L}
    v_mov_b32 v{V_T1}, v{V_L}
    s_mul_i32 s76, s{S_KQ}, {AREA}
    v_lshlrev_b32 v{V_T2}, 4, v{L}
    v_permlane32_swap_b32 v{V_T0}, v{V_T1}
    s_mul_i32 s3, s{S_QT}, 12288
    s_add_u32 s77, s76, s3
    v_add_f32 v{V_L}, v{V_T0}, v{V_T1}
    v_add_u32 v{V_T1}, s77, v{V_T2}
    """)
    for j in range(1, 4):
        for rq in range(4):
            r = V_O + 16*j + 4*rq
            a(f"ds_write_b128 v{V_T1}, v[{r}:{r+3}] offset:{(j-1)*4096 + rq*1024}")
    mt(1)
    a(f"""
    v_and_b32 v{V_T0}, 31, v{L}
    v_lshlrev_b32 v{V_T0}, 3, v{V_T0}
    s_lshl_b32 s3, s{S_QT}, 8
    s_add_u32 s3, s3, 36864
    v_add_u32 v{V_T0}, s3, v{V_T0}
    v_add_u32 v{V_T1}, s76, v{V_T0}
    ds_write_b64 v{V_T1}, v[{V_M}:{V_L}]
    """)
    for j in range(1, 4):
        a(f"s_sub_u32 s3, s{S_KQ}, {j}")
        a(f"s_and_b32 s3, s3, 3")
        a(f"s_mul_i32 s76, s3, {AREA}")
        a(f"v_add_u32 v{V_Q+j}, s76, v{V_T0}")
        a(f"s_mul_i32 s3, s{S_QT}, 12288")
        a(f"s_add_u32 s76, s76, s3")
        a(f"v_add_u32 v{V_Q+4+j}, s76, v{V_T2}")
    A0, A1, A2, A3 = V_Q+8, V_Q+9, V_Q+10, V_Q+11
    a(f"""
    v_and_b32 v{A1}, 31, v{L}
    s_lshl_b32 s3, s{S_QT}, 5
    v_add_u32 v{A1}, s3, v{A1}
    v_cmp_le_u32 vcc, 48, v{A1}
    v_subrev_u32 v{A2}, 48, v{A1}
    v_mov_b32 v{A0}, 0
    v_mov_b32 v{A3}, {4*3*1024}
    v_cndmask_b32 v{A1}, v{A1}, v{A2}, vcc
    v_cndmask_b32 v{A0}, v{A0}, v{A3}, vcc
    v_lshrrev_b32 v{A2}, 4, v{A1}
    v_lshlrev_b32 v{A2}, 10, v{A2}
    v_add_u32 v{A0}, v{A0}, v{A2}
    v_and_b32 v{A1}, 15, v{A1}
    v_lshlrev_b32 v{A1}, 4, v{A1}
    v_add_u32 v{A0}, v{A0}, v{A1}
    v_lshrrev_b32 v{A1}, 5, v{L}
    v_lshlrev_b32 v{A1}, 3, v{A1}
    v_add_u32 v{A0}, v{A0}, v{A1}
    s_lshl_b32 s3, s{S_BLK}, 3
    s_add_u32 s3, s3, s{S_B}
    s_lshl_b32 s3, s3, 5
    s_lshl_b32 s76, s{S_G}, 3
    s_add_u32 s3, s3, s76
    s_lshl_b32 s76, s{S_HP}, 1
    s_add_u32 s3, s3, s76
    s_lshl_b32 s3, s3, 2
    s_add_u32 s3, s3, s{S_KQ}
    s_mul_i32 s79, s3, 3072
    """)
    mt(2)
    a("s_waitcnt lgkmcnt(0)")
    mt(3)
    a("s_barrier")
    mt(4)
    for j in range(1, 4):
        a(f"ds_read_b64 v[{F+2*j}:{F+2*j+1}], v{V_Q+j}")
    for j in range(1, 4):
        for rq in range(4):
            r = V_O + 16*j + 4*rq
            a(f"ds_read_b128 v[{r}:{r+3}], v{V_Q+4+j} offset:{(j-1)*4096 + rq*1024}")
    a("s_waitcnt lgkmcnt(12)")
    mt(5)
    a(f"""
    v_max3_f32 v{F+8}, v{V_M}, v{F+2}, v{F+4}
    v_max_f32 v{F+8}, v{F+8}, v{F+6}
    v_sub_f32 v{F+10}, v{V_M}, v{F+8}
    v_sub_f32 v{F+12}, v{F+2}, v{F+8}
    v_sub_f32 v{F+14}, v{F+4}, v{F+8}
    v_sub_f32 v{F+16}, v{F+6}, v{F+8}
    v_exp_f32 v{F+10}, v{F+10}
    v_exp_f32 v{F+12}, v{F+12}
    v_exp_f32 v{F+14}, v{F+14}
    v_exp_f32 v{F+16}, v{F+16}
    v_mul_f32 v{F+18}, v{F+10}, v{V_L}
    v_fma_f32 v{F+18}, v{F+12}, v{F+3}, v{F+18}
    v_fma_f32 v{F+18}, v{F+14}, v{F+5}, v{F+18}
    v_fma_f32 v{F+18}, v{F+16}, v{F+7}, v{F+18}
    v_rcp_f32 v{F+18}, v{F+18}
    v_mul_f32 v{F+10}, v{F+10}, v{F+18}
    v_mul_f32 v{F+12}, v{F+12}, v{F+18}
    v_mul_f32 v{F+14}, v{F+14}, v{F+18}
    v_mul_f32 v{F+16}, v{F+16}, v{F+18}
    """)
    mt(6)
    for i in range(0, 16, 2):
        a(f"v_pk_mul_f32 v[{V_O+i}:{V_O+i+1}], v[{V_O+i}:{V_O+i+1}], v[{F+10}:{F+11}] op_sel_hi:[1,0]")
    for j in range(1, 4):
        a(f"s_waitcnt lgkmcnt({12 - 4*j})")
        for i in range(0, 16, 2):
            a(f"v_pk_fma_f32 v[{V_O+i}:{V_O+i+1}], v[{V_O+16*j+i}:{V_O+16*j+i+1}], v[{F+10+2*j}:{F+11+2*j}], v[{V_O+i}:{V_O+i+1}] op_sel_hi:[1,0,1]")
    mt(7)
    for rq in range(4):
        a(f"v_cvt_pk_bf16_f32 v{F+20+2*rq}, v{V_O+4*rq}, v{V_O+4*rq+1}")
        a(f"v_cvt_pk_bf16_f32 v{F+20+2*rq+1}, v{V_O+4*rq+2}, v{V_O+4*rq+3}")
    for rq in range(4):
        a(f"buffer_store_dwordx2 v[{F+20+2*rq}:{F+20+2*rq+1}], v{A0}, s[24:27], s79 offen offset:{rq*256}")
    stamp(a, 3)
    tr2(41)
    trace_dump(a, 167, 100, S_W, V_LANE, 1)
    if OPT.get("lt"):
        a("s_waitcnt lgkmcnt(0)")
        a(f"s_lshl_b32 s3, s2, 4")
        a(f"s_add_u32 s3, s3, s{S_W}")
        a(f"s_lshl_b32 s3, s3, 8")
        a(f"s_add_u32 s3, s3, {(24 << 20) + (1 << 20)}")
        a("v_mov_b32 v102, s3")
        for i in range(11):
            a(f"v_mov_b32 v100, s{80+2*i}")
            a(f"buffer_store_dword v100, v102, s[24:27], 0 offen offset:{4*i}")
            a("s_waitcnt vmcnt(0)")
    if OPT["stamps"]: a("s_memtime s[90:91]")
    stamp_flush(a, 6, 100, S_W, 0)
    a("s_endpgm")
    a.label("L_slow_first")
    a(f"v_cndmask_b32 v{V_M}, v{V_M}, v{V_T0}, vcc")
    a(f"s_mov_b64 s[{S_SLOW}:{S_SLOW+1}], -1")
    a(f"v_add_f32 v{V_THR}, s{S_TC}, v{V_M}")
    a("s_branch L_slow_sub")
    a.label("L_slow")
    a("s_cbranch_vccz L_slow_sub")
    a(f"v_max_f32 v{V_T1}, v{V_M}, v{V_T0}")
    a(f"v_cndmask_b32 v{V_T1}, v{V_M}, v{V_T1}, vcc")
    a.label("L_slow_upd")
    a(f"""
    s_mov_b64 s[{S_SLOW}:{S_SLOW+1}], -1
    v_sub_f32 v{V_T2}, v{V_M}, v{V_T1}
    v_exp_f32 v{V_T2}, v{V_T2}
    v_mov_b32 v{V_M}, v{V_T1}
    v_add_f32 v{V_THR}, s{S_TC}, v{V_T1}
    v_mul_f32 v{V_L}, v{V_L}, v{V_T2}
    """)
    for i in range(64):
        a(f"v_mul_f32 v{V_O+i}, v{V_T2}, v{V_O+i}")
    a.label("L_slow_sub")
    for i in range(16):
        a(f"v_sub_f32 v{V_S+i}, v{V_S+i}, v{V_M}")
    a("s_nop 1")
    a(f"s_setpc_b64 s[{S_RET}:{S_RET+1}]")
    a.label("L_k1_end")
    a("s_endpgm")
    return a

def build():
    k1 = gen_k1().finalize()
    k2 = G1.gen_k2().finalize()
    h1, d1 = kernel_text("gqa_attn_kernel", k1, 168)
    h2, d2 = kernel_text("gqa_oproj_kernel", k2, 112)
    hdr = open("concat_heads__gqa_block_cached__gqa_block_cached__near_ridge.s.ref").read().split("; Override")[0]
    txt = hdr
    txt += "; @launch kernel=gqa_attn_kernel grid=(256,1,1) block=(768,1,1) lds=163840\n"
    txt += "; @launch kernel=gqa_oproj_kernel grid=(256,1,1) block=(512,1,1) lds=98304\n"
    txt += '.amdgcn_target "amdgcn-amd-amdhsa--gfx950"\n.text\n' + h1 + h2
    txt += '.section .rodata,"a"\n.p2align 6\n' + d1 + ".p2align 6\n" + d2
    return txt

if __name__ == "__main__":
    out = sys.argv[1]
    for kv in sys.argv[2:]:
        k, v = kv.split("=")
        OPT[k] = int(v, 0)
    open(out, "w").write(build())
    print("wrote", out)
```

```python
import sys, math, struct
from asmlib import *
import gen as G1
from gen import f2u, load_ptrs, srd, AREA, C_SCALE, T_LOG2

OPT = G1.OPT
stamp, stamp_flush, trace, trace_dump = G1.stamp, G1.stamp_flush, G1.trace, G1.trace_dump
NT = G1.NT

def gen_k1():
    a = Asm()
    S_W, S_BLK, S_G, S_B, S_HP, S_KQ, S_QT = 28, 29, 30, 31, 32, 33, 34
    S_C, S_NC, S_TC = 35, 36, 37
    S_RET = 38
    S_SLOW = 50
    T_HI, T_LO = 16.0, 64.0
    S_T0, S_T1, S_T2, S_T3 = 41, 42, 43, 44
    S_WQB, S_XB, S_KVB = 45, 46, 47
    S_CNT, S_SLOT = 75, 78
    V_O, V_Q, V_S, V_F, V_KA, V_VA = 0, 64, 96, 112, 144, 152
    V_M, V_L, V_NMC, V_THR, V_T0, V_T1, V_T2, V_LANE, V_DOFF = 156, 157, 158, 159, 160, 161, 162, 163, 164
    L = V_LANE

    a("s_cmp_ge_u32 s2, 256")
    a("s_cbranch_scc1 L_k1_end")
    stamp(a, 0)
    if OPT["stamps"]: a("s_memtime s[88:89]")
    load_ptrs(a)
    if OPT.get("trace"):
        a("v_mov_b32 v120, 0")
        a("v_mov_b32 v167, 0")
        trace(a, 120, idx_imm=63)
    a(f"""
    v_lshrrev_b32 v1, 6, v0
    v_and_b32 v{L}, 63, v0
    s_and_b32 s3, s2, 7
    v_readfirstlane_b32 s{S_W}, v1
    s_lshr_b32 s{S_BLK}, s3, 2
    s_and_b32 s{S_G}, s3, 3
    s_lshr_b32 s3, s2, 3
    s_lshr_b32 s{S_B}, s3, 2
    s_and_b32 s{S_HP}, s3, 3
    s_and_b32 s{S_KQ}, s{S_W}, 3
    s_lshr_b32 s{S_QT}, s{S_W}, 2
    s_lshl_b32 s{S_WQB}, s{S_G}, 11
    s_lshl_b32 s3, s{S_HP}, 9
    s_add_u32 s{S_WQB}, s{S_WQB}, s3
    s_mul_i32 s{S_XB}, s{S_B}, {48*2048}
    s_cmp_ge_u32 s{S_W}, 8
    s_cbranch_scc1 L_p1_compute
    """)
    a(f"""
    v_lshrrev_b32 v5, 5, v{L}
    v_and_b32 v6, 31, v{L}
    s_and_b32 s{S_T1}, s{S_W}, 1
    s_lshl_b32 s{S_T1}, s{S_T1}, 2
    v_or_b32 v7, s{S_T1}, v5
    v_lshlrev_b32 v8, 1, v7
    v_xor_b32 v8, v8, v6
    v_lshlrev_b32 v8, 4, v8
    v_lshlrev_b32 v9, 13, v5
    v_add_u32 v2, v9, v8
    v_xor_b32 v8, 64, v8
    v_add_u32 v3, v9, v8
    s_mul_i32 s{S_T1}, s{S_W}, 6
    v_lshrrev_b32 v5, 3, v{L}
    v_add_u32 v5, s{S_T1}, v5
    v_lshrrev_b32 v6, 1, v5
    v_xor_b32 v6, v6, v{L}
    v_and_b32 v6, 7, v6
    v_lshlrev_b32 v6, 4, v6
    v_lshlrev_b32 v5, 11, v5
    v_add_u32 v4, v5, v6
    s_lshl_b32 s{S_T2}, s{S_W}, 16
    s_add_u32 s{S_WQB}, s{S_WQB}, s{S_T2}
    s_lshl_b32 s{S_T2}, s{S_W}, 12
    s_mul_i32 s{S_T3}, s{S_W}, 768
    s_add_u32 s{S_T3}, s{S_T3}, 32768
    s_cmp_eq_u32 s{S_BLK}, 0
    s_waitcnt lgkmcnt(0)
    """)
    srd(a, 8, 48, 58, 8*48*1024*2)
    srd(a, 12, 54, 64, 1024*4096*2)
    def issue_tile():
        a(f"""
        s_add_u32 s3, s{S_CNT}, s{S_B}
        s_and_b32 s3, s3, 7
        s_and_b32 s76, s{S_CNT}, 8
        s_or_b32 s3, s3, s76
        s_lshl_b32 s76, s3, 19
        s_add_u32 s76, s76, s{S_WQB}
        s_add_u32 s77, s{S_SLOT}, s{S_T2}
        """)
        for q in range(4):
            a(f"s_add_u32 m0, s77, {q*1024}")
            if q: a(f"s_add_u32 s76, s76, {2*8192}")
            a(f"buffer_load_dwordx4 v{2 + (q & 1)}, s[12:15], s76 offen {NT()}lds")
        a(f"""
        s_lshl_b32 s76, s3, 7
        s_add_u32 s76, s76, s{S_XB}
        s_add_u32 m0, s{S_SLOT}, s{S_T3}
        s_mov_b32 exec_hi, 0xffff
        buffer_load_dwordx4 v4, s[8:11], s76 offen {NT()}lds
        s_mov_b32 exec_hi, -1
        """)
    a(f"s_mov_b32 s{S_CNT}, 0")
    a(f"s_mov_b32 s{S_SLOT}, 0")
    issue_tile()
    a(f"s_mov_b32 s{S_CNT}, 1")
    a(f"s_mov_b32 s{S_SLOT}, {AREA}")
    issue_tile()
    a(f"s_mov_b32 s{S_CNT}, 2")
    a(f"s_mov_b32 s{S_SLOT}, {2*AREA}")
    a(f"s_cmp_eq_u32 s{S_BLK}, 0")
    srd(a, 16, 50, 60, 8*4*1024*128*2)
    srd(a, 20, 52, 62, 8*4*1024*128*2)
    srd(a, 24, 72, 72, 1 << 28, sel=False)
    a(f"""
    s_lshl_b32 s3, s{S_B}, 2
    s_add_u32 s3, s3, s{S_G}
    s_lshl_b32 s{S_KVB}, s3, 18
    s_lshl_b32 s3, s{S_KQ}, 16
    s_add_u32 s{S_KVB}, s{S_KVB}, s3
    v_lshrrev_b32 v5, 4, v{L}
    v_and_b32 v6, 15, v{L}
    v_lshlrev_b32 v7, 8, v5
    v_xor_b32 v8, v6, v5
    v_lshlrev_b32 v9, 4, v8
    v_add_u32 v{V_DOFF}, v7, v9
    v_xor_b32 v9, 64, v9
    v_add_u32 v{V_DOFF+1}, v7, v9
    v_xor_b32 v9, 0xc0, v9
    v_add_u32 v{V_DOFF+2}, v7, v9
    v_xor_b32 v9, 64, v9
    v_add_u32 v{V_DOFF+3 if not OPT.get("trace") else V_T2}, v7, v9
    s_cmp_eq_u32 s{S_QT}, 0
    s_cbranch_scc1 L_voff_done
    v_lshlrev_b32 v8, 2, v5
    v_xor_b32 v8, v8, v6
    v_lshlrev_b32 v8, 4, v8
    v_add_u32 v{V_DOFF}, v7, v8
    L_voff_done:
    """)
    a.label("L_p1_ld_loop")
    a("s_waitcnt vmcnt(5)")
    trace(a, 120, idx_sreg=S_CNT)
    a("s_barrier")
    if OPT.get("trace"): a(f"s_add_u32 s94, s{S_CNT}, 16")
    trace(a, 120, idx_sreg=94)
    issue_tile()
    if OPT.get("trace"): a(f"s_add_u32 s94, s{S_CNT}, 32")
    trace(a, 120, idx_sreg=94)
    a(f"""
    s_add_u32 s{S_SLOT}, s{S_SLOT}, {AREA}
    s_cmp_eq_u32 s{S_SLOT}, {3*AREA}
    s_cselect_b32 s{S_SLOT}, 0, s{S_SLOT}
    s_add_u32 s{S_CNT}, s{S_CNT}, 1
    s_cmp_lt_u32 s{S_CNT}, 16
    s_cbranch_scc1 L_p1_ld_loop
    """)
    def tile_soff(step, dst):
        a(f"""
        s_add_u32 s{dst}, s{S_HP}, {step}
        s_and_b32 s{dst}, s{dst}, 3
        s_or_b32 s{dst}, s{dst}, {step & 4}
        s_lshl_b32 s{dst}, s{dst}, 13
        s_add_u32 s{dst}, s{dst}, s{S_KVB}
        """)
    def dma8(step, lds_off, voff_fn, srdb):
        tile_soff(step, 76)
        a(f"s_mul_i32 s77, s{S_KQ}, {AREA}")
        a(f"s_add_u32 m0, s77, {lds_off}")
        for q in range(8):
            if q == 4:
                a(f"s_add_u32 m0, s77, {lds_off + 4096}")
                a(f"s_add_u32 s76, s76, 4096")
            a(f"buffer_load_dwordx4 v{voff_fn(q)}, s[{srdb}:{srdb+3}], s76 offen offset:{(q & 3) * 1024} {NT()}lds")
    def issue_k(step):
        if OPT.get("trace"):
            a(f"v_xor_b32 v{V_T2}, 64, v{V_DOFF+2}")
            dma8(step, (step % 3) * 8192, lambda q: (V_DOFF + (q & 3)) if (q & 3) != 3 else V_T2, 16)
        else:
            dma8(step, (step % 3) * 8192, lambda q: V_DOFF + (q & 3), 16)
    def issue_v(step): dma8(step, 24576 + (step % 2) * 8192, lambda q: V_DOFF, 20)
    def call_early_if(kq):
        lab = a.newlabel("L_ne")
        a(f"s_cmp_eq_u32 s{S_KQ}, {kq}")
        a(f"s_cbranch_scc0 {lab}")
        a(f"s_call_b64 s[{S_RET}:{S_RET+1}], L_early")
        a.label(lab)
    a("s_waitcnt vmcnt(5)")
    call_early_if(3)
    a("s_barrier")
    call_early_if(1)
    a(f"""
    s_and_b32 s3, s{S_KQ}, 1
    s_cmp_eq_u32 s3, 1
    s_cbranch_scc1 L_w15_early
    s_waitcnt vmcnt(0)
    s_branch L_w15_done
    L_w15_early:
    s_cmp_eq_u32 s{S_QT}, 0
    s_cbranch_scc1 L_w15_k
    s_waitcnt vmcnt(8)
    s_branch L_w15_done
    L_w15_k:
    s_waitcnt vmcnt(16)
    L_w15_done:
    """)
    a("s_barrier")
    call_early_if(2)
    a("s_barrier")
    call_early_if(0)
    a("s_branch L_p1_join")
    a.label("L_early")
    a(f"s_cmp_eq_u32 s{S_QT}, 0")
    a("s_cbranch_scc0 L_early_v")
    issue_k(0)
    issue_k(1)
    a(f"s_setpc_b64 s[{S_RET}:{S_RET+1}]")
    a.label("L_early_v")
    issue_v(0)
    a(f"s_setpc_b64 s[{S_RET}:{S_RET+1}]")

    a.label("L_p1_compute")
    P_ACC, P_A, P_B, P_WA, P_XA = 0, 48, 80, 104, 108
    a(f"""
    v_lshrrev_b32 v110, 4, v{L}
    v_and_b32 v111, 15, v{L}
    v_lshrrev_b32 v112, 2, v111
    v_and_b32 v113, 3, v111
    v_lshlrev_b32 v114, 3, v110
    v_add_u32 v114, v114, v112
    v_lshlrev_b32 v114, 9, v114
    v_lshlrev_b32 v113, 3, v113
    v_add_u32 v114, v114, v113
    v_and_b32 v115, 1, v110
    v_lshlrev_b32 v115, 2, v115
    v_or_b32 v115, v115, v112
    s_lshl_b32 s{S_T0}, s{S_KQ}, 2
    """)
    for dt in range(4):
        a(f"s_add_u32 s{S_T1}, s{S_T0}, {dt}")
        a(f"v_xor_b32 v116, s{S_T1}, v115")
        a(f"v_lshlrev_b32 v116, 5, v116")
        a(f"v_add_u32 v{P_WA+dt}, v114, v116")
    a(f"""
    v_lshrrev_b32 v112, 1, v111
    v_xor_b32 v112, v112, v110
    v_lshlrev_b32 v112, 4, v112
    v_lshlrev_b32 v113, 7, v111
    v_add_u32 v112, v112, v113
    v_add_u32 v{P_XA}, 32768, v112
    v_xor_b32 v{P_XA+1}, 64, v{P_XA}
    """)
    for i in range(48):
        a(f"v_mov_b32 v{P_ACC+i}, 0")
    for i in range(4):
        a(f"v_mov_b32 v{V_DOFF+i}, 0")
    a(f"s_waitcnt lgkmcnt(0)")
    srd(a, 24, 72, 72, 1 << 28, sel=False)
    a(f"s_cmp_eq_u32 s{S_BLK}, 0")
    srd(a, 16, 50, 60, 8*4*1024*128*2)
    srd(a, 20, 52, 62, 8*4*1024*128*2)
    a(f"s_mov_b32 s{S_KVB}, 0")
    a(f"s_mov_b32 s{S_CNT}, 0")
    a(f"s_mov_b32 s{S_SLOT}, 0")
    def rd_ks(ks):
        for dt in range(4):
            for hf in range(2):
                r = P_A + ks*16 + dt*4 + hf*2
                a(f"ds_read_b64_tr_b16 v[{r}:{r+1}], v{P_WA+dt} offset:{ks*16384 + hf*2048}")
    def rd_x(ks):
        for st in range(3):
            r = P_B + ks*12 + st*4
            a(f"ds_read_b128 v[{r}:{r+3}], v{P_XA+ks} offset:{st*2048}")
    def mm(ks):
        for dt in range(4):
            for st in range(3):
                ac = P_ACC + (dt*3+st)*4
                ra = P_A + ks*16 + dt*4; rb = P_B + ks*12 + st*4
                a(f"v_mfma_f32_16x16x32_bf16 v[{ac}:{ac+3}], v[{ra}:{ra+3}], v[{rb}:{rb+3}], v[{ac}:{ac+3}]")
    a.label("L_p1_c_loop")
    trace(a, 120, idx_sreg=S_CNT)
    a("s_barrier")
    if OPT.get("trace"): a(f"s_add_u32 s94, s{S_CNT}, 16")
    trace(a, 120, idx_sreg=94)
    rd_x(0); rd_ks(0)
    a(f"s_cmp_eq_u32 s{S_CNT}, 0")
    a("s_cbranch_scc1 L_p1_c_skip")
    mm(1)
    a.label("L_p1_c_skip")
    rd_x(1); rd_ks(1)
    a("s_waitcnt lgkmcnt(11)")
    mm(0)
    a(f"""
    s_add_u32 s{S_SLOT}, s{S_SLOT}, 1
    s_cmp_eq_u32 s{S_SLOT}, 3
    s_cselect_b32 s{S_SLOT}, 0, s{S_SLOT}
    s_mov_b32 s3, {AREA}
    s_cselect_b32 s3, {(-2*AREA) & 0xffffffff}, s3
    """)
    for r in list(range(P_WA, P_WA+4)) + [P_XA, P_XA+1]:
        a(f"v_add_u32 v{r}, s3, v{r}")
    a(f"""
    s_add_u32 s{S_CNT}, s{S_CNT}, 1
    s_cmp_lt_u32 s{S_CNT}, 16
    s_waitcnt lgkmcnt(0)
    s_cbranch_scc1 L_p1_c_loop
    s_barrier
    """)
    mm(1)
    a(f"""
    s_mov_b32 s{S_C}, {f2u(C_SCALE)}
    v_lshrrev_b32 v110, 4, v{L}
    v_and_b32 v111, 15, v{L}
    v_lshlrev_b32 v112, 8, v111
    v_and_b32 v113, 1, v110
    v_lshlrev_b32 v113, 3, v113
    v_add_u32 v112, v112, v113
    v_lshrrev_b32 v113, 1, v110
    s_and_b32 s{S_T0}, s{S_KQ}, 1
    s_lshl_b32 s{S_T0}, s{S_T0}, 3
    v_add_u32 v113, s{S_T0}, v113
    s_lshr_b32 s{S_T1}, s{S_KQ}, 1
    s_cmp_eq_u32 s{S_T1}, 0
    s_mov_b32 s76, {2*AREA+16384+4096}
    s_mov_b32 s77, {3*AREA+16384}
    s_mov_b32 s78, {3*AREA+16384+4096}
    s_cselect_b32 s76, {1*AREA+16384}, s76
    s_cselect_b32 s77, {1*AREA+16384+4096}, s77
    s_cselect_b32 s78, {2*AREA+16384}, s78
    """)
    for dt in range(4):
        a(f"v_add_u32 v114, {2*dt}, v113")
        a(f"v_xor_b32 v114, v114, v111")
        a(f"v_lshlrev_b32 v114, 4, v114")
        a(f"v_add_u32 v114, v114, v112")
        for st in range(3):
            ac = P_ACC + (dt*3+st)*4
            t = 116 + 2*(st & 1)
            for e in range(4): a(f"v_mul_f32 v{ac+e}, s{S_C}, v{ac+e}")
            a(f"v_cvt_pk_bf16_f32 v{t}, v{ac}, v{ac+1}")
            a(f"v_cvt_pk_bf16_f32 v{t+1}, v{ac+2}, v{ac+3}")
            a(f"v_add_u32 v{123+st}, s{76+st}, v114")
            a(f"ds_write_b64 v{123+st}, v[{t}:{t+1}]")
    a("s_waitcnt lgkmcnt(0)")

    a.label("L_p1_join")
    trace(a, 120, idx_imm=60)
    a("s_barrier")
    trace(a, 120, idx_imm=61)
    trace_dump(a, 120, 121, S_W, V_LANE, 0)
    if OPT.get("trace"): a("v_mov_b32 v167, 0")
    stamp(a, 1)
    a(f"""
    s_mov_b32 s{S_TC}, {f2u(T_HI)}
    s_mov_b32 s{S_NC}, {f2u(-T_LO)}
    s_mov_b64 s[{S_SLOW}:{S_SLOW+1}], 0
    v_and_b32 v{V_T0}, 31, v{L}
    v_lshlrev_b32 v{V_T0}, 8, v{V_T0}
    v_lshrrev_b32 v{V_T1}, 5, v{L}
    v_and_b32 v{V_T2}, 15, v{L}
    v_xor_b32 v{V_T1}, v{V_T1}, v{V_T2}
    v_lshlrev_b32 v{V_T1}, 4, v{V_T1}
    v_add_u32 v{V_T0}, v{V_T0}, v{V_T1}
    s_add_u32 s3, s{S_QT}, 1
    s_mul_i32 s3, s3, {AREA}
    s_add_u32 s3, s3, 16384
    s_mul_i32 s76, s{S_KQ}, {AREA}
    """)
    for st8 in range(8):
        a(f"v_xor_b32 v{V_T1}, {st8 << 5}, v{V_T0}")
        a(f"v_add_u32 v{V_F+st8}, s3, v{V_T1}")
        a(f"v_add_u32 v{V_KA+st8}, s76, v{V_T1}")
        a(f"ds_read_b128 v[{V_Q+4*st8}:{V_Q+4*st8+3}], v{V_F+st8}")
    a(f"""
    v_lshrrev_b32 v{V_T0}, 5, v{L}
    v_lshlrev_b32 v{V_T0}, 2, v{V_T0}
    v_bfe_u32 v{V_T1}, v{L}, 2, 2
    v_add_u32 v{V_T0}, v{V_T0}, v{V_T1}
    v_lshlrev_b32 v{V_T0}, 8, v{V_T0}
    v_bfe_u32 v{V_T2}, v{L}, 4, 1
    v_lshlrev_b32 v{V_T2}, 5, v{V_T2}
    v_add_u32 v{V_T0}, v{V_T0}, v{V_T2}
    v_and_b32 v{V_T2}, 3, v{L}
    v_lshlrev_b32 v{V_T2}, 3, v{V_T2}
    v_add_u32 v{V_T0}, v{V_T0}, v{V_T2}
    s_add_u32 s76, s76, 24576
    v_add_u32 v{V_T0}, s76, v{V_T0}
    """)
    for j in range(4):
        a(f"s_add_u32 s3, s{S_KQ}, {j}")
        a(f"s_and_b32 s3, s3, 3")
        a(f"v_xor_b32 v{V_T2}, s3, v{V_T1}")
        a(f"v_lshlrev_b32 v{V_T2}, 6, v{V_T2}")
        a(f"v_add_u32 v{V_VA+j}, v{V_T0}, v{V_T2}")
    for i in range(64):
        a(f"v_mov_b32 v{V_O+i}, 0")
    a(f"""
    v_mov_b32 v{V_M}, 0
    v_mov_b32 v{V_THR}, s{S_TC}
    v_mov_b32 v{V_L}, 0
    s_waitcnt lgkmcnt(0)
    """)

    S = V_S
    def tr2(idx):
        lt = OPT.get("lt")
        if lt and idx < 36:
            i, k = idx // 4, idx % 4
            if (lt == 1 and k == 1) or (lt == 2 and k == 0) or (lt == 3 and k == 2):
                a(f"s_memtime s[{80+2*i}:{81+2*i}]")
        if lt and idx == 41: a("s_memtime s[98:99]")
        if lt and idx == 40: a("s_memtime s[100:101]")
        if not OPT.get("trace"): return
        trace(a, 120 if False else 167, idx_imm=idx)
    def rd_k(step, st8):
        a(f"ds_read_b128 v[{V_F+4*st8}:{V_F+4*st8+3}], v{V_KA+st8} offset:{(step % 3) * 8192}")
    def rd_v(step, f):
        t, j = f // 4, f % 4
        for hf in range(2):
            r = V_F + 4*f + 2*hf
            a(f"ds_read_b64_tr_b16 v[{r}:{r+1}], v{V_VA+j} offset:{(step % 2) * 8192 + (16*t + 8*hf)*256}")
    def qk(step, pending_k):
        for st8 in range(8):
            a(f"s_waitcnt lgkmcnt({7 - st8 if st8 < 2 else min(15, 7 - st8 + 2*(st8-1))})")
            c = "0" if st8 == 0 else f"v[{S}:{S+15}]"
            a(f"v_mfma_f32_32x32x16_bf16 v[{S}:{S+15}], v[{V_F+4*st8}:{V_F+4*st8+3}], v[{V_Q+4*st8}:{V_Q+4*st8+3}], {c}")
            if st8 >= 1: rd_v(step, st8 - 1)
        rd_v(step, 7)
    def softmax_half(half):
        for i in range(8*half, 8*half+8):
            a(f"v_exp_f32 v{S+i}, v{S+i}")
        for i in range(8*half, 8*half+8):
            a(f"v_add_f32 v{V_L}, v{V_L}, v{S+i}")
        for j in range(4*half, 4*half+4):
            a(f"v_cvt_pk_bf16_f32 v{S+j}, v{S+2*j}, v{S+2*j+1}")
    def softmax_max(lab, first=False):
        a(f"v_max3_f32 v{V_T0}, v{S}, v{S+1}, v{S+2}")
        a(f"v_max3_f32 v{V_T1}, v{S+3}, v{S+4}, v{S+5}")
        a(f"v_max3_f32 v{V_T0}, v{V_T0}, v{S+6}, v{S+7}")
        a(f"v_max3_f32 v{V_T1}, v{V_T1}, v{S+8}, v{S+9}")
        a(f"v_max3_f32 v{V_T0}, v{V_T0}, v{S+10}, v{S+11}")
        a(f"v_max3_f32 v{V_T1}, v{V_T1}, v{S+12}, v{S+13}")
        a(f"v_max3_f32 v{V_T0}, v{V_T0}, v{S+14}, v{S+15}")
        a(f"v_max_f32 v{V_T0}, v{V_T0}, v{V_T1}")
        a(f"v_mov_b32 v{V_T1}, v{V_T0}")
        a(f"v_permlane32_swap_b32 v{V_T0}, v{V_T1}")
        a(f"v_max_f32 v{V_T0}, v{V_T0}, v{V_T1}")
        a(f"v_cmp_gt_f32 vcc, v{V_T0}, v{V_THR}")
        if first:
            a(f"v_cmp_gt_f32 s[52:53], s{S_NC}, v{V_T0}")
            a(f"s_or_b64 vcc, vcc, s[52:53]")
        a(f"s_or_b64 s[52:53], vcc, s[{S_SLOW}:{S_SLOW+1}]")
        a(f"s_cbranch_scc0 {lab}")
        a(f"s_call_b64 s[{S_RET}:{S_RET+1}], L_slow{'_first' if first else ''}")
        a.label(lab)
    def pv_mfma(f):
        t, j = f // 4, f % 4
        o = V_O + 16*j
        a(f"v_mfma_f32_32x32x16_bf16 v[{o}:{o+15}], v[{V_F+4*f}:{V_F+4*f+3}], v[{S+4*t}:{S+4*t+3}], v[{o}:{o+15}]")
    def pv_then_k(next_step):
        for f in range(8):
            pv_mfma(f)
            if next_step is not None and f >= 1: rd_k(next_step, f - 1)
        if next_step is not None: rd_k(next_step, 7)

    PR = OPT.get("prio", 1)
    def prio(p):
        if PR: a(f"s_setprio {p}")
    a(f"s_cmp_eq_u32 s{S_QT}, 1")
    a("s_cbranch_scc1 L_typeA")
    a(f"s_cmp_eq_u32 s{S_QT}, 2")
    a("s_cbranch_scc1 L_typeC")
    for i in range(8):
        a(f"s_waitcnt vmcnt({8 if i < 7 else 0})")
        tr2(4*i)
        a("s_barrier")
        tr2(4*i+1)
        prio(1)
        if i == 0:
            for st8 in range(8): rd_k(0, st8)
        else:
            pv_then_k(i)
        if i + 2 < 8: issue_k(i + 2)
        qk(i, 0)
        tr2(4*i+2)
        prio(2)
        softmax_max(f"L_D{i}", first=(i == 0))
        softmax_half(0); softmax_half(1)
        a("s_waitcnt lgkmcnt(0)")
    tr2(32)
    a("s_barrier")
    pv_then_k(None)
    a("s_branch L_merge")
    a.label("L_typeA")
    for i in range(8):
        a(f"s_waitcnt vmcnt(0)")
        tr2(4*i)
        a("s_barrier")
        tr2(4*i+1)
        prio(3)
        for st8 in range(8): rd_k(i, st8)
        if i + 1 < 8: issue_v(i + 1)
        qk(i, 0)
        tr2(4*i+2)
        prio(2)
        softmax_max(f"L_A{i}", first=(i == 0))
        softmax_half(0); softmax_half(1)
        prio(0)
        for f in range(8):
            a(f"s_waitcnt lgkmcnt({min(15, 2*(7-f))})")
            pv_mfma(f)
    tr2(32)
    a("s_barrier")
    a("s_branch L_merge")
    a.label("L_typeC")
    for i in range(9):
        tr2(4*i)
        a("s_barrier")
        tr2(4*i+1)
        prio(2)
        if i == 0:
            for st8 in range(8): rd_k(0, st8)
        else:
            softmax_max(f"L_C{i}", first=(i == 1))
            softmax_half(0); softmax_half(1)
            pv_then_k(i if i < 8 else None)
        if i < 8:
            prio(1)
            qk(i, 0)
            a("s_waitcnt lgkmcnt(0)")
    a.label("L_merge")
    prio(0)
    stamp(a, 2)
    tr2(40)
    F = V_F
    def mt(i):
        if OPT.get("lt") == 4: a(f"s_memtime s[{80+2*i}:{81+2*i}]")
    mt(0)
    a(f"""
    v_mov_b32 v{V_T0}, v{V_L}
    v_mov_b32 v{V_T1}, v{V_L}
    s_mul_i32 s76, s{S_KQ}, {AREA}
    v_lshlrev_b32 v{V_T2}, 4, v{L}
    v_permlane32_swap_b32 v{V_T0}, v{V_T1}
    s_mul_i32 s3, s{S_QT}, 12288
    s_add_u32 s77, s76, s3
    v_add_f32 v{V_L}, v{V_T0}, v{V_T1}
    v_add_u32 v{V_T1}, s77, v{V_T2}
    """)
    for j in range(1, 4):
        for rq in range(4):
            r = V_O + 16*j + 4*rq
            a(f"ds_write_b128 v{V_T1}, v[{r}:{r+3}] offset:{(j-1)*4096 + rq*1024}")
    mt(1)
    a(f"""
    v_and_b32 v{V_T0}, 31, v{L}
    v_lshlrev_b32 v{V_T0}, 3, v{V_T0}
    s_lshl_b32 s3, s{S_QT}, 8
    s_add_u32 s3, s3, 36864
    v_add_u32 v{V_T0}, s3, v{V_T0}
    v_add_u32 v{V_T1}, s76, v{V_T0}
    ds_write_b64 v{V_T1}, v[{V_M}:{V_L}]
    """)
    for j in range(1, 4):
        a(f"s_sub_u32 s3, s{S_KQ}, {j}")
        a(f"s_and_b32 s3, s3, 3")
        a(f"s_mul_i32 s76, s3, {AREA}")
        a(f"v_add_u32 v{V_Q+j}, s76, v{V_T0}")
        a(f"s_mul_i32 s3, s{S_QT}, 12288")
        a(f"s_add_u32 s76, s76, s3")
        a(f"v_add_u32 v{V_Q+4+j}, s76, v{V_T2}")
    A0, A1, A2, A3 = V_Q+8, V_Q+9, V_Q+10, V_Q+11
    a(f"""
    v_and_b32 v{A1}, 31, v{L}
    s_lshl_b32 s3, s{S_QT}, 5
    v_add_u32 v{A1}, s3, v{A1}
    v_cmp_le_u32 vcc, 48, v{A1}
    v_subrev_u32 v{A2}, 48, v{A1}
    v_mov_b32 v{A0}, 0
    v_mov_b32 v{A3}, {4*3*1024}
    v_cndmask_b32 v{A1}, v{A1}, v{A2}, vcc
    v_cndmask_b32 v{A0}, v{A0}, v{A3}, vcc
    v_lshrrev_b32 v{A2}, 4, v{A1}
    v_lshlrev_b32 v{A2}, 10, v{A2}
    v_add_u32 v{A0}, v{A0}, v{A2}
    v_and_b32 v{A1}, 15, v{A1}
    v_lshlrev_b32 v{A1}, 4, v{A1}
    v_add_u32 v{A0}, v{A0}, v{A1}
    v_lshrrev_b32 v{A1}, 5, v{L}
    v_lshlrev_b32 v{A1}, 3, v{A1}
    v_add_u32 v{A0}, v{A0}, v{A1}
    s_lshl_b32 s3, s{S_BLK}, 3
    s_add_u32 s3, s3, s{S_B}
    s_lshl_b32 s3, s3, 5
    s_lshl_b32 s76, s{S_G}, 3
    s_add_u32 s3, s3, s76
    s_lshl_b32 s76, s{S_HP}, 1
    s_add_u32 s3, s3, s76
    s_lshl_b32 s3, s3, 2
    s_add_u32 s3, s3, s{S_KQ}
    s_mul_i32 s79, s3, 3072
    """)
    mt(2)
    a("s_waitcnt lgkmcnt(0)")
    mt(3)
    a("s_barrier")
    mt(4)
    for j in range(1, 4):
        a(f"ds_read_b64 v[{F+2*j}:{F+2*j+1}], v{V_Q+j}")
    for j in range(1, 4):
        for rq in range(4):
            r = V_O + 16*j + 4*rq
            a(f"ds_read_b128 v[{r}:{r+3}], v{V_Q+4+j} offset:{(j-1)*4096 + rq*1024}")
    a("s_waitcnt lgkmcnt(12)")
    mt(5)
    a(f"""
    v_max3_f32 v{F+8}, v{V_M}, v{F+2}, v{F+4}
    v_max_f32 v{F+8}, v{F+8}, v{F+6}
    v_sub_f32 v{F+10}, v{V_M}, v{F+8}
    v_sub_f32 v{F+12}, v{F+2}, v{F+8}
    v_sub_f32 v{F+14}, v{F+4}, v{F+8}
    v_sub_f32 v{F+16}, v{F+6}, v{F+8}
    v_exp_f32 v{F+10}, v{F+10}
    v_exp_f32 v{F+12}, v{F+12}
    v_exp_f32 v{F+14}, v{F+14}
    v_exp_f32 v{F+16}, v{F+16}
    v_mul_f32 v{F+18}, v{F+10}, v{V_L}
    v_fma_f32 v{F+18}, v{F+12}, v{F+3}, v{F+18}
    v_fma_f32 v{F+18}, v{F+14}, v{F+5}, v{F+18}
    v_fma_f32 v{F+18}, v{F+16}, v{F+7}, v{F+18}
    v_rcp_f32 v{F+18}, v{F+18}
    v_mul_f32 v{F+10}, v{F+10}, v{F+18}
    v_mul_f32 v{F+12}, v{F+12}, v{F+18}
    v_mul_f32 v{F+14}, v{F+14}, v{F+18}
    v_mul_f32 v{F+16}, v{F+16}, v{F+18}
    """)
    mt(6)
    for i in range(0, 16, 2):
        a(f"v_pk_mul_f32 v[{V_O+i}:{V_O+i+1}], v[{V_O+i}:{V_O+i+1}], v[{F+10}:{F+11}] op_sel_hi:[1,0]")
    for j in range(1, 4):
        a(f"s_waitcnt lgkmcnt({12 - 4*j})")
        for i in range(0, 16, 2):
            a(f"v_pk_fma_f32 v[{V_O+i}:{V_O+i+1}], v[{V_O+16*j+i}:{V_O+16*j+i+1}], v[{F+10+2*j}:{F+11+2*j}], v[{V_O+i}:{V_O+i+1}] op_sel_hi:[1,0,1]")
    mt(7)
    for rq in range(4):
        a(f"v_cvt_pk_bf16_f32 v{F+20+2*rq}, v{V_O+4*rq}, v{V_O+4*rq+1}")
        a(f"v_cvt_pk_bf16_f32 v{F+20+2*rq+1}, v{V_O+4*rq+2}, v{V_O+4*rq+3}")
    for rq in range(4):
        a(f"buffer_store_dwordx2 v[{F+20+2*rq}:{F+20+2*rq+1}], v{A0}, s[24:27], s79 offen offset:{rq*256}")
    stamp(a, 3)
    tr2(41)
    trace_dump(a, 167, 100, S_W, V_LANE, 1)
    if OPT.get("lt"):
        a("s_waitcnt lgkmcnt(0)")
        a(f"s_lshl_b32 s3, s2, 4")
        a(f"s_add_u32 s3, s3, s{S_W}")
        a(f"s_lshl_b32 s3, s3, 8")
        a(f"s_add_u32 s3, s3, {(24 << 20) + (1 << 20)}")
        a("v_mov_b32 v102, s3")
        for i in range(11):
            a(f"v_mov_b32 v100, s{80+2*i}")
            a(f"buffer_store_dword v100, v102, s[24:27], 0 offen offset:{4*i}")
            a("s_waitcnt vmcnt(0)")
    if OPT["stamps"]: a("s_memtime s[90:91]")
    stamp_flush(a, 6, 100, S_W, 0)
    a("s_endpgm")
    a.label("L_slow_first")
    a(f"v_cndmask_b32 v{V_M}, v{V_M}, v{V_T0}, vcc")
    a(f"s_mov_b64 s[{S_SLOW}:{S_SLOW+1}], -1")
    a(f"v_add_f32 v{V_THR}, s{S_TC}, v{V_M}")
    a("s_branch L_slow_sub")
    a.label("L_slow")
    a("s_cbranch_vccz L_slow_sub")
    a(f"v_max_f32 v{V_T1}, v{V_M}, v{V_T0}")
    a(f"v_cndmask_b32 v{V_T1}, v{V_M}, v{V_T1}, vcc")
    a.label("L_slow_upd")
    a(f"""
    s_mov_b64 s[{S_SLOW}:{S_SLOW+1}], -1
    v_sub_f32 v{V_T2}, v{V_M}, v{V_T1}
    v_exp_f32 v{V_T2}, v{V_T2}
    v_mov_b32 v{V_M}, v{V_T1}
    v_add_f32 v{V_THR}, s{S_TC}, v{V_T1}
    v_mul_f32 v{V_L}, v{V_L}, v{V_T2}
    """)
    for i in range(64):
        a(f"v_mul_f32 v{V_O+i}, v{V_T2}, v{V_O+i}")
    a.label("L_slow_sub")
    for i in range(16):
        a(f"v_sub_f32 v{V_S+i}, v{V_S+i}, v{V_M}")
    a("s_nop 1")
    a(f"s_setpc_b64 s[{S_RET}:{S_RET+1}]")
    a.label("L_k1_end")
    a("s_endpgm")
    return a

def build():
    k1 = gen_k1().finalize()
    k2 = G1.gen_k2().finalize()
    h1, d1 = kernel_text("gqa_attn_kernel", k1, 168)
    h2, d2 = kernel_text("gqa_oproj_kernel", k2, 112)
    hdr = open("concat_heads__gqa_block_cached__gqa_block_cached__near_ridge.s.ref").read().split("; Override")[0]
    txt = hdr
    he = de = ""
    if OPT.get("empty"):
        he, de = kernel_text("empty_kernel", "    s_endpgm\n", 8, sgpr=16)
        de = ".p2align 6\n" + de
    if OPT.get("empty") == 1:
        txt += "; @launch kernel=empty_kernel grid=(256,1,1) block=(64,1,1) lds=0\n"
    txt += "; @launch kernel=gqa_attn_kernel grid=(256,1,1) block=(768,1,1) lds=163840\n"
    txt += "; @launch kernel=gqa_oproj_kernel grid=(256,1,1) block=(512,1,1) lds=98304\n"
    if OPT.get("empty") == 2:
        txt += "; @launch kernel=empty_kernel grid=(256,1,1) block=(64,1,1) lds=0\n"
    if OPT.get("empty") == 3:
        txt += "; @launch kernel=empty_kernel grid=(256,1,1) block=(64,1,1) lds=0\n" * 4
    txt += '.amdgcn_target "amdgcn-amd-amdhsa--gfx950"\n.text\n' + h1 + h2 + he
    txt += '.section .rodata,"a"\n.p2align 6\n' + d1 + ".p2align 6\n" + d2 + de
    return txt

if __name__ == "__main__":
    out = sys.argv[1]
    for kv in sys.argv[2:]:
        k, v = kv.split("=")
        OPT[k] = int(v, 0)
    open(out, "w").write(build())
    print("wrote", out)
```

```python
import sys, math, struct
from asmlib import *
import gen as G1
G1.OPT["stamp_off"] = 48 << 20
from gen import f2u, load_ptrs, srd, AREA, C_SCALE, T_LOG2

OPT = G1.OPT
stamp, stamp_flush, trace, trace_dump = G1.stamp, G1.stamp_flush, G1.trace, G1.trace_dump
NT = G1.NT

O_OFF = 0
FLAG_OFF = 8 << 20
PART_OFF = 16 << 20
TOK_A, TOK_B = 0x5EED0A01, 0x5EED0B02
SPIN_MAX = 1 << 18

def gen_k1():
    a = Asm()
    S_BP, S_NT8, S_G1, S_G2 = 54, 55, 58, 59
    S_W, S_BLK, S_G, S_B, S_HP, S_KQ, S_QT = 28, 29, 30, 31, 32, 33, 34
    S_C, S_NC, S_TC = 35, 36, 37
    S_RET = 38
    S_SLOW = 50
    T_HI, T_LO = 16.0, 64.0
    S_T0, S_T1, S_T2, S_T3 = 41, 42, 43, 44
    S_WQB, S_XB, S_KVB = 45, 46, 47
    S_CNT, S_SLOT = 75, 78
    V_O, V_Q, V_S, V_F, V_KA, V_VA = 0, 64, 96, 112, 144, 152
    V_M, V_L, V_NMC, V_THR, V_T0, V_T1, V_T2, V_LANE, V_DOFF = 156, 157, 158, 159, 160, 161, 162, 163, 164
    L = V_LANE

    def group_ids():
        a(f"""
        s_lshr_b32 s{S_BP}, s{S_B}, 1
        s_and_b32 s{S_NT8}, s{S_B}, 1
        s_lshl_b32 s{S_NT8}, s{S_NT8}, 2
        s_add_u32 s{S_NT8}, s{S_NT8}, s{S_HP}
        s_lshl_b32 s{S_G1}, s{S_BLK}, 2
        s_add_u32 s{S_G1}, s{S_G1}, s{S_G}
        s_lshl_b32 s{S_G1}, s{S_G1}, 2
        s_add_u32 s{S_G1}, s{S_G1}, s{S_BP}
        s_lshl_b32 s{S_G2}, s{S_BLK}, 2
        s_add_u32 s{S_G2}, s{S_G2}, s{S_BP}
        s_lshl_b32 s{S_G2}, s{S_G2}, 3
        s_add_u32 s{S_G2}, s{S_G2}, s{S_NT8}
        """)
    a("s_cmp_ge_u32 s2, 256")
    a("s_cbranch_scc1 L_k1_end")
    stamp(a, 0)
    if OPT["stamps"]: a("s_memtime s[88:89]")
    load_ptrs(a)
    if OPT.get("trace"):
        a("v_mov_b32 v120, 0")
        a("v_mov_b32 v167, 0")
        trace(a, 120, idx_imm=63)
    a(f"""
    v_lshrrev_b32 v1, 6, v0
    v_and_b32 v{L}, 63, v0
    s_and_b32 s3, s2, 7
    v_readfirstlane_b32 s{S_W}, v1
    s_lshr_b32 s{S_BLK}, s3, 2
    s_and_b32 s{S_G}, s3, 3
    s_lshr_b32 s3, s2, 3
    s_lshr_b32 s{S_B}, s3, 2
    s_and_b32 s{S_HP}, s3, 3
    s_and_b32 s{S_KQ}, s{S_W}, 3
    s_lshr_b32 s{S_QT}, s{S_W}, 2
    s_lshl_b32 s{S_WQB}, s{S_G}, 11
    s_lshl_b32 s3, s{S_HP}, 9
    s_add_u32 s{S_WQB}, s{S_WQB}, s3
    s_mul_i32 s{S_XB}, s{S_B}, {48*2048}
    s_cmp_ge_u32 s{S_W}, 8
    s_cbranch_scc1 L_p1_compute
    """)
    a(f"""
    v_lshrrev_b32 v5, 5, v{L}
    v_and_b32 v6, 31, v{L}
    s_and_b32 s{S_T1}, s{S_W}, 1
    s_lshl_b32 s{S_T1}, s{S_T1}, 2
    v_or_b32 v7, s{S_T1}, v5
    v_lshlrev_b32 v8, 1, v7
    v_xor_b32 v8, v8, v6
    v_lshlrev_b32 v8, 4, v8
    v_lshlrev_b32 v9, 13, v5
    v_add_u32 v2, v9, v8
    v_xor_b32 v8, 64, v8
    v_add_u32 v3, v9, v8
    s_mul_i32 s{S_T1}, s{S_W}, 6
    v_lshrrev_b32 v5, 3, v{L}
    v_add_u32 v5, s{S_T1}, v5
    v_lshrrev_b32 v6, 1, v5
    v_xor_b32 v6, v6, v{L}
    v_and_b32 v6, 7, v6
    v_lshlrev_b32 v6, 4, v6
    v_lshlrev_b32 v5, 11, v5
    v_add_u32 v4, v5, v6
    s_lshl_b32 s{S_T2}, s{S_W}, 16
    s_add_u32 s{S_WQB}, s{S_WQB}, s{S_T2}
    s_lshl_b32 s{S_T2}, s{S_W}, 12
    s_mul_i32 s{S_T3}, s{S_W}, 768
    s_add_u32 s{S_T3}, s{S_T3}, 32768
    s_cmp_eq_u32 s{S_BLK}, 0
    s_waitcnt lgkmcnt(0)
    """)
    srd(a, 8, 48, 58, 8*48*1024*2)
    srd(a, 12, 54, 64, 1024*4096*2)
    def issue_tile():
        a(f"""
        s_add_u32 s3, s{S_CNT}, s{S_B}
        s_and_b32 s3, s3, 7
        s_and_b32 s76, s{S_CNT}, 8
        s_or_b32 s3, s3, s76
        s_lshl_b32 s76, s3, 19
        s_add_u32 s76, s76, s{S_WQB}
        s_add_u32 s77, s{S_SLOT}, s{S_T2}
        """)
        for q in range(4):
            a(f"s_add_u32 m0, s77, {q*1024}")
            if q: a(f"s_add_u32 s76, s76, {2*8192}")
            a(f"buffer_load_dwordx4 v{2 + (q & 1)}, s[12:15], s76 offen {NT()}lds")
        a(f"""
        s_lshl_b32 s76, s3, 7
        s_add_u32 s76, s76, s{S_XB}
        s_add_u32 m0, s{S_SLOT}, s{S_T3}
        s_mov_b32 exec_hi, 0xffff
        buffer_load_dwordx4 v4, s[8:11], s76 offen {NT()}lds
        s_mov_b32 exec_hi, -1
        """)
    a(f"s_mov_b32 s{S_CNT}, 0")
    a(f"s_mov_b32 s{S_SLOT}, 0")
    issue_tile()
    a(f"s_mov_b32 s{S_CNT}, 1")
    a(f"s_mov_b32 s{S_SLOT}, {AREA}")
    issue_tile()
    a(f"s_mov_b32 s{S_CNT}, 2")
    a(f"s_mov_b32 s{S_SLOT}, {2*AREA}")
    a(f"s_cmp_eq_u32 s{S_BLK}, 0")
    srd(a, 16, 50, 60, 8*4*1024*128*2)
    srd(a, 20, 52, 62, 8*4*1024*128*2)
    srd(a, 24, 72, 72, 1 << 28, sel=False)
    group_ids()
    a(f"""
    s_lshl_b32 s3, s{S_B}, 2
    s_add_u32 s3, s3, s{S_G}
    s_lshl_b32 s{S_KVB}, s3, 18
    s_lshl_b32 s3, s{S_KQ}, 16
    s_add_u32 s{S_KVB}, s{S_KVB}, s3
    v_lshrrev_b32 v5, 4, v{L}
    v_and_b32 v6, 15, v{L}
    v_lshlrev_b32 v7, 8, v5
    v_xor_b32 v8, v6, v5
    v_lshlrev_b32 v9, 4, v8
    v_add_u32 v{V_DOFF}, v7, v9
    v_xor_b32 v9, 64, v9
    v_add_u32 v{V_DOFF+1}, v7, v9
    v_xor_b32 v9, 0xc0, v9
    v_add_u32 v{V_DOFF+2}, v7, v9
    v_xor_b32 v9, 64, v9
    v_add_u32 v{V_DOFF+3 if not OPT.get("trace") else V_T2}, v7, v9
    s_cmp_eq_u32 s{S_QT}, 0
    s_cbranch_scc1 L_voff_done
    v_lshlrev_b32 v8, 2, v5
    v_xor_b32 v8, v8, v6
    v_lshlrev_b32 v8, 4, v8
    v_add_u32 v{V_DOFF}, v7, v8
    L_voff_done:
    """)
    a.label("L_p1_ld_loop")
    a("s_waitcnt vmcnt(5)")
    trace(a, 120, idx_sreg=S_CNT)
    a("s_barrier")
    if OPT.get("trace"): a(f"s_add_u32 s94, s{S_CNT}, 16")
    trace(a, 120, idx_sreg=94)
    issue_tile()
    if OPT.get("trace"): a(f"s_add_u32 s94, s{S_CNT}, 32")
    trace(a, 120, idx_sreg=94)
    a(f"""
    s_add_u32 s{S_SLOT}, s{S_SLOT}, {AREA}
    s_cmp_eq_u32 s{S_SLOT}, {3*AREA}
    s_cselect_b32 s{S_SLOT}, 0, s{S_SLOT}
    s_add_u32 s{S_CNT}, s{S_CNT}, 1
    s_cmp_lt_u32 s{S_CNT}, 16
    s_cbranch_scc1 L_p1_ld_loop
    """)
    def tile_soff(step, dst):
        a(f"""
        s_add_u32 s{dst}, s{S_HP}, {step}
        s_and_b32 s{dst}, s{dst}, 3
        s_or_b32 s{dst}, s{dst}, {step & 4}
        s_lshl_b32 s{dst}, s{dst}, 13
        s_add_u32 s{dst}, s{dst}, s{S_KVB}
        """)
    def dma8(step, lds_off, voff_fn, srdb):
        tile_soff(step, 76)
        a(f"s_mul_i32 s77, s{S_KQ}, {AREA}")
        a(f"s_add_u32 m0, s77, {lds_off}")
        for q in range(8):
            if q == 4:
                a(f"s_add_u32 m0, s77, {lds_off + 4096}")
                a(f"s_add_u32 s76, s76, 4096")
            a(f"buffer_load_dwordx4 v{voff_fn(q)}, s[{srdb}:{srdb+3}], s76 offen offset:{(q & 3) * 1024} {NT()}lds")
    def issue_k(step):
        if OPT.get("trace"):
            a(f"v_xor_b32 v{V_T2}, 64, v{V_DOFF+2}")
            dma8(step, (step % 3) * 8192, lambda q: (V_DOFF + (q & 3)) if (q & 3) != 3 else V_T2, 16)
        else:
            dma8(step, (step % 3) * 8192, lambda q: V_DOFF + (q & 3), 16)
    def issue_v(step): dma8(step, 24576 + (step % 2) * 8192, lambda q: V_DOFF, 20)
    def call_early_if(kq):
        lab = a.newlabel("L_ne")
        a(f"s_cmp_eq_u32 s{S_KQ}, {kq}")
        a(f"s_cbranch_scc0 {lab}")
        a(f"s_call_b64 s[{S_RET}:{S_RET+1}], L_early")
        a.label(lab)
    a("s_waitcnt vmcnt(5)")
    call_early_if(3)
    a("s_barrier")
    call_early_if(1)
    a(f"""
    s_and_b32 s3, s{S_KQ}, 1
    s_cmp_eq_u32 s3, 1
    s_cbranch_scc1 L_w15_early
    s_waitcnt vmcnt(0)
    s_branch L_w15_done
    L_w15_early:
    s_cmp_eq_u32 s{S_QT}, 0
    s_cbranch_scc1 L_w15_k
    s_waitcnt vmcnt(8)
    s_branch L_w15_done
    L_w15_k:
    s_waitcnt vmcnt(16)
    L_w15_done:
    """)
    a("s_barrier")
    call_early_if(2)
    a("s_barrier")
    call_early_if(0)
    a("s_branch L_p1_join")
    a.label("L_early")
    a(f"s_cmp_eq_u32 s{S_QT}, 0")
    a("s_cbranch_scc0 L_early_v")
    issue_k(0)
    issue_k(1)
    a(f"s_setpc_b64 s[{S_RET}:{S_RET+1}]")
    a.label("L_early_v")
    issue_v(0)
    a(f"s_setpc_b64 s[{S_RET}:{S_RET+1}]")

    a.label("L_p1_compute")
    P_ACC, P_A, P_B, P_WA, P_XA = 0, 48, 80, 104, 108
    a(f"""
    v_lshrrev_b32 v110, 4, v{L}
    v_and_b32 v111, 15, v{L}
    v_lshrrev_b32 v112, 2, v111
    v_and_b32 v113, 3, v111
    v_lshlrev_b32 v114, 3, v110
    v_add_u32 v114, v114, v112
    v_lshlrev_b32 v114, 9, v114
    v_lshlrev_b32 v113, 3, v113
    v_add_u32 v114, v114, v113
    v_and_b32 v115, 1, v110
    v_lshlrev_b32 v115, 2, v115
    v_or_b32 v115, v115, v112
    s_lshl_b32 s{S_T0}, s{S_KQ}, 2
    """)
    for dt in range(4):
        a(f"s_add_u32 s{S_T1}, s{S_T0}, {dt}")
        a(f"v_xor_b32 v116, s{S_T1}, v115")
        a(f"v_lshlrev_b32 v116, 5, v116")
        a(f"v_add_u32 v{P_WA+dt}, v114, v116")
    a(f"""
    v_lshrrev_b32 v112, 1, v111
    v_xor_b32 v112, v112, v110
    v_lshlrev_b32 v112, 4, v112
    v_lshlrev_b32 v113, 7, v111
    v_add_u32 v112, v112, v113
    v_add_u32 v{P_XA}, 32768, v112
    v_xor_b32 v{P_XA+1}, 64, v{P_XA}
    """)
    for i in range(48):
        a(f"v_mov_b32 v{P_ACC+i}, 0")
    for i in range(4):
        a(f"v_mov_b32 v{V_DOFF+i}, 0")
    a(f"s_waitcnt lgkmcnt(0)")
    srd(a, 24, 72, 72, 1 << 28, sel=False)
    a(f"s_cmp_eq_u32 s{S_BLK}, 0")
    srd(a, 16, 50, 60, 8*4*1024*128*2)
    srd(a, 20, 52, 62, 8*4*1024*128*2)
    group_ids()
    a(f"s_cmp_eq_u32 s{S_W}, 8")
    a("s_cbranch_scc0 L_noclr")
    a(f"""
    s_mov_b32 s16, s70
    s_mov_b32 s17, s71
    s_mov_b32 s18, 256
    s_mov_b32 s19, 0x00020000
    s_lshl_b32 s3, s{S_G1}, 7
    s_lshl_b32 s76, s{S_NT8}, 2
    s_add_u32 s3, s3, s76
    s_add_u32 s3, s3, {FLAG_OFF}
    s_lshl_b32 s76, s{S_G2}, 7
    s_lshl_b32 s77, s{S_G}, 2
    s_add_u32 s76, s76, s77
    s_add_u32 s76, s76, {FLAG_OFF + 8192}
    v_mov_b32 v126, 0
    v_mov_b32 v127, 1
    s_mov_b64 exec, 1
    buffer_store_dword v126, v126, s[24:27], s3 offen sc1
    buffer_store_dword v126, v126, s[24:27], s76 offen sc1
    s_waitcnt vmcnt(0)
    s_and_b32 s3, s2, 15
    s_lshl_b32 s3, s3, 2
    buffer_atomic_add v127, v126, s[16:19], s3 offen sc1
    s_mov_b64 exec, -1
    L_noclr:
    """)
    a(f"s_mov_b32 s{S_KVB}, 0")
    a(f"s_mov_b32 s{S_CNT}, 0")
    a(f"s_mov_b32 s{S_SLOT}, 0")
    def rd_ks(ks):
        for dt in range(4):
            for hf in range(2):
                r = P_A + ks*16 + dt*4 + hf*2
                a(f"ds_read_b64_tr_b16 v[{r}:{r+1}], v{P_WA+dt} offset:{ks*16384 + hf*2048}")
    def rd_x(ks):
        for st in range(3):
            r = P_B + ks*12 + st*4
            a(f"ds_read_b128 v[{r}:{r+3}], v{P_XA+ks} offset:{st*2048}")
    def mm(ks):
        for dt in range(4):
            for st in range(3):
                ac = P_ACC + (dt*3+st)*4
                ra = P_A + ks*16 + dt*4; rb = P_B + ks*12 + st*4
                a(f"v_mfma_f32_16x16x32_bf16 v[{ac}:{ac+3}], v[{ra}:{ra+3}], v[{rb}:{rb+3}], v[{ac}:{ac+3}]")
    a.label("L_p1_c_loop")
    trace(a, 120, idx_sreg=S_CNT)
    a("s_barrier")
    if OPT.get("trace"): a(f"s_add_u32 s94, s{S_CNT}, 16")
    trace(a, 120, idx_sreg=94)
    rd_x(0); rd_ks(0)
    a(f"s_cmp_eq_u32 s{S_CNT}, 0")
    a("s_cbranch_scc1 L_p1_c_skip")
    mm(1)
    a.label("L_p1_c_skip")
    rd_x(1); rd_ks(1)
    a("s_waitcnt lgkmcnt(11)")
    mm(0)
    a(f"""
    s_add_u32 s{S_SLOT}, s{S_SLOT}, 1
    s_cmp_eq_u32 s{S_SLOT}, 3
    s_cselect_b32 s{S_SLOT}, 0, s{S_SLOT}
    s_mov_b32 s3, {AREA}
    s_cselect_b32 s3, {(-2*AREA) & 0xffffffff}, s3
    """)
    for r in list(range(P_WA, P_WA+4)) + [P_XA, P_XA+1]:
        a(f"v_add_u32 v{r}, s3, v{r}")
    a(f"""
    s_add_u32 s{S_CNT}, s{S_CNT}, 1
    s_cmp_lt_u32 s{S_CNT}, 16
    s_waitcnt lgkmcnt(0)
    s_cbranch_scc1 L_p1_c_loop
    s_barrier
    """)
    mm(1)
    a(f"""
    s_mov_b32 s{S_C}, {f2u(C_SCALE)}
    v_lshrrev_b32 v110, 4, v{L}
    v_and_b32 v111, 15, v{L}
    v_lshlrev_b32 v112, 8, v111
    v_and_b32 v113, 1, v110
    v_lshlrev_b32 v113, 3, v113
    v_add_u32 v112, v112, v113
    v_lshrrev_b32 v113, 1, v110
    s_and_b32 s{S_T0}, s{S_KQ}, 1
    s_lshl_b32 s{S_T0}, s{S_T0}, 3
    v_add_u32 v113, s{S_T0}, v113
    s_lshr_b32 s{S_T1}, s{S_KQ}, 1
    s_cmp_eq_u32 s{S_T1}, 0
    s_mov_b32 s76, {2*AREA+16384+4096}
    s_mov_b32 s77, {3*AREA+16384}
    s_mov_b32 s78, {3*AREA+16384+4096}
    s_cselect_b32 s76, {1*AREA+16384}, s76
    s_cselect_b32 s77, {1*AREA+16384+4096}, s77
    s_cselect_b32 s78, {2*AREA+16384}, s78
    """)
    for dt in range(4):
        a(f"v_add_u32 v114, {2*dt}, v113")
        a(f"v_xor_b32 v114, v114, v111")
        a(f"v_lshlrev_b32 v114, 4, v114")
        a(f"v_add_u32 v114, v114, v112")
        for st in range(3):
            ac = P_ACC + (dt*3+st)*4
            t = 116 + 2*(st & 1)
            for e in range(4): a(f"v_mul_f32 v{ac+e}, s{S_C}, v{ac+e}")
            a(f"v_cvt_pk_bf16_f32 v{t}, v{ac}, v{ac+1}")
            a(f"v_cvt_pk_bf16_f32 v{t+1}, v{ac+2}, v{ac+3}")
            a(f"v_add_u32 v{123+st}, s{76+st}, v114")
            a(f"ds_write_b64 v{123+st}, v[{t}:{t+1}]")
    a("s_waitcnt lgkmcnt(0)")

    a.label("L_p1_join")
    trace(a, 120, idx_imm=60)
    a("s_barrier")
    trace(a, 120, idx_imm=61)
    trace_dump(a, 120, 121, S_W, V_LANE, 0)
    if OPT.get("trace"): a("v_mov_b32 v167, 0")
    stamp(a, 1)
    a(f"""
    s_mov_b32 s{S_TC}, {f2u(T_HI)}
    s_mov_b32 s{S_NC}, {f2u(-T_LO)}
    s_mov_b64 s[{S_SLOW}:{S_SLOW+1}], 0
    v_and_b32 v{V_T0}, 31, v{L}
    v_lshlrev_b32 v{V_T0}, 8, v{V_T0}
    v_lshrrev_b32 v{V_T1}, 5, v{L}
    v_and_b32 v{V_T2}, 15, v{L}
    v_xor_b32 v{V_T1}, v{V_T1}, v{V_T2}
    v_lshlrev_b32 v{V_T1}, 4, v{V_T1}
    v_add_u32 v{V_T0}, v{V_T0}, v{V_T1}
    s_add_u32 s3, s{S_QT}, 1
    s_mul_i32 s3, s3, {AREA}
    s_add_u32 s3, s3, 16384
    s_mul_i32 s76, s{S_KQ}, {AREA}
    """)
    for st8 in range(8):
        a(f"v_xor_b32 v{V_T1}, {st8 << 5}, v{V_T0}")
        a(f"v_add_u32 v{V_F+st8}, s3, v{V_T1}")
        a(f"v_add_u32 v{V_KA+st8}, s76, v{V_T1}")
        a(f"ds_read_b128 v[{V_Q+4*st8}:{V_Q+4*st8+3}], v{V_F+st8}")
    a(f"""
    v_lshrrev_b32 v{V_T0}, 5, v{L}
    v_lshlrev_b32 v{V_T0}, 2, v{V_T0}
    v_bfe_u32 v{V_T1}, v{L}, 2, 2
    v_add_u32 v{V_T0}, v{V_T0}, v{V_T1}
    v_lshlrev_b32 v{V_T0}, 8, v{V_T0}
    v_bfe_u32 v{V_T2}, v{L}, 4, 1
    v_lshlrev_b32 v{V_T2}, 5, v{V_T2}
    v_add_u32 v{V_T0}, v{V_T0}, v{V_T2}
    v_and_b32 v{V_T2}, 3, v{L}
    v_lshlrev_b32 v{V_T2}, 3, v{V_T2}
    v_add_u32 v{V_T0}, v{V_T0}, v{V_T2}
    s_add_u32 s76, s76, 24576
    v_add_u32 v{V_T0}, s76, v{V_T0}
    """)
    for j in range(4):
        a(f"s_add_u32 s3, s{S_KQ}, {j}")
        a(f"s_and_b32 s3, s3, 3")
        a(f"v_xor_b32 v{V_T2}, s3, v{V_T1}")
        a(f"v_lshlrev_b32 v{V_T2}, 6, v{V_T2}")
        a(f"v_add_u32 v{V_VA+j}, v{V_T0}, v{V_T2}")
    for i in range(64):
        a(f"v_mov_b32 v{V_O+i}, 0")
    a(f"""
    v_mov_b32 v{V_M}, 0
    v_mov_b32 v{V_THR}, s{S_TC}
    v_mov_b32 v{V_L}, 0
    s_waitcnt lgkmcnt(0)
    """)

    S = V_S
    def tr2(idx):
        lt = OPT.get("lt")
        if lt and idx < 36:
            i, k = idx // 4, idx % 4
            if (lt == 1 and k == 1) or (lt == 2 and k == 0) or (lt == 3 and k == 2):
                a(f"s_memtime s[{80+2*i}:{81+2*i}]")
        if lt and idx == 41: a("s_memtime s[98:99]")
        if lt and idx == 40: a("s_memtime s[100:101]")
        if not OPT.get("trace"): return
        trace(a, 120 if False else 167, idx_imm=idx)
    def rd_k(step, st8):
        a(f"ds_read_b128 v[{V_F+4*st8}:{V_F+4*st8+3}], v{V_KA+st8} offset:{(step % 3) * 8192}")
    def rd_v(step, f):
        t, j = f // 4, f % 4
        for hf in range(2):
            r = V_F + 4*f + 2*hf
            a(f"ds_read_b64_tr_b16 v[{r}:{r+1}], v{V_VA+j} offset:{(step % 2) * 8192 + (16*t + 8*hf)*256}")
    def qk(step, pending_k):
        for st8 in range(8):
            a(f"s_waitcnt lgkmcnt({7 - st8 if st8 < 2 else min(15, 7 - st8 + 2*(st8-1))})")
            c = "0" if st8 == 0 else f"v[{S}:{S+15}]"
            a(f"v_mfma_f32_32x32x16_bf16 v[{S}:{S+15}], v[{V_F+4*st8}:{V_F+4*st8+3}], v[{V_Q+4*st8}:{V_Q+4*st8+3}], {c}")
            if st8 >= 1: rd_v(step, st8 - 1)
        rd_v(step, 7)
    def softmax_half(half):
        for i in range(8*half, 8*half+8):
            a(f"v_exp_f32 v{S+i}, v{S+i}")
        for i in range(8*half, 8*half+8):
            a(f"v_add_f32 v{V_L}, v{V_L}, v{S+i}")
        for j in range(4*half, 4*half+4):
            a(f"v_cvt_pk_bf16_f32 v{S+j}, v{S+2*j}, v{S+2*j+1}")
    def softmax_max(lab, first=False):
        a(f"v_max3_f32 v{V_T0}, v{S}, v{S+1}, v{S+2}")
        a(f"v_max3_f32 v{V_T1}, v{S+3}, v{S+4}, v{S+5}")
        a(f"v_max3_f32 v{V_T0}, v{V_T0}, v{S+6}, v{S+7}")
        a(f"v_max3_f32 v{V_T1}, v{V_T1}, v{S+8}, v{S+9}")
        a(f"v_max3_f32 v{V_T0}, v{V_T0}, v{S+10}, v{S+11}")
        a(f"v_max3_f32 v{V_T1}, v{V_T1}, v{S+12}, v{S+13}")
        a(f"v_max3_f32 v{V_T0}, v{V_T0}, v{S+14}, v{S+15}")
        a(f"v_max_f32 v{V_T0}, v{V_T0}, v{V_T1}")
        a(f"v_mov_b32 v{V_T1}, v{V_T0}")
        a(f"v_permlane32_swap_b32 v{V_T0}, v{V_T1}")
        a(f"v_max_f32 v{V_T0}, v{V_T0}, v{V_T1}")
        a(f"v_cmp_gt_f32 vcc, v{V_T0}, v{V_THR}")
        if first:
            a(f"v_cmp_gt_f32 s[52:53], s{S_NC}, v{V_T0}")
            a(f"s_or_b64 vcc, vcc, s[52:53]")
        a(f"s_or_b64 s[52:53], vcc, s[{S_SLOW}:{S_SLOW+1}]")
        a(f"s_cbranch_scc0 {lab}")
        a(f"s_call_b64 s[{S_RET}:{S_RET+1}], L_slow{'_first' if first else ''}")
        a.label(lab)
    def pv_mfma(f):
        t, j = f // 4, f % 4
        o = V_O + 16*j
        a(f"v_mfma_f32_32x32x16_bf16 v[{o}:{o+15}], v[{V_F+4*f}:{V_F+4*f+3}], v[{S+4*t}:{S+4*t+3}], v[{o}:{o+15}]")
    def pv_then_k(next_step):
        for f in range(8):
            pv_mfma(f)
            if next_step is not None and f >= 1: rd_k(next_step, f - 1)
        if next_step is not None: rd_k(next_step, 7)

    PR = OPT.get("prio", 1)
    def prio(p):
        if PR: a(f"s_setprio {p}")
    a(f"s_cmp_eq_u32 s{S_QT}, 1")
    a("s_cbranch_scc1 L_typeA")
    a(f"s_cmp_eq_u32 s{S_QT}, 2")
    a("s_cbranch_scc1 L_typeC")
    for i in range(8):
        a(f"s_waitcnt vmcnt({8 if i < 7 else 0})")
        tr2(4*i)
        a("s_barrier")
        tr2(4*i+1)
        prio(1)
        if i == 0:
            for st8 in range(8): rd_k(0, st8)
        else:
            pv_then_k(i)
        if i + 2 < 8: issue_k(i + 2)
        qk(i, 0)
        tr2(4*i+2)
        prio(2)
        softmax_max(f"L_D{i}", first=(i == 0))
        softmax_half(0); softmax_half(1)
        a("s_waitcnt lgkmcnt(0)")
    tr2(32)
    a("s_barrier")
    pv_then_k(None)
    a("s_branch L_merge")
    a.label("L_typeA")
    for i in range(8):
        a(f"s_waitcnt vmcnt(0)")
        tr2(4*i)
        a("s_barrier")
        tr2(4*i+1)
        prio(3)
        for st8 in range(8): rd_k(i, st8)
        if i + 1 < 8: issue_v(i + 1)
        qk(i, 0)
        tr2(4*i+2)
        prio(2)
        softmax_max(f"L_A{i}", first=(i == 0))
        softmax_half(0); softmax_half(1)
        prio(0)
        for f in range(8):
            a(f"s_waitcnt lgkmcnt({min(15, 2*(7-f))})")
            pv_mfma(f)
    tr2(32)
    a("s_barrier")
    a("s_branch L_merge")
    a.label("L_typeC")
    for i in range(9):
        tr2(4*i)
        a("s_barrier")
        tr2(4*i+1)
        prio(2)
        if i == 0:
            for st8 in range(8): rd_k(0, st8)
        else:
            softmax_max(f"L_C{i}", first=(i == 1))
            softmax_half(0); softmax_half(1)
            pv_then_k(i if i < 8 else None)
        if i < 8:
            prio(1)
            qk(i, 0)
            a("s_waitcnt lgkmcnt(0)")
    def spin(label, load_lines, cmp_val, vreg):
        a(f"s_mov_b32 s{S_CNT}, 0")
        a.label(label)
        a(load_lines)
        a("s_waitcnt vmcnt(0)")
        a(f"v_cmp_ne_u32 vcc, s3, v{vreg}" if cmp_val is None else f"v_cmp_ne_u32 vcc, {cmp_val}, v{vreg}")
        a(f"s_cbranch_vccz {label}_ok")
        a(f"s_add_u32 s{S_CNT}, s{S_CNT}, 1")
        a(f"s_cmp_lt_u32 s{S_CNT}, {SPIN_MAX}")
        a("s_sleep 1")
        a(f"s_cbranch_scc1 {label}")
        a.label(f"{label}_ok")

    def gen_tail():
        T_ACC, T_FR, T_AA, T_BA, T_DOFF, T_X = 0, 48, 112, 113, 114, 116
        S_WOB, S_OB, S_ST = 45, 46, 47
        def ts(i):
            if OPT.get("lt") == 5: a(f"s_memtime s[{80+2*i}:{81+2*i}]")
        ts(0)
        a(f"s_cmp_eq_u32 s{S_BLK}, 0")
        srd(a, 12, 56, 66, 4096*1024*2)
        srd(a, 8, 68, 68, 8*48*2048*2, sel=False)
        a(f"""
        s_mov_b32 s16, s70
        s_mov_b32 s17, s71
        s_mov_b32 s18, 256
        s_mov_b32 s19, 0x00020000
        s_lshl_b32 s{S_WOB}, s{S_G}, 21
        s_lshl_b32 s3, s{S_NT8}, 8
        s_add_u32 s{S_WOB}, s{S_WOB}, s3
        s_mul_i32 s{S_OB}, s{S_G1}, {192*1024}
        s_add_u32 s{S_OB}, s{S_OB}, {O_OFF}
        s_cmp_ge_u32 s{S_W}, 8
        s_cbranch_scc1 L_t_compute
        """)
        a(f"""
        v_lshrrev_b32 v{T_X}, 4, v{L}
        v_and_b32 v{T_X+1}, 15, v{L}
        v_lshlrev_b32 v{T_X+2}, 2, v{T_X}
        v_xor_b32 v{T_X+2}, v{T_X+2}, v{T_X+1}
        v_lshlrev_b32 v{T_X+2}, 4, v{T_X+2}
        v_lshlrev_b32 v{T_X}, 11, v{T_X}
        v_add_u32 v{T_DOFF}, v{T_X}, v{T_X+2}
        v_lshlrev_b32 v{T_DOFF+1}, 4, v{L}
        s_lshl_b32 s{S_T0}, s{S_W}, 15
        s_add_u32 s{S_WOB}, s{S_WOB}, s{S_T0}
        s_lshl_b32 s{S_T2}, s{S_W}, 12
        s_mul_i32 s{S_T3}, s{S_W}, 3072
        s_add_u32 s{S_OB}, s{S_OB}, s{S_T3}
        """)
        def issue_wo(st_sreg_or_imm, slot):
            if isinstance(st_sreg_or_imm, int):
                a(f"s_lshl_b32 s3, s{S_BP}, 1")
                a(f"s_add_u32 s3, s3, {st_sreg_or_imm}")
            a(f"s_and_b32 s3, s3, 7")
            a(f"s_lshl_b32 s76, s3, 18")
            a(f"s_add_u32 s76, s76, s{S_WOB}")
            a(f"s_add_u32 s77, s{S_T2}, {slot*32768}")
            for q in range(4):
                a(f"s_add_u32 m0, s77, {q*1024}")
                if q: a(f"s_add_u32 s76, s76, {4*2048}")
                a(f"buffer_load_dwordx4 v{T_DOFF}, s[12:15], s76 offen lds")
        def issue_o(st, slot):
            a(f"s_lshl_b32 s3, s{S_BP}, 1")
            a(f"s_add_u32 s3, s3, {st}")
            a(f"s_and_b32 s3, s3, 7")
            a(f"s_mul_i32 s76, s3, 24576")
            a(f"s_add_u32 s76, s76, s{S_OB}")
            a(f"s_add_u32 m0, s{S_T3}, {98304 + slot*24576}")
            for q in range(3):
                a(f"buffer_load_dwordx4 v{T_DOFF+1}, s[24:27], s76 offen offset:{q*1024} sc1 lds")
        for st in range(3): issue_wo(st, st)
        a("s_waitcnt vmcnt(12)")
        ts(1)
        a("s_barrier")
        a("s_barrier")
        ts(2)
        issue_o(0, 0); issue_o(1, 1)
        for st in range(8):
            n = 3 if st == 0 else (0 if st in (1, 7) else 4)
            a(f"s_waitcnt vmcnt({n})")
            a("s_barrier")
            if st >= 1:
                if st + 1 <= 7: issue_o(st + 1, (st + 1) % 2)
                if st + 2 <= 7: issue_wo(st + 2, (st + 2) % 3)
        ts(3)
        a("s_branch L_t_join")
        a.label("L_t_compute")
        a(f"""
        v_lshrrev_b32 v{T_X}, 5, v{L}
        v_lshlrev_b32 v{T_X}, 3, v{T_X}
        v_bfe_u32 v{T_X+1}, v{L}, 2, 2
        v_add_u32 v{T_X}, v{T_X}, v{T_X+1}
        v_lshlrev_b32 v{T_X}, 8, v{T_X}
        v_bfe_u32 v{T_X+2}, v{L}, 4, 1
        v_lshlrev_b32 v{T_X+2}, 5, v{T_X+2}
        v_add_u32 v{T_X}, v{T_X}, v{T_X+2}
        v_and_b32 v{T_X+2}, 3, v{L}
        v_lshlrev_b32 v{T_X+2}, 3, v{T_X+2}
        v_add_u32 v{T_X}, v{T_X}, v{T_X+2}
        v_xor_b32 v{T_X+2}, s{S_KQ}, v{T_X+1}
        v_lshlrev_b32 v{T_X+2}, 6, v{T_X+2}
        v_add_u32 v{T_AA}, v{T_X}, v{T_X+2}
        v_lshlrev_b32 v{T_BA}, 4, v{L}
        v_add_u32 v{T_BA}, 98304, v{T_BA}
        """)
        for i in range(48):
            a(f"v_mov_b32 v{T_ACC+i}, 0")
        a("s_waitcnt vmcnt(0)")
        ts(1)
        a("s_barrier")
        a(f"s_cmp_eq_u32 s{S_W}, 8")
        a("s_cbranch_scc0 L_t_nopoll1")
        a(f"""
        s_lshl_b32 s3, s{S_G1}, 7
        s_add_u32 s76, s3, {FLAG_OFF}
        s_lshl_b32 s3, s{S_NT8}, 2
        s_add_u32 s77, s76, s3
        v_mov_b32 v{T_X}, 0
        v_mov_b32 v{T_X+1}, {TOK_A}
        s_mov_b64 exec, 1
        buffer_store_dword v{T_X+1}, v{T_X}, s[24:27], s77 offen sc1
        s_mov_b64 exec, -1
        v_and_b32 v{T_X}, 15, v{L}
        v_lshlrev_b32 v{T_X}, 2, v{T_X}
        v_and_b32 v{T_X+2}, 7, v{L}
        v_lshlrev_b32 v{T_X+2}, 2, v{T_X+2}
        """)
        spin("L_spin_dbg", f"buffer_load_dword v{T_X+1}, v{T_X}, s[16:19], 0 offen sc1", 16, T_X+1)
        a(f"s_mov_b32 s3, {TOK_A}")
        spin("L_spin_a", f"buffer_load_dword v{T_X+1}, v{T_X+2}, s[24:27], s76 offen sc1", None, T_X+1)
        a.label("L_t_nopoll1")
        a("s_barrier")
        ts(2)
        def rd(j):
            b = T_FR + 16*(j % 4)
            for hf in range(2):
                a(f"ds_read_b64_tr_b16 v[{b+2*hf}:{b+2*hf+1}], v{T_AA} offset:{j*4096 + hf*1024}")
            for m in range(3):
                a(f"ds_read_b128 v[{b+4+4*m}:{b+7+4*m}], v{T_BA} offset:{(j*3+m)*1024}")
        def mm3(j):
            b = T_FR + 16*(j % 4)
            for m in range(3):
                ac = T_ACC + 16*m
                a(f"v_mfma_f32_32x32x16_bf16 v[{ac}:{ac+15}], v[{b}:{b+3}], v[{b+4+4*m}:{b+7+4*m}], v[{ac}:{ac+15}]")
        a(f"s_mov_b32 s{S_ST}, 0")
        a(f"s_mov_b32 s{S_SLOT}, 0")
        a.label("L_t_loop")
        a("s_barrier")
        rd(0); rd(1)
        a(f"s_cmp_eq_u32 s{S_ST}, 0")
        a("s_cbranch_scc1 L_t_skip")
        mm3(6); mm3(7)
        a.label("L_t_skip")
        for j in range(6):
            rd(j + 2)
            a("s_waitcnt lgkmcnt(10)")
            mm3(j)
        a(f"""
        s_add_u32 s{S_SLOT}, s{S_SLOT}, 1
        s_cmp_eq_u32 s{S_SLOT}, 3
        s_cselect_b32 s{S_SLOT}, 0, s{S_SLOT}
        s_mov_b32 s3, 32768
        s_cselect_b32 s3, {(-65536) & 0xffffffff}, s3
        v_add_u32 v{T_AA}, s3, v{T_AA}
        s_bitcmp1_b32 s{S_ST}, 0
        s_mov_b32 s3, 24576
        s_cselect_b32 s3, {(-24576) & 0xffffffff}, s3
        v_add_u32 v{T_BA}, s3, v{T_BA}
        s_add_u32 s{S_ST}, s{S_ST}, 1
        s_cmp_lt_u32 s{S_ST}, 8
        s_waitcnt lgkmcnt(0)
        s_cbranch_scc1 L_t_loop
        """)
        mm3(6); mm3(7)
        ts(3)
        a(f"""
        s_lshl_b32 s3, s{S_G2}, 2
        s_add_u32 s3, s3, s{S_KQ}
        s_lshl_b32 s3, s3, 2
        s_add_u32 s3, s3, s{S_G}
        s_mul_i32 s76, s3, 12288
        s_add_u32 s76, s76, {PART_OFF}
        v_lshlrev_b32 v{T_X}, 4, v{L}
        """)
        for m in range(3):
            for rq in range(4):
                r = T_ACC + 16*m + 4*rq
                a(f"buffer_store_dwordx4 v[{r}:{r+3}], v{T_X}, s[24:27], s76 offen offset:{rq*1024} sc1")
            if m < 2: a(f"s_add_u32 s76, s76, 4096")
        a("s_waitcnt vmcnt(0)")
        a.label("L_t_join")
        ts(4)
        a("s_barrier")
        a(f"s_cmp_eq_u32 s{S_W}, 8")
        a("s_cbranch_scc0 L_t_nopoll2")
        a(f"""
        s_lshl_b32 s3, s{S_G2}, 7
        s_add_u32 s76, s3, {FLAG_OFF + 8192}
        s_lshl_b32 s3, s{S_G}, 2
        s_add_u32 s77, s76, s3
        v_mov_b32 v{T_X}, 0
        v_mov_b32 v{T_X+1}, {TOK_B}
        s_mov_b64 exec, 1
        buffer_store_dword v{T_X+1}, v{T_X}, s[24:27], s77 offen sc1
        s_mov_b64 exec, -1
        v_and_b32 v{T_X+2}, 3, v{L}
        v_lshlrev_b32 v{T_X+2}, 2, v{T_X+2}
        s_mov_b32 s3, {TOK_B}
        """)
        spin("L_spin_b", f"buffer_load_dword v{T_X+1}, v{T_X+2}, s[24:27], s76 offen sc1", None, T_X+1)
        a.label("L_t_nopoll2")
        a("s_barrier")
        ts(5)
        a(f"""
        s_lshl_b32 s3, s{S_G2}, 2
        s_add_u32 s3, s3, s{S_G}
        s_mul_i32 s76, s3, {4*12288}
        s_lshl_b32 s3, s{S_W}, 10
        s_add_u32 s76, s76, s3
        s_add_u32 s76, s76, {PART_OFF}
        v_lshlrev_b32 v{T_X}, 4, v{L}
        """)
        for src in range(4):
            a(f"buffer_load_dwordx4 v[{16+4*src}:{19+4*src}], v{T_X}, s[24:27], s76 offen sc1")
            if src < 3: a(f"s_add_u32 s76, s76, 12288")
        a(f"""
        s_mul_i32 s3, s{S_BP}, 96
        s_lshl_b32 s77, s{S_QT}, 5
        s_add_u32 s3, s3, s77
        s_lshl_b32 s3, s3, 12
        s_lshl_b32 s77, s{S_BLK}, 11
        s_add_u32 s3, s3, s77
        s_lshl_b32 s77, s{S_NT8}, 8
        s_add_u32 s3, s3, s77
        s_lshl_b32 s77, s{S_G}, 6
        s_add_u32 s3, s3, s77
        s_lshl_b32 s77, s{S_KQ}, 4
        s_add_u32 s3, s3, s77
        v_and_b32 v{T_X+1}, 31, v{L}
        v_lshlrev_b32 v{T_X+1}, 12, v{T_X+1}
        v_lshrrev_b32 v{T_X+2}, 5, v{L}
        v_lshlrev_b32 v{T_X+2}, 3, v{T_X+2}
        v_add_u32 v{T_X+1}, v{T_X+1}, v{T_X+2}
        s_waitcnt vmcnt(0)
        """)
        for i in range(4):
            a(f"v_add_f32 v{16+i}, v{16+i}, v{20+i}")
            a(f"v_add_f32 v{24+i}, v{24+i}, v{28+i}")
        for i in range(4):
            a(f"v_add_f32 v{16+i}, v{16+i}, v{24+i}")
        a("v_cvt_pk_bf16_f32 v20, v16, v17")
        a("v_cvt_pk_bf16_f32 v21, v18, v19")
        a(f"buffer_store_dwordx2 v[20:21], v{T_X+1}, s[8:11], s3 offen")
        ts(6)

    a.label("L_merge")
    prio(0)
    stamp(a, 2)
    tr2(40)
    F = V_F
    def mt(i):
        if OPT.get("lt") == 4: a(f"s_memtime s[{80+2*i}:{81+2*i}]")
    mt(0)
    a(f"""
    v_mov_b32 v{V_T0}, v{V_L}
    v_mov_b32 v{V_T1}, v{V_L}
    s_mul_i32 s76, s{S_KQ}, {AREA}
    v_lshlrev_b32 v{V_T2}, 4, v{L}
    v_permlane32_swap_b32 v{V_T0}, v{V_T1}
    s_mul_i32 s3, s{S_QT}, 12288
    s_add_u32 s77, s76, s3
    v_add_f32 v{V_L}, v{V_T0}, v{V_T1}
    v_add_u32 v{V_T1}, s77, v{V_T2}
    """)
    for j in range(1, 4):
        for rq in range(4):
            r = V_O + 16*j + 4*rq
            a(f"ds_write_b128 v{V_T1}, v[{r}:{r+3}] offset:{(j-1)*4096 + rq*1024}")
    mt(1)
    a(f"""
    v_and_b32 v{V_T0}, 31, v{L}
    v_lshlrev_b32 v{V_T0}, 3, v{V_T0}
    s_lshl_b32 s3, s{S_QT}, 8
    s_add_u32 s3, s3, 36864
    v_add_u32 v{V_T0}, s3, v{V_T0}
    v_add_u32 v{V_T1}, s76, v{V_T0}
    ds_write_b64 v{V_T1}, v[{V_M}:{V_L}]
    """)
    for j in range(1, 4):
        a(f"s_sub_u32 s3, s{S_KQ}, {j}")
        a(f"s_and_b32 s3, s3, 3")
        a(f"s_mul_i32 s76, s3, {AREA}")
        a(f"v_add_u32 v{V_Q+j}, s76, v{V_T0}")
        a(f"s_mul_i32 s3, s{S_QT}, 12288")
        a(f"s_add_u32 s76, s76, s3")
        a(f"v_add_u32 v{V_Q+4+j}, s76, v{V_T2}")
    A0, A1, A2, A3 = V_Q+8, V_Q+9, V_Q+10, V_Q+11
    a(f"""
    v_and_b32 v{A1}, 31, v{L}
    s_lshl_b32 s3, s{S_QT}, 5
    v_add_u32 v{A1}, s3, v{A1}
    v_cmp_le_u32 vcc, 48, v{A1}
    v_subrev_u32 v{A2}, 48, v{A1}
    v_mov_b32 v{A0}, 0
    v_mov_b32 v{A3}, {8*3072}
    v_cndmask_b32 v{A1}, v{A1}, v{A2}, vcc
    v_cndmask_b32 v{A0}, v{A0}, v{A3}, vcc
    s_and_b32 s3, s{S_B}, 1
    s_mul_i32 s3, s3, 48
    v_add_u32 v{A1}, s3, v{A1}
    v_lshrrev_b32 v{A2}, 5, v{A1}
    v_lshlrev_b32 v{A2}, 10, v{A2}
    v_add_u32 v{A0}, v{A0}, v{A2}
    v_and_b32 v{A1}, 31, v{A1}
    v_lshlrev_b32 v{A1}, 4, v{A1}
    v_add_u32 v{A0}, v{A0}, v{A1}
    v_lshrrev_b32 v{A1}, 5, v{L}
    v_lshlrev_b32 v{A1}, 3, v{A1}
    v_add_u32 v{A0}, v{A0}, v{A1}
    s_lshl_b32 s3, s{S_HP}, 4
    s_lshl_b32 s76, s{S_KQ}, 1
    s_add_u32 s3, s3, s76
    s_mul_i32 s3, s3, 3072
    s_mul_i32 s79, s{S_G1}, {192*1024}
    s_add_u32 s79, s79, s3
    s_add_u32 s79, s79, {O_OFF}
    """)
    mt(2)
    a("s_waitcnt lgkmcnt(0)")
    mt(3)
    a("s_barrier")
    mt(4)
    for j in range(1, 4):
        a(f"ds_read_b64 v[{F+2*j}:{F+2*j+1}], v{V_Q+j}")
    for j in range(1, 4):
        for rq in range(4):
            r = V_O + 16*j + 4*rq
            a(f"ds_read_b128 v[{r}:{r+3}], v{V_Q+4+j} offset:{(j-1)*4096 + rq*1024}")
    a("s_waitcnt lgkmcnt(12)")
    mt(5)
    a(f"""
    v_max3_f32 v{F+8}, v{V_M}, v{F+2}, v{F+4}
    v_max_f32 v{F+8}, v{F+8}, v{F+6}
    v_sub_f32 v{F+10}, v{V_M}, v{F+8}
    v_sub_f32 v{F+12}, v{F+2}, v{F+8}
    v_sub_f32 v{F+14}, v{F+4}, v{F+8}
    v_sub_f32 v{F+16}, v{F+6}, v{F+8}
    v_exp_f32 v{F+10}, v{F+10}
    v_exp_f32 v{F+12}, v{F+12}
    v_exp_f32 v{F+14}, v{F+14}
    v_exp_f32 v{F+16}, v{F+16}
    v_mul_f32 v{F+18}, v{F+10}, v{V_L}
    v_fma_f32 v{F+18}, v{F+12}, v{F+3}, v{F+18}
    v_fma_f32 v{F+18}, v{F+14}, v{F+5}, v{F+18}
    v_fma_f32 v{F+18}, v{F+16}, v{F+7}, v{F+18}
    v_rcp_f32 v{F+18}, v{F+18}
    v_mul_f32 v{F+10}, v{F+10}, v{F+18}
    v_mul_f32 v{F+12}, v{F+12}, v{F+18}
    v_mul_f32 v{F+14}, v{F+14}, v{F+18}
    v_mul_f32 v{F+16}, v{F+16}, v{F+18}
    """)
    mt(6)
    for i in range(0, 16, 2):
        a(f"v_pk_mul_f32 v[{V_O+i}:{V_O+i+1}], v[{V_O+i}:{V_O+i+1}], v[{F+10}:{F+11}] op_sel_hi:[1,0]")
    for j in range(1, 4):
        a(f"s_waitcnt lgkmcnt({12 - 4*j})")
        if j == 3: a("s_barrier")
        for i in range(0, 16, 2):
            a(f"v_pk_fma_f32 v[{V_O+i}:{V_O+i+1}], v[{V_O+16*j+i}:{V_O+16*j+i+1}], v[{F+10+2*j}:{F+11+2*j}], v[{V_O+i}:{V_O+i+1}] op_sel_hi:[1,0,1]")
    mt(7)
    for rq in range(4):
        a(f"v_cvt_pk_bf16_f32 v{F+20+2*rq}, v{V_O+4*rq}, v{V_O+4*rq+1}")
        a(f"v_cvt_pk_bf16_f32 v{F+20+2*rq+1}, v{V_O+4*rq+2}, v{V_O+4*rq+3}")
    for rq in range(4):
        a(f"buffer_store_dwordx2 v[{F+20+2*rq}:{F+20+2*rq+1}], v{A0}, s[24:27], s79 offen offset:{(rq & 1)*512} sc1" if rq < 2 else
          f"buffer_store_dwordx2 v[{F+20+2*rq}:{F+20+2*rq+1}], v{A0}, s[24:27], s79 offen offset:{3072 + (rq & 1)*512} sc1")
    gen_tail()
    stamp(a, 3)
    tr2(41)
    trace_dump(a, 167, 100, S_W, V_LANE, 1)
    if OPT.get("lt"):
        a("s_waitcnt lgkmcnt(0)")
        a(f"s_lshl_b32 s3, s2, 4")
        a(f"s_add_u32 s3, s3, s{S_W}")
        a(f"s_lshl_b32 s3, s3, 8")
        a(f"s_add_u32 s3, s3, {(56 << 20) + (1 << 20)}")
        a("v_mov_b32 v102, s3")
        for i in range(11):
            a(f"v_mov_b32 v100, s{80+2*i}")
            a(f"buffer_store_dword v100, v102, s[24:27], 0 offen offset:{4*i}")
            a("s_waitcnt vmcnt(0)")
    if OPT["stamps"]: a("s_memtime s[90:91]")
    stamp_flush(a, 6, 100, S_W, 0)
    a("s_endpgm")
    a.label("L_slow_first")
    a(f"v_cndmask_b32 v{V_M}, v{V_M}, v{V_T0}, vcc")
    a(f"s_mov_b64 s[{S_SLOW}:{S_SLOW+1}], -1")
    a(f"v_add_f32 v{V_THR}, s{S_TC}, v{V_M}")
    a("s_branch L_slow_sub")
    a.label("L_slow")
    a("s_cbranch_vccz L_slow_sub")
    a(f"v_max_f32 v{V_T1}, v{V_M}, v{V_T0}")
    a(f"v_cndmask_b32 v{V_T1}, v{V_M}, v{V_T1}, vcc")
    a.label("L_slow_upd")
    a(f"""
    s_mov_b64 s[{S_SLOW}:{S_SLOW+1}], -1
    v_sub_f32 v{V_T2}, v{V_M}, v{V_T1}
    v_exp_f32 v{V_T2}, v{V_T2}
    v_mov_b32 v{V_M}, v{V_T1}
    v_add_f32 v{V_THR}, s{S_TC}, v{V_T1}
    v_mul_f32 v{V_L}, v{V_L}, v{V_T2}
    """)
    for i in range(64):
        a(f"v_mul_f32 v{V_O+i}, v{V_T2}, v{V_O+i}")
    a.label("L_slow_sub")
    for i in range(16):
        a(f"v_sub_f32 v{V_S+i}, v{V_S+i}, v{V_M}")
    a("s_nop 1")
    a(f"s_setpc_b64 s[{S_RET}:{S_RET+1}]")
    a.label("L_k1_end")
    a("s_endpgm")
    return a

def build():
    k1 = gen_k1().finalize()
    h1, d1 = kernel_text("gqa_fused_kernel", k1, 168)
    hdr = open("concat_heads__gqa_block_cached__gqa_block_cached__near_ridge.s.ref").read().split("; Override")[0]
    txt = hdr
    txt += "; @launch kernel=gqa_fused_kernel grid=(256,1,1) block=(768,1,1) lds=163840\n"
    txt += '.amdgcn_target "amdgcn-amd-amdhsa--gfx950"\n.text\n' + h1
    txt += '.section .rodata,"a"\n.p2align 6\n' + d1
    return txt

if __name__ == "__main__":
    out = sys.argv[1]
    for kv in sys.argv[2:]:
        k, v = kv.split("=")
        OPT[k] = int(v, 0)
    open(out, "w").write(build())
    print("wrote", out)
```

```python
import sys, math, struct
from asmlib import *
import gen as G1
G1.OPT["stamp_off"] = 48 << 20
from gen import f2u, load_ptrs, srd, AREA, C_SCALE, T_LOG2

OPT = G1.OPT
stamp, stamp_flush, trace, trace_dump = G1.stamp, G1.stamp_flush, G1.trace, G1.trace_dump
NT = G1.NT

OSC = lambda: '' if OPT.get('o_plain') else 'sc1 '
O_OFF = 0
FLAG_OFF = 8 << 20
PART_OFF = 16 << 20
TOK_A, TOK_B = 0x5EED0A01, 0x5EED0B02
SPIN_MAX = 1 << 18

def emit_tile(a, dst, s_cnt, phi, m1, m3, win, r, t0, t1, t2):
    sc = f"s{s_cnt}" if isinstance(s_cnt, int) else str(s_cnt[1])
    a(f"s_add_u32 s{t0}, s{phi}, {win}")
    a(f"s_sub_u32 s{t1}, {win}, s{phi}")
    a(f"s_mov_b32 s{t2}, s{m3}")
    a(f"s_cmp_lt_u32 {sc}, s{t0}" if isinstance(s_cnt, int) else f"s_cmp_gt_u32 s{t0}, {sc}")
    a(f"s_cselect_b32 s{t0}, s{phi}, s{t0}")
    a(f"s_cselect_b32 s{t1}, {win}, s{t1}")
    a(f"s_cselect_b32 s{t2}, {256 // win}, s{t2}")
    a(f"s_cmp_lt_u32 {sc}, s{phi}" if isinstance(s_cnt, int) else f"s_cmp_gt_u32 s{phi}, {sc}")
    a(f"s_cselect_b32 s{t0}, 0, s{t0}")
    a(f"s_cselect_b32 s{t1}, s{phi}, s{t1}")
    a(f"s_cselect_b32 s{t2}, s{m1}, s{t2}")
    a(f"s_sub_u32 s{dst}, {sc}, s{t0}")
    a(f"s_add_u32 s{dst}, s{dst}, s{r}")
    a(f"s_mul_i32 s{t2}, s{dst}, s{t2}")
    a(f"s_lshr_b32 s{t2}, s{t2}, 8")
    a(f"s_mul_i32 s{t2}, s{t2}, s{t1}")
    a(f"s_sub_u32 s{dst}, s{dst}, s{t2}")
    a(f"s_add_u32 s{dst}, s{dst}, s{t0}")

def gen_k1():
    a = Asm()
    S_PHI, S_M1, S_M3, S_P2 = 4, 5, 6, 7
    S_BP, S_NT8, S_G1, S_G2 = 54, 55, 58, 59
    S_W, S_BLK, S_G, S_B, S_HP, S_KQ, S_QT = 28, 29, 30, 31, 32, 33, 34
    S_C, S_NC, S_TC = 35, 36, 37
    S_RET = 38
    S_SLOW = 50
    T_HI, T_LO = 16.0, 64.0
    S_T0, S_T1, S_T2, S_T3 = 41, 42, 43, 44
    S_WQB, S_XB, S_KVB = 45, 46, 47
    S_CNT, S_SLOT = 75, 78
    V_O, V_Q, V_S, V_F, V_KA, V_VA = 0, 64, 96, 112, 144, 152
    V_M, V_L, V_NMC, V_THR, V_T0, V_T1, V_T2, V_LANE, V_DOFF = 156, 157, 158, 159, 160, 161, 162, 163, 164
    L = V_LANE

    def group_ids():
        a(f"""
        s_lshr_b32 s{S_BP}, s{S_B}, 1
        s_and_b32 s{S_NT8}, s{S_B}, 1
        s_lshl_b32 s{S_NT8}, s{S_NT8}, 2
        s_add_u32 s{S_NT8}, s{S_NT8}, s{S_HP}
        s_lshl_b32 s{S_G1}, s{S_BLK}, 2
        s_add_u32 s{S_G1}, s{S_G1}, s{S_G}
        s_lshl_b32 s{S_G1}, s{S_G1}, 2
        s_add_u32 s{S_G1}, s{S_G1}, s{S_BP}
        s_lshl_b32 s{S_G2}, s{S_BLK}, 2
        s_add_u32 s{S_G2}, s{S_G2}, s{S_BP}
        s_lshl_b32 s{S_G2}, s{S_G2}, 3
        s_add_u32 s{S_G2}, s{S_G2}, s{S_NT8}
        """)
    a("s_cmp_ge_u32 s2, 256")
    a("s_cbranch_scc1 L_k1_end")
    stamp(a, 0)
    if OPT["stamps"]: a("s_memtime s[88:89]")
    if OPT.get("lt") == 7: a("s_memtime s[80:81]")
    load_ptrs(a)
    if OPT.get("trace"):
        a("v_mov_b32 v120, 0")
        a("v_mov_b32 v167, 0")
        trace(a, 120, idx_imm=63)
    a(f"""
    v_lshrrev_b32 v1, 6, v0
    v_and_b32 v{L}, 63, v0
    s_and_b32 s3, s2, 7
    v_readfirstlane_b32 s{S_W}, v1
    s_lshr_b32 s{S_BLK}, s3, 2
    s_and_b32 s{S_G}, s3, 3
    s_lshr_b32 s3, s2, 3
    s_lshr_b32 s{S_B}, s3, 2
    s_and_b32 s{S_HP}, s3, 3
    s_and_b32 s{S_KQ}, s{S_W}, 3
    s_lshr_b32 s{S_QT}, s{S_W}, 2
    s_lshl_b32 s{S_WQB}, s{S_G}, 11
    s_lshl_b32 s3, s{S_HP}, 9
    s_add_u32 s{S_WQB}, s{S_WQB}, s3
    s_mul_i32 s{S_XB}, s{S_B}, {48*2048}
    s_cmp_ge_u32 s{S_W}, 8
    s_cbranch_scc1 L_p1_compute
    """)
    a(f"""
    v_lshrrev_b32 v5, 5, v{L}
    v_and_b32 v6, 31, v{L}
    s_and_b32 s{S_T1}, s{S_W}, 1
    s_lshl_b32 s{S_T1}, s{S_T1}, 2
    v_or_b32 v7, s{S_T1}, v5
    v_lshlrev_b32 v8, 1, v7
    v_xor_b32 v8, v8, v6
    v_lshlrev_b32 v8, 4, v8
    v_lshlrev_b32 v9, 13, v5
    v_add_u32 v2, v9, v8
    v_xor_b32 v8, 64, v8
    v_add_u32 v3, v9, v8
    s_mul_i32 s{S_T1}, s{S_W}, 6
    v_lshrrev_b32 v5, 3, v{L}
    v_add_u32 v5, s{S_T1}, v5
    v_lshrrev_b32 v6, 1, v5
    v_xor_b32 v6, v6, v{L}
    v_and_b32 v6, 7, v6
    v_lshlrev_b32 v6, 4, v6
    v_lshlrev_b32 v5, 11, v5
    v_add_u32 v4, v5, v6
    s_lshl_b32 s{S_T2}, s{S_W}, 16
    s_add_u32 s{S_WQB}, s{S_WQB}, s{S_T2}
    s_lshl_b32 s{S_T2}, s{S_W}, 12
    s_mul_i32 s{S_T3}, s{S_W}, 768
    s_add_u32 s{S_T3}, s{S_T3}, 32768
    """)
    if OPT.get("stag1", 2) == 1:
        a(f"""
        s_add_u32 s{S_PHI}, s{S_HP}, 1
        s_lshl_b32 s3, s{S_HP}, 3
        s_lshr_b32 s{S_M1}, 0x3f557fff, s3
        s_and_b32 s{S_M1}, s{S_M1}, 0xff
        s_add_u32 s{S_M1}, s{S_M1}, 1
        s_lshr_b32 s{S_M3}, 0x40342b25, s3
        s_and_b32 s{S_M3}, s{S_M3}, 0xff
        """)
    else:
        pa, pb = OPT.get("phiA", 8), OPT.get("phiB", 4)
        Mt = lambda n: -(-256 // n) if n else 1
        a(f"""
        s_cmp_eq_u32 s{S_BLK}, 0
        s_mov_b32 s{S_PHI}, {pb}
        s_cselect_b32 s{S_PHI}, {pa}, s{S_PHI}
        s_mov_b32 s{S_M1}, {Mt(pb)}
        s_cselect_b32 s{S_M1}, {Mt(pa)}, s{S_M1}
        s_mov_b32 s{S_M3}, {Mt(8-pb)}
        s_cselect_b32 s{S_M3}, {Mt(8-pa)}, s{S_M3}
        """)
    a(f"""
    s_cmp_eq_u32 s{S_BLK}, 0
    s_waitcnt lgkmcnt(0)
    """)
    if OPT.get("lt") == 7: a("s_memtime s[82:83]")
    srd(a, 8, 48, 58, 8*48*1024*2)
    srd(a, 12, 54, 64, 1024*4096*2)
    def issue_tile():
        if OPT.get("stag1", 2):
            emit_tile(a, 3, S_CNT, S_PHI, S_M1, S_M3, 8, S_B, 76, 77, 79)
        else:
            a(f"""
            s_add_u32 s3, s{S_CNT}, s{S_B}
            s_and_b32 s3, s3, 7
            s_and_b32 s76, s{S_CNT}, 8
            s_or_b32 s3, s3, s76
            """)
        a(f"""
        s_lshl_b32 s76, s3, 19
        s_add_u32 s76, s76, s{S_WQB}
        s_add_u32 s77, s{S_SLOT}, s{S_T2}
        """)
        for q in range(4):
            a(f"s_add_u32 m0, s77, {q*1024}")
            if q: a(f"s_add_u32 s76, s76, {2*8192}")
            a(f"buffer_load_dwordx4 v{2 + (q & 1)}, s[12:15], s76 offen {NT()}lds")
        a(f"""
        s_lshl_b32 s76, s3, 7
        s_add_u32 s76, s76, s{S_XB}
        s_add_u32 m0, s{S_SLOT}, s{S_T3}
        s_mov_b32 exec_hi, {'0xffff' if not OPT.get('xfull') else '-1'}
        buffer_load_dwordx4 v4, s[8:11], s76 offen {NT()}lds
        s_mov_b32 exec_hi, -1
        """)
    a(f"s_mov_b32 s{S_CNT}, 0")
    a(f"s_mov_b32 s{S_SLOT}, 0")
    issue_tile()
    if OPT.get("b01", 1): a("s_barrier")
    a(f"s_mov_b32 s{S_CNT}, 1")
    a(f"s_mov_b32 s{S_SLOT}, {AREA}")
    issue_tile()
    a(f"s_mov_b32 s{S_CNT}, 2")
    a(f"s_mov_b32 s{S_SLOT}, {2*AREA}")
    if OPT.get("lt") == 7: a("s_memtime s[84:85]")
    a(f"s_cmp_eq_u32 s{S_BLK}, 0")
    srd(a, 16, 50, 60, 8*4*1024*128*2)
    srd(a, 20, 52, 62, 8*4*1024*128*2)
    srd(a, 24, 72, 72, 1 << 28, sel=False)
    group_ids()
    a(f"""
    s_lshl_b32 s3, s{S_B}, 2
    s_add_u32 s3, s3, s{S_G}
    s_lshl_b32 s{S_KVB}, s3, 18
    s_lshl_b32 s3, s{S_KQ}, 16
    s_add_u32 s{S_KVB}, s{S_KVB}, s3
    v_lshrrev_b32 v5, 4, v{L}
    v_and_b32 v6, 15, v{L}
    v_lshlrev_b32 v7, 8, v5
    v_xor_b32 v8, v6, v5
    v_lshlrev_b32 v9, 4, v8
    v_add_u32 v{V_DOFF}, v7, v9
    v_xor_b32 v9, 64, v9
    v_add_u32 v{V_DOFF+1}, v7, v9
    v_xor_b32 v9, 0xc0, v9
    v_add_u32 v{V_DOFF+2}, v7, v9
    v_xor_b32 v9, 64, v9
    v_add_u32 v{V_DOFF+3 if not OPT.get("trace") else V_T2}, v7, v9
    s_cmp_eq_u32 s{S_QT}, 0
    s_cbranch_scc1 L_voff_done
    v_lshlrev_b32 v8, 2, v5
    v_xor_b32 v8, v8, v6
    v_lshlrev_b32 v8, 4, v8
    v_add_u32 v{V_DOFF}, v7, v8
    L_voff_done:
    """)
    a(f"""
    s_and_b32 s3, s{S_B}, 3
    s_add_u32 s60, s3, 1
    s_lshl_b32 s3, s3, 3
    s_lshr_b32 s61, 0x3f557fff, s3
    s_and_b32 s61, s61, 0xff
    s_add_u32 s61, s61, 1
    s_lshr_b32 s62, 0x00ff7f55, s3
    s_and_b32 s62, s62, 0xff
    s_add_u32 s62, s62, 1
    s_mov_b32 s{S_P2}, 0
    """)
    for i in range(8):
        if OPT.get("stag2", 1):
            emit_tile(a, 63, ("imm", i), 60, 61, 62, 4, S_HP, 64, 65, 79)
        else:
            a(f"s_add_u32 s63, s{S_HP}, {i}")
            a(f"s_and_b32 s63, s63, 3")
            a(f"s_or_b32 s63, s63, {i & 4}")
        a(f"s_lshl_b32 s63, s63, {4*i}")
        a(f"s_or_b32 s{S_P2}, s{S_P2}, s63")
    a.label("L_p1_ld_loop")
    a("s_waitcnt vmcnt(5)")
    trace(a, 120, idx_sreg=S_CNT)
    if OPT.get("lt") == 7:
        for k, cnt in enumerate((2, 3, 4, 9, 10, 11, 15)):
            a(f"s_cmp_eq_u32 s{S_CNT}, {cnt}")
            a(f"s_cbranch_scc0 L_lt7_{k}")
            a(f"s_memtime s[{86+2*k}:{87+2*k}]")
            a.label(f"L_lt7_{k}")
    a("s_barrier")
    if OPT.get("trace"): a(f"s_add_u32 s94, s{S_CNT}, 16")
    trace(a, 120, idx_sreg=94)
    issue_tile()
    if OPT.get("trace"): a(f"s_add_u32 s94, s{S_CNT}, 32")
    trace(a, 120, idx_sreg=94)
    a(f"""
    s_add_u32 s{S_SLOT}, s{S_SLOT}, {AREA}
    s_cmp_eq_u32 s{S_SLOT}, {3*AREA}
    s_cselect_b32 s{S_SLOT}, 0, s{S_SLOT}
    s_add_u32 s{S_CNT}, s{S_CNT}, 1
    s_cmp_lt_u32 s{S_CNT}, 16
    s_cbranch_scc1 L_p1_ld_loop
    """)
    def tile_soff(step, dst):
        a(f"""
        s_bfe_u32 s{dst}, s{S_P2}, {(4 << 16) | (4*step)}
        s_lshl_b32 s{dst}, s{dst}, 13
        s_add_u32 s{dst}, s{dst}, s{S_KVB}
        """)
    def dma8(step, lds_off, voff_fn, srdb):
        tile_soff(step, 76)
        a(f"s_mul_i32 s77, s{S_KQ}, {AREA}")
        a(f"s_add_u32 m0, s77, {lds_off}")
        for q in range(8):
            if q == 4:
                a(f"s_add_u32 m0, s77, {lds_off + 4096}")
                a(f"s_add_u32 s76, s76, 4096")
            a(f"buffer_load_dwordx4 v{voff_fn(q)}, s[{srdb}:{srdb+3}], s76 offen offset:{(q & 3) * 1024} {NT()}lds")
    def issue_k(step):
        if OPT.get("trace"):
            a(f"v_xor_b32 v{V_T2}, 64, v{V_DOFF+2}")
            dma8(step, (step % 3) * 8192, lambda q: (V_DOFF + (q & 3)) if (q & 3) != 3 else V_T2, 16)
        else:
            dma8(step, (step % 3) * 8192, lambda q: V_DOFF + (q & 3), 16)
    def issue_v(step): dma8(step, 24576 + (step % 2) * 8192, lambda q: V_DOFF, 20)
    def call_early_if(kq):
        lab = a.newlabel("L_ne")
        a(f"s_cmp_eq_u32 s{S_KQ}, {kq}")
        a(f"s_cbranch_scc0 {lab}")
        a(f"s_call_b64 s[{S_RET}:{S_RET+1}], L_early")
        a.label(lab)
    a("s_waitcnt vmcnt(5)")
    call_early_if(3)
    a("s_barrier")
    call_early_if(1)
    a(f"""
    s_and_b32 s3, s{S_KQ}, 1
    s_cmp_eq_u32 s3, 1
    s_cbranch_scc1 L_w15_early
    s_waitcnt vmcnt(0)
    s_branch L_w15_done
    L_w15_early:
    s_cmp_eq_u32 s{S_QT}, 0
    s_cbranch_scc1 L_w15_k
    s_waitcnt vmcnt(8)
    s_branch L_w15_done
    L_w15_k:
    s_waitcnt vmcnt(16)
    L_w15_done:
    """)
    a("s_barrier")
    call_early_if(2)
    a("s_barrier")
    call_early_if(0)
    a("s_branch L_p1_join")
    a.label("L_early")
    a(f"s_cmp_eq_u32 s{S_QT}, 0")
    a("s_cbranch_scc0 L_early_v")
    issue_k(0)
    issue_k(1)
    a(f"s_setpc_b64 s[{S_RET}:{S_RET+1}]")
    a.label("L_early_v")
    issue_v(0)
    a(f"s_setpc_b64 s[{S_RET}:{S_RET+1}]")

    a.label("L_p1_compute")
    P_ACC, P_A, P_B, P_WA, P_XA = 0, 48, 80, 104, 108
    a(f"""
    v_lshrrev_b32 v110, 4, v{L}
    v_and_b32 v111, 15, v{L}
    v_lshrrev_b32 v112, 2, v111
    v_and_b32 v113, 3, v111
    v_lshlrev_b32 v114, 3, v110
    v_add_u32 v114, v114, v112
    v_lshlrev_b32 v114, 9, v114
    v_lshlrev_b32 v113, 3, v113
    v_add_u32 v114, v114, v113
    v_and_b32 v115, 1, v110
    v_lshlrev_b32 v115, 2, v115
    v_or_b32 v115, v115, v112
    s_lshl_b32 s{S_T0}, s{S_KQ}, 2
    """)
    for dt in range(4):
        a(f"s_add_u32 s{S_T1}, s{S_T0}, {dt}")
        a(f"v_xor_b32 v116, s{S_T1}, v115")
        a(f"v_lshlrev_b32 v116, 5, v116")
        a(f"v_add_u32 v{P_WA+dt}, v114, v116")
    a(f"""
    v_lshrrev_b32 v112, 1, v111
    v_xor_b32 v112, v112, v110
    v_lshlrev_b32 v112, 4, v112
    v_lshlrev_b32 v113, 7, v111
    v_add_u32 v112, v112, v113
    v_add_u32 v{P_XA}, 32768, v112
    v_xor_b32 v{P_XA+1}, 64, v{P_XA}
    """)
    for i in range(48):
        a(f"v_mov_b32 v{P_ACC+i}, 0")
    for i in range(4):
        a(f"v_mov_b32 v{V_DOFF+i}, 0")
    a(f"s_waitcnt lgkmcnt(0)")
    srd(a, 24, 72, 72, 1 << 28, sel=False)
    a(f"s_cmp_eq_u32 s{S_BLK}, 0")
    srd(a, 16, 50, 60, 8*4*1024*128*2)
    srd(a, 20, 52, 62, 8*4*1024*128*2)
    if OPT.get("b01", 1) and OPT.get("xpf_late"): a("s_barrier")
    if OPT.get("xpf", 1):
        a(f"s_cmp_eq_u32 s{S_BLK}, 0")
        srd(a, 8, 48, 58, 8*48*1024*2)
        a(f"""
        s_cmp_eq_u32 s{S_KQ}, 3
        s_cbranch_scc1 L_noxpf
        s_mul_i32 s3, s{S_HP}, 24576
        s_add_u32 s3, s3, s{S_XB}
        s_lshl_b32 s76, s{S_KQ}, 13
        s_add_u32 s3, s3, s76
        v_lshlrev_b32 v126, 7, v{L}
        buffer_load_dword v128, v126, s[8:11], s3 offen
        L_noxpf:
        """)
    if OPT.get("b01", 1) and not OPT.get("xpf_late"): a("s_barrier")
    group_ids()
    a(f"s_cmp_eq_u32 s{S_W}, 8")
    a("s_cbranch_scc0 L_noclr")
    a(f"""
    s_mov_b32 s16, s70
    s_mov_b32 s17, s71
    s_mov_b32 s18, 256
    s_mov_b32 s19, 0x00020000
    s_lshl_b32 s3, s{S_G1}, 7
    s_lshl_b32 s76, s{S_NT8}, 2
    s_add_u32 s3, s3, s76
    s_add_u32 s3, s3, {FLAG_OFF}
    s_lshl_b32 s76, s{S_G2}, 7
    s_lshl_b32 s77, s{S_G}, 2
    s_add_u32 s76, s76, s77
    s_add_u32 s76, s76, {FLAG_OFF + 8192}
    v_mov_b32 v126, 0
    v_mov_b32 v127, 1
    s_mov_b64 exec, 1
    buffer_store_dword v126, v126, s[24:27], s3 offen sc1
    buffer_store_dword v126, v126, s[24:27], s76 offen sc1
    s_waitcnt vmcnt(0)
    s_and_b32 s3, s2, 15
    s_lshl_b32 s3, s3, 2
    buffer_atomic_add v127, v126, s[16:19], s3 offen sc1
    s_mov_b64 exec, -1
    L_noclr:
    """)
    a(f"s_mov_b32 s{S_KVB}, 0")
    a(f"s_mov_b32 s{S_CNT}, 0")
    a(f"s_mov_b32 s{S_SLOT}, 0")
    def rd_ks(ks):
        if OPT.get("nocomp"): return
        for dt in range(4):
            for hf in range(2):
                r = P_A + ks*16 + dt*4 + hf*2
                a(f"ds_read_b64_tr_b16 v[{r}:{r+1}], v{P_WA+dt} offset:{ks*16384 + hf*2048}")
    def rd_x(ks):
        if OPT.get("nocomp"): return
        for st in range(3):
            r = P_B + ks*12 + st*4
            a(f"ds_read_b128 v[{r}:{r+3}], v{P_XA+ks} offset:{st*2048}")
    def mm(ks):
        if OPT.get("nocomp"): return
        for dt in range(4):
            for st in range(3):
                ac = P_ACC + (dt*3+st)*4
                ra = P_A + ks*16 + dt*4; rb = P_B + ks*12 + st*4
                a(f"v_mfma_f32_16x16x32_bf16 v[{ac}:{ac+3}], v[{ra}:{ra+3}], v[{rb}:{rb+3}], v[{ac}:{ac+3}]")
    a.label("L_p1_c_loop")
    trace(a, 120, idx_sreg=S_CNT)
    a("s_barrier")
    if OPT.get("trace"): a(f"s_add_u32 s94, s{S_CNT}, 16")
    trace(a, 120, idx_sreg=94)
    rd_x(0); rd_ks(0)
    a(f"s_cmp_eq_u32 s{S_CNT}, 0")
    a("s_cbranch_scc1 L_p1_c_skip")
    mm(1)
    a.label("L_p1_c_skip")
    rd_x(1); rd_ks(1)
    a("s_waitcnt lgkmcnt(11)")
    mm(0)
    a(f"""
    s_add_u32 s{S_SLOT}, s{S_SLOT}, 1
    s_cmp_eq_u32 s{S_SLOT}, 3
    s_cselect_b32 s{S_SLOT}, 0, s{S_SLOT}
    s_mov_b32 s3, {AREA}
    s_cselect_b32 s3, {(-2*AREA) & 0xffffffff}, s3
    """)
    for r in list(range(P_WA, P_WA+4)) + [P_XA, P_XA+1]:
        a(f"v_add_u32 v{r}, s3, v{r}")
    a(f"""
    s_add_u32 s{S_CNT}, s{S_CNT}, 1
    s_cmp_lt_u32 s{S_CNT}, 16
    s_waitcnt lgkmcnt(0)
    s_cbranch_scc1 L_p1_c_loop
    s_barrier
    """)
    mm(1)
    a(f"""
    s_mov_b32 s{S_C}, {f2u(C_SCALE)}
    v_lshrrev_b32 v110, 4, v{L}
    v_and_b32 v111, 15, v{L}
    v_lshlrev_b32 v112, 8, v111
    v_and_b32 v113, 1, v110
    v_lshlrev_b32 v113, 3, v113
    v_add_u32 v112, v112, v113
    v_lshrrev_b32 v113, 1, v110
    s_and_b32 s{S_T0}, s{S_KQ}, 1
    s_lshl_b32 s{S_T0}, s{S_T0}, 3
    v_add_u32 v113, s{S_T0}, v113
    s_lshr_b32 s{S_T1}, s{S_KQ}, 1
    s_cmp_eq_u32 s{S_T1}, 0
    s_mov_b32 s76, {2*AREA+16384+4096}
    s_mov_b32 s77, {3*AREA+16384}
    s_mov_b32 s78, {3*AREA+16384+4096}
    s_cselect_b32 s76, {1*AREA+16384}, s76
    s_cselect_b32 s77, {1*AREA+16384+4096}, s77
    s_cselect_b32 s78, {2*AREA+16384}, s78
    """)
    for dt in range(4):
        a(f"v_add_u32 v114, {2*dt}, v113")
        a(f"v_xor_b32 v114, v114, v111")
        a(f"v_lshlrev_b32 v114, 4, v114")
        a(f"v_add_u32 v114, v114, v112")
        for st in range(3):
            ac = P_ACC + (dt*3+st)*4
            t = 116 + 2*(st & 1)
            for e in range(4): a(f"v_mul_f32 v{ac+e}, s{S_C}, v{ac+e}")
            a(f"v_cvt_pk_bf16_f32 v{t}, v{ac}, v{ac+1}")
            a(f"v_cvt_pk_bf16_f32 v{t+1}, v{ac+2}, v{ac+3}")
            a(f"v_add_u32 v{123+st}, s{76+st}, v114")
            a(f"ds_write_b64 v{123+st}, v[{t}:{t+1}]")
    a("s_waitcnt lgkmcnt(0)")

    a.label("L_p1_join")
    trace(a, 120, idx_imm=60)
    if OPT.get("lt") == 7: a("s_memtime s[100:101]")
    a("s_barrier")
    trace(a, 120, idx_imm=61)
    trace_dump(a, 120, 121, S_W, V_LANE, 0)
    if OPT.get("trace"): a("v_mov_b32 v167, 0")
    stamp(a, 1)
    a(f"""
    s_mov_b32 s{S_TC}, {f2u(T_HI)}
    s_mov_b32 s{S_NC}, {f2u(-T_LO)}
    s_mov_b64 s[{S_SLOW}:{S_SLOW+1}], 0
    v_and_b32 v{V_T0}, 31, v{L}
    v_lshlrev_b32 v{V_T0}, 8, v{V_T0}
    v_lshrrev_b32 v{V_T1}, 5, v{L}
    v_and_b32 v{V_T2}, 15, v{L}
    v_xor_b32 v{V_T1}, v{V_T1}, v{V_T2}
    v_lshlrev_b32 v{V_T1}, 4, v{V_T1}
    v_add_u32 v{V_T0}, v{V_T0}, v{V_T1}
    s_add_u32 s3, s{S_QT}, 1
    s_mul_i32 s3, s3, {AREA}
    s_add_u32 s3, s3, 16384
    s_mul_i32 s76, s{S_KQ}, {AREA}
    """)
    for st8 in range(8):
        a(f"v_xor_b32 v{V_T1}, {st8 << 5}, v{V_T0}")
        a(f"v_add_u32 v{V_F+st8}, s3, v{V_T1}")
        a(f"v_add_u32 v{V_KA+st8}, s76, v{V_T1}")
        a(f"ds_read_b128 v[{V_Q+4*st8}:{V_Q+4*st8+3}], v{V_F+st8}")
    a(f"""
    v_lshrrev_b32 v{V_T0}, 5, v{L}
    v_lshlrev_b32 v{V_T0}, 2, v{V_T0}
    v_bfe_u32 v{V_T1}, v{L}, 2, 2
    v_add_u32 v{V_T0}, v{V_T0}, v{V_T1}
    v_lshlrev_b32 v{V_T0}, 8, v{V_T0}
    v_bfe_u32 v{V_T2}, v{L}, 4, 1
    v_lshlrev_b32 v{V_T2}, 5, v{V_T2}
    v_add_u32 v{V_T0}, v{V_T0}, v{V_T2}
    v_and_b32 v{V_T2}, 3, v{L}
    v_lshlrev_b32 v{V_T2}, 3, v{V_T2}
    v_add_u32 v{V_T0}, v{V_T0}, v{V_T2}
    s_add_u32 s76, s76, 24576
    v_add_u32 v{V_T0}, s76, v{V_T0}
    """)
    for j in range(4):
        a(f"s_add_u32 s3, s{S_KQ}, {j}")
        a(f"s_and_b32 s3, s3, 3")
        a(f"v_xor_b32 v{V_T2}, s3, v{V_T1}")
        a(f"v_lshlrev_b32 v{V_T2}, 6, v{V_T2}")
        a(f"v_add_u32 v{V_VA+j}, v{V_T0}, v{V_T2}")
    for i in range(64):
        a(f"v_mov_b32 v{V_O+i}, 0")
    a(f"""
    v_mov_b32 v{V_M}, 0
    v_mov_b32 v{V_THR}, s{S_TC}
    v_mov_b32 v{V_L}, 0
    s_waitcnt lgkmcnt(0)
    """)

    S = V_S
    def tr2(idx):
        lt = OPT.get("lt")
        if lt and idx < 36:
            i, k = idx // 4, idx % 4
            if (lt == 1 and k == 1) or (lt == 2 and k == 0) or (lt == 3 and k == 2):
                a(f"s_memtime s[{80+2*i}:{81+2*i}]")
        if lt and lt != 7 and idx == 41: a("s_memtime s[98:99]")
        if lt and lt != 7 and idx == 40: a("s_memtime s[100:101]")
        if not OPT.get("trace"): return
        trace(a, 120 if False else 167, idx_imm=idx)
    def rd_k(step, st8):
        a(f"ds_read_b128 v[{V_F+4*st8}:{V_F+4*st8+3}], v{V_KA+st8} offset:{(step % 3) * 8192}")
    def rd_v(step, f):
        t, j = f // 4, f % 4
        for hf in range(2):
            r = V_F + 4*f + 2*hf
            a(f"ds_read_b64_tr_b16 v[{r}:{r+1}], v{V_VA+j} offset:{(step % 2) * 8192 + (16*t + 8*hf)*256}")
    def qk(step, pending_k):
        for st8 in range(8):
            a(f"s_waitcnt lgkmcnt({7 - st8 if st8 < 2 else min(15, 7 - st8 + 2*(st8-1))})")
            c = "0" if st8 == 0 else f"v[{S}:{S+15}]"
            a(f"v_mfma_f32_32x32x16_bf16 v[{S}:{S+15}], v[{V_F+4*st8}:{V_F+4*st8+3}], v[{V_Q+4*st8}:{V_Q+4*st8+3}], {c}")
            if st8 >= 1: rd_v(step, st8 - 1)
        rd_v(step, 7)
    def softmax_half(half):
        for i in range(8*half, 8*half+8):
            a(f"v_exp_f32 v{S+i}, v{S+i}")
        for i in range(8*half, 8*half+8):
            a(f"v_add_f32 v{V_L}, v{V_L}, v{S+i}")
        for j in range(4*half, 4*half+4):
            a(f"v_cvt_pk_bf16_f32 v{S+j}, v{S+2*j}, v{S+2*j+1}")
    def softmax_max(lab, first=False):
        a(f"v_max3_f32 v{V_T0}, v{S}, v{S+1}, v{S+2}")
        a(f"v_max3_f32 v{V_T1}, v{S+3}, v{S+4}, v{S+5}")
        a(f"v_max3_f32 v{V_T0}, v{V_T0}, v{S+6}, v{S+7}")
        a(f"v_max3_f32 v{V_T1}, v{V_T1}, v{S+8}, v{S+9}")
        a(f"v_max3_f32 v{V_T0}, v{V_T0}, v{S+10}, v{S+11}")
        a(f"v_max3_f32 v{V_T1}, v{V_T1}, v{S+12}, v{S+13}")
        a(f"v_max3_f32 v{V_T0}, v{V_T0}, v{S+14}, v{S+15}")
        a(f"v_max_f32 v{V_T0}, v{V_T0}, v{V_T1}")
        a(f"v_mov_b32 v{V_T1}, v{V_T0}")
        a(f"v_permlane32_swap_b32 v{V_T0}, v{V_T1}")
        a(f"v_max_f32 v{V_T0}, v{V_T0}, v{V_T1}")
        a(f"v_cmp_gt_f32 vcc, v{V_T0}, v{V_THR}")
        if first:
            a(f"v_cmp_gt_f32 s[52:53], s{S_NC}, v{V_T0}")
            a(f"s_or_b64 vcc, vcc, s[52:53]")
        a(f"s_or_b64 s[52:53], vcc, s[{S_SLOW}:{S_SLOW+1}]")
        a(f"s_cbranch_scc0 {lab}")
        a(f"s_call_b64 s[{S_RET}:{S_RET+1}], L_slow{'_first' if first else ''}")
        a.label(lab)
    def pv_mfma(f):
        t, j = f // 4, f % 4
        o = V_O + 16*j
        a(f"v_mfma_f32_32x32x16_bf16 v[{o}:{o+15}], v[{V_F+4*f}:{V_F+4*f+3}], v[{S+4*t}:{S+4*t+3}], v[{o}:{o+15}]")
    def pv_then_k(next_step):
        for f in range(8):
            pv_mfma(f)
            if next_step is not None and f >= 1: rd_k(next_step, f - 1)
        if next_step is not None: rd_k(next_step, 7)

    PR = OPT.get("prio", 1)
    def prio(p):
        if PR: a(f"s_setprio {p}")
    a(f"s_cmp_eq_u32 s{S_QT}, 1")
    a("s_cbranch_scc1 L_typeA")
    a(f"s_cmp_eq_u32 s{S_QT}, 2")
    a("s_cbranch_scc1 L_typeC")
    for i in range(8):
        a(f"s_waitcnt vmcnt({8 if i < 7 else 0})")
        tr2(4*i)
        a("s_barrier")
        tr2(4*i+1)
        prio(1)
        if i == 0:
            for st8 in range(8): rd_k(0, st8)
        else:
            pv_then_k(i)
        if i + 2 < 8: issue_k(i + 2)
        qk(i, 0)
        tr2(4*i+2)
        prio(2)
        softmax_max(f"L_D{i}", first=(i == 0))
        softmax_half(0); softmax_half(1)
        a("s_waitcnt lgkmcnt(0)")
    tr2(32)
    a("s_barrier")
    pv_then_k(None)
    a("s_branch L_merge")
    a.label("L_typeA")
    for i in range(8):
        a(f"s_waitcnt vmcnt(0)")
        tr2(4*i)
        a("s_barrier")
        tr2(4*i+1)
        prio(3)
        for st8 in range(8): rd_k(i, st8)
        if i + 1 < 8: issue_v(i + 1)
        qk(i, 0)
        tr2(4*i+2)
        prio(2)
        softmax_max(f"L_A{i}", first=(i == 0))
        softmax_half(0); softmax_half(1)
        prio(0)
        for f in range(8):
            a(f"s_waitcnt lgkmcnt({min(15, 2*(7-f))})")
            pv_mfma(f)
    tr2(32)
    a("s_barrier")
    a("s_branch L_merge")
    a.label("L_typeC")
    a(f"s_cmp_eq_u32 s{S_BLK}, 0")
    srd(a, 12, 56, 66, 4096*1024*2)
    a(f"""
    v_lshrrev_b32 v{V_DOFF+1}, 1, v{L}
    v_lshlrev_b32 v{V_DOFF+1}, 11, v{V_DOFF+1}
    v_and_b32 v{V_DOFF+2}, 1, v{L}
    v_lshlrev_b32 v{V_DOFF+2}, 7, v{V_DOFF+2}
    v_add_u32 v{V_DOFF+1}, v{V_DOFF+1}, v{V_DOFF+2}
    s_lshl_b32 s45, s{S_G}, 10
    s_lshl_b32 s3, s{S_BP}, 8
    s_add_u32 s45, s45, s3
    s_lshl_b32 s3, s{S_KQ}, 6
    s_add_u32 s45, s45, s3
    s_lshl_b32 s45, s45, 11
    s_lshl_b32 s3, s{S_NT8}, 8
    s_add_u32 s45, s45, s3
    """)
    PF_AT = {OPT.get("pf0", 2): 0, OPT.get("pf1", 5): 1}
    for i in range(9):
        tr2(4*i)
        a("s_barrier")
        tr2(4*i+1)
        prio(2)
        if i == 0:
            for st8 in range(8): rd_k(0, st8)
        else:
            softmax_max(f"L_C{i}", first=(i == 1))
            softmax_half(0); softmax_half(1)
            if i in PF_AT and OPT.get("wopf", 1):
                a(f"s_add_u32 s3, s45, {PF_AT[i] * 32 * 2048}")
                a(f"buffer_load_dword v{V_DOFF+2}, v{V_DOFF+1}, s[12:15], s3 offen")
            pv_then_k(i if i < 8 else None)
        if i < 8:
            prio(1)
            qk(i, 0)
            a("s_waitcnt lgkmcnt(0)")
    def spin(label, load_lines, cmp_val, vreg):
        a(f"s_mov_b32 s{S_CNT}, 0")
        a.label(label)
        a(load_lines)
        a("s_waitcnt vmcnt(0)")
        a(f"v_cmp_ne_u32 vcc, s3, v{vreg}" if cmp_val is None else f"v_cmp_ne_u32 vcc, {cmp_val}, v{vreg}")
        a(f"s_cbranch_vccz {label}_ok")
        a(f"s_add_u32 s{S_CNT}, s{S_CNT}, 1")
        a(f"s_cmp_lt_u32 s{S_CNT}, {SPIN_MAX}")
        a("s_sleep 1")
        a(f"s_cbranch_scc1 {label}")
        a.label(f"{label}_ok")

    def gen_tail():
        T_ACC, T_FR, T_AA, T_BA, T_DOFF, T_X = 0, 48, 112, 113, 114, 116
        S_WOB, S_OB, S_ST = 45, 46, 47
        def ts(i):
            if OPT.get("lt") == 5: a(f"s_memtime s[{80+2*i}:{81+2*i}]")
        ts(0)
        a(f"s_cmp_eq_u32 s{S_BLK}, 0")
        srd(a, 12, 56, 66, 4096*1024*2)
        srd(a, 8, 68, 68, 8*48*2048*2, sel=False)
        a(f"""
        s_mov_b32 s16, s70
        s_mov_b32 s17, s71
        s_mov_b32 s18, 256
        s_mov_b32 s19, 0x00020000
        s_lshl_b32 s{S_WOB}, s{S_G}, 21
        s_lshl_b32 s3, s{S_NT8}, 8
        s_add_u32 s{S_WOB}, s{S_WOB}, s3
        s_mul_i32 s{S_OB}, s{S_G1}, {192*1024}
        s_add_u32 s{S_OB}, s{S_OB}, {O_OFF}
        s_cmp_ge_u32 s{S_W}, 8
        s_cbranch_scc1 L_t_compute
        """)
        a(f"""
        v_lshrrev_b32 v{T_X}, 4, v{L}
        v_and_b32 v{T_X+1}, 15, v{L}
        v_lshlrev_b32 v{T_X+2}, 2, v{T_X}
        v_xor_b32 v{T_X+2}, v{T_X+2}, v{T_X+1}
        v_lshlrev_b32 v{T_X+2}, 4, v{T_X+2}
        v_lshlrev_b32 v{T_X}, 11, v{T_X}
        v_add_u32 v{T_DOFF}, v{T_X}, v{T_X+2}
        v_lshlrev_b32 v{T_DOFF+1}, 4, v{L}
        s_lshl_b32 s{S_T0}, s{S_W}, 15
        s_add_u32 s{S_WOB}, s{S_WOB}, s{S_T0}
        s_lshl_b32 s{S_T2}, s{S_W}, 12
        s_mul_i32 s{S_T3}, s{S_W}, 3072
        s_add_u32 s{S_OB}, s{S_OB}, s{S_T3}
        """)
        def issue_wo(st_sreg_or_imm, slot):
            if isinstance(st_sreg_or_imm, int):
                a(f"s_add_u32 s3, s{S_NT8}, {st_sreg_or_imm}")
            a(f"s_and_b32 s3, s3, 7")
            a(f"s_lshl_b32 s76, s3, 18")
            a(f"s_add_u32 s76, s76, s{S_WOB}")
            a(f"s_add_u32 s77, s{S_T2}, {slot*32768}")
            for q in range(4):
                a(f"s_add_u32 m0, s77, {q*1024}")
                if q: a(f"s_add_u32 s76, s76, {4*2048}")
                a(f"buffer_load_dwordx4 v{T_DOFF}, s[12:15], s76 offen lds")
        def issue_o(st, slot):
            a(f"s_add_u32 s3, s{S_NT8}, {st}")
            a(f"s_and_b32 s3, s3, 7")
            a(f"s_mul_i32 s76, s3, 24576")
            a(f"s_add_u32 s76, s76, s{S_OB}")
            a(f"s_add_u32 m0, s{S_T3}, {98304 + slot*24576}")
            for q in range(3):
                a(f"buffer_load_dwordx4 v{T_DOFF+1}, s[24:27], s76 offen offset:{q*1024} {OSC()}lds")
        a("s_waitcnt vmcnt(0)")
        ts(1)
        a("s_barrier")
        a("s_sleep 1")
        for st in range(3): issue_wo(st, st)
        a("s_barrier")
        ts(2)
        issue_o(0, 0); issue_o(1, 1)
        for st in range(8):
            n = 3 if st == 0 else (0 if st in (1, 7) else 4)
            a(f"s_waitcnt vmcnt({n})")
            if OPT.get("lt") == 6: a(f"s_memtime s[{80+2*st}:{81+2*st}]")
            a("s_barrier")
            if st >= 1:
                if st + 1 <= 7: issue_o(st + 1, (st + 1) % 2)
                if st + 2 <= 7: issue_wo(st + 2, (st + 2) % 3)
        ts(3)
        a("s_branch L_t_join")
        a.label("L_t_compute")
        a(f"""
        v_lshrrev_b32 v{T_X}, 5, v{L}
        v_lshlrev_b32 v{T_X}, 3, v{T_X}
        v_bfe_u32 v{T_X+1}, v{L}, 2, 2
        v_add_u32 v{T_X}, v{T_X}, v{T_X+1}
        v_lshlrev_b32 v{T_X}, 8, v{T_X}
        v_bfe_u32 v{T_X+2}, v{L}, 4, 1
        v_lshlrev_b32 v{T_X+2}, 5, v{T_X+2}
        v_add_u32 v{T_X}, v{T_X}, v{T_X+2}
        v_and_b32 v{T_X+2}, 3, v{L}
        v_lshlrev_b32 v{T_X+2}, 3, v{T_X+2}
        v_add_u32 v{T_X}, v{T_X}, v{T_X+2}
        v_xor_b32 v{T_X+2}, s{S_KQ}, v{T_X+1}
        v_lshlrev_b32 v{T_X+2}, 6, v{T_X+2}
        v_add_u32 v{T_AA}, v{T_X}, v{T_X+2}
        v_lshlrev_b32 v{T_BA}, 4, v{L}
        v_add_u32 v{T_BA}, 98304, v{T_BA}
        """)
        for i in range(48):
            a(f"v_mov_b32 v{T_ACC+i}, 0")
        a("s_waitcnt vmcnt(0)")
        ts(1)
        a("s_barrier")
        a(f"s_cmp_eq_u32 s{S_W}, 8")
        a("s_cbranch_scc0 L_t_nopoll1")
        a("s_setprio 3")
        a(f"""
        s_lshl_b32 s3, s{S_G1}, 7
        s_add_u32 s76, s3, {FLAG_OFF}
        s_lshl_b32 s3, s{S_NT8}, 2
        s_add_u32 s77, s76, s3
        v_mov_b32 v{T_X}, 0
        v_mov_b32 v{T_X+1}, {TOK_A}
        s_mov_b64 exec, 1
        buffer_store_dword v{T_X+1}, v{T_X}, s[24:27], s77 offen sc1
        s_mov_b64 exec, -1
        v_and_b32 v{T_X}, 15, v{L}
        v_lshlrev_b32 v{T_X}, 2, v{T_X}
        v_and_b32 v{T_X+2}, 7, v{L}
        v_lshlrev_b32 v{T_X+2}, 2, v{T_X+2}
        """)
        spin("L_spin_dbg", f"buffer_load_dword v{T_X+1}, v{T_X}, s[16:19], 0 offen sc1", 16, T_X+1)
        a(f"s_mov_b32 s3, {TOK_A}")
        spin("L_spin_a", f"buffer_load_dword v{T_X+1}, v{T_X+2}, s[24:27], s76 offen sc1", None, T_X+1)
        a("s_setprio 0")
        a.label("L_t_nopoll1")
        a("s_barrier")
        ts(2)
        def rd_list(j):
            b = T_FR + 16*(j % 4)
            out = []
            for hf in range(2):
                out.append(f"ds_read_b64_tr_b16 v[{b+2*hf}:{b+2*hf+1}], v{T_AA} offset:{j*4096 + hf*1024}")
            for m in range(3):
                out.append(f"ds_read_b128 v[{b+4+4*m}:{b+7+4*m}], v{T_BA} offset:{(j*3+m)*1024}")
            return out
        def mm_list(j):
            b = T_FR + 16*(j % 4)
            return [f"v_mfma_f32_32x32x16_bf16 v[{T_ACC+16*m}:{T_ACC+16*m+15}], v[{b}:{b+3}], v[{b+4+4*m}:{b+7+4*m}], v[{T_ACC+16*m}:{T_ACC+16*m+15}]" for m in range(3)]
        def mm3(j):
            for x in mm_list(j): a(x)
        def weave(mm, rd):
            groups = [rd[0:3], rd[3:4], rd[4:5]]
            for x, g in zip(mm, groups):
                a(x)
                for y in g: a(y)
        a(f"s_mov_b32 s{S_ST}, 0")
        a(f"s_mov_b32 s{S_SLOT}, 0")
        a.label("L_t_loop")
        if OPT.get("lt") == 6:
            for st in range(8):
                a(f"s_cmp_eq_u32 s{S_ST}, {st}")
                a(f"s_cbranch_scc0 L_lt6_{st}")
                a(f"s_memtime s[{80+2*st}:{81+2*st}]")
                a.label(f"L_lt6_{st}")
        a("s_barrier")
        a(f"s_cmp_eq_u32 s{S_ST}, 0")
        a("s_cbranch_scc0 L_t_left")
        for y in rd_list(0) + rd_list(1): a(y)
        a("s_branch L_t_skip")
        a.label("L_t_left")
        weave(mm_list(6), rd_list(0))
        weave(mm_list(7), rd_list(1))
        a.label("L_t_skip")
        for j in range(6):
            a("s_waitcnt lgkmcnt(5)")
            weave(mm_list(j), rd_list(j + 2))
        a(f"""
        s_add_u32 s{S_SLOT}, s{S_SLOT}, 1
        s_cmp_eq_u32 s{S_SLOT}, 3
        s_cselect_b32 s{S_SLOT}, 0, s{S_SLOT}
        s_mov_b32 s3, 32768
        s_cselect_b32 s3, {(-65536) & 0xffffffff}, s3
        v_add_u32 v{T_AA}, s3, v{T_AA}
        s_bitcmp1_b32 s{S_ST}, 0
        s_mov_b32 s3, 24576
        s_cselect_b32 s3, {(-24576) & 0xffffffff}, s3
        v_add_u32 v{T_BA}, s3, v{T_BA}
        s_add_u32 s{S_ST}, s{S_ST}, 1
        s_cmp_lt_u32 s{S_ST}, 8
        s_waitcnt lgkmcnt(0)
        s_cbranch_scc1 L_t_loop
        """)
        mm3(6); mm3(7)
        ts(3)
        a(f"""
        s_lshl_b32 s3, s{S_G2}, 2
        s_add_u32 s3, s3, s{S_KQ}
        s_lshl_b32 s3, s3, 2
        s_add_u32 s3, s3, s{S_G}
        s_mul_i32 s76, s3, 12288
        s_add_u32 s76, s76, {PART_OFF}
        v_lshlrev_b32 v{T_X}, 4, v{L}
        """)
        for m in range(3):
            for rq in range(4):
                r = T_ACC + 16*m + 4*rq
                a(f"buffer_store_dwordx4 v[{r}:{r+3}], v{T_X}, s[24:27], s76 offen offset:{rq*1024} sc1")
            if m < 2: a(f"s_add_u32 s76, s76, 4096")
        a("s_waitcnt vmcnt(0)")
        a.label("L_t_join")
        ts(4)
        a("s_barrier")
        a(f"s_cmp_eq_u32 s{S_W}, 8")
        a("s_cbranch_scc0 L_t_nopoll2")
        a(f"""
        s_lshl_b32 s3, s{S_G2}, 7
        s_add_u32 s76, s3, {FLAG_OFF + 8192}
        s_lshl_b32 s3, s{S_G}, 2
        s_add_u32 s77, s76, s3
        v_mov_b32 v{T_X}, 0
        v_mov_b32 v{T_X+1}, {TOK_B}
        s_mov_b64 exec, 1
        buffer_store_dword v{T_X+1}, v{T_X}, s[24:27], s77 offen sc1
        s_mov_b64 exec, -1
        v_and_b32 v{T_X+2}, 3, v{L}
        v_lshlrev_b32 v{T_X+2}, 2, v{T_X+2}
        s_mov_b32 s3, {TOK_B}
        """)
        spin("L_spin_b", f"buffer_load_dword v{T_X+1}, v{T_X+2}, s[24:27], s76 offen sc1", None, T_X+1)
        a.label("L_t_nopoll2")
        a("s_barrier")
        ts(5)
        a(f"""
        s_lshl_b32 s3, s{S_G2}, 2
        s_add_u32 s3, s3, s{S_G}
        s_mul_i32 s76, s3, {4*12288}
        s_lshl_b32 s3, s{S_W}, 10
        s_add_u32 s76, s76, s3
        s_add_u32 s76, s76, {PART_OFF}
        v_lshlrev_b32 v{T_X}, 4, v{L}
        """)
        for src in range(4):
            a(f"buffer_load_dwordx4 v[{16+4*src}:{19+4*src}], v{T_X}, s[24:27], s76 offen sc1")
            if src < 3: a(f"s_add_u32 s76, s76, 12288")
        a(f"""
        s_mul_i32 s3, s{S_BP}, 96
        s_lshl_b32 s77, s{S_QT}, 5
        s_add_u32 s3, s3, s77
        s_lshl_b32 s3, s3, 12
        s_lshl_b32 s77, s{S_BLK}, 11
        s_add_u32 s3, s3, s77
        s_lshl_b32 s77, s{S_NT8}, 8
        s_add_u32 s3, s3, s77
        s_lshl_b32 s77, s{S_G}, 6
        s_add_u32 s3, s3, s77
        s_lshl_b32 s77, s{S_KQ}, 4
        s_add_u32 s3, s3, s77
        v_and_b32 v{T_X+1}, 31, v{L}
        v_lshlrev_b32 v{T_X+1}, 12, v{T_X+1}
        v_lshrrev_b32 v{T_X+2}, 5, v{L}
        v_lshlrev_b32 v{T_X+2}, 3, v{T_X+2}
        v_add_u32 v{T_X+1}, v{T_X+1}, v{T_X+2}
        s_waitcnt vmcnt(0)
        """)
        for i in range(4):
            a(f"v_add_f32 v{16+i}, v{16+i}, v{20+i}")
            a(f"v_add_f32 v{24+i}, v{24+i}, v{28+i}")
        for i in range(4):
            a(f"v_add_f32 v{16+i}, v{16+i}, v{24+i}")
        a("v_cvt_pk_bf16_f32 v20, v16, v17")
        a("v_cvt_pk_bf16_f32 v21, v18, v19")
        a(f"buffer_store_dwordx2 v[20:21], v{T_X+1}, s[8:11], s3 offen")
        ts(6)

    a.label("L_merge")
    prio(0)
    stamp(a, 2)
    tr2(40)
    F = V_F
    def mt(i):
        if OPT.get("lt") == 4: a(f"s_memtime s[{80+2*i}:{81+2*i}]")
    mt(0)
    a(f"""
    v_mov_b32 v{V_T0}, v{V_L}
    v_mov_b32 v{V_T1}, v{V_L}
    s_mul_i32 s76, s{S_KQ}, {AREA}
    v_lshlrev_b32 v{V_T2}, 4, v{L}
    v_permlane32_swap_b32 v{V_T0}, v{V_T1}
    s_mul_i32 s3, s{S_QT}, 12288
    s_add_u32 s77, s76, s3
    v_add_f32 v{V_L}, v{V_T0}, v{V_T1}
    v_add_u32 v{V_T1}, s77, v{V_T2}
    """)
    for j in range(1, 4):
        for rq in range(4):
            r = V_O + 16*j + 4*rq
            a(f"ds_write_b128 v{V_T1}, v[{r}:{r+3}] offset:{(j-1)*4096 + rq*1024}")
    mt(1)
    a(f"""
    v_and_b32 v{V_T0}, 31, v{L}
    v_lshlrev_b32 v{V_T0}, 3, v{V_T0}
    s_lshl_b32 s3, s{S_QT}, 8
    s_add_u32 s3, s3, 36864
    v_add_u32 v{V_T0}, s3, v{V_T0}
    v_add_u32 v{V_T1}, s76, v{V_T0}
    ds_write_b64 v{V_T1}, v[{V_M}:{V_L}]
    """)
    for j in range(1, 4):
        a(f"s_sub_u32 s3, s{S_KQ}, {j}")
        a(f"s_and_b32 s3, s3, 3")
        a(f"s_mul_i32 s76, s3, {AREA}")
        a(f"v_add_u32 v{V_Q+j}, s76, v{V_T0}")
        a(f"s_mul_i32 s3, s{S_QT}, 12288")
        a(f"s_add_u32 s76, s76, s3")
        a(f"v_add_u32 v{V_Q+4+j}, s76, v{V_T2}")
    A0, A1, A2, A3 = V_Q+8, V_Q+9, V_Q+10, V_Q+11
    a(f"""
    v_and_b32 v{A1}, 31, v{L}
    s_lshl_b32 s3, s{S_QT}, 5
    v_add_u32 v{A1}, s3, v{A1}
    v_cmp_le_u32 vcc, 48, v{A1}
    v_subrev_u32 v{A2}, 48, v{A1}
    v_mov_b32 v{A0}, 0
    v_mov_b32 v{A3}, {8*3072}
    v_cndmask_b32 v{A1}, v{A1}, v{A2}, vcc
    v_cndmask_b32 v{A0}, v{A0}, v{A3}, vcc
    s_and_b32 s3, s{S_B}, 1
    s_mul_i32 s3, s3, 48
    v_add_u32 v{A1}, s3, v{A1}
    v_lshrrev_b32 v{A2}, 5, v{A1}
    v_lshlrev_b32 v{A2}, 10, v{A2}
    v_add_u32 v{A0}, v{A0}, v{A2}
    v_and_b32 v{A1}, 31, v{A1}
    v_lshlrev_b32 v{A1}, 4, v{A1}
    v_add_u32 v{A0}, v{A0}, v{A1}
    v_lshrrev_b32 v{A1}, 5, v{L}
    v_lshlrev_b32 v{A1}, 3, v{A1}
    v_add_u32 v{A0}, v{A0}, v{A1}
    s_lshl_b32 s3, s{S_HP}, 4
    s_lshl_b32 s76, s{S_KQ}, 1
    s_add_u32 s3, s3, s76
    s_mul_i32 s3, s3, 3072
    s_mul_i32 s79, s{S_G1}, {192*1024}
    s_add_u32 s79, s79, s3
    s_add_u32 s79, s79, {O_OFF}
    """)
    mt(2)
    a("s_waitcnt lgkmcnt(0)")
    mt(3)
    a("s_barrier")
    mt(4)
    for j in range(1, 4):
        a(f"ds_read_b64 v[{F+2*j}:{F+2*j+1}], v{V_Q+j}")
    for j in range(1, 4):
        for rq in range(4):
            r = V_O + 16*j + 4*rq
            a(f"ds_read_b128 v[{r}:{r+3}], v{V_Q+4+j} offset:{(j-1)*4096 + rq*1024}")
    a("s_waitcnt lgkmcnt(12)")
    mt(5)
    a(f"""
    v_max3_f32 v{F+8}, v{V_M}, v{F+2}, v{F+4}
    v_max_f32 v{F+8}, v{F+8}, v{F+6}
    v_sub_f32 v{F+10}, v{V_M}, v{F+8}
    v_sub_f32 v{F+12}, v{F+2}, v{F+8}
    v_sub_f32 v{F+14}, v{F+4}, v{F+8}
    v_sub_f32 v{F+16}, v{F+6}, v{F+8}
    v_exp_f32 v{F+10}, v{F+10}
    v_exp_f32 v{F+12}, v{F+12}
    v_exp_f32 v{F+14}, v{F+14}
    v_exp_f32 v{F+16}, v{F+16}
    v_mul_f32 v{F+18}, v{F+10}, v{V_L}
    v_fma_f32 v{F+18}, v{F+12}, v{F+3}, v{F+18}
    v_fma_f32 v{F+18}, v{F+14}, v{F+5}, v{F+18}
    v_fma_f32 v{F+18}, v{F+16}, v{F+7}, v{F+18}
    v_rcp_f32 v{F+18}, v{F+18}
    v_mul_f32 v{F+10}, v{F+10}, v{F+18}
    v_mul_f32 v{F+12}, v{F+12}, v{F+18}
    v_mul_f32 v{F+14}, v{F+14}, v{F+18}
    v_mul_f32 v{F+16}, v{F+16}, v{F+18}
    """)
    mt(6)
    for i in range(0, 16, 2):
        a(f"v_pk_mul_f32 v[{V_O+i}:{V_O+i+1}], v[{V_O+i}:{V_O+i+1}], v[{F+10}:{F+11}] op_sel_hi:[1,0]")
    for j in range(1, 4):
        a(f"s_waitcnt lgkmcnt({12 - 4*j})")
        if j == 3: a("s_barrier")
        for i in range(0, 16, 2):
            a(f"v_pk_fma_f32 v[{V_O+i}:{V_O+i+1}], v[{V_O+16*j+i}:{V_O+16*j+i+1}], v[{F+10+2*j}:{F+11+2*j}], v[{V_O+i}:{V_O+i+1}] op_sel_hi:[1,0,1]")
    mt(7)
    for rq in range(4):
        a(f"v_cvt_pk_bf16_f32 v{F+20+2*rq}, v{V_O+4*rq}, v{V_O+4*rq+1}")
        a(f"v_cvt_pk_bf16_f32 v{F+20+2*rq+1}, v{V_O+4*rq+2}, v{V_O+4*rq+3}")
    for rq in range(4):
        a(f"buffer_store_dwordx2 v[{F+20+2*rq}:{F+20+2*rq+1}], v{A0}, s[24:27], s79 offen offset:{(rq & 1)*512} sc1" if rq < 2 else
          f"buffer_store_dwordx2 v[{F+20+2*rq}:{F+20+2*rq+1}], v{A0}, s[24:27], s79 offen offset:{3072 + (rq & 1)*512} sc1")
    gen_tail()
    stamp(a, 3)
    tr2(41)
    trace_dump(a, 167, 100, S_W, V_LANE, 1)
    if OPT.get("lt"):
        a("s_waitcnt lgkmcnt(0)")
        a(f"s_lshl_b32 s3, s2, 4")
        a(f"s_add_u32 s3, s3, s{S_W}")
        a(f"s_lshl_b32 s3, s3, 8")
        a(f"s_add_u32 s3, s3, {(56 << 20) + (1 << 20)}")
        a("v_mov_b32 v102, s3")
        for i in range(11):
            a(f"v_mov_b32 v100, s{80+2*i}")
            a(f"buffer_store_dword v100, v102, s[24:27], 0 offen offset:{4*i}")
            a("s_waitcnt vmcnt(0)")
    if OPT["stamps"]: a("s_memtime s[90:91]")
    stamp_flush(a, 6, 100, S_W, 0)
    a("s_endpgm")
    a.label("L_slow_first")
    a(f"v_cndmask_b32 v{V_M}, v{V_M}, v{V_T0}, vcc")
    a(f"s_mov_b64 s[{S_SLOW}:{S_SLOW+1}], -1")
    a(f"v_add_f32 v{V_THR}, s{S_TC}, v{V_M}")
    a("s_branch L_slow_sub")
    a.label("L_slow")
    a("s_cbranch_vccz L_slow_sub")
    a(f"v_max_f32 v{V_T1}, v{V_M}, v{V_T0}")
    a(f"v_cndmask_b32 v{V_T1}, v{V_M}, v{V_T1}, vcc")
    a.label("L_slow_upd")
    a(f"""
    s_mov_b64 s[{S_SLOW}:{S_SLOW+1}], -1
    v_sub_f32 v{V_T2}, v{V_M}, v{V_T1}
    v_exp_f32 v{V_T2}, v{V_T2}
    v_mov_b32 v{V_M}, v{V_T1}
    v_add_f32 v{V_THR}, s{S_TC}, v{V_T1}
    v_mul_f32 v{V_L}, v{V_L}, v{V_T2}
    """)
    for i in range(64):
        a(f"v_mul_f32 v{V_O+i}, v{V_T2}, v{V_O+i}")
    a.label("L_slow_sub")
    for i in range(16):
        a(f"v_sub_f32 v{V_S+i}, v{V_S+i}, v{V_M}")
    a("s_nop 1")
    a(f"s_setpc_b64 s[{S_RET}:{S_RET+1}]")
    a.label("L_k1_end")
    a("s_endpgm")
    return a

def build():
    k1 = gen_k1().finalize()
    h1, d1 = kernel_text("gqa_fused_kernel", k1, 168)
    hdr = open("concat_heads__gqa_block_cached__gqa_block_cached__near_ridge.s.ref").read().split("; Override")[0]
    txt = hdr
    txt += "; @launch kernel=gqa_fused_kernel grid=(256,1,1) block=(768,1,1) lds=163840\n"
    txt += '.amdgcn_target "amdgcn-amd-amdhsa--gfx950"\n.text\n' + h1
    txt += '.section .rodata,"a"\n.p2align 6\n' + d1
    return txt

if __name__ == "__main__":
    out = sys.argv[1]
    for kv in sys.argv[2:]:
        k, v = kv.split("=")
        OPT[k] = int(v, 0)
    open(out, "w").write(build())
    print("wrote", out)
```

```python
import sys, math, struct
from asmlib import *
import gen as G1
G1.OPT["stamp_off"] = 48 << 20
from gen import f2u, load_ptrs, srd, AREA, C_SCALE, T_LOG2

OPT = G1.OPT
stamp, stamp_flush, trace, trace_dump = G1.stamp, G1.stamp_flush, G1.trace, G1.trace_dump
NT = G1.NT

NTQ = lambda: 'nt ' if OPT.get('nt_wq') else ''
NTX = lambda: 'nt ' if OPT.get('nt_x') else ''
NTKV = lambda: 'nt ' if OPT.get('nt_kv') else ''
NTWO = lambda: 'nt ' if OPT.get('nt_wo') else ''
OSC = lambda: '' if OPT.get('o_plain') else 'sc1 '
O_OFF = 0
FLAG_OFF = 8 << 20
PART_OFF = 16 << 20
TOK_A, TOK_B = 0x5EED0A01, 0x5EED0B02
SPIN_MAX = 1 << 18

def emit_tile(a, dst, s_cnt, phi, m1, m3, win, r, t0, t1, t2):
    sc = f"s{s_cnt}" if isinstance(s_cnt, int) else str(s_cnt[1])
    a(f"s_add_u32 s{t0}, s{phi}, {win}")
    a(f"s_sub_u32 s{t1}, {win}, s{phi}")
    a(f"s_mov_b32 s{t2}, s{m3}")
    a(f"s_cmp_lt_u32 {sc}, s{t0}" if isinstance(s_cnt, int) else f"s_cmp_gt_u32 s{t0}, {sc}")
    a(f"s_cselect_b32 s{t0}, s{phi}, s{t0}")
    a(f"s_cselect_b32 s{t1}, {win}, s{t1}")
    a(f"s_cselect_b32 s{t2}, {256 // win}, s{t2}")
    a(f"s_cmp_lt_u32 {sc}, s{phi}" if isinstance(s_cnt, int) else f"s_cmp_gt_u32 s{phi}, {sc}")
    a(f"s_cselect_b32 s{t0}, 0, s{t0}")
    a(f"s_cselect_b32 s{t1}, s{phi}, s{t1}")
    a(f"s_cselect_b32 s{t2}, s{m1}, s{t2}")
    a(f"s_sub_u32 s{dst}, {sc}, s{t0}")
    a(f"s_add_u32 s{dst}, s{dst}, s{r}")
    a(f"s_mul_i32 s{t2}, s{dst}, s{t2}")
    a(f"s_lshr_b32 s{t2}, s{t2}, 8")
    a(f"s_mul_i32 s{t2}, s{t2}, s{t1}")
    a(f"s_sub_u32 s{dst}, s{dst}, s{t2}")
    a(f"s_add_u32 s{dst}, s{dst}, s{t0}")

def gen_k1():
    a = Asm()
    S_PHI, S_M1, S_M3, S_P2 = 4, 5, 6, 7
    S_BP, S_NT8, S_G1, S_G2 = 54, 55, 58, 59
    S_W, S_BLK, S_G, S_B, S_HP, S_KQ, S_QT = 28, 29, 30, 31, 32, 33, 34
    S_C, S_NC, S_TC = 35, 36, 37
    S_RET = 38
    S_SLOW = 50
    T_HI, T_LO = 16.0, 64.0
    S_T0, S_T1, S_T2, S_T3 = 41, 42, 43, 44
    S_WQB, S_XB, S_KVB = 45, 46, 47
    S_CNT, S_SLOT = 75, 78
    V_O, V_Q, V_S, V_F, V_KA, V_VA = 0, 64, 96, 112, 144, 152
    V_M, V_L, V_NMC, V_THR, V_T0, V_T1, V_T2, V_LANE, V_DOFF = 156, 157, 158, 159, 160, 161, 162, 163, 164
    L = V_LANE

    def group_ids():
        a(f"""
        s_lshr_b32 s{S_BP}, s{S_B}, 1
        s_and_b32 s{S_NT8}, s{S_B}, 1
        s_lshl_b32 s{S_NT8}, s{S_NT8}, 2
        s_add_u32 s{S_NT8}, s{S_NT8}, s{S_HP}
        s_lshl_b32 s{S_G1}, s{S_BLK}, 2
        s_add_u32 s{S_G1}, s{S_G1}, s{S_G}
        s_lshl_b32 s{S_G1}, s{S_G1}, 2
        s_add_u32 s{S_G1}, s{S_G1}, s{S_BP}
        s_lshl_b32 s{S_G2}, s{S_BLK}, 2
        s_add_u32 s{S_G2}, s{S_G2}, s{S_BP}
        s_lshl_b32 s{S_G2}, s{S_G2}, 3
        s_add_u32 s{S_G2}, s{S_G2}, s{S_NT8}
        """)
    a("s_cmp_ge_u32 s2, 256")
    a("s_cbranch_scc1 L_k1_end")
    stamp(a, 0)
    if OPT["stamps"]: a("s_memtime s[88:89]")
    if OPT.get("lt") == 7: a("s_memtime s[80:81]")
    load_ptrs(a)
    if OPT.get("trace"):
        a("v_mov_b32 v120, 0")
        a("v_mov_b32 v167, 0")
        trace(a, 120, idx_imm=63)
    a(f"""
    v_lshrrev_b32 v1, 6, v0
    v_and_b32 v{L}, 63, v0
    s_and_b32 s3, s2, 7
    v_readfirstlane_b32 s{S_W}, v1
    s_lshr_b32 s{S_BLK}, s3, 2
    s_and_b32 s{S_G}, s3, 3
    s_lshr_b32 s3, s2, 3
    s_lshr_b32 s{S_B}, s3, 2
    s_and_b32 s{S_HP}, s3, 3
    s_and_b32 s{S_KQ}, s{S_W}, 3
    s_lshr_b32 s{S_QT}, s{S_W}, 2
    s_lshl_b32 s{S_WQB}, s{S_G}, 11
    s_lshl_b32 s3, s{S_HP}, 9
    s_add_u32 s{S_WQB}, s{S_WQB}, s3
    s_mul_i32 s{S_XB}, s{S_B}, {48*2048}
    s_cmp_ge_u32 s{S_W}, 8
    s_cbranch_scc1 L_p1_compute
    """)
    a(f"""
    v_lshrrev_b32 v5, 5, v{L}
    v_and_b32 v6, 31, v{L}
    s_and_b32 s{S_T1}, s{S_W}, 1
    s_lshl_b32 s{S_T1}, s{S_T1}, 2
    v_or_b32 v7, s{S_T1}, v5
    v_lshlrev_b32 v8, 1, v7
    v_xor_b32 v8, v8, v6
    v_lshlrev_b32 v8, 4, v8
    v_lshlrev_b32 v9, 13, v5
    v_add_u32 v2, v9, v8
    v_xor_b32 v8, 64, v8
    v_add_u32 v3, v9, v8
    s_mul_i32 s{S_T1}, s{S_W}, 6
    v_lshrrev_b32 v5, 3, v{L}
    v_add_u32 v5, s{S_T1}, v5
    v_lshrrev_b32 v6, 1, v5
    v_xor_b32 v6, v6, v{L}
    v_and_b32 v6, 7, v6
    v_lshlrev_b32 v6, 4, v6
    v_lshlrev_b32 v5, 11, v5
    v_add_u32 v4, v5, v6
    s_lshl_b32 s{S_T2}, s{S_W}, 16
    s_add_u32 s{S_WQB}, s{S_WQB}, s{S_T2}
    s_lshl_b32 s{S_T2}, s{S_W}, 12
    s_mul_i32 s{S_T3}, s{S_W}, 768
    s_add_u32 s{S_T3}, s{S_T3}, 32768
    """)
    if OPT.get("stag1", 2) == 1:
        a(f"""
        s_add_u32 s{S_PHI}, s{S_HP}, 1
        s_lshl_b32 s3, s{S_HP}, 3
        s_lshr_b32 s{S_M1}, 0x3f557fff, s3
        s_and_b32 s{S_M1}, s{S_M1}, 0xff
        s_add_u32 s{S_M1}, s{S_M1}, 1
        s_lshr_b32 s{S_M3}, 0x40342b25, s3
        s_and_b32 s{S_M3}, s{S_M3}, 0xff
        """)
    else:
        pa, pb = OPT.get("phiA", 8), OPT.get("phiB", 4)
        Mt = lambda n: -(-256 // n) if n else 1
        a(f"""
        s_cmp_eq_u32 s{S_BLK}, 0
        s_mov_b32 s{S_PHI}, {pb}
        s_cselect_b32 s{S_PHI}, {pa}, s{S_PHI}
        s_mov_b32 s{S_M1}, {Mt(pb)}
        s_cselect_b32 s{S_M1}, {Mt(pa)}, s{S_M1}
        s_mov_b32 s{S_M3}, {Mt(8-pb)}
        s_cselect_b32 s{S_M3}, {Mt(8-pa)}, s{S_M3}
        """)
    a(f"""
    s_cmp_eq_u32 s{S_BLK}, 0
    s_waitcnt lgkmcnt(0)
    """)
    if OPT.get("lt") == 7: a("s_memtime s[82:83]")
    srd(a, 8, 48, 58, 8*48*1024*2)
    srd(a, 12, 54, 64, 1024*4096*2)
    def issue_tile():
        if OPT.get("stag1", 2):
            emit_tile(a, 3, S_CNT, S_PHI, S_M1, S_M3, 8, S_B, 76, 77, 79)
        else:
            a(f"""
            s_add_u32 s3, s{S_CNT}, s{S_B}
            s_and_b32 s3, s3, 7
            s_and_b32 s76, s{S_CNT}, 8
            s_or_b32 s3, s3, s76
            """)
        a(f"""
        s_lshl_b32 s76, s3, 19
        s_add_u32 s76, s76, s{S_WQB}
        s_add_u32 s77, s{S_SLOT}, s{S_T2}
        """)
        for q in range(4):
            a(f"s_add_u32 m0, s77, {q*1024}")
            if q: a(f"s_add_u32 s76, s76, {2*8192}")
            a(f"buffer_load_dwordx4 v{2 + (q & 1)}, s[12:15], s76 offen {NTQ()}lds")
        a(f"""
        s_lshl_b32 s76, s3, 7
        s_add_u32 s76, s76, s{S_XB}
        s_add_u32 m0, s{S_SLOT}, s{S_T3}
        s_mov_b32 exec_hi, {'0xffff' if not OPT.get('xfull') else '-1'}
        buffer_load_dwordx4 v4, s[8:11], s76 offen {NTX()}lds
        s_mov_b32 exec_hi, -1
        """)
    a(f"s_mov_b32 s{S_CNT}, 0")
    a(f"s_mov_b32 s{S_SLOT}, 0")
    issue_tile()
    if OPT.get("b01", 1): a("s_barrier")
    a(f"s_mov_b32 s{S_CNT}, 1")
    a(f"s_mov_b32 s{S_SLOT}, {AREA}")
    issue_tile()
    a(f"s_mov_b32 s{S_CNT}, 2")
    a(f"s_mov_b32 s{S_SLOT}, {2*AREA}")
    if OPT.get("lt") == 7: a("s_memtime s[84:85]")
    a(f"s_cmp_eq_u32 s{S_BLK}, 0")
    srd(a, 16, 50, 60, 8*4*1024*128*2)
    srd(a, 20, 52, 62, 8*4*1024*128*2)
    srd(a, 24, 72, 72, 1 << 28, sel=False)
    group_ids()
    a(f"""
    s_lshl_b32 s3, s{S_B}, 2
    s_add_u32 s3, s3, s{S_G}
    s_lshl_b32 s{S_KVB}, s3, 18
    s_lshl_b32 s3, s{S_KQ}, 16
    s_add_u32 s{S_KVB}, s{S_KVB}, s3
    v_lshrrev_b32 v5, 4, v{L}
    v_and_b32 v6, 15, v{L}
    v_lshlrev_b32 v7, 8, v5
    v_xor_b32 v8, v6, v5
    v_lshlrev_b32 v9, 4, v8
    v_add_u32 v{V_DOFF}, v7, v9
    v_xor_b32 v9, 64, v9
    v_add_u32 v{V_DOFF+1}, v7, v9
    v_xor_b32 v9, 0xc0, v9
    v_add_u32 v{V_DOFF+2}, v7, v9
    v_xor_b32 v9, 64, v9
    v_add_u32 v{V_DOFF+3 if not OPT.get("trace") else V_T2}, v7, v9
    s_cmp_eq_u32 s{S_QT}, 0
    s_cbranch_scc1 L_voff_done
    v_lshlrev_b32 v8, 2, v5
    v_xor_b32 v8, v8, v6
    v_lshlrev_b32 v8, 4, v8
    v_add_u32 v{V_DOFF}, v7, v8
    L_voff_done:
    """)
    a(f"""
    s_and_b32 s3, s{S_B}, 3
    s_add_u32 s60, s3, 1
    s_lshl_b32 s3, s3, 3
    s_lshr_b32 s61, 0x3f557fff, s3
    s_and_b32 s61, s61, 0xff
    s_add_u32 s61, s61, 1
    s_lshr_b32 s62, 0x00ff7f55, s3
    s_and_b32 s62, s62, 0xff
    s_add_u32 s62, s62, 1
    s_mov_b32 s{S_P2}, 0
    """)
    for i in range(8):
        if OPT.get("stag2", 1):
            emit_tile(a, 63, ("imm", i), 60, 61, 62, 4, S_HP, 64, 65, 79)
        else:
            a(f"s_add_u32 s63, s{S_HP}, {i}")
            a(f"s_and_b32 s63, s63, 3")
            a(f"s_or_b32 s63, s63, {i & 4}")
        a(f"s_lshl_b32 s63, s63, {4*i}")
        a(f"s_or_b32 s{S_P2}, s{S_P2}, s63")
    a.label("L_p1_ld_loop")
    a("s_waitcnt vmcnt(5)")
    trace(a, 120, idx_sreg=S_CNT)
    if OPT.get("lt") == 7:
        for k, cnt in enumerate((2, 3, 4, 9, 10, 11, 15)):
            a(f"s_cmp_eq_u32 s{S_CNT}, {cnt}")
            a(f"s_cbranch_scc0 L_lt7_{k}")
            a(f"s_memtime s[{86+2*k}:{87+2*k}]")
            a.label(f"L_lt7_{k}")
    a("s_barrier")
    if OPT.get("trace"): a(f"s_add_u32 s94, s{S_CNT}, 16")
    trace(a, 120, idx_sreg=94)
    issue_tile()
    if OPT.get("trace"): a(f"s_add_u32 s94, s{S_CNT}, 32")
    trace(a, 120, idx_sreg=94)
    a(f"""
    s_add_u32 s{S_SLOT}, s{S_SLOT}, {AREA}
    s_cmp_eq_u32 s{S_SLOT}, {3*AREA}
    s_cselect_b32 s{S_SLOT}, 0, s{S_SLOT}
    s_add_u32 s{S_CNT}, s{S_CNT}, 1
    s_cmp_lt_u32 s{S_CNT}, 16
    s_cbranch_scc1 L_p1_ld_loop
    """)
    def tile_soff(step, dst):
        a(f"""
        s_bfe_u32 s{dst}, s{S_P2}, {(4 << 16) | (4*step)}
        s_lshl_b32 s{dst}, s{dst}, 13
        s_add_u32 s{dst}, s{dst}, s{S_KVB}
        """)
    def dma8(step, lds_off, voff_fn, srdb):
        tile_soff(step, 76)
        a(f"s_mul_i32 s77, s{S_KQ}, {AREA}")
        a(f"s_add_u32 m0, s77, {lds_off}")
        for q in range(8):
            if q == 4:
                a(f"s_add_u32 m0, s77, {lds_off + 4096}")
                a(f"s_add_u32 s76, s76, 4096")
            a(f"buffer_load_dwordx4 v{voff_fn(q)}, s[{srdb}:{srdb+3}], s76 offen offset:{(q & 3) * 1024} {NTKV()}lds")
    def issue_k(step):
        if OPT.get("trace"):
            a(f"v_xor_b32 v{V_T2}, 64, v{V_DOFF+2}")
            dma8(step, (step % 3) * 8192, lambda q: (V_DOFF + (q & 3)) if (q & 3) != 3 else V_T2, 16)
        else:
            dma8(step, (step % 3) * 8192, lambda q: V_DOFF + (q & 3), 16)
    def issue_v(step): dma8(step, 24576 + (step % 2) * 8192, lambda q: V_DOFF, 20)
    def call_early_if(kq):
        lab = a.newlabel("L_ne")
        a(f"s_cmp_eq_u32 s{S_KQ}, {kq}")
        a(f"s_cbranch_scc0 {lab}")
        a(f"s_call_b64 s[{S_RET}:{S_RET+1}], L_early")
        a.label(lab)
    a("s_waitcnt vmcnt(5)")
    call_early_if(3)
    a("s_barrier")
    call_early_if(1)
    a(f"""
    s_and_b32 s3, s{S_KQ}, 1
    s_cmp_eq_u32 s3, 1
    s_cbranch_scc1 L_w15_early
    s_waitcnt vmcnt(0)
    s_branch L_w15_done
    L_w15_early:
    s_cmp_eq_u32 s{S_QT}, 0
    s_cbranch_scc1 L_w15_k
    s_waitcnt vmcnt(8)
    s_branch L_w15_done
    L_w15_k:
    s_waitcnt vmcnt(16)
    L_w15_done:
    """)
    a("s_barrier")
    call_early_if(2)
    a("s_barrier")
    call_early_if(0)
    a("s_branch L_p1_join")
    a.label("L_early")
    a(f"s_cmp_eq_u32 s{S_QT}, 0")
    a("s_cbranch_scc0 L_early_v")
    issue_k(0)
    issue_k(1)
    a(f"s_setpc_b64 s[{S_RET}:{S_RET+1}]")
    a.label("L_early_v")
    issue_v(0)
    a(f"s_setpc_b64 s[{S_RET}:{S_RET+1}]")

    a.label("L_p1_compute")
    P_ACC, P_A, P_B, P_WA, P_XA = 0, 48, 80, 104, 108
    a(f"""
    v_lshrrev_b32 v110, 4, v{L}
    v_and_b32 v111, 15, v{L}
    v_lshrrev_b32 v112, 2, v111
    v_and_b32 v113, 3, v111
    v_lshlrev_b32 v114, 3, v110
    v_add_u32 v114, v114, v112
    v_lshlrev_b32 v114, 9, v114
    v_lshlrev_b32 v113, 3, v113
    v_add_u32 v114, v114, v113
    v_and_b32 v115, 1, v110
    v_lshlrev_b32 v115, 2, v115
    v_or_b32 v115, v115, v112
    s_lshl_b32 s{S_T0}, s{S_KQ}, 2
    """)
    for dt in range(4):
        a(f"s_add_u32 s{S_T1}, s{S_T0}, {dt}")
        a(f"v_xor_b32 v116, s{S_T1}, v115")
        a(f"v_lshlrev_b32 v116, 5, v116")
        a(f"v_add_u32 v{P_WA+dt}, v114, v116")
    a(f"""
    v_lshrrev_b32 v112, 1, v111
    v_xor_b32 v112, v112, v110
    v_lshlrev_b32 v112, 4, v112
    v_lshlrev_b32 v113, 7, v111
    v_add_u32 v112, v112, v113
    v_add_u32 v{P_XA}, 32768, v112
    v_xor_b32 v{P_XA+1}, 64, v{P_XA}
    """)
    for i in range(48):
        a(f"v_mov_b32 v{P_ACC+i}, 0")
    for i in range(4):
        a(f"v_mov_b32 v{V_DOFF+i}, 0")
    a(f"s_waitcnt lgkmcnt(0)")
    srd(a, 24, 72, 72, 1 << 28, sel=False)
    a(f"s_cmp_eq_u32 s{S_BLK}, 0")
    srd(a, 16, 50, 60, 8*4*1024*128*2)
    srd(a, 20, 52, 62, 8*4*1024*128*2)
    if OPT.get("b01", 1) and OPT.get("xpf_late"): a("s_barrier")
    if OPT.get("xpf", 1):
        a(f"s_cmp_eq_u32 s{S_BLK}, 0")
        srd(a, 8, 48, 58, 8*48*1024*2)
        a(f"""
        s_cmp_eq_u32 s{S_KQ}, 3
        s_cbranch_scc1 L_noxpf
        s_mul_i32 s3, s{S_HP}, 24576
        s_add_u32 s3, s3, s{S_XB}
        s_lshl_b32 s76, s{S_KQ}, 13
        s_add_u32 s3, s3, s76
        v_lshlrev_b32 v126, 7, v{L}
        buffer_load_dword v128, v126, s[8:11], s3 offen
        L_noxpf:
        """)
    if OPT.get("b01", 1) and not OPT.get("xpf_late"): a("s_barrier")
    group_ids()
    a(f"s_cmp_eq_u32 s{S_W}, 8")
    a("s_cbranch_scc0 L_noclr")
    a(f"""
    s_mov_b32 s16, s70
    s_mov_b32 s17, s71
    s_mov_b32 s18, 256
    s_mov_b32 s19, 0x00020000
    s_lshl_b32 s3, s{S_G1}, 7
    s_lshl_b32 s76, s{S_NT8}, 2
    s_add_u32 s3, s3, s76
    s_add_u32 s3, s3, {FLAG_OFF}
    s_lshl_b32 s76, s{S_G2}, 7
    s_lshl_b32 s77, s{S_G}, 2
    s_add_u32 s76, s76, s77
    s_add_u32 s76, s76, {FLAG_OFF + 8192}
    v_mov_b32 v126, 0
    v_mov_b32 v127, 1
    s_mov_b64 exec, 1
    buffer_store_dword v126, v126, s[24:27], s3 offen sc1
    buffer_store_dword v126, v126, s[24:27], s76 offen sc1
    s_waitcnt vmcnt(0)
    s_and_b32 s3, s2, 15
    s_lshl_b32 s3, s3, 2
    buffer_atomic_add v127, v126, s[16:19], s3 offen sc1
    s_mov_b64 exec, -1
    L_noclr:
    """)
    a(f"s_mov_b32 s{S_KVB}, 0")
    a(f"s_mov_b32 s{S_CNT}, 0")
    a(f"s_mov_b32 s{S_SLOT}, 0")
    def rd_ks(ks):
        if OPT.get("nocomp"): return
        for dt in range(4):
            for hf in range(2):
                r = P_A + ks*16 + dt*4 + hf*2
                a(f"ds_read_b64_tr_b16 v[{r}:{r+1}], v{P_WA+dt} offset:{ks*16384 + hf*2048}")
    def rd_x(ks):
        if OPT.get("nocomp"): return
        for st in range(3):
            r = P_B + ks*12 + st*4
            a(f"ds_read_b128 v[{r}:{r+3}], v{P_XA+ks} offset:{st*2048}")
    def mm(ks):
        if OPT.get("nocomp"): return
        for dt in range(4):
            for st in range(3):
                ac = P_ACC + (dt*3+st)*4
                ra = P_A + ks*16 + dt*4; rb = P_B + ks*12 + st*4
                a(f"v_mfma_f32_16x16x32_bf16 v[{ac}:{ac+3}], v[{ra}:{ra+3}], v[{rb}:{rb+3}], v[{ac}:{ac+3}]")
    a.label("L_p1_c_loop")
    trace(a, 120, idx_sreg=S_CNT)
    a("s_barrier")
    if OPT.get("trace"): a(f"s_add_u32 s94, s{S_CNT}, 16")
    trace(a, 120, idx_sreg=94)
    rd_x(0); rd_ks(0)
    a(f"s_cmp_eq_u32 s{S_CNT}, 0")
    a("s_cbranch_scc1 L_p1_c_skip")
    mm(1)
    a.label("L_p1_c_skip")
    rd_x(1); rd_ks(1)
    a("s_waitcnt lgkmcnt(11)")
    mm(0)
    a(f"""
    s_add_u32 s{S_SLOT}, s{S_SLOT}, 1
    s_cmp_eq_u32 s{S_SLOT}, 3
    s_cselect_b32 s{S_SLOT}, 0, s{S_SLOT}
    s_mov_b32 s3, {AREA}
    s_cselect_b32 s3, {(-2*AREA) & 0xffffffff}, s3
    """)
    for r in list(range(P_WA, P_WA+4)) + [P_XA, P_XA+1]:
        a(f"v_add_u32 v{r}, s3, v{r}")
    a(f"""
    s_add_u32 s{S_CNT}, s{S_CNT}, 1
    s_cmp_lt_u32 s{S_CNT}, 16
    s_waitcnt lgkmcnt(0)
    s_cbranch_scc1 L_p1_c_loop
    s_barrier
    """)
    mm(1)
    a(f"""
    s_mov_b32 s{S_C}, {f2u(C_SCALE)}
    v_lshrrev_b32 v110, 4, v{L}
    v_and_b32 v111, 15, v{L}
    v_lshlrev_b32 v112, 8, v111
    v_and_b32 v113, 1, v110
    v_lshlrev_b32 v113, 3, v113
    v_add_u32 v112, v112, v113
    v_lshrrev_b32 v113, 1, v110
    s_and_b32 s{S_T0}, s{S_KQ}, 1
    s_lshl_b32 s{S_T0}, s{S_T0}, 3
    v_add_u32 v113, s{S_T0}, v113
    s_lshr_b32 s{S_T1}, s{S_KQ}, 1
    s_cmp_eq_u32 s{S_T1}, 0
    s_mov_b32 s76, {2*AREA+16384+4096}
    s_mov_b32 s77, {3*AREA+16384}
    s_mov_b32 s78, {3*AREA+16384+4096}
    s_cselect_b32 s76, {1*AREA+16384}, s76
    s_cselect_b32 s77, {1*AREA+16384+4096}, s77
    s_cselect_b32 s78, {2*AREA+16384}, s78
    """)
    for dt in range(4):
        a(f"v_add_u32 v114, {2*dt}, v113")
        a(f"v_xor_b32 v114, v114, v111")
        a(f"v_lshlrev_b32 v114, 4, v114")
        a(f"v_add_u32 v114, v114, v112")
        for st in range(3):
            ac = P_ACC + (dt*3+st)*4
            t = 116 + 2*(st & 1)
            for e in range(4): a(f"v_mul_f32 v{ac+e}, s{S_C}, v{ac+e}")
            a(f"v_cvt_pk_bf16_f32 v{t}, v{ac}, v{ac+1}")
            a(f"v_cvt_pk_bf16_f32 v{t+1}, v{ac+2}, v{ac+3}")
            a(f"v_add_u32 v{123+st}, s{76+st}, v114")
            a(f"ds_write_b64 v{123+st}, v[{t}:{t+1}]")
    a("s_waitcnt lgkmcnt(0)")

    a.label("L_p1_join")
    trace(a, 120, idx_imm=60)
    if OPT.get("lt") == 7: a("s_memtime s[100:101]")
    a("s_barrier")
    trace(a, 120, idx_imm=61)
    trace_dump(a, 120, 121, S_W, V_LANE, 0)
    if OPT.get("trace"): a("v_mov_b32 v167, 0")
    stamp(a, 1)
    a(f"""
    s_mov_b32 s{S_TC}, {f2u(T_HI)}
    s_mov_b32 s{S_NC}, {f2u(-T_LO)}
    s_mov_b64 s[{S_SLOW}:{S_SLOW+1}], 0
    v_and_b32 v{V_T0}, 31, v{L}
    v_lshlrev_b32 v{V_T0}, 8, v{V_T0}
    v_lshrrev_b32 v{V_T1}, 5, v{L}
    v_and_b32 v{V_T2}, 15, v{L}
    v_xor_b32 v{V_T1}, v{V_T1}, v{V_T2}
    v_lshlrev_b32 v{V_T1}, 4, v{V_T1}
    v_add_u32 v{V_T0}, v{V_T0}, v{V_T1}
    s_add_u32 s3, s{S_QT}, 1
    s_mul_i32 s3, s3, {AREA}
    s_add_u32 s3, s3, 16384
    s_mul_i32 s76, s{S_KQ}, {AREA}
    """)
    for st8 in range(8):
        a(f"v_xor_b32 v{V_T1}, {st8 << 5}, v{V_T0}")
        a(f"v_add_u32 v{V_F+st8}, s3, v{V_T1}")
        a(f"v_add_u32 v{V_KA+st8}, s76, v{V_T1}")
        a(f"ds_read_b128 v[{V_Q+4*st8}:{V_Q+4*st8+3}], v{V_F+st8}")
    a(f"""
    v_lshrrev_b32 v{V_T0}, 5, v{L}
    v_lshlrev_b32 v{V_T0}, 2, v{V_T0}
    v_bfe_u32 v{V_T1}, v{L}, 2, 2
    v_add_u32 v{V_T0}, v{V_T0}, v{V_T1}
    v_lshlrev_b32 v{V_T0}, 8, v{V_T0}
    v_bfe_u32 v{V_T2}, v{L}, 4, 1
    v_lshlrev_b32 v{V_T2}, 5, v{V_T2}
    v_add_u32 v{V_T0}, v{V_T0}, v{V_T2}
    v_and_b32 v{V_T2}, 3, v{L}
    v_lshlrev_b32 v{V_T2}, 3, v{V_T2}
    v_add_u32 v{V_T0}, v{V_T0}, v{V_T2}
    s_add_u32 s76, s76, 24576
    v_add_u32 v{V_T0}, s76, v{V_T0}
    """)
    for j in range(4):
        a(f"s_add_u32 s3, s{S_KQ}, {j}")
        a(f"s_and_b32 s3, s3, 3")
        a(f"v_xor_b32 v{V_T2}, s3, v{V_T1}")
        a(f"v_lshlrev_b32 v{V_T2}, 6, v{V_T2}")
        a(f"v_add_u32 v{V_VA+j}, v{V_T0}, v{V_T2}")
    for i in range(64):
        a(f"v_mov_b32 v{V_O+i}, 0")
    a(f"""
    v_mov_b32 v{V_M}, 0
    v_mov_b32 v{V_THR}, s{S_TC}
    v_mov_b32 v{V_L}, 0
    s_waitcnt lgkmcnt(0)
    """)

    S = V_S
    def tr2(idx):
        lt = OPT.get("lt")
        if lt and idx < 36:
            i, k = idx // 4, idx % 4
            if (lt == 1 and k == 1) or (lt == 2 and k == 0) or (lt == 3 and k == 2):
                a(f"s_memtime s[{80+2*i}:{81+2*i}]")
        if lt and lt != 7 and idx == 41: a("s_memtime s[98:99]")
        if lt and lt != 7 and idx == 40: a("s_memtime s[100:101]")
        if not OPT.get("trace"): return
        trace(a, 120 if False else 167, idx_imm=idx)
    def rd_k(step, st8):
        a(f"ds_read_b128 v[{V_F+4*st8}:{V_F+4*st8+3}], v{V_KA+st8} offset:{(step % 3) * 8192}")
    def rd_v(step, f):
        t, j = f // 4, f % 4
        for hf in range(2):
            r = V_F + 4*f + 2*hf
            a(f"ds_read_b64_tr_b16 v[{r}:{r+1}], v{V_VA+j} offset:{(step % 2) * 8192 + (16*t + 8*hf)*256}")
    def qk(step, pending_k):
        for st8 in range(8):
            a(f"s_waitcnt lgkmcnt({7 - st8 if st8 < 2 else min(15, 7 - st8 + 2*(st8-1))})")
            c = "0" if st8 == 0 else f"v[{S}:{S+15}]"
            a(f"v_mfma_f32_32x32x16_bf16 v[{S}:{S+15}], v[{V_F+4*st8}:{V_F+4*st8+3}], v[{V_Q+4*st8}:{V_Q+4*st8+3}], {c}")
            if st8 >= 1: rd_v(step, st8 - 1)
        rd_v(step, 7)
    def softmax_half(half):
        for i in range(8*half, 8*half+8):
            a(f"v_exp_f32 v{S+i}, v{S+i}")
        for i in range(8*half, 8*half+8):
            a(f"v_add_f32 v{V_L}, v{V_L}, v{S+i}")
        for j in range(4*half, 4*half+4):
            a(f"v_cvt_pk_bf16_f32 v{S+j}, v{S+2*j}, v{S+2*j+1}")
    def softmax_max(lab, first=False):
        a(f"v_max3_f32 v{V_T0}, v{S}, v{S+1}, v{S+2}")
        a(f"v_max3_f32 v{V_T1}, v{S+3}, v{S+4}, v{S+5}")
        a(f"v_max3_f32 v{V_T0}, v{V_T0}, v{S+6}, v{S+7}")
        a(f"v_max3_f32 v{V_T1}, v{V_T1}, v{S+8}, v{S+9}")
        a(f"v_max3_f32 v{V_T0}, v{V_T0}, v{S+10}, v{S+11}")
        a(f"v_max3_f32 v{V_T1}, v{V_T1}, v{S+12}, v{S+13}")
        a(f"v_max3_f32 v{V_T0}, v{V_T0}, v{S+14}, v{S+15}")
        a(f"v_max_f32 v{V_T0}, v{V_T0}, v{V_T1}")
        a(f"v_mov_b32 v{V_T1}, v{V_T0}")
        a(f"v_permlane32_swap_b32 v{V_T0}, v{V_T1}")
        a(f"v_max_f32 v{V_T0}, v{V_T0}, v{V_T1}")
        a(f"v_cmp_gt_f32 vcc, v{V_T0}, v{V_THR}")
        if first:
            a(f"v_cmp_gt_f32 s[52:53], s{S_NC}, v{V_T0}")
            a(f"s_or_b64 vcc, vcc, s[52:53]")
        a(f"s_or_b64 s[52:53], vcc, s[{S_SLOW}:{S_SLOW+1}]")
        a(f"s_cbranch_scc0 {lab}")
        a(f"s_call_b64 s[{S_RET}:{S_RET+1}], L_slow{'_first' if first else ''}")
        a.label(lab)
    def pv_mfma(f):
        t, j = f // 4, f % 4
        o = V_O + 16*j
        a(f"v_mfma_f32_32x32x16_bf16 v[{o}:{o+15}], v[{V_F+4*f}:{V_F+4*f+3}], v[{S+4*t}:{S+4*t+3}], v[{o}:{o+15}]")
    def pv_then_k(next_step):
        for f in range(8):
            pv_mfma(f)
            if next_step is not None and f >= 1: rd_k(next_step, f - 1)
        if next_step is not None: rd_k(next_step, 7)

    PR = OPT.get("prio", 1)
    def prio(p):
        if PR: a(f"s_setprio {p}")
    a(f"s_cmp_eq_u32 s{S_QT}, 1")
    a("s_cbranch_scc1 L_typeA")
    a(f"s_cmp_eq_u32 s{S_QT}, 2")
    a("s_cbranch_scc1 L_typeC")
    for i in range(8):
        a(f"s_waitcnt vmcnt({8 if i < 7 else 0})")
        tr2(4*i)
        a("s_barrier")
        tr2(4*i+1)
        prio(1)
        if i == 0:
            for st8 in range(8): rd_k(0, st8)
        else:
            pv_then_k(i)
        if i + 2 < 8: issue_k(i + 2)
        qk(i, 0)
        tr2(4*i+2)
        prio(2)
        softmax_max(f"L_D{i}", first=(i == 0))
        softmax_half(0); softmax_half(1)
        a("s_waitcnt lgkmcnt(0)")
    tr2(32)
    a("s_barrier")
    pv_then_k(None)
    a("s_branch L_merge")
    a.label("L_typeA")
    for i in range(8):
        a(f"s_waitcnt vmcnt(0)")
        tr2(4*i)
        a("s_barrier")
        tr2(4*i+1)
        prio(3)
        for st8 in range(8): rd_k(i, st8)
        if i + 1 < 8: issue_v(i + 1)
        qk(i, 0)
        tr2(4*i+2)
        prio(2)
        softmax_max(f"L_A{i}", first=(i == 0))
        softmax_half(0); softmax_half(1)
        prio(0)
        for f in range(8):
            a(f"s_waitcnt lgkmcnt({min(15, 2*(7-f))})")
            pv_mfma(f)
    tr2(32)
    a("s_barrier")
    a("s_branch L_merge")
    a.label("L_typeC")
    a(f"s_cmp_eq_u32 s{S_BLK}, 0")
    srd(a, 12, 56, 66, 4096*1024*2)
    a(f"""
    v_lshrrev_b32 v{V_DOFF+1}, 1, v{L}
    v_lshlrev_b32 v{V_DOFF+1}, 11, v{V_DOFF+1}
    v_and_b32 v{V_DOFF+2}, 1, v{L}
    v_lshlrev_b32 v{V_DOFF+2}, 7, v{V_DOFF+2}
    v_add_u32 v{V_DOFF+1}, v{V_DOFF+1}, v{V_DOFF+2}
    s_lshl_b32 s45, s{S_G}, 10
    s_lshl_b32 s3, s{S_BP}, 8
    s_add_u32 s45, s45, s3
    s_lshl_b32 s3, s{S_KQ}, 6
    s_add_u32 s45, s45, s3
    s_lshl_b32 s45, s45, 11
    s_lshl_b32 s3, s{S_NT8}, 8
    s_add_u32 s45, s45, s3
    """)
    PF_AT = {OPT.get("pf0", 2): 0, OPT.get("pf1", 5): 1}
    for i in range(9):
        tr2(4*i)
        a("s_barrier")
        tr2(4*i+1)
        prio(2)
        if i == 0:
            for st8 in range(8): rd_k(0, st8)
        else:
            softmax_max(f"L_C{i}", first=(i == 1))
            softmax_half(0); softmax_half(1)
            if i in PF_AT and OPT.get("wopf", 1):
                a(f"s_add_u32 s3, s45, {PF_AT[i] * 32 * 2048}")
                a(f"buffer_load_dword v{V_DOFF+2}, v{V_DOFF+1}, s[12:15], s3 offen {NTWO()}")
            pv_then_k(i if i < 8 else None)
        if i < 8:
            prio(1)
            qk(i, 0)
            a("s_waitcnt lgkmcnt(0)")
    def spin(label, load_lines, cmp_val, vreg):
        a(f"s_mov_b32 s{S_CNT}, 0")
        a.label(label)
        a(load_lines)
        a("s_waitcnt vmcnt(0)")
        a(f"v_cmp_ne_u32 vcc, s3, v{vreg}" if cmp_val is None else f"v_cmp_ne_u32 vcc, {cmp_val}, v{vreg}")
        a(f"s_cbranch_vccz {label}_ok")
        a(f"s_add_u32 s{S_CNT}, s{S_CNT}, 1")
        a(f"s_cmp_lt_u32 s{S_CNT}, {SPIN_MAX}")
        a("s_sleep 1")
        a(f"s_cbranch_scc1 {label}")
        a.label(f"{label}_ok")

    def gen_tail():
        T_ACC, T_FR, T_AA, T_BA, T_DOFF, T_X = 0, 48, 112, 113, 114, 116
        S_WOB, S_OB, S_ST = 45, 46, 47
        def ts(i):
            if OPT.get("lt") == 5: a(f"s_memtime s[{80+2*i}:{81+2*i}]")
        ts(0)
        a(f"s_cmp_eq_u32 s{S_BLK}, 0")
        srd(a, 12, 56, 66, 4096*1024*2)
        srd(a, 8, 68, 68, 8*48*2048*2, sel=False)
        a(f"""
        s_mov_b32 s16, s70
        s_mov_b32 s17, s71
        s_mov_b32 s18, 256
        s_mov_b32 s19, 0x00020000
        s_lshl_b32 s{S_WOB}, s{S_G}, 21
        s_lshl_b32 s3, s{S_NT8}, 8
        s_add_u32 s{S_WOB}, s{S_WOB}, s3
        s_mul_i32 s{S_OB}, s{S_G1}, {192*1024}
        s_add_u32 s{S_OB}, s{S_OB}, {O_OFF}
        s_cmp_ge_u32 s{S_W}, 8
        s_cbranch_scc1 L_t_compute
        """)
        a(f"""
        v_lshrrev_b32 v{T_X}, 4, v{L}
        v_and_b32 v{T_X+1}, 15, v{L}
        v_lshlrev_b32 v{T_X+2}, 2, v{T_X}
        v_xor_b32 v{T_X+2}, v{T_X+2}, v{T_X+1}
        v_lshlrev_b32 v{T_X+2}, 4, v{T_X+2}
        v_lshlrev_b32 v{T_X}, 11, v{T_X}
        v_add_u32 v{T_DOFF}, v{T_X}, v{T_X+2}
        v_lshlrev_b32 v{T_DOFF+1}, 4, v{L}
        s_lshl_b32 s{S_T0}, s{S_W}, 15
        s_add_u32 s{S_WOB}, s{S_WOB}, s{S_T0}
        s_lshl_b32 s{S_T2}, s{S_W}, 12
        s_mul_i32 s{S_T3}, s{S_W}, 3072
        s_add_u32 s{S_OB}, s{S_OB}, s{S_T3}
        """)
        def issue_wo(st_sreg_or_imm, slot):
            if isinstance(st_sreg_or_imm, int):
                a(f"s_add_u32 s3, s{S_NT8}, {st_sreg_or_imm}")
            a(f"s_and_b32 s3, s3, 7")
            a(f"s_lshl_b32 s76, s3, 18")
            a(f"s_add_u32 s76, s76, s{S_WOB}")
            a(f"s_add_u32 s77, s{S_T2}, {slot*32768}")
            for q in range(4):
                a(f"s_add_u32 m0, s77, {q*1024}")
                if q: a(f"s_add_u32 s76, s76, {4*2048}")
                a(f"buffer_load_dwordx4 v{T_DOFF}, s[12:15], s76 offen lds")
        def issue_o(st, slot):
            a(f"s_add_u32 s3, s{S_NT8}, {st}")
            a(f"s_and_b32 s3, s3, 7")
            a(f"s_mul_i32 s76, s3, 24576")
            a(f"s_add_u32 s76, s76, s{S_OB}")
            a(f"s_add_u32 m0, s{S_T3}, {98304 + slot*24576}")
            for q in range(3):
                a(f"buffer_load_dwordx4 v{T_DOFF+1}, s[24:27], s76 offen offset:{q*1024} {OSC()}lds")
        a("s_waitcnt vmcnt(0)")
        ts(1)
        a("s_barrier")
        a("s_sleep 1")
        for st in range(3): issue_wo(st, st)
        a("s_barrier")
        ts(2)
        issue_o(0, 0); issue_o(1, 1)
        for st in range(8):
            n = 3 if st == 0 else (0 if st in (1, 7) else 4)
            a(f"s_waitcnt vmcnt({n})")
            if OPT.get("lt") == 6: a(f"s_memtime s[{80+2*st}:{81+2*st}]")
            a("s_barrier")
            if st >= 1:
                if st + 1 <= 7: issue_o(st + 1, (st + 1) % 2)
                if st + 2 <= 7: issue_wo(st + 2, (st + 2) % 3)
        ts(3)
        a("s_branch L_t_join")
        a.label("L_t_compute")
        a(f"""
        v_lshrrev_b32 v{T_X}, 5, v{L}
        v_lshlrev_b32 v{T_X}, 3, v{T_X}
        v_bfe_u32 v{T_X+1}, v{L}, 2, 2
        v_add_u32 v{T_X}, v{T_X}, v{T_X+1}
        v_lshlrev_b32 v{T_X}, 8, v{T_X}
        v_bfe_u32 v{T_X+2}, v{L}, 4, 1
        v_lshlrev_b32 v{T_X+2}, 5, v{T_X+2}
        v_add_u32 v{T_X}, v{T_X}, v{T_X+2}
        v_and_b32 v{T_X+2}, 3, v{L}
        v_lshlrev_b32 v{T_X+2}, 3, v{T_X+2}
        v_add_u32 v{T_X}, v{T_X}, v{T_X+2}
        v_xor_b32 v{T_X+2}, s{S_KQ}, v{T_X+1}
        v_lshlrev_b32 v{T_X+2}, 6, v{T_X+2}
        v_add_u32 v{T_AA}, v{T_X}, v{T_X+2}
        v_lshlrev_b32 v{T_BA}, 4, v{L}
        v_add_u32 v{T_BA}, 98304, v{T_BA}
        """)
        for i in range(48):
            a(f"v_mov_b32 v{T_ACC+i}, 0")
        a("s_waitcnt vmcnt(0)")
        ts(1)
        a("s_barrier")
        a(f"s_cmp_eq_u32 s{S_W}, 8")
        a("s_cbranch_scc0 L_t_nopoll1")
        a("s_setprio 3")
        a(f"""
        s_lshl_b32 s3, s{S_G1}, 7
        s_add_u32 s76, s3, {FLAG_OFF}
        s_lshl_b32 s3, s{S_NT8}, 2
        s_add_u32 s77, s76, s3
        v_mov_b32 v{T_X}, 0
        v_mov_b32 v{T_X+1}, {TOK_A}
        s_mov_b64 exec, 1
        buffer_store_dword v{T_X+1}, v{T_X}, s[24:27], s77 offen sc1
        s_mov_b64 exec, -1
        v_and_b32 v{T_X}, 15, v{L}
        v_lshlrev_b32 v{T_X}, 2, v{T_X}
        v_and_b32 v{T_X+2}, 7, v{L}
        v_lshlrev_b32 v{T_X+2}, 2, v{T_X+2}
        """)
        spin("L_spin_dbg", f"buffer_load_dword v{T_X+1}, v{T_X}, s[16:19], 0 offen sc1", 16, T_X+1)
        a(f"s_mov_b32 s3, {TOK_A}")
        spin("L_spin_a", f"buffer_load_dword v{T_X+1}, v{T_X+2}, s[24:27], s76 offen sc1", None, T_X+1)
        a("s_setprio 0")
        a.label("L_t_nopoll1")
        a("s_barrier")
        ts(2)
        def rd_list(j):
            b = T_FR + 16*(j % 4)
            out = []
            for hf in range(2):
                out.append(f"ds_read_b64_tr_b16 v[{b+2*hf}:{b+2*hf+1}], v{T_AA} offset:{j*4096 + hf*1024}")
            for m in range(3):
                out.append(f"ds_read_b128 v[{b+4+4*m}:{b+7+4*m}], v{T_BA} offset:{(j*3+m)*1024}")
            return out
        def mm_list(j):
            b = T_FR + 16*(j % 4)
            return [f"v_mfma_f32_32x32x16_bf16 v[{T_ACC+16*m}:{T_ACC+16*m+15}], v[{b}:{b+3}], v[{b+4+4*m}:{b+7+4*m}], v[{T_ACC+16*m}:{T_ACC+16*m+15}]" for m in range(3)]
        def mm3(j):
            for x in mm_list(j): a(x)
        def weave(mm, rd):
            groups = [rd[0:3], rd[3:4], rd[4:5]]
            for x, g in zip(mm, groups):
                a(x)
                for y in g: a(y)
        a(f"s_mov_b32 s{S_ST}, 0")
        a(f"s_mov_b32 s{S_SLOT}, 0")
        a.label("L_t_loop")
        if OPT.get("lt") == 6:
            for st in range(8):
                a(f"s_cmp_eq_u32 s{S_ST}, {st}")
                a(f"s_cbranch_scc0 L_lt6_{st}")
                a(f"s_memtime s[{80+2*st}:{81+2*st}]")
                a.label(f"L_lt6_{st}")
        a("s_barrier")
        a(f"s_cmp_eq_u32 s{S_ST}, 0")
        a("s_cbranch_scc0 L_t_left")
        for y in rd_list(0) + rd_list(1): a(y)
        a("s_branch L_t_skip")
        a.label("L_t_left")
        weave(mm_list(6), rd_list(0))
        weave(mm_list(7), rd_list(1))
        a.label("L_t_skip")
        for j in range(6):
            a("s_waitcnt lgkmcnt(5)")
            weave(mm_list(j), rd_list(j + 2))
        a(f"""
        s_add_u32 s{S_SLOT}, s{S_SLOT}, 1
        s_cmp_eq_u32 s{S_SLOT}, 3
        s_cselect_b32 s{S_SLOT}, 0, s{S_SLOT}
        s_mov_b32 s3, 32768
        s_cselect_b32 s3, {(-65536) & 0xffffffff}, s3
        v_add_u32 v{T_AA}, s3, v{T_AA}
        s_bitcmp1_b32 s{S_ST}, 0
        s_mov_b32 s3, 24576
        s_cselect_b32 s3, {(-24576) & 0xffffffff}, s3
        v_add_u32 v{T_BA}, s3, v{T_BA}
        s_add_u32 s{S_ST}, s{S_ST}, 1
        s_cmp_lt_u32 s{S_ST}, 8
        s_waitcnt lgkmcnt(0)
        s_cbranch_scc1 L_t_loop
        """)
        mm3(6); mm3(7)
        ts(3)
        a(f"""
        s_lshl_b32 s3, s{S_G2}, 2
        s_add_u32 s3, s3, s{S_KQ}
        s_lshl_b32 s3, s3, 2
        s_add_u32 s3, s3, s{S_G}
        s_mul_i32 s76, s3, 12288
        s_add_u32 s76, s76, {PART_OFF}
        v_lshlrev_b32 v{T_X}, 4, v{L}
        """)
        for m in range(3):
            for rq in range(4):
                r = T_ACC + 16*m + 4*rq
                a(f"buffer_store_dwordx4 v[{r}:{r+3}], v{T_X}, s[24:27], s76 offen offset:{rq*1024} sc1")
            if m < 2: a(f"s_add_u32 s76, s76, 4096")
        a("s_waitcnt vmcnt(0)")
        a.label("L_t_join")
        ts(4)
        a("s_barrier")
        a(f"s_cmp_eq_u32 s{S_W}, 8")
        a("s_cbranch_scc0 L_t_nopoll2")
        a(f"""
        s_lshl_b32 s3, s{S_G2}, 7
        s_add_u32 s76, s3, {FLAG_OFF + 8192}
        s_lshl_b32 s3, s{S_G}, 2
        s_add_u32 s77, s76, s3
        v_mov_b32 v{T_X}, 0
        v_mov_b32 v{T_X+1}, {TOK_B}
        s_mov_b64 exec, 1
        buffer_store_dword v{T_X+1}, v{T_X}, s[24:27], s77 offen sc1
        s_mov_b64 exec, -1
        v_and_b32 v{T_X+2}, 3, v{L}
        v_lshlrev_b32 v{T_X+2}, 2, v{T_X+2}
        s_mov_b32 s3, {TOK_B}
        """)
        spin("L_spin_b", f"buffer_load_dword v{T_X+1}, v{T_X+2}, s[24:27], s76 offen sc1", None, T_X+1)
        a.label("L_t_nopoll2")
        a("s_barrier")
        ts(5)
        a(f"""
        s_lshl_b32 s3, s{S_G2}, 2
        s_add_u32 s3, s3, s{S_G}
        s_mul_i32 s76, s3, {4*12288}
        s_lshl_b32 s3, s{S_W}, 10
        s_add_u32 s76, s76, s3
        s_add_u32 s76, s76, {PART_OFF}
        v_lshlrev_b32 v{T_X}, 4, v{L}
        """)
        for src in range(4):
            a(f"buffer_load_dwordx4 v[{16+4*src}:{19+4*src}], v{T_X}, s[24:27], s76 offen sc1")
            if src < 3: a(f"s_add_u32 s76, s76, 12288")
        a(f"""
        s_mul_i32 s3, s{S_BP}, 96
        s_lshl_b32 s77, s{S_QT}, 5
        s_add_u32 s3, s3, s77
        s_lshl_b32 s3, s3, 12
        s_lshl_b32 s77, s{S_BLK}, 11
        s_add_u32 s3, s3, s77
        s_lshl_b32 s77, s{S_NT8}, 8
        s_add_u32 s3, s3, s77
        s_lshl_b32 s77, s{S_G}, 6
        s_add_u32 s3, s3, s77
        s_lshl_b32 s77, s{S_KQ}, 4
        s_add_u32 s3, s3, s77
        v_and_b32 v{T_X+1}, 31, v{L}
        v_lshlrev_b32 v{T_X+1}, 12, v{T_X+1}
        v_lshrrev_b32 v{T_X+2}, 5, v{L}
        v_lshlrev_b32 v{T_X+2}, 3, v{T_X+2}
        v_add_u32 v{T_X+1}, v{T_X+1}, v{T_X+2}
        s_waitcnt vmcnt(0)
        """)
        for i in range(4):
            a(f"v_add_f32 v{16+i}, v{16+i}, v{20+i}")
            a(f"v_add_f32 v{24+i}, v{24+i}, v{28+i}")
        for i in range(4):
            a(f"v_add_f32 v{16+i}, v{16+i}, v{24+i}")
        a("v_cvt_pk_bf16_f32 v20, v16, v17")
        a("v_cvt_pk_bf16_f32 v21, v18, v19")
        a(f"buffer_store_dwordx2 v[20:21], v{T_X+1}, s[8:11], s3 offen")
        ts(6)

    a.label("L_merge")
    prio(0)
    stamp(a, 2)
    tr2(40)
    F = V_F
    def mt(i):
        if OPT.get("lt") == 4: a(f"s_memtime s[{80+2*i}:{81+2*i}]")
    mt(0)
    a(f"""
    v_mov_b32 v{V_T0}, v{V_L}
    v_mov_b32 v{V_T1}, v{V_L}
    s_mul_i32 s76, s{S_KQ}, {AREA}
    v_lshlrev_b32 v{V_T2}, 4, v{L}
    v_permlane32_swap_b32 v{V_T0}, v{V_T1}
    s_mul_i32 s3, s{S_QT}, 12288
    s_add_u32 s77, s76, s3
    v_add_f32 v{V_L}, v{V_T0}, v{V_T1}
    v_add_u32 v{V_T1}, s77, v{V_T2}
    """)
    for j in range(1, 4):
        for rq in range(4):
            r = V_O + 16*j + 4*rq
            a(f"ds_write_b128 v{V_T1}, v[{r}:{r+3}] offset:{(j-1)*4096 + rq*1024}")
    mt(1)
    a(f"""
    v_and_b32 v{V_T0}, 31, v{L}
    v_lshlrev_b32 v{V_T0}, 3, v{V_T0}
    s_lshl_b32 s3, s{S_QT}, 8
    s_add_u32 s3, s3, 36864
    v_add_u32 v{V_T0}, s3, v{V_T0}
    v_add_u32 v{V_T1}, s76, v{V_T0}
    ds_write_b64 v{V_T1}, v[{V_M}:{V_L}]
    """)
    for j in range(1, 4):
        a(f"s_sub_u32 s3, s{S_KQ}, {j}")
        a(f"s_and_b32 s3, s3, 3")
        a(f"s_mul_i32 s76, s3, {AREA}")
        a(f"v_add_u32 v{V_Q+j}, s76, v{V_T0}")
        a(f"s_mul_i32 s3, s{S_QT}, 12288")
        a(f"s_add_u32 s76, s76, s3")
        a(f"v_add_u32 v{V_Q+4+j}, s76, v{V_T2}")
    A0, A1, A2, A3 = V_Q+8, V_Q+9, V_Q+10, V_Q+11
    a(f"""
    v_and_b32 v{A1}, 31, v{L}
    s_lshl_b32 s3, s{S_QT}, 5
    v_add_u32 v{A1}, s3, v{A1}
    v_cmp_le_u32 vcc, 48, v{A1}
    v_subrev_u32 v{A2}, 48, v{A1}
    v_mov_b32 v{A0}, 0
    v_mov_b32 v{A3}, {8*3072}
    v_cndmask_b32 v{A1}, v{A1}, v{A2}, vcc
    v_cndmask_b32 v{A0}, v{A0}, v{A3}, vcc
    s_and_b32 s3, s{S_B}, 1
    s_mul_i32 s3, s3, 48
    v_add_u32 v{A1}, s3, v{A1}
    v_lshrrev_b32 v{A2}, 5, v{A1}
    v_lshlrev_b32 v{A2}, 10, v{A2}
    v_add_u32 v{A0}, v{A0}, v{A2}
    v_and_b32 v{A1}, 31, v{A1}
    v_lshlrev_b32 v{A1}, 4, v{A1}
    v_add_u32 v{A0}, v{A0}, v{A1}
    v_lshrrev_b32 v{A1}, 5, v{L}
    v_lshlrev_b32 v{A1}, 3, v{A1}
    v_add_u32 v{A0}, v{A0}, v{A1}
    s_lshl_b32 s3, s{S_HP}, 4
    s_lshl_b32 s76, s{S_KQ}, 1
    s_add_u32 s3, s3, s76
    s_mul_i32 s3, s3, 3072
    s_mul_i32 s79, s{S_G1}, {192*1024}
    s_add_u32 s79, s79, s3
    s_add_u32 s79, s79, {O_OFF}
    """)
    mt(2)
    a("s_waitcnt lgkmcnt(0)")
    mt(3)
    a("s_barrier")
    mt(4)
    for j in range(1, 4):
        a(f"ds_read_b64 v[{F+2*j}:{F+2*j+1}], v{V_Q+j}")
    for j in range(1, 4):
        for rq in range(4):
            r = V_O + 16*j + 4*rq
            a(f"ds_read_b128 v[{r}:{r+3}], v{V_Q+4+j} offset:{(j-1)*4096 + rq*1024}")
    a("s_waitcnt lgkmcnt(12)")
    mt(5)
    a(f"""
    v_max3_f32 v{F+8}, v{V_M}, v{F+2}, v{F+4}
    v_max_f32 v{F+8}, v{F+8}, v{F+6}
    v_sub_f32 v{F+10}, v{V_M}, v{F+8}
    v_sub_f32 v{F+12}, v{F+2}, v{F+8}
    v_sub_f32 v{F+14}, v{F+4}, v{F+8}
    v_sub_f32 v{F+16}, v{F+6}, v{F+8}
    v_exp_f32 v{F+10}, v{F+10}
    v_exp_f32 v{F+12}, v{F+12}
    v_exp_f32 v{F+14}, v{F+14}
    v_exp_f32 v{F+16}, v{F+16}
    v_mul_f32 v{F+18}, v{F+10}, v{V_L}
    v_fma_f32 v{F+18}, v{F+12}, v{F+3}, v{F+18}
    v_fma_f32 v{F+18}, v{F+14}, v{F+5}, v{F+18}
    v_fma_f32 v{F+18}, v{F+16}, v{F+7}, v{F+18}
    v_rcp_f32 v{F+18}, v{F+18}
    v_mul_f32 v{F+10}, v{F+10}, v{F+18}
    v_mul_f32 v{F+12}, v{F+12}, v{F+18}
    v_mul_f32 v{F+14}, v{F+14}, v{F+18}
    v_mul_f32 v{F+16}, v{F+16}, v{F+18}
    """)
    mt(6)
    for i in range(0, 16, 2):
        a(f"v_pk_mul_f32 v[{V_O+i}:{V_O+i+1}], v[{V_O+i}:{V_O+i+1}], v[{F+10}:{F+11}] op_sel_hi:[1,0]")
    for j in range(1, 4):
        a(f"s_waitcnt lgkmcnt({12 - 4*j})")
        if j == 3: a("s_barrier")
        for i in range(0, 16, 2):
            a(f"v_pk_fma_f32 v[{V_O+i}:{V_O+i+1}], v[{V_O+16*j+i}:{V_O+16*j+i+1}], v[{F+10+2*j}:{F+11+2*j}], v[{V_O+i}:{V_O+i+1}] op_sel_hi:[1,0,1]")
    mt(7)
    for rq in range(4):
        a(f"v_cvt_pk_bf16_f32 v{F+20+2*rq}, v{V_O+4*rq}, v{V_O+4*rq+1}")
        a(f"v_cvt_pk_bf16_f32 v{F+20+2*rq+1}, v{V_O+4*rq+2}, v{V_O+4*rq+3}")
    for rq in range(4):
        a(f"buffer_store_dwordx2 v[{F+20+2*rq}:{F+20+2*rq+1}], v{A0}, s[24:27], s79 offen offset:{(rq & 1)*512} sc1" if rq < 2 else
          f"buffer_store_dwordx2 v[{F+20+2*rq}:{F+20+2*rq+1}], v{A0}, s[24:27], s79 offen offset:{3072 + (rq & 1)*512} sc1")
    gen_tail()
    stamp(a, 3)
    tr2(41)
    trace_dump(a, 167, 100, S_W, V_LANE, 1)
    if OPT.get("lt"):
        a("s_waitcnt lgkmcnt(0)")
        a(f"s_lshl_b32 s3, s2, 4")
        a(f"s_add_u32 s3, s3, s{S_W}")
        a(f"s_lshl_b32 s3, s3, 8")
        a(f"s_add_u32 s3, s3, {(56 << 20) + (1 << 20)}")
        a("v_mov_b32 v102, s3")
        for i in range(11):
            a(f"v_mov_b32 v100, s{80+2*i}")
            a(f"buffer_store_dword v100, v102, s[24:27], 0 offen offset:{4*i}")
            a("s_waitcnt vmcnt(0)")
    if OPT["stamps"]: a("s_memtime s[90:91]")
    stamp_flush(a, 6, 100, S_W, 0)
    a("s_endpgm")
    a.label("L_slow_first")
    a(f"v_cndmask_b32 v{V_M}, v{V_M}, v{V_T0}, vcc")
    a(f"s_mov_b64 s[{S_SLOW}:{S_SLOW+1}], -1")
    a(f"v_add_f32 v{V_THR}, s{S_TC}, v{V_M}")
    a("s_branch L_slow_sub")
    a.label("L_slow")
    a("s_cbranch_vccz L_slow_sub")
    a(f"v_max_f32 v{V_T1}, v{V_M}, v{V_T0}")
    a(f"v_cndmask_b32 v{V_T1}, v{V_M}, v{V_T1}, vcc")
    a.label("L_slow_upd")
    a(f"""
    s_mov_b64 s[{S_SLOW}:{S_SLOW+1}], -1
    v_sub_f32 v{V_T2}, v{V_M}, v{V_T1}
    v_exp_f32 v{V_T2}, v{V_T2}
    v_mov_b32 v{V_M}, v{V_T1}
    v_add_f32 v{V_THR}, s{S_TC}, v{V_T1}
    v_mul_f32 v{V_L}, v{V_L}, v{V_T2}
    """)
    for i in range(64):
        a(f"v_mul_f32 v{V_O+i}, v{V_T2}, v{V_O+i}")
    a.label("L_slow_sub")
    for i in range(16):
        a(f"v_sub_f32 v{V_S+i}, v{V_S+i}, v{V_M}")
    a("s_nop 1")
    a(f"s_setpc_b64 s[{S_RET}:{S_RET+1}]")
    a.label("L_k1_end")
    a("s_endpgm")
    return a

def build():
    k1 = gen_k1().finalize()
    h1, d1 = kernel_text("gqa_fused_kernel", k1, 168)
    hdr = open("concat_heads__gqa_block_cached__gqa_block_cached__near_ridge.s.ref").read().split("; Override")[0]
    txt = hdr
    txt += "; @launch kernel=gqa_fused_kernel grid=(256,1,1) block=(768,1,1) lds=163840\n"
    txt += '.amdgcn_target "amdgcn-amd-amdhsa--gfx950"\n.text\n' + h1
    txt += '.section .rodata,"a"\n.p2align 6\n' + d1
    return txt

if __name__ == "__main__":
    out = sys.argv[1]
    for kv in sys.argv[2:]:
        k, v = kv.split("=")
        OPT[k] = int(v, 0)
    open(out, "w").write(build())
    print("wrote", out)
```

```python
import sys, math, struct
from asmlib import *
import gen as G1
G1.OPT["stamp_off"] = 48 << 20
from gen import f2u, load_ptrs, srd, AREA, C_SCALE, T_LOG2

OPT = G1.OPT
stamp, stamp_flush, trace, trace_dump = G1.stamp, G1.stamp_flush, G1.trace, G1.trace_dump
NT = G1.NT

NTQ = lambda: 'nt ' if OPT.get('nt_wq') else ''
NTX = lambda: 'nt ' if OPT.get('nt_x') else ''
NTKV = lambda: 'nt ' if OPT.get('nt_kv') else ''
NTWO = lambda: 'nt ' if OPT.get('nt_wo') else ''
OSC = lambda: '' if OPT.get('o_plain') else 'sc1 '
O_OFF = 0
FLAG_OFF = 8 << 20
PART_OFF = 16 << 20
TOK_A, TOK_B = 0x5EED0A01, 0x5EED0B02
SPIN_MAX = 1 << 18

def emit_tile(a, dst, s_cnt, phi, m1, m3, win, r, t0, t1, t2):
    sc = f"s{s_cnt}" if isinstance(s_cnt, int) else str(s_cnt[1])
    a(f"s_add_u32 s{t0}, s{phi}, {win}")
    a(f"s_sub_u32 s{t1}, {win}, s{phi}")
    a(f"s_mov_b32 s{t2}, s{m3}")
    a(f"s_cmp_lt_u32 {sc}, s{t0}" if isinstance(s_cnt, int) else f"s_cmp_gt_u32 s{t0}, {sc}")
    a(f"s_cselect_b32 s{t0}, s{phi}, s{t0}")
    a(f"s_cselect_b32 s{t1}, {win}, s{t1}")
    a(f"s_cselect_b32 s{t2}, {256 // win}, s{t2}")
    a(f"s_cmp_lt_u32 {sc}, s{phi}" if isinstance(s_cnt, int) else f"s_cmp_gt_u32 s{phi}, {sc}")
    a(f"s_cselect_b32 s{t0}, 0, s{t0}")
    a(f"s_cselect_b32 s{t1}, s{phi}, s{t1}")
    a(f"s_cselect_b32 s{t2}, s{m1}, s{t2}")
    a(f"s_sub_u32 s{dst}, {sc}, s{t0}")
    a(f"s_add_u32 s{dst}, s{dst}, s{r}")
    a(f"s_mul_i32 s{t2}, s{dst}, s{t2}")
    a(f"s_lshr_b32 s{t2}, s{t2}, 8")
    a(f"s_mul_i32 s{t2}, s{t2}, s{t1}")
    a(f"s_sub_u32 s{dst}, s{dst}, s{t2}")
    a(f"s_add_u32 s{dst}, s{dst}, s{t0}")

def gen_k1():
    a = Asm()
    S_PHI, S_M1, S_M3, S_P2 = 4, 5, 6, 7
    S_BP, S_NT8, S_G1, S_G2 = 54, 55, 58, 59
    S_W, S_BLK, S_G, S_B, S_HP, S_KQ, S_QT = 28, 29, 30, 31, 32, 33, 34
    S_C, S_NC, S_TC = 35, 36, 37
    S_RET = 38
    S_SLOW = 50
    T_HI, T_LO = 16.0, 64.0
    S_T0, S_T1, S_T2, S_T3 = 41, 42, 43, 44
    S_WQB, S_XB, S_KVB = 45, 46, 47
    S_CNT, S_SLOT = 75, 78
    V_O, V_Q, V_S, V_F, V_KA, V_VA = 0, 64, 96, 112, 144, 152
    V_M, V_L, V_NMC, V_THR, V_T0, V_T1, V_T2, V_LANE, V_DOFF = 156, 157, 158, 159, 160, 161, 162, 163, 164
    L = V_LANE

    def group_ids():
        a(f"""
        s_lshr_b32 s{S_BP}, s{S_B}, 1
        s_and_b32 s{S_NT8}, s{S_B}, 1
        s_lshl_b32 s{S_NT8}, s{S_NT8}, 2
        s_add_u32 s{S_NT8}, s{S_NT8}, s{S_HP}
        s_lshl_b32 s{S_G1}, s{S_BLK}, 2
        s_add_u32 s{S_G1}, s{S_G1}, s{S_G}
        s_lshl_b32 s{S_G1}, s{S_G1}, 2
        s_add_u32 s{S_G1}, s{S_G1}, s{S_BP}
        s_lshl_b32 s{S_G2}, s{S_BLK}, 2
        s_add_u32 s{S_G2}, s{S_G2}, s{S_BP}
        s_lshl_b32 s{S_G2}, s{S_G2}, 3
        s_add_u32 s{S_G2}, s{S_G2}, s{S_NT8}
        """)
    a("s_cmp_ge_u32 s2, 256")
    a("s_cbranch_scc1 L_k1_end")
    stamp(a, 0)
    if OPT["stamps"]: a("s_memtime s[88:89]")
    if OPT.get("lt") == 7: a("s_memtime s[80:81]")
    load_ptrs(a)
    if OPT.get("trace"):
        a("v_mov_b32 v120, 0")
        a("v_mov_b32 v167, 0")
        trace(a, 120, idx_imm=63)
    a(f"""
    v_lshrrev_b32 v1, 6, v0
    v_and_b32 v{L}, 63, v0
    s_and_b32 s3, s2, 7
    v_readfirstlane_b32 s{S_W}, v1
    s_lshr_b32 s{S_BLK}, s3, 2
    s_and_b32 s{S_G}, s3, 3
    s_lshr_b32 s3, s2, 3
    s_lshr_b32 s{S_B}, s3, 2
    s_and_b32 s{S_HP}, s3, 3
    s_and_b32 s{S_KQ}, s{S_W}, 3
    s_lshr_b32 s{S_QT}, s{S_W}, 2
    s_lshl_b32 s{S_WQB}, s{S_G}, 11
    s_lshl_b32 s3, s{S_HP}, 9
    s_add_u32 s{S_WQB}, s{S_WQB}, s3
    s_mul_i32 s{S_XB}, s{S_B}, {48*2048}
    s_cmp_ge_u32 s{S_W}, 8
    s_cbranch_scc1 L_p1_compute
    """)
    a(f"""
    v_lshrrev_b32 v5, 5, v{L}
    v_and_b32 v6, 31, v{L}
    s_and_b32 s{S_T1}, s{S_W}, 1
    s_lshl_b32 s{S_T1}, s{S_T1}, 2
    v_or_b32 v7, s{S_T1}, v5
    v_lshlrev_b32 v8, 1, v7
    v_xor_b32 v8, v8, v6
    v_lshlrev_b32 v8, 4, v8
    v_lshlrev_b32 v9, 13, v5
    v_add_u32 v2, v9, v8
    v_xor_b32 v8, 64, v8
    v_add_u32 v3, v9, v8
    s_mul_i32 s{S_T1}, s{S_W}, 6
    v_lshrrev_b32 v5, 3, v{L}
    v_add_u32 v5, s{S_T1}, v5
    v_lshrrev_b32 v6, 1, v5
    v_xor_b32 v6, v6, v{L}
    v_and_b32 v6, 7, v6
    v_lshlrev_b32 v6, 4, v6
    v_lshlrev_b32 v5, 11, v5
    v_add_u32 v4, v5, v6
    s_lshl_b32 s{S_T2}, s{S_W}, 16
    s_add_u32 s{S_WQB}, s{S_WQB}, s{S_T2}
    s_lshl_b32 s{S_T2}, s{S_W}, 12
    s_mul_i32 s{S_T3}, s{S_W}, 768
    s_add_u32 s{S_T3}, s{S_T3}, 32768
    """)
    if OPT.get("stag1", 2) == 1:
        a(f"""
        s_add_u32 s{S_PHI}, s{S_HP}, 1
        s_lshl_b32 s3, s{S_HP}, 3
        s_lshr_b32 s{S_M1}, 0x3f557fff, s3
        s_and_b32 s{S_M1}, s{S_M1}, 0xff
        s_add_u32 s{S_M1}, s{S_M1}, 1
        s_lshr_b32 s{S_M3}, 0x40342b25, s3
        s_and_b32 s{S_M3}, s{S_M3}, 0xff
        """)
    else:
        pa, pb = OPT.get("phiA", 8), OPT.get("phiB", 4)
        Mt = lambda n: -(-256 // n) if n else 1
        a(f"""
        s_cmp_eq_u32 s{S_BLK}, 0
        s_mov_b32 s{S_PHI}, {pb}
        s_cselect_b32 s{S_PHI}, {pa}, s{S_PHI}
        s_mov_b32 s{S_M1}, {Mt(pb)}
        s_cselect_b32 s{S_M1}, {Mt(pa)}, s{S_M1}
        s_mov_b32 s{S_M3}, {Mt(8-pb)}
        s_cselect_b32 s{S_M3}, {Mt(8-pa)}, s{S_M3}
        """)
    a(f"""
    s_cmp_eq_u32 s{S_BLK}, 0
    s_waitcnt lgkmcnt(0)
    """)
    if OPT.get("lt") == 7: a("s_memtime s[82:83]")
    srd(a, 8, 48, 58, 8*48*1024*2)
    srd(a, 12, 54, 64, 1024*4096*2)
    def issue_tile():
        if OPT.get("stag1", 2):
            emit_tile(a, 3, S_CNT, S_PHI, S_M1, S_M3, 8, S_B, 76, 77, 79)
        else:
            a(f"""
            s_add_u32 s3, s{S_CNT}, s{S_B}
            s_and_b32 s3, s3, 7
            s_and_b32 s76, s{S_CNT}, 8
            s_or_b32 s3, s3, s76
            """)
        a(f"""
        s_lshl_b32 s76, s3, 19
        s_add_u32 s76, s76, s{S_WQB}
        s_add_u32 s77, s{S_SLOT}, s{S_T2}
        """)
        for q in range(4):
            a(f"s_add_u32 m0, s77, {q*1024}")
            if q: a(f"s_add_u32 s76, s76, {2*8192}")
            a(f"buffer_load_dwordx4 v{2 + (q & 1)}, s[12:15], s76 offen {NTQ()}lds")
        a(f"""
        s_lshl_b32 s76, s3, 7
        s_add_u32 s76, s76, s{S_XB}
        s_add_u32 m0, s{S_SLOT}, s{S_T3}
        s_mov_b32 exec_hi, {'0xffff' if not OPT.get('xfull') else '-1'}
        buffer_load_dwordx4 v4, s[8:11], s76 offen {NTX()}lds
        s_mov_b32 exec_hi, -1
        """)
    a(f"s_mov_b32 s{S_CNT}, 0")
    a(f"s_mov_b32 s{S_SLOT}, 0")
    issue_tile()
    if OPT.get("b01", 1): a("s_barrier")
    a(f"s_mov_b32 s{S_CNT}, 1")
    a(f"s_mov_b32 s{S_SLOT}, {AREA}")
    issue_tile()
    a(f"s_mov_b32 s{S_CNT}, 2")
    a(f"s_mov_b32 s{S_SLOT}, {2*AREA}")
    if OPT.get("lt") == 7: a("s_memtime s[84:85]")
    a(f"s_cmp_eq_u32 s{S_BLK}, 0")
    srd(a, 16, 50, 60, 8*4*1024*128*2)
    srd(a, 20, 52, 62, 8*4*1024*128*2)
    srd(a, 24, 72, 72, 1 << 28, sel=False)
    group_ids()
    a(f"""
    s_lshl_b32 s3, s{S_B}, 2
    s_add_u32 s3, s3, s{S_G}
    s_lshl_b32 s{S_KVB}, s3, 18
    s_lshl_b32 s3, s{S_KQ}, 16
    s_add_u32 s{S_KVB}, s{S_KVB}, s3
    v_lshrrev_b32 v5, 4, v{L}
    v_and_b32 v6, 15, v{L}
    v_lshlrev_b32 v7, 8, v5
    v_xor_b32 v8, v6, v5
    v_lshlrev_b32 v9, 4, v8
    v_add_u32 v{V_DOFF}, v7, v9
    v_xor_b32 v9, 64, v9
    v_add_u32 v{V_DOFF+1}, v7, v9
    v_xor_b32 v9, 0xc0, v9
    v_add_u32 v{V_DOFF+2}, v7, v9
    v_xor_b32 v9, 64, v9
    v_add_u32 v{V_DOFF+3 if not OPT.get("trace") else V_T2}, v7, v9
    s_cmp_eq_u32 s{S_QT}, 0
    s_cbranch_scc1 L_voff_done
    v_lshlrev_b32 v8, 2, v5
    v_xor_b32 v8, v8, v6
    v_lshlrev_b32 v8, 4, v8
    v_add_u32 v{V_DOFF}, v7, v8
    L_voff_done:
    """)
    a(f"""
    s_and_b32 s3, s{S_B}, 3
    s_add_u32 s60, s3, 1
    s_lshl_b32 s3, s3, 3
    s_lshr_b32 s61, 0x3f557fff, s3
    s_and_b32 s61, s61, 0xff
    s_add_u32 s61, s61, 1
    s_lshr_b32 s62, 0x00ff7f55, s3
    s_and_b32 s62, s62, 0xff
    s_add_u32 s62, s62, 1
    s_mov_b32 s{S_P2}, 0
    """)
    for i in range(8):
        if OPT.get("stag2", 1):
            emit_tile(a, 63, ("imm", i), 60, 61, 62, 4, S_HP, 64, 65, 79)
        else:
            a(f"s_add_u32 s63, s{S_HP}, {i}")
            a(f"s_and_b32 s63, s63, 3")
            a(f"s_or_b32 s63, s63, {i & 4}")
        a(f"s_lshl_b32 s63, s63, {4*i}")
        a(f"s_or_b32 s{S_P2}, s{S_P2}, s63")
    a.label("L_p1_ld_loop")
    a("s_waitcnt vmcnt(5)")
    trace(a, 120, idx_sreg=S_CNT)
    if OPT.get("lt") == 7:
        for k, cnt in enumerate((2, 3, 4, 9, 10, 11, 15)):
            a(f"s_cmp_eq_u32 s{S_CNT}, {cnt}")
            a(f"s_cbranch_scc0 L_lt7_{k}")
            a(f"s_memtime s[{86+2*k}:{87+2*k}]")
            a.label(f"L_lt7_{k}")
    a("s_barrier")
    if OPT.get("trace"): a(f"s_add_u32 s94, s{S_CNT}, 16")
    trace(a, 120, idx_sreg=94)
    issue_tile()
    if OPT.get("trace"): a(f"s_add_u32 s94, s{S_CNT}, 32")
    trace(a, 120, idx_sreg=94)
    a(f"""
    s_add_u32 s{S_SLOT}, s{S_SLOT}, {AREA}
    s_cmp_eq_u32 s{S_SLOT}, {3*AREA}
    s_cselect_b32 s{S_SLOT}, 0, s{S_SLOT}
    s_add_u32 s{S_CNT}, s{S_CNT}, 1
    s_cmp_lt_u32 s{S_CNT}, 16
    s_cbranch_scc1 L_p1_ld_loop
    """)
    def tile_soff(step, dst):
        a(f"""
        s_bfe_u32 s{dst}, s{S_P2}, {(4 << 16) | (4*step)}
        s_lshl_b32 s{dst}, s{dst}, 13
        s_add_u32 s{dst}, s{dst}, s{S_KVB}
        """)
    def dma8(step, lds_off, voff_fn, srdb):
        tile_soff(step, 76)
        a(f"s_mul_i32 s77, s{S_KQ}, {AREA}")
        a(f"s_add_u32 m0, s77, {lds_off}")
        for q in range(8):
            if q == 4:
                a(f"s_add_u32 m0, s77, {lds_off + 4096}")
                a(f"s_add_u32 s76, s76, 4096")
            a(f"buffer_load_dwordx4 v{voff_fn(q)}, s[{srdb}:{srdb+3}], s76 offen offset:{(q & 3) * 1024} {NTKV()}lds")
    def issue_k(step):
        if OPT.get("trace"):
            a(f"v_xor_b32 v{V_T2}, 64, v{V_DOFF+2}")
            dma8(step, (step % 3) * 8192, lambda q: (V_DOFF + (q & 3)) if (q & 3) != 3 else V_T2, 16)
        else:
            dma8(step, (step % 3) * 8192, lambda q: V_DOFF + (q & 3), 16)
    def issue_v(step): dma8(step, 24576 + (step % 2) * 8192, lambda q: V_DOFF, 20)
    def call_early_if(kq):
        lab = a.newlabel("L_ne")
        a(f"s_cmp_eq_u32 s{S_KQ}, {kq}")
        a(f"s_cbranch_scc0 {lab}")
        a(f"s_call_b64 s[{S_RET}:{S_RET+1}], L_early")
        a.label(lab)
    a("s_waitcnt vmcnt(5)")
    call_early_if(3)
    a("s_barrier")
    call_early_if(1)
    a(f"""
    s_and_b32 s3, s{S_KQ}, 1
    s_cmp_eq_u32 s3, 1
    s_cbranch_scc1 L_w15_early
    s_waitcnt vmcnt(0)
    s_branch L_w15_done
    L_w15_early:
    s_cmp_eq_u32 s{S_QT}, 0
    s_cbranch_scc1 L_w15_k
    s_waitcnt vmcnt(8)
    s_branch L_w15_done
    L_w15_k:
    s_waitcnt vmcnt(16)
    L_w15_done:
    """)
    a("s_barrier")
    call_early_if(2)
    a("s_barrier")
    call_early_if(0)
    a("s_branch L_p1_join")
    a.label("L_early")
    a(f"s_cmp_eq_u32 s{S_QT}, 0")
    a("s_cbranch_scc0 L_early_v")
    issue_k(0)
    issue_k(1)
    a(f"s_setpc_b64 s[{S_RET}:{S_RET+1}]")
    a.label("L_early_v")
    issue_v(0)
    a(f"s_setpc_b64 s[{S_RET}:{S_RET+1}]")

    a.label("L_p1_compute")
    P_ACC, P_A, P_B, P_WA, P_XA = 0, 48, 80, 104, 108
    a(f"""
    v_lshrrev_b32 v110, 4, v{L}
    v_and_b32 v111, 15, v{L}
    v_lshrrev_b32 v112, 2, v111
    v_and_b32 v113, 3, v111
    v_lshlrev_b32 v114, 3, v110
    v_add_u32 v114, v114, v112
    v_lshlrev_b32 v114, 9, v114
    v_lshlrev_b32 v113, 3, v113
    v_add_u32 v114, v114, v113
    v_and_b32 v115, 1, v110
    v_lshlrev_b32 v115, 2, v115
    v_or_b32 v115, v115, v112
    s_lshl_b32 s{S_T0}, s{S_KQ}, 2
    """)
    for dt in range(4):
        a(f"s_add_u32 s{S_T1}, s{S_T0}, {dt}")
        a(f"v_xor_b32 v116, s{S_T1}, v115")
        a(f"v_lshlrev_b32 v116, 5, v116")
        a(f"v_add_u32 v{P_WA+dt}, v114, v116")
    a(f"""
    v_lshrrev_b32 v112, 1, v111
    v_xor_b32 v112, v112, v110
    v_lshlrev_b32 v112, 4, v112
    v_lshlrev_b32 v113, 7, v111
    v_add_u32 v112, v112, v113
    v_add_u32 v{P_XA}, 32768, v112
    v_xor_b32 v{P_XA+1}, 64, v{P_XA}
    """)
    for i in range(48):
        a(f"v_mov_b32 v{P_ACC+i}, 0")
    for i in range(4):
        a(f"v_mov_b32 v{V_DOFF+i}, 0")
    a(f"s_waitcnt lgkmcnt(0)")
    srd(a, 24, 72, 72, 1 << 28, sel=False)
    a(f"s_cmp_eq_u32 s{S_BLK}, 0")
    srd(a, 16, 50, 60, 8*4*1024*128*2)
    srd(a, 20, 52, 62, 8*4*1024*128*2)
    if OPT.get("b01", 1) and OPT.get("xpf_late"): a("s_barrier")
    if OPT.get("xpf", 1):
        a(f"s_cmp_eq_u32 s{S_BLK}, 0")
        srd(a, 8, 48, 58, 8*48*1024*2)
        a(f"""
        s_cmp_eq_u32 s{S_KQ}, 3
        s_cbranch_scc1 L_noxpf
        s_mul_i32 s3, s{S_HP}, 24576
        s_add_u32 s3, s3, s{S_XB}
        s_lshl_b32 s76, s{S_KQ}, 13
        s_add_u32 s3, s3, s76
        v_lshlrev_b32 v126, 7, v{L}
        buffer_load_dword v128, v126, s[8:11], s3 offen
        L_noxpf:
        """)
    if OPT.get("b01", 1) and not OPT.get("xpf_late"): a("s_barrier")
    group_ids()
    a(f"s_cmp_eq_u32 s{S_W}, 8")
    a("s_cbranch_scc0 L_noclr")
    a(f"""
    s_mov_b32 s16, s70
    s_mov_b32 s17, s71
    s_mov_b32 s18, 256
    s_mov_b32 s19, 0x00020000
    s_lshl_b32 s3, s{S_G1}, 7
    s_lshl_b32 s76, s{S_NT8}, 2
    s_add_u32 s3, s3, s76
    s_add_u32 s3, s3, {FLAG_OFF}
    s_lshl_b32 s76, s{S_G2}, 7
    s_lshl_b32 s77, s{S_G}, 2
    s_add_u32 s76, s76, s77
    s_add_u32 s76, s76, {FLAG_OFF + 8192}
    v_mov_b32 v126, 0
    v_mov_b32 v127, 1
    s_mov_b64 exec, 1
    buffer_store_dword v126, v126, s[24:27], s3 offen sc1
    buffer_store_dword v126, v126, s[24:27], s76 offen sc1
    s_waitcnt vmcnt(0)
    s_and_b32 s3, s2, 15
    s_lshl_b32 s3, s3, 2
    s_add_u32 s3, s3, 128
    buffer_atomic_add v127, v126, s[16:19], s3 offen sc1
    s_mov_b64 exec, -1
    L_noclr:
    """)
    a(f"s_mov_b32 s{S_KVB}, 0")
    a(f"s_mov_b32 s{S_CNT}, 0")
    a(f"s_mov_b32 s{S_SLOT}, 0")
    def rd_ks(ks):
        if OPT.get("nocomp"): return
        for dt in range(4):
            for hf in range(2):
                r = P_A + ks*16 + dt*4 + hf*2
                a(f"ds_read_b64_tr_b16 v[{r}:{r+1}], v{P_WA+dt} offset:{ks*16384 + hf*2048}")
    def rd_x(ks):
        if OPT.get("nocomp"): return
        for st in range(3):
            r = P_B + ks*12 + st*4
            a(f"ds_read_b128 v[{r}:{r+3}], v{P_XA+ks} offset:{st*2048}")
    def mm(ks):
        if OPT.get("nocomp"): return
        for dt in range(4):
            for st in range(3):
                ac = P_ACC + (dt*3+st)*4
                ra = P_A + ks*16 + dt*4; rb = P_B + ks*12 + st*4
                a(f"v_mfma_f32_16x16x32_bf16 v[{ac}:{ac+3}], v[{ra}:{ra+3}], v[{rb}:{rb+3}], v[{ac}:{ac+3}]")
    a.label("L_p1_c_loop")
    trace(a, 120, idx_sreg=S_CNT)
    a("s_barrier")
    if OPT.get("trace"): a(f"s_add_u32 s94, s{S_CNT}, 16")
    trace(a, 120, idx_sreg=94)
    rd_x(0); rd_ks(0)
    a(f"s_cmp_eq_u32 s{S_CNT}, 0")
    a("s_cbranch_scc1 L_p1_c_skip")
    mm(1)
    a.label("L_p1_c_skip")
    rd_x(1); rd_ks(1)
    a("s_waitcnt lgkmcnt(11)")
    mm(0)
    a(f"""
    s_add_u32 s{S_SLOT}, s{S_SLOT}, 1
    s_cmp_eq_u32 s{S_SLOT}, 3
    s_cselect_b32 s{S_SLOT}, 0, s{S_SLOT}
    s_mov_b32 s3, {AREA}
    s_cselect_b32 s3, {(-2*AREA) & 0xffffffff}, s3
    """)
    for r in list(range(P_WA, P_WA+4)) + [P_XA, P_XA+1]:
        a(f"v_add_u32 v{r}, s3, v{r}")
    a(f"""
    s_add_u32 s{S_CNT}, s{S_CNT}, 1
    s_cmp_lt_u32 s{S_CNT}, 16
    s_waitcnt lgkmcnt(0)
    s_cbranch_scc1 L_p1_c_loop
    s_barrier
    """)
    mm(1)
    a(f"""
    s_mov_b32 s{S_C}, {f2u(C_SCALE)}
    v_lshrrev_b32 v110, 4, v{L}
    v_and_b32 v111, 15, v{L}
    v_lshlrev_b32 v112, 8, v111
    v_and_b32 v113, 1, v110
    v_lshlrev_b32 v113, 3, v113
    v_add_u32 v112, v112, v113
    v_lshrrev_b32 v113, 1, v110
    s_and_b32 s{S_T0}, s{S_KQ}, 1
    s_lshl_b32 s{S_T0}, s{S_T0}, 3
    v_add_u32 v113, s{S_T0}, v113
    s_lshr_b32 s{S_T1}, s{S_KQ}, 1
    s_cmp_eq_u32 s{S_T1}, 0
    s_mov_b32 s76, {2*AREA+16384+4096}
    s_mov_b32 s77, {3*AREA+16384}
    s_mov_b32 s78, {3*AREA+16384+4096}
    s_cselect_b32 s76, {1*AREA+16384}, s76
    s_cselect_b32 s77, {1*AREA+16384+4096}, s77
    s_cselect_b32 s78, {2*AREA+16384}, s78
    """)
    for dt in range(4):
        a(f"v_add_u32 v114, {2*dt}, v113")
        a(f"v_xor_b32 v114, v114, v111")
        a(f"v_lshlrev_b32 v114, 4, v114")
        a(f"v_add_u32 v114, v114, v112")
        for st in range(3):
            ac = P_ACC + (dt*3+st)*4
            t = 116 + 2*(st & 1)
            for e in range(4): a(f"v_mul_f32 v{ac+e}, s{S_C}, v{ac+e}")
            a(f"v_cvt_pk_bf16_f32 v{t}, v{ac}, v{ac+1}")
            a(f"v_cvt_pk_bf16_f32 v{t+1}, v{ac+2}, v{ac+3}")
            a(f"v_add_u32 v{123+st}, s{76+st}, v114")
            a(f"ds_write_b64 v{123+st}, v[{t}:{t+1}]")
    a("s_waitcnt lgkmcnt(0)")

    a.label("L_p1_join")
    trace(a, 120, idx_imm=60)
    if OPT.get("lt") == 7: a("s_memtime s[100:101]")
    a("s_barrier")
    trace(a, 120, idx_imm=61)
    trace_dump(a, 120, 121, S_W, V_LANE, 0)
    if OPT.get("trace"): a("v_mov_b32 v167, 0")
    stamp(a, 1)
    a(f"""
    s_mov_b32 s{S_TC}, {f2u(T_HI)}
    s_mov_b32 s{S_NC}, {f2u(-T_LO)}
    s_mov_b64 s[{S_SLOW}:{S_SLOW+1}], 0
    v_and_b32 v{V_T0}, 31, v{L}
    v_lshlrev_b32 v{V_T0}, 8, v{V_T0}
    v_lshrrev_b32 v{V_T1}, 5, v{L}
    v_and_b32 v{V_T2}, 15, v{L}
    v_xor_b32 v{V_T1}, v{V_T1}, v{V_T2}
    v_lshlrev_b32 v{V_T1}, 4, v{V_T1}
    v_add_u32 v{V_T0}, v{V_T0}, v{V_T1}
    s_add_u32 s3, s{S_QT}, 1
    s_mul_i32 s3, s3, {AREA}
    s_add_u32 s3, s3, 16384
    s_mul_i32 s76, s{S_KQ}, {AREA}
    """)
    for st8 in range(8):
        a(f"v_xor_b32 v{V_T1}, {st8 << 5}, v{V_T0}")
        a(f"v_add_u32 v{V_F+st8}, s3, v{V_T1}")
        a(f"v_add_u32 v{V_KA+st8}, s76, v{V_T1}")
        a(f"ds_read_b128 v[{V_Q+4*st8}:{V_Q+4*st8+3}], v{V_F+st8}")
    a(f"""
    v_lshrrev_b32 v{V_T0}, 5, v{L}
    v_lshlrev_b32 v{V_T0}, 2, v{V_T0}
    v_bfe_u32 v{V_T1}, v{L}, 2, 2
    v_add_u32 v{V_T0}, v{V_T0}, v{V_T1}
    v_lshlrev_b32 v{V_T0}, 8, v{V_T0}
    v_bfe_u32 v{V_T2}, v{L}, 4, 1
    v_lshlrev_b32 v{V_T2}, 5, v{V_T2}
    v_add_u32 v{V_T0}, v{V_T0}, v{V_T2}
    v_and_b32 v{V_T2}, 3, v{L}
    v_lshlrev_b32 v{V_T2}, 3, v{V_T2}
    v_add_u32 v{V_T0}, v{V_T0}, v{V_T2}
    s_add_u32 s76, s76, 24576
    v_add_u32 v{V_T0}, s76, v{V_T0}
    """)
    for j in range(4):
        a(f"s_add_u32 s3, s{S_KQ}, {j}")
        a(f"s_and_b32 s3, s3, 3")
        a(f"v_xor_b32 v{V_T2}, s3, v{V_T1}")
        a(f"v_lshlrev_b32 v{V_T2}, 6, v{V_T2}")
        a(f"v_add_u32 v{V_VA+j}, v{V_T0}, v{V_T2}")
    for i in range(64):
        a(f"v_mov_b32 v{V_O+i}, 0")
    a(f"""
    v_mov_b32 v{V_M}, 0
    v_mov_b32 v{V_THR}, s{S_TC}
    v_mov_b32 v{V_L}, 0
    s_waitcnt lgkmcnt(0)
    """)

    S = V_S
    def tr2(idx):
        lt = OPT.get("lt")
        if lt and idx < 36:
            i, k = idx // 4, idx % 4
            if (lt == 1 and k == 1) or (lt == 2 and k == 0) or (lt == 3 and k == 2):
                a(f"s_memtime s[{80+2*i}:{81+2*i}]")
        if lt and lt != 7 and idx == 41: a("s_memtime s[98:99]")
        if lt and lt != 7 and idx == 40: a("s_memtime s[100:101]")
        if not OPT.get("trace"): return
        trace(a, 120 if False else 167, idx_imm=idx)
    def rd_k(step, st8):
        a(f"ds_read_b128 v[{V_F+4*st8}:{V_F+4*st8+3}], v{V_KA+st8} offset:{(step % 3) * 8192}")
    def rd_v(step, f):
        t, j = f // 4, f % 4
        for hf in range(2):
            r = V_F + 4*f + 2*hf
            a(f"ds_read_b64_tr_b16 v[{r}:{r+1}], v{V_VA+j} offset:{(step % 2) * 8192 + (16*t + 8*hf)*256}")
    def qk(step, pending_k):
        for st8 in range(8):
            a(f"s_waitcnt lgkmcnt({7 - st8 if st8 < 2 else min(15, 7 - st8 + 2*(st8-1))})")
            c = "0" if st8 == 0 else f"v[{S}:{S+15}]"
            a(f"v_mfma_f32_32x32x16_bf16 v[{S}:{S+15}], v[{V_F+4*st8}:{V_F+4*st8+3}], v[{V_Q+4*st8}:{V_Q+4*st8+3}], {c}")
            if st8 >= 1: rd_v(step, st8 - 1)
        rd_v(step, 7)
    def softmax_half(half):
        for i in range(8*half, 8*half+8):
            a(f"v_exp_f32 v{S+i}, v{S+i}")
        for i in range(8*half, 8*half+8):
            a(f"v_add_f32 v{V_L}, v{V_L}, v{S+i}")
        for j in range(4*half, 4*half+4):
            a(f"v_cvt_pk_bf16_f32 v{S+j}, v{S+2*j}, v{S+2*j+1}")
    def softmax_max(lab, first=False):
        a(f"v_max3_f32 v{V_T0}, v{S}, v{S+1}, v{S+2}")
        a(f"v_max3_f32 v{V_T1}, v{S+3}, v{S+4}, v{S+5}")
        a(f"v_max3_f32 v{V_T0}, v{V_T0}, v{S+6}, v{S+7}")
        a(f"v_max3_f32 v{V_T1}, v{V_T1}, v{S+8}, v{S+9}")
        a(f"v_max3_f32 v{V_T0}, v{V_T0}, v{S+10}, v{S+11}")
        a(f"v_max3_f32 v{V_T1}, v{V_T1}, v{S+12}, v{S+13}")
        a(f"v_max3_f32 v{V_T0}, v{V_T0}, v{S+14}, v{S+15}")
        a(f"v_max_f32 v{V_T0}, v{V_T0}, v{V_T1}")
        a(f"v_mov_b32 v{V_T1}, v{V_T0}")
        a(f"v_permlane32_swap_b32 v{V_T0}, v{V_T1}")
        a(f"v_max_f32 v{V_T0}, v{V_T0}, v{V_T1}")
        a(f"v_cmp_gt_f32 vcc, v{V_T0}, v{V_THR}")
        if first:
            a(f"v_cmp_gt_f32 s[52:53], s{S_NC}, v{V_T0}")
            a(f"s_or_b64 vcc, vcc, s[52:53]")
        a(f"s_or_b64 s[52:53], vcc, s[{S_SLOW}:{S_SLOW+1}]")
        a(f"s_cbranch_scc0 {lab}")
        a(f"s_call_b64 s[{S_RET}:{S_RET+1}], L_slow{'_first' if first else ''}")
        a.label(lab)
    def pv_mfma(f):
        t, j = f // 4, f % 4
        o = V_O + 16*j
        a(f"v_mfma_f32_32x32x16_bf16 v[{o}:{o+15}], v[{V_F+4*f}:{V_F+4*f+3}], v[{S+4*t}:{S+4*t+3}], v[{o}:{o+15}]")
    def pv_then_k(next_step):
        for f in range(8):
            pv_mfma(f)
            if next_step is not None and f >= 1: rd_k(next_step, f - 1)
        if next_step is not None: rd_k(next_step, 7)

    PR = OPT.get("prio", 1)
    def prio(p):
        if PR: a(f"s_setprio {p}")
    a(f"s_cmp_eq_u32 s{S_QT}, 1")
    a("s_cbranch_scc1 L_typeA")
    a(f"s_cmp_eq_u32 s{S_QT}, 2")
    a("s_cbranch_scc1 L_typeC")
    for i in range(8):
        a(f"s_waitcnt vmcnt({8 if i < 7 else 0})")
        tr2(4*i)
        a("s_barrier")
        tr2(4*i+1)
        prio(1)
        if i == 0:
            for st8 in range(8): rd_k(0, st8)
        else:
            pv_then_k(i)
        if i + 2 < 8: issue_k(i + 2)
        qk(i, 0)
        tr2(4*i+2)
        prio(2)
        softmax_max(f"L_D{i}", first=(i == 0))
        softmax_half(0); softmax_half(1)
        a("s_waitcnt lgkmcnt(0)")
    tr2(32)
    a("s_barrier")
    pv_then_k(None)
    a("s_branch L_merge")
    a.label("L_typeA")
    for i in range(8):
        a(f"s_waitcnt vmcnt(0)")
        tr2(4*i)
        a("s_barrier")
        tr2(4*i+1)
        prio(3)
        for st8 in range(8): rd_k(i, st8)
        if i + 1 < 8: issue_v(i + 1)
        qk(i, 0)
        tr2(4*i+2)
        prio(2)
        softmax_max(f"L_A{i}", first=(i == 0))
        softmax_half(0); softmax_half(1)
        prio(0)
        for f in range(8):
            a(f"s_waitcnt lgkmcnt({min(15, 2*(7-f))})")
            pv_mfma(f)
    tr2(32)
    a("s_barrier")
    a("s_branch L_merge")
    a.label("L_typeC")
    a(f"s_cmp_eq_u32 s{S_BLK}, 0")
    srd(a, 12, 56, 66, 4096*1024*2)
    a(f"""
    v_lshrrev_b32 v{V_DOFF+1}, 1, v{L}
    v_lshlrev_b32 v{V_DOFF+1}, 11, v{V_DOFF+1}
    v_and_b32 v{V_DOFF+2}, 1, v{L}
    v_lshlrev_b32 v{V_DOFF+2}, 7, v{V_DOFF+2}
    v_add_u32 v{V_DOFF+1}, v{V_DOFF+1}, v{V_DOFF+2}
    s_lshl_b32 s45, s{S_G}, 10
    s_lshl_b32 s3, s{S_BP}, 8
    s_add_u32 s45, s45, s3
    s_lshl_b32 s3, s{S_KQ}, 6
    s_add_u32 s45, s45, s3
    s_lshl_b32 s45, s45, 11
    s_lshl_b32 s3, s{S_NT8}, 8
    s_add_u32 s45, s45, s3
    """)
    PF_AT = {OPT.get("pf0", 2): 0, OPT.get("pf1", 5): 1}
    for i in range(9):
        tr2(4*i)
        a("s_barrier")
        tr2(4*i+1)
        prio(2)
        if i == 0:
            for st8 in range(8): rd_k(0, st8)
        else:
            softmax_max(f"L_C{i}", first=(i == 1))
            softmax_half(0); softmax_half(1)
            if i in PF_AT and OPT.get("wopf", 1):
                a(f"s_add_u32 s3, s45, {PF_AT[i] * 32 * 2048}")
                a(f"buffer_load_dword v{V_DOFF+2}, v{V_DOFF+1}, s[12:15], s3 offen {NTWO()}")
            pv_then_k(i if i < 8 else None)
        if i < 8:
            prio(1)
            qk(i, 0)
            a("s_waitcnt lgkmcnt(0)")
    def spin(label, load_lines, cmp_val, vreg):
        a(f"s_mov_b32 s{S_CNT}, 0")
        a.label(label)
        a(load_lines)
        a("s_waitcnt vmcnt(0)")
        a(f"v_cmp_ne_u32 vcc, s3, v{vreg}" if cmp_val is None else f"v_cmp_ne_u32 vcc, {cmp_val}, v{vreg}")
        a(f"s_cbranch_vccz {label}_ok")
        a(f"s_add_u32 s{S_CNT}, s{S_CNT}, 1")
        a(f"s_cmp_lt_u32 s{S_CNT}, {SPIN_MAX}")
        a("s_sleep 1")
        a(f"s_cbranch_scc1 {label}")
        a.label(f"{label}_ok")

    def gen_tail():
        T_ACC, T_FR, T_AA, T_BA, T_DOFF, T_X = 0, 48, 112, 113, 114, 116
        S_WOB, S_OB, S_ST = 45, 46, 47
        def ts(i):
            if OPT.get("lt") == 5: a(f"s_memtime s[{80+2*i}:{81+2*i}]")
        ts(0)
        a(f"s_cmp_eq_u32 s{S_BLK}, 0")
        srd(a, 12, 56, 66, 4096*1024*2)
        srd(a, 8, 68, 68, 8*48*2048*2, sel=False)
        a(f"""
        s_mov_b32 s16, s70
        s_mov_b32 s17, s71
        s_mov_b32 s18, 256
        s_mov_b32 s19, 0x00020000
        s_lshl_b32 s{S_WOB}, s{S_G}, 21
        s_lshl_b32 s3, s{S_NT8}, 8
        s_add_u32 s{S_WOB}, s{S_WOB}, s3
        s_mul_i32 s{S_OB}, s{S_G1}, {192*1024}
        s_add_u32 s{S_OB}, s{S_OB}, {O_OFF}
        s_cmp_ge_u32 s{S_W}, 8
        s_cbranch_scc1 L_t_compute
        """)
        a(f"""
        v_lshrrev_b32 v{T_X}, 4, v{L}
        v_and_b32 v{T_X+1}, 15, v{L}
        v_lshlrev_b32 v{T_X+2}, 2, v{T_X}
        v_xor_b32 v{T_X+2}, v{T_X+2}, v{T_X+1}
        v_lshlrev_b32 v{T_X+2}, 4, v{T_X+2}
        v_lshlrev_b32 v{T_X}, 11, v{T_X}
        v_add_u32 v{T_DOFF}, v{T_X}, v{T_X+2}
        v_lshlrev_b32 v{T_DOFF+1}, 4, v{L}
        s_lshl_b32 s{S_T0}, s{S_W}, 15
        s_add_u32 s{S_WOB}, s{S_WOB}, s{S_T0}
        s_lshl_b32 s{S_T2}, s{S_W}, 12
        s_mul_i32 s{S_T3}, s{S_W}, 3072
        s_add_u32 s{S_OB}, s{S_OB}, s{S_T3}
        """)
        def issue_wo(st_sreg_or_imm, slot):
            if isinstance(st_sreg_or_imm, int):
                a(f"s_add_u32 s3, s{S_NT8}, {st_sreg_or_imm}")
            a(f"s_and_b32 s3, s3, 7")
            a(f"s_lshl_b32 s76, s3, 18")
            a(f"s_add_u32 s76, s76, s{S_WOB}")
            a(f"s_add_u32 s77, s{S_T2}, {slot*32768}")
            for q in range(4):
                a(f"s_add_u32 m0, s77, {q*1024}")
                if q: a(f"s_add_u32 s76, s76, {4*2048}")
                a(f"buffer_load_dwordx4 v{T_DOFF}, s[12:15], s76 offen lds")
        def issue_o(st, slot):
            a(f"s_add_u32 s3, s{S_NT8}, {st}")
            a(f"s_and_b32 s3, s3, 7")
            a(f"s_mul_i32 s76, s3, 24576")
            a(f"s_add_u32 s76, s76, s{S_OB}")
            a(f"s_add_u32 m0, s{S_T3}, {98304 + slot*24576}")
            for q in range(3):
                a(f"buffer_load_dwordx4 v{T_DOFF+1}, s[24:27], s76 offen offset:{q*1024} {OSC()}lds")
        a("s_waitcnt vmcnt(0)")
        ts(1)
        a("s_barrier")
        a("s_sleep 1")
        for st in range(3): issue_wo(st, st)
        a("s_barrier")
        ts(2)
        issue_o(0, 0); issue_o(1, 1)
        for st in range(8):
            n = 3 if st == 0 else (0 if st in (1, 7) else 4)
            a(f"s_waitcnt vmcnt({n})")
            if OPT.get("lt") == 6: a(f"s_memtime s[{80+2*st}:{81+2*st}]")
            a("s_barrier")
            if st >= 1:
                if st + 1 <= 7: issue_o(st + 1, (st + 1) % 2)
                if st + 2 <= 7: issue_wo(st + 2, (st + 2) % 3)
        ts(3)
        a("s_branch L_t_join")
        a.label("L_t_compute")
        a(f"""
        v_lshrrev_b32 v{T_X}, 5, v{L}
        v_lshlrev_b32 v{T_X}, 3, v{T_X}
        v_bfe_u32 v{T_X+1}, v{L}, 2, 2
        v_add_u32 v{T_X}, v{T_X}, v{T_X+1}
        v_lshlrev_b32 v{T_X}, 8, v{T_X}
        v_bfe_u32 v{T_X+2}, v{L}, 4, 1
        v_lshlrev_b32 v{T_X+2}, 5, v{T_X+2}
        v_add_u32 v{T_X}, v{T_X}, v{T_X+2}
        v_and_b32 v{T_X+2}, 3, v{L}
        v_lshlrev_b32 v{T_X+2}, 3, v{T_X+2}
        v_add_u32 v{T_X}, v{T_X}, v{T_X+2}
        v_xor_b32 v{T_X+2}, s{S_KQ}, v{T_X+1}
        v_lshlrev_b32 v{T_X+2}, 6, v{T_X+2}
        v_add_u32 v{T_AA}, v{T_X}, v{T_X+2}
        v_lshlrev_b32 v{T_BA}, 4, v{L}
        v_add_u32 v{T_BA}, 98304, v{T_BA}
        """)
        for i in range(48):
            a(f"v_mov_b32 v{T_ACC+i}, 0")
        a("s_waitcnt vmcnt(0)")
        ts(1)
        a("s_barrier")
        a(f"s_cmp_eq_u32 s{S_W}, 8")
        a("s_cbranch_scc0 L_t_nopoll1")
        a("s_setprio 3")
        a(f"""
        s_lshl_b32 s3, s{S_G1}, 7
        s_add_u32 s76, s3, {FLAG_OFF}
        s_lshl_b32 s3, s{S_NT8}, 2
        s_add_u32 s77, s76, s3
        v_mov_b32 v{T_X}, 0
        v_mov_b32 v{T_X+1}, {TOK_A}
        s_mov_b64 exec, 1
        buffer_store_dword v{T_X+1}, v{T_X}, s[24:27], s77 offen sc1
        s_mov_b64 exec, -1
        v_and_b32 v{T_X}, 15, v{L}
        v_lshlrev_b32 v{T_X}, 2, v{T_X}
        v_and_b32 v{T_X+2}, 7, v{L}
        v_lshlrev_b32 v{T_X+2}, 2, v{T_X+2}
        """)
        spin("L_spin_dbg", f"buffer_load_dword v{T_X+1}, v{T_X}, s[16:19], 0 offen offset:128 sc1", 16, T_X+1)
        a(f"s_mov_b32 s3, {TOK_A}")
        spin("L_spin_a", f"buffer_load_dword v{T_X+1}, v{T_X+2}, s[24:27], s76 offen sc1", None, T_X+1)
        a("s_setprio 0")
        a.label("L_t_nopoll1")
        a("s_barrier")
        ts(2)
        def rd_list(j):
            b = T_FR + 16*(j % 4)
            out = []
            for hf in range(2):
                out.append(f"ds_read_b64_tr_b16 v[{b+2*hf}:{b+2*hf+1}], v{T_AA} offset:{j*4096 + hf*1024}")
            for m in range(3):
                out.append(f"ds_read_b128 v[{b+4+4*m}:{b+7+4*m}], v{T_BA} offset:{(j*3+m)*1024}")
            return out
        def mm_list(j):
            b = T_FR + 16*(j % 4)
            return [f"v_mfma_f32_32x32x16_bf16 v[{T_ACC+16*m}:{T_ACC+16*m+15}], v[{b}:{b+3}], v[{b+4+4*m}:{b+7+4*m}], v[{T_ACC+16*m}:{T_ACC+16*m+15}]" for m in range(3)]
        def mm3(j):
            for x in mm_list(j): a(x)
        def weave(mm, rd):
            groups = [rd[0:3], rd[3:4], rd[4:5]]
            for x, g in zip(mm, groups):
                a(x)
                for y in g: a(y)
        a(f"s_mov_b32 s{S_ST}, 0")
        a(f"s_mov_b32 s{S_SLOT}, 0")
        a.label("L_t_loop")
        if OPT.get("lt") == 6:
            for st in range(8):
                a(f"s_cmp_eq_u32 s{S_ST}, {st}")
                a(f"s_cbranch_scc0 L_lt6_{st}")
                a(f"s_memtime s[{80+2*st}:{81+2*st}]")
                a.label(f"L_lt6_{st}")
        a("s_barrier")
        a(f"s_cmp_eq_u32 s{S_ST}, 0")
        a("s_cbranch_scc0 L_t_left")
        for y in rd_list(0) + rd_list(1): a(y)
        a("s_branch L_t_skip")
        a.label("L_t_left")
        weave(mm_list(6), rd_list(0))
        weave(mm_list(7), rd_list(1))
        a.label("L_t_skip")
        for j in range(6):
            a("s_waitcnt lgkmcnt(5)")
            weave(mm_list(j), rd_list(j + 2))
        a(f"""
        s_add_u32 s{S_SLOT}, s{S_SLOT}, 1
        s_cmp_eq_u32 s{S_SLOT}, 3
        s_cselect_b32 s{S_SLOT}, 0, s{S_SLOT}
        s_mov_b32 s3, 32768
        s_cselect_b32 s3, {(-65536) & 0xffffffff}, s3
        v_add_u32 v{T_AA}, s3, v{T_AA}
        s_bitcmp1_b32 s{S_ST}, 0
        s_mov_b32 s3, 24576
        s_cselect_b32 s3, {(-24576) & 0xffffffff}, s3
        v_add_u32 v{T_BA}, s3, v{T_BA}
        s_add_u32 s{S_ST}, s{S_ST}, 1
        s_cmp_lt_u32 s{S_ST}, 8
        s_waitcnt lgkmcnt(0)
        s_cbranch_scc1 L_t_loop
        """)
        mm3(6); mm3(7)
        ts(3)
        a(f"""
        s_lshl_b32 s3, s{S_G2}, 2
        s_add_u32 s3, s3, s{S_KQ}
        s_lshl_b32 s3, s3, 2
        s_add_u32 s3, s3, s{S_G}
        s_mul_i32 s76, s3, 12288
        s_add_u32 s76, s76, {PART_OFF}
        v_lshlrev_b32 v{T_X}, 4, v{L}
        """)
        for m in range(3):
            for rq in range(4):
                r = T_ACC + 16*m + 4*rq
                a(f"buffer_store_dwordx4 v[{r}:{r+3}], v{T_X}, s[24:27], s76 offen offset:{rq*1024} sc1")
            if m < 2: a(f"s_add_u32 s76, s76, 4096")
        a("s_waitcnt vmcnt(0)")
        a.label("L_t_join")
        ts(4)
        a("s_barrier")
        a(f"s_cmp_eq_u32 s{S_W}, 8")
        a("s_cbranch_scc0 L_t_nopoll2")
        a(f"""
        s_lshl_b32 s3, s{S_G2}, 7
        s_add_u32 s76, s3, {FLAG_OFF + 8192}
        s_lshl_b32 s3, s{S_G}, 2
        s_add_u32 s77, s76, s3
        v_mov_b32 v{T_X}, 0
        v_mov_b32 v{T_X+1}, {TOK_B}
        s_mov_b64 exec, 1
        buffer_store_dword v{T_X+1}, v{T_X}, s[24:27], s77 offen sc1
        s_mov_b64 exec, -1
        v_and_b32 v{T_X+2}, 3, v{L}
        v_lshlrev_b32 v{T_X+2}, 2, v{T_X+2}
        s_mov_b32 s3, {TOK_B}
        """)
        spin("L_spin_b", f"buffer_load_dword v{T_X+1}, v{T_X+2}, s[24:27], s76 offen sc1", None, T_X+1)
        a.label("L_t_nopoll2")
        a("s_barrier")
        ts(5)
        a(f"""
        s_lshl_b32 s3, s{S_G2}, 2
        s_add_u32 s3, s3, s{S_G}
        s_mul_i32 s76, s3, {4*12288}
        s_lshl_b32 s3, s{S_W}, 10
        s_add_u32 s76, s76, s3
        s_add_u32 s76, s76, {PART_OFF}
        v_lshlrev_b32 v{T_X}, 4, v{L}
        """)
        for src in range(4):
            a(f"buffer_load_dwordx4 v[{16+4*src}:{19+4*src}], v{T_X}, s[24:27], s76 offen sc1")
            if src < 3: a(f"s_add_u32 s76, s76, 12288")
        a(f"""
        s_mul_i32 s3, s{S_BP}, 96
        s_lshl_b32 s77, s{S_QT}, 5
        s_add_u32 s3, s3, s77
        s_lshl_b32 s3, s3, 12
        s_lshl_b32 s77, s{S_BLK}, 11
        s_add_u32 s3, s3, s77
        s_lshl_b32 s77, s{S_NT8}, 8
        s_add_u32 s3, s3, s77
        s_lshl_b32 s77, s{S_G}, 6
        s_add_u32 s3, s3, s77
        s_lshl_b32 s77, s{S_KQ}, 4
        s_add_u32 s3, s3, s77
        v_and_b32 v{T_X+1}, 31, v{L}
        v_lshlrev_b32 v{T_X+1}, 12, v{T_X+1}
        v_lshrrev_b32 v{T_X+2}, 5, v{L}
        v_lshlrev_b32 v{T_X+2}, 3, v{T_X+2}
        v_add_u32 v{T_X+1}, v{T_X+1}, v{T_X+2}
        s_waitcnt vmcnt(0)
        """)
        for i in range(4):
            a(f"v_add_f32 v{16+i}, v{16+i}, v{20+i}")
            a(f"v_add_f32 v{24+i}, v{24+i}, v{28+i}")
        for i in range(4):
            a(f"v_add_f32 v{16+i}, v{16+i}, v{24+i}")
        a("v_cvt_pk_bf16_f32 v20, v16, v17")
        a("v_cvt_pk_bf16_f32 v21, v18, v19")
        a(f"buffer_store_dwordx2 v[20:21], v{T_X+1}, s[8:11], s3 offen")
        ts(6)

    a.label("L_merge")
    prio(0)
    stamp(a, 2)
    tr2(40)
    F = V_F
    def mt(i):
        if OPT.get("lt") == 4: a(f"s_memtime s[{80+2*i}:{81+2*i}]")
    mt(0)
    a(f"""
    v_mov_b32 v{V_T0}, v{V_L}
    v_mov_b32 v{V_T1}, v{V_L}
    s_mul_i32 s76, s{S_KQ}, {AREA}
    v_lshlrev_b32 v{V_T2}, 4, v{L}
    v_permlane32_swap_b32 v{V_T0}, v{V_T1}
    s_mul_i32 s3, s{S_QT}, 12288
    s_add_u32 s77, s76, s3
    v_add_f32 v{V_L}, v{V_T0}, v{V_T1}
    v_add_u32 v{V_T1}, s77, v{V_T2}
    """)
    for j in range(1, 4):
        for rq in range(4):
            r = V_O + 16*j + 4*rq
            a(f"ds_write_b128 v{V_T1}, v[{r}:{r+3}] offset:{(j-1)*4096 + rq*1024}")
    mt(1)
    a(f"""
    v_and_b32 v{V_T0}, 31, v{L}
    v_lshlrev_b32 v{V_T0}, 3, v{V_T0}
    s_lshl_b32 s3, s{S_QT}, 8
    s_add_u32 s3, s3, 36864
    v_add_u32 v{V_T0}, s3, v{V_T0}
    v_add_u32 v{V_T1}, s76, v{V_T0}
    ds_write_b64 v{V_T1}, v[{V_M}:{V_L}]
    """)
    for j in range(1, 4):
        a(f"s_sub_u32 s3, s{S_KQ}, {j}")
        a(f"s_and_b32 s3, s3, 3")
        a(f"s_mul_i32 s76, s3, {AREA}")
        a(f"v_add_u32 v{V_Q+j}, s76, v{V_T0}")
        a(f"s_mul_i32 s3, s{S_QT}, 12288")
        a(f"s_add_u32 s76, s76, s3")
        a(f"v_add_u32 v{V_Q+4+j}, s76, v{V_T2}")
    A0, A1, A2, A3 = V_Q+8, V_Q+9, V_Q+10, V_Q+11
    a(f"""
    v_and_b32 v{A1}, 31, v{L}
    s_lshl_b32 s3, s{S_QT}, 5
    v_add_u32 v{A1}, s3, v{A1}
    v_cmp_le_u32 vcc, 48, v{A1}
    v_subrev_u32 v{A2}, 48, v{A1}
    v_mov_b32 v{A0}, 0
    v_mov_b32 v{A3}, {8*3072}
    v_cndmask_b32 v{A1}, v{A1}, v{A2}, vcc
    v_cndmask_b32 v{A0}, v{A0}, v{A3}, vcc
    s_and_b32 s3, s{S_B}, 1
    s_mul_i32 s3, s3, 48
    v_add_u32 v{A1}, s3, v{A1}
    v_lshrrev_b32 v{A2}, 5, v{A1}
    v_lshlrev_b32 v{A2}, 10, v{A2}
    v_add_u32 v{A0}, v{A0}, v{A2}
    v_and_b32 v{A1}, 31, v{A1}
    v_lshlrev_b32 v{A1}, 4, v{A1}
    v_add_u32 v{A0}, v{A0}, v{A1}
    v_lshrrev_b32 v{A1}, 5, v{L}
    v_lshlrev_b32 v{A1}, 3, v{A1}
    v_add_u32 v{A0}, v{A0}, v{A1}
    s_lshl_b32 s3, s{S_HP}, 4
    s_lshl_b32 s76, s{S_KQ}, 1
    s_add_u32 s3, s3, s76
    s_mul_i32 s3, s3, 3072
    s_mul_i32 s79, s{S_G1}, {192*1024}
    s_add_u32 s79, s79, s3
    s_add_u32 s79, s79, {O_OFF}
    """)
    mt(2)
    a("s_waitcnt lgkmcnt(0)")
    mt(3)
    a("s_barrier")
    mt(4)
    for j in range(1, 4):
        a(f"ds_read_b64 v[{F+2*j}:{F+2*j+1}], v{V_Q+j}")
    for j in range(1, 4):
        for rq in range(4):
            r = V_O + 16*j + 4*rq
            a(f"ds_read_b128 v[{r}:{r+3}], v{V_Q+4+j} offset:{(j-1)*4096 + rq*1024}")
    a("s_waitcnt lgkmcnt(12)")
    mt(5)
    a(f"""
    v_max3_f32 v{F+8}, v{V_M}, v{F+2}, v{F+4}
    v_max_f32 v{F+8}, v{F+8}, v{F+6}
    v_sub_f32 v{F+10}, v{V_M}, v{F+8}
    v_sub_f32 v{F+12}, v{F+2}, v{F+8}
    v_sub_f32 v{F+14}, v{F+4}, v{F+8}
    v_sub_f32 v{F+16}, v{F+6}, v{F+8}
    v_exp_f32 v{F+10}, v{F+10}
    v_exp_f32 v{F+12}, v{F+12}
    v_exp_f32 v{F+14}, v{F+14}
    v_exp_f32 v{F+16}, v{F+16}
    v_mul_f32 v{F+18}, v{F+10}, v{V_L}
    v_fma_f32 v{F+18}, v{F+12}, v{F+3}, v{F+18}
    v_fma_f32 v{F+18}, v{F+14}, v{F+5}, v{F+18}
    v_fma_f32 v{F+18}, v{F+16}, v{F+7}, v{F+18}
    v_rcp_f32 v{F+18}, v{F+18}
    v_mul_f32 v{F+10}, v{F+10}, v{F+18}
    v_mul_f32 v{F+12}, v{F+12}, v{F+18}
    v_mul_f32 v{F+14}, v{F+14}, v{F+18}
    v_mul_f32 v{F+16}, v{F+16}, v{F+18}
    """)
    mt(6)
    for i in range(0, 16, 2):
        a(f"v_pk_mul_f32 v[{V_O+i}:{V_O+i+1}], v[{V_O+i}:{V_O+i+1}], v[{F+10}:{F+11}] op_sel_hi:[1,0]")
    for j in range(1, 4):
        a(f"s_waitcnt lgkmcnt({12 - 4*j})")
        if j == 3: a("s_barrier")
        for i in range(0, 16, 2):
            a(f"v_pk_fma_f32 v[{V_O+i}:{V_O+i+1}], v[{V_O+16*j+i}:{V_O+16*j+i+1}], v[{F+10+2*j}:{F+11+2*j}], v[{V_O+i}:{V_O+i+1}] op_sel_hi:[1,0,1]")
    mt(7)
    for rq in range(4):
        a(f"v_cvt_pk_bf16_f32 v{F+20+2*rq}, v{V_O+4*rq}, v{V_O+4*rq+1}")
        a(f"v_cvt_pk_bf16_f32 v{F+20+2*rq+1}, v{V_O+4*rq+2}, v{V_O+4*rq+3}")
    for rq in range(4):
        a(f"buffer_store_dwordx2 v[{F+20+2*rq}:{F+20+2*rq+1}], v{A0}, s[24:27], s79 offen offset:{(rq & 1)*512} sc1" if rq < 2 else
          f"buffer_store_dwordx2 v[{F+20+2*rq}:{F+20+2*rq+1}], v{A0}, s[24:27], s79 offen offset:{3072 + (rq & 1)*512} sc1")
    gen_tail()
    stamp(a, 3)
    tr2(41)
    trace_dump(a, 167, 100, S_W, V_LANE, 1)
    if OPT.get("lt"):
        a("s_waitcnt lgkmcnt(0)")
        a(f"s_lshl_b32 s3, s2, 4")
        a(f"s_add_u32 s3, s3, s{S_W}")
        a(f"s_lshl_b32 s3, s3, 8")
        a(f"s_add_u32 s3, s3, {(56 << 20) + (1 << 20)}")
        a("v_mov_b32 v102, s3")
        for i in range(11):
            a(f"v_mov_b32 v100, s{80+2*i}")
            a(f"buffer_store_dword v100, v102, s[24:27], 0 offen offset:{4*i}")
            a("s_waitcnt vmcnt(0)")
    if OPT["stamps"]: a("s_memtime s[90:91]")
    if OPT.get("dbgclk"):
        a(f"""
        s_waitcnt lgkmcnt(0)
        s_cmp_eq_u32 s2, {OPT.get("dbgwg", 77)}
        s_cbranch_scc0 L_nodbg
        s_cmp_eq_u32 s{S_W}, 0
        s_cbranch_scc0 L_nodbg
        s_sub_u32 s90, s90, s88
        s_sub_u32 s82, s82, s80
        s_sub_u32 s84, s84, s80
        s_sub_u32 s86, s86, s80
        v_mov_b32 v100, s90
        v_mov_b32 v101, s82
        v_mov_b32 v102, s84
        v_mov_b32 v103, s86
        v_mov_b32 v104, 0
        s_mov_b64 exec, 1
        buffer_store_dwordx4 v[100:103], v104, s[16:19], 0 offen
        s_mov_b64 exec, -1
        L_nodbg:
        """)
    else:
        stamp_flush(a, 6, 100, S_W, 0)
    a("s_endpgm")
    a.label("L_slow_first")
    a(f"v_cndmask_b32 v{V_M}, v{V_M}, v{V_T0}, vcc")
    a(f"s_mov_b64 s[{S_SLOW}:{S_SLOW+1}], -1")
    a(f"v_add_f32 v{V_THR}, s{S_TC}, v{V_M}")
    a("s_branch L_slow_sub")
    a.label("L_slow")
    a("s_cbranch_vccz L_slow_sub")
    a(f"v_max_f32 v{V_T1}, v{V_M}, v{V_T0}")
    a(f"v_cndmask_b32 v{V_T1}, v{V_M}, v{V_T1}, vcc")
    a.label("L_slow_upd")
    a(f"""
    s_mov_b64 s[{S_SLOW}:{S_SLOW+1}], -1
    v_sub_f32 v{V_T2}, v{V_M}, v{V_T1}
    v_exp_f32 v{V_T2}, v{V_T2}
    v_mov_b32 v{V_M}, v{V_T1}
    v_add_f32 v{V_THR}, s{S_TC}, v{V_T1}
    v_mul_f32 v{V_L}, v{V_L}, v{V_T2}
    """)
    for i in range(64):
        a(f"v_mul_f32 v{V_O+i}, v{V_T2}, v{V_O+i}")
    a.label("L_slow_sub")
    for i in range(16):
        a(f"v_sub_f32 v{V_S+i}, v{V_S+i}, v{V_M}")
    a("s_nop 1")
    a(f"s_setpc_b64 s[{S_RET}:{S_RET+1}]")
    a.label("L_k1_end")
    a("s_endpgm")
    return a

def build():
    k1 = gen_k1().finalize()
    h1, d1 = kernel_text("gqa_fused_kernel", k1, 168)
    hdr = open("concat_heads__gqa_block_cached__gqa_block_cached__near_ridge.s.ref").read().split("; Override")[0]
    txt = hdr
    txt += "; @launch kernel=gqa_fused_kernel grid=(256,1,1) block=(768,1,1) lds=163840\n"
    txt += '.amdgcn_target "amdgcn-amd-amdhsa--gfx950"\n.text\n' + h1
    txt += '.section .rodata,"a"\n.p2align 6\n' + d1
    return txt

if __name__ == "__main__":
    out = sys.argv[1]
    for kv in sys.argv[2:]:
        k, v = kv.split("=")
        OPT[k] = int(v, 0)
    open(out, "w").write(build())
    print("wrote", out)
```

```python
import sys, math, struct
from asmlib import *
import gen as G1
G1.OPT["stamp_off"] = 48 << 20
from gen import f2u, load_ptrs, srd, AREA, C_SCALE, T_LOG2

OPT = G1.OPT
stamp, stamp_flush, trace, trace_dump = G1.stamp, G1.stamp_flush, G1.trace, G1.trace_dump
NT = G1.NT

NTQ = lambda: 'nt ' if OPT.get('nt_wq') else ''
NTX = lambda: 'nt ' if OPT.get('nt_x') else ''
NTKV = lambda: 'nt ' if OPT.get('nt_kv') else ''
NTWO = lambda: 'nt ' if OPT.get('nt_wo') else ''
OSC = lambda: '' if OPT.get('o_plain') else 'sc1 '
O_OFF = 0
FLAG_OFF = 8 << 20
PART_OFF = 16 << 20
TOK_A, TOK_B = 0x5EED0A01, 0x5EED0B02
SPIN_MAX = 1 << 18

def emit_tile(a, dst, s_cnt, phi, m1, m3, win, r, t0, t1, t2):
    sc = f"s{s_cnt}" if isinstance(s_cnt, int) else str(s_cnt[1])
    a(f"s_add_u32 s{t0}, s{phi}, {win}")
    a(f"s_sub_u32 s{t1}, {win}, s{phi}")
    a(f"s_mov_b32 s{t2}, s{m3}")
    a(f"s_cmp_lt_u32 {sc}, s{t0}" if isinstance(s_cnt, int) else f"s_cmp_gt_u32 s{t0}, {sc}")
    a(f"s_cselect_b32 s{t0}, s{phi}, s{t0}")
    a(f"s_cselect_b32 s{t1}, {win}, s{t1}")
    a(f"s_cselect_b32 s{t2}, {256 // win}, s{t2}")
    a(f"s_cmp_lt_u32 {sc}, s{phi}" if isinstance(s_cnt, int) else f"s_cmp_gt_u32 s{phi}, {sc}")
    a(f"s_cselect_b32 s{t0}, 0, s{t0}")
    a(f"s_cselect_b32 s{t1}, s{phi}, s{t1}")
    a(f"s_cselect_b32 s{t2}, s{m1}, s{t2}")
    a(f"s_sub_u32 s{dst}, {sc}, s{t0}")
    a(f"s_add_u32 s{dst}, s{dst}, s{r}")
    a(f"s_mul_i32 s{t2}, s{dst}, s{t2}")
    a(f"s_lshr_b32 s{t2}, s{t2}, 8")
    a(f"s_mul_i32 s{t2}, s{t2}, s{t1}")
    a(f"s_sub_u32 s{dst}, s{dst}, s{t2}")
    a(f"s_add_u32 s{dst}, s{dst}, s{t0}")

def gen_k1():
    a = Asm()
    S_PHI, S_M1, S_M3, S_P2 = 4, 5, 6, 7
    S_BP, S_NT8, S_G1, S_G2 = 54, 55, 58, 59
    S_W, S_BLK, S_G, S_B, S_HP, S_KQ, S_QT = 28, 29, 30, 31, 32, 33, 34
    S_C, S_NC, S_TC = 35, 36, 37
    S_RET = 38
    S_SLOW = 50
    T_HI, T_LO = 16.0, 64.0
    S_T0, S_T1, S_T2, S_T3 = 41, 42, 43, 44
    S_WQB, S_XB, S_KVB = 45, 46, 47
    S_CNT, S_SLOT = 75, 78
    V_O, V_Q, V_S, V_F, V_KA, V_VA = 0, 64, 96, 112, 144, 152
    V_M, V_L, V_NMC, V_THR, V_T0, V_T1, V_T2, V_LANE, V_DOFF = 156, 157, 158, 159, 160, 161, 162, 163, 164
    L = V_LANE

    def group_ids():
        a(f"""
        s_lshr_b32 s{S_BP}, s{S_B}, 1
        s_and_b32 s{S_NT8}, s{S_B}, 1
        s_lshl_b32 s{S_NT8}, s{S_NT8}, 2
        s_add_u32 s{S_NT8}, s{S_NT8}, s{S_HP}
        s_lshl_b32 s{S_G1}, s{S_BLK}, 2
        s_add_u32 s{S_G1}, s{S_G1}, s{S_G}
        s_lshl_b32 s{S_G1}, s{S_G1}, 2
        s_add_u32 s{S_G1}, s{S_G1}, s{S_BP}
        s_lshl_b32 s{S_G2}, s{S_BLK}, 2
        s_add_u32 s{S_G2}, s{S_G2}, s{S_BP}
        s_lshl_b32 s{S_G2}, s{S_G2}, 3
        s_add_u32 s{S_G2}, s{S_G2}, s{S_NT8}
        """)
    a("s_cmp_ge_u32 s2, 256")
    a("s_cbranch_scc1 L_k1_end")
    stamp(a, 0)
    if OPT["stamps"]: a("s_memtime s[88:89]")
    if OPT.get("lt") == 7: a("s_memtime s[80:81]")
    load_ptrs(a)
    if OPT.get("trace"):
        a("v_mov_b32 v120, 0")
        a("v_mov_b32 v167, 0")
        trace(a, 120, idx_imm=63)
    a(f"""
    v_lshrrev_b32 v1, 6, v0
    v_and_b32 v{L}, 63, v0
    s_and_b32 s3, s2, 7
    v_readfirstlane_b32 s{S_W}, v1
    s_lshr_b32 s{S_BLK}, s3, 2
    s_and_b32 s{S_G}, s3, 3
    s_lshr_b32 s3, s2, 3
    s_lshr_b32 s{S_B}, s3, 2
    s_and_b32 s{S_HP}, s3, 3
    s_and_b32 s{S_KQ}, s{S_W}, 3
    s_lshr_b32 s{S_QT}, s{S_W}, 2
    s_lshl_b32 s{S_WQB}, s{S_G}, 11
    s_lshl_b32 s3, s{S_HP}, 9
    s_add_u32 s{S_WQB}, s{S_WQB}, s3
    s_mul_i32 s{S_XB}, s{S_B}, {48*2048}
    s_cmp_ge_u32 s{S_W}, 8
    s_cbranch_scc1 L_p1_compute
    """)
    a(f"""
    v_lshrrev_b32 v5, 5, v{L}
    v_and_b32 v6, 31, v{L}
    s_and_b32 s{S_T1}, s{S_W}, 1
    s_lshl_b32 s{S_T1}, s{S_T1}, 2
    v_or_b32 v7, s{S_T1}, v5
    v_lshlrev_b32 v8, 1, v7
    v_xor_b32 v8, v8, v6
    v_lshlrev_b32 v8, 4, v8
    v_lshlrev_b32 v9, 13, v5
    v_add_u32 v2, v9, v8
    v_xor_b32 v8, 64, v8
    v_add_u32 v3, v9, v8
    s_mul_i32 s{S_T1}, s{S_W}, 6
    v_lshrrev_b32 v5, 3, v{L}
    v_add_u32 v5, s{S_T1}, v5
    v_lshrrev_b32 v6, 1, v5
    v_xor_b32 v6, v6, v{L}
    v_and_b32 v6, 7, v6
    v_lshlrev_b32 v6, 4, v6
    v_lshlrev_b32 v5, 11, v5
    v_add_u32 v4, v5, v6
    s_lshl_b32 s{S_T2}, s{S_W}, 16
    s_add_u32 s{S_WQB}, s{S_WQB}, s{S_T2}
    s_lshl_b32 s{S_T2}, s{S_W}, 12
    s_mul_i32 s{S_T3}, s{S_W}, 768
    s_add_u32 s{S_T3}, s{S_T3}, 32768
    """)
    if OPT.get("stag1", 2) == 1:
        a(f"""
        s_add_u32 s{S_PHI}, s{S_HP}, 1
        s_lshl_b32 s3, s{S_HP}, 3
        s_lshr_b32 s{S_M1}, 0x3f557fff, s3
        s_and_b32 s{S_M1}, s{S_M1}, 0xff
        s_add_u32 s{S_M1}, s{S_M1}, 1
        s_lshr_b32 s{S_M3}, 0x40342b25, s3
        s_and_b32 s{S_M3}, s{S_M3}, 0xff
        """)
    else:
        pa, pb = OPT.get("phiA", 8), OPT.get("phiB", 4)
        Mt = lambda n: -(-256 // n) if n else 1
        a(f"""
        s_cmp_eq_u32 s{S_BLK}, 0
        s_mov_b32 s{S_PHI}, {pb}
        s_cselect_b32 s{S_PHI}, {pa}, s{S_PHI}
        s_mov_b32 s{S_M1}, {Mt(pb)}
        s_cselect_b32 s{S_M1}, {Mt(pa)}, s{S_M1}
        s_mov_b32 s{S_M3}, {Mt(8-pb)}
        s_cselect_b32 s{S_M3}, {Mt(8-pa)}, s{S_M3}
        """)
    a(f"""
    s_cmp_eq_u32 s{S_BLK}, 0
    s_waitcnt lgkmcnt(0)
    """)
    if OPT.get("lt") == 7: a("s_memtime s[82:83]")
    srd(a, 8, 48, 58, 8*48*1024*2)
    srd(a, 12, 54, 64, 1024*4096*2)
    def issue_tile():
        if OPT.get("stag1", 2):
            emit_tile(a, 3, S_CNT, S_PHI, S_M1, S_M3, 8, S_B, 76, 77, 79)
        else:
            a(f"""
            s_add_u32 s3, s{S_CNT}, s{S_B}
            s_and_b32 s3, s3, 7
            s_and_b32 s76, s{S_CNT}, 8
            s_or_b32 s3, s3, s76
            """)
        a(f"""
        s_lshl_b32 s76, s3, 19
        s_add_u32 s76, s76, s{S_WQB}
        s_add_u32 s77, s{S_SLOT}, s{S_T2}
        """)
        def wq4(nt):
            for q in range(4):
                a(f"s_add_u32 m0, s77, {q*1024}")
                if q: a(f"s_add_u32 s76, s76, {2*8192}")
                a(f"buffer_load_dwordx4 v{2 + (q & 1)}, s[12:15], s76 offen {nt}lds")
        if OPT.get("ntf_wq"):
            l1, l2 = a.newlabel("L_wqn"), a.newlabel("L_wqd")
            a(f"s_and_b32 s79, s{S_CNT}, 7")
            a(f"s_cbranch_scc1 {l1}")
            wq4("nt ")
            a(f"s_branch {l2}")
            a.label(l1)
            wq4("")
            a.label(l2)
        else:
            wq4(NTQ())
        a(f"""
        s_lshl_b32 s76, s3, 7
        s_add_u32 s76, s76, s{S_XB}
        s_add_u32 m0, s{S_SLOT}, s{S_T3}
        s_mov_b32 exec_hi, {'0xffff' if not OPT.get('xfull') else '-1'}
        buffer_load_dwordx4 v4, s[8:11], s76 offen {NTX()}lds
        s_mov_b32 exec_hi, -1
        """)
    a(f"s_mov_b32 s{S_CNT}, 0")
    a(f"s_mov_b32 s{S_SLOT}, 0")
    issue_tile()
    if OPT.get("b01", 1): a("s_barrier")
    a(f"s_mov_b32 s{S_CNT}, 1")
    a(f"s_mov_b32 s{S_SLOT}, {AREA}")
    issue_tile()
    a(f"s_mov_b32 s{S_CNT}, 2")
    a(f"s_mov_b32 s{S_SLOT}, {2*AREA}")
    if OPT.get("lt") == 7: a("s_memtime s[84:85]")
    a(f"s_cmp_eq_u32 s{S_BLK}, 0")
    srd(a, 16, 50, 60, 8*4*1024*128*2)
    srd(a, 20, 52, 62, 8*4*1024*128*2)
    srd(a, 24, 72, 72, 1 << 28, sel=False)
    group_ids()
    a(f"""
    s_lshl_b32 s3, s{S_B}, 2
    s_add_u32 s3, s3, s{S_G}
    s_lshl_b32 s{S_KVB}, s3, 18
    s_lshl_b32 s3, s{S_KQ}, 16
    s_add_u32 s{S_KVB}, s{S_KVB}, s3
    v_lshrrev_b32 v5, 4, v{L}
    v_and_b32 v6, 15, v{L}
    v_lshlrev_b32 v7, 8, v5
    v_xor_b32 v8, v6, v5
    v_lshlrev_b32 v9, 4, v8
    v_add_u32 v{V_DOFF}, v7, v9
    v_xor_b32 v9, 64, v9
    v_add_u32 v{V_DOFF+1}, v7, v9
    v_xor_b32 v9, 0xc0, v9
    v_add_u32 v{V_DOFF+2}, v7, v9
    v_xor_b32 v9, 64, v9
    v_add_u32 v{V_DOFF+3 if not OPT.get("trace") else V_T2}, v7, v9
    s_cmp_eq_u32 s{S_QT}, 0
    s_cbranch_scc1 L_voff_done
    v_lshlrev_b32 v8, 2, v5
    v_xor_b32 v8, v8, v6
    v_lshlrev_b32 v8, 4, v8
    v_add_u32 v{V_DOFF}, v7, v8
    L_voff_done:
    """)
    a(f"""
    s_and_b32 s3, s{S_B}, 3
    s_add_u32 s60, s3, 1
    s_lshl_b32 s3, s3, 3
    s_lshr_b32 s61, 0x3f557fff, s3
    s_and_b32 s61, s61, 0xff
    s_add_u32 s61, s61, 1
    s_lshr_b32 s62, 0x00ff7f55, s3
    s_and_b32 s62, s62, 0xff
    s_add_u32 s62, s62, 1
    s_mov_b32 s{S_P2}, 0
    """)
    for i in range(8):
        if OPT.get("stag2", 1):
            emit_tile(a, 63, ("imm", i), 60, 61, 62, 4, S_HP, 64, 65, 79)
        else:
            a(f"s_add_u32 s63, s{S_HP}, {i}")
            a(f"s_and_b32 s63, s63, 3")
            a(f"s_or_b32 s63, s63, {i & 4}")
        a(f"s_lshl_b32 s63, s63, {4*i}")
        a(f"s_or_b32 s{S_P2}, s{S_P2}, s63")
    a.label("L_p1_ld_loop")
    a("s_waitcnt vmcnt(5)")
    trace(a, 120, idx_sreg=S_CNT)
    if OPT.get("lt") == 7:
        for k, cnt in enumerate((2, 3, 4, 9, 10, 11, 15)):
            a(f"s_cmp_eq_u32 s{S_CNT}, {cnt}")
            a(f"s_cbranch_scc0 L_lt7_{k}")
            a(f"s_memtime s[{86+2*k}:{87+2*k}]")
            a.label(f"L_lt7_{k}")
    a("s_barrier")
    if OPT.get("trace"): a(f"s_add_u32 s94, s{S_CNT}, 16")
    trace(a, 120, idx_sreg=94)
    issue_tile()
    if OPT.get("trace"): a(f"s_add_u32 s94, s{S_CNT}, 32")
    trace(a, 120, idx_sreg=94)
    a(f"""
    s_add_u32 s{S_SLOT}, s{S_SLOT}, {AREA}
    s_cmp_eq_u32 s{S_SLOT}, {3*AREA}
    s_cselect_b32 s{S_SLOT}, 0, s{S_SLOT}
    s_add_u32 s{S_CNT}, s{S_CNT}, 1
    s_cmp_lt_u32 s{S_CNT}, 16
    s_cbranch_scc1 L_p1_ld_loop
    """)
    def tile_soff(step, dst):
        a(f"""
        s_bfe_u32 s{dst}, s{S_P2}, {(4 << 16) | (4*step)}
        s_lshl_b32 s{dst}, s{dst}, 13
        s_add_u32 s{dst}, s{dst}, s{S_KVB}
        """)
    def dma8(step, lds_off, voff_fn, srdb):
        ntk = "nt " if (OPT.get("nt_kv") or (OPT.get("ntf_kv") and step in (0, 4))) else ""
        tile_soff(step, 76)
        a(f"s_mul_i32 s77, s{S_KQ}, {AREA}")
        a(f"s_add_u32 m0, s77, {lds_off}")
        for q in range(8):
            if q == 4:
                a(f"s_add_u32 m0, s77, {lds_off + 4096}")
                a(f"s_add_u32 s76, s76, 4096")
            a(f"buffer_load_dwordx4 v{voff_fn(q)}, s[{srdb}:{srdb+3}], s76 offen offset:{(q & 3) * 1024} {ntk}lds")
    def issue_k(step):
        if OPT.get("trace"):
            a(f"v_xor_b32 v{V_T2}, 64, v{V_DOFF+2}")
            dma8(step, (step % 3) * 8192, lambda q: (V_DOFF + (q & 3)) if (q & 3) != 3 else V_T2, 16)
        else:
            dma8(step, (step % 3) * 8192, lambda q: V_DOFF + (q & 3), 16)
    def issue_v(step): dma8(step, 24576 + (step % 2) * 8192, lambda q: V_DOFF, 20)
    def call_early_if(kq):
        lab = a.newlabel("L_ne")
        a(f"s_cmp_eq_u32 s{S_KQ}, {kq}")
        a(f"s_cbranch_scc0 {lab}")
        a(f"s_call_b64 s[{S_RET}:{S_RET+1}], L_early")
        a.label(lab)
    a("s_waitcnt vmcnt(5)")
    call_early_if(3)
    a("s_barrier")
    call_early_if(1)
    a(f"""
    s_and_b32 s3, s{S_KQ}, 1
    s_cmp_eq_u32 s3, 1
    s_cbranch_scc1 L_w15_early
    s_waitcnt vmcnt(0)
    s_branch L_w15_done
    L_w15_early:
    s_cmp_eq_u32 s{S_QT}, 0
    s_cbranch_scc1 L_w15_k
    s_waitcnt vmcnt(8)
    s_branch L_w15_done
    L_w15_k:
    s_waitcnt vmcnt(16)
    L_w15_done:
    """)
    a("s_barrier")
    call_early_if(2)
    a("s_barrier")
    call_early_if(0)
    a("s_branch L_p1_join")
    a.label("L_early")
    a(f"s_cmp_eq_u32 s{S_QT}, 0")
    a("s_cbranch_scc0 L_early_v")
    issue_k(0)
    issue_k(1)
    a(f"s_setpc_b64 s[{S_RET}:{S_RET+1}]")
    a.label("L_early_v")
    issue_v(0)
    a(f"s_setpc_b64 s[{S_RET}:{S_RET+1}]")

    a.label("L_p1_compute")
    P_ACC, P_A, P_B, P_WA, P_XA = 0, 48, 80, 104, 108
    a(f"""
    v_lshrrev_b32 v110, 4, v{L}
    v_and_b32 v111, 15, v{L}
    v_lshrrev_b32 v112, 2, v111
    v_and_b32 v113, 3, v111
    v_lshlrev_b32 v114, 3, v110
    v_add_u32 v114, v114, v112
    v_lshlrev_b32 v114, 9, v114
    v_lshlrev_b32 v113, 3, v113
    v_add_u32 v114, v114, v113
    v_and_b32 v115, 1, v110
    v_lshlrev_b32 v115, 2, v115
    v_or_b32 v115, v115, v112
    s_lshl_b32 s{S_T0}, s{S_KQ}, 2
    """)
    for dt in range(4):
        a(f"s_add_u32 s{S_T1}, s{S_T0}, {dt}")
        a(f"v_xor_b32 v116, s{S_T1}, v115")
        a(f"v_lshlrev_b32 v116, 5, v116")
        a(f"v_add_u32 v{P_WA+dt}, v114, v116")
    a(f"""
    v_lshrrev_b32 v112, 1, v111
    v_xor_b32 v112, v112, v110
    v_lshlrev_b32 v112, 4, v112
    v_lshlrev_b32 v113, 7, v111
    v_add_u32 v112, v112, v113
    v_add_u32 v{P_XA}, 32768, v112
    v_xor_b32 v{P_XA+1}, 64, v{P_XA}
    """)
    for i in range(48):
        a(f"v_mov_b32 v{P_ACC+i}, 0")
    for i in range(4):
        a(f"v_mov_b32 v{V_DOFF+i}, 0")
    a(f"s_waitcnt lgkmcnt(0)")
    srd(a, 24, 72, 72, 1 << 28, sel=False)
    a(f"s_cmp_eq_u32 s{S_BLK}, 0")
    srd(a, 16, 50, 60, 8*4*1024*128*2)
    srd(a, 20, 52, 62, 8*4*1024*128*2)
    if OPT.get("b01", 1) and OPT.get("xpf_late"): a("s_barrier")
    if OPT.get("xpf", 1):
        a(f"s_cmp_eq_u32 s{S_BLK}, 0")
        srd(a, 8, 48, 58, 8*48*1024*2)
        a(f"""
        s_cmp_eq_u32 s{S_KQ}, 3
        s_cbranch_scc1 L_noxpf
        s_mul_i32 s3, s{S_HP}, 24576
        s_add_u32 s3, s3, s{S_XB}
        s_lshl_b32 s76, s{S_KQ}, 13
        s_add_u32 s3, s3, s76
        v_lshlrev_b32 v126, 7, v{L}
        buffer_load_dword v128, v126, s[8:11], s3 offen
        L_noxpf:
        """)
    if OPT.get("b01", 1) and not OPT.get("xpf_late"): a("s_barrier")
    group_ids()
    a(f"s_cmp_eq_u32 s{S_W}, 8")
    a("s_cbranch_scc0 L_noclr")
    a(f"""
    s_mov_b32 s16, s70
    s_mov_b32 s17, s71
    s_mov_b32 s18, 256
    s_mov_b32 s19, 0x00020000
    s_lshl_b32 s3, s{S_G1}, 7
    s_lshl_b32 s76, s{S_NT8}, 2
    s_add_u32 s3, s3, s76
    s_add_u32 s3, s3, {FLAG_OFF}
    s_lshl_b32 s76, s{S_G2}, 7
    s_lshl_b32 s77, s{S_G}, 2
    s_add_u32 s76, s76, s77
    s_add_u32 s76, s76, {FLAG_OFF + 8192}
    v_mov_b32 v126, 0
    v_mov_b32 v127, 1
    s_mov_b64 exec, 1
    buffer_store_dword v126, v126, s[24:27], s3 offen sc1
    buffer_store_dword v126, v126, s[24:27], s76 offen sc1
    s_waitcnt vmcnt(0)
    s_and_b32 s3, s2, 15
    s_lshl_b32 s3, s3, 2
    s_add_u32 s3, s3, 128
    buffer_atomic_add v127, v126, s[16:19], s3 offen sc1
    s_mov_b64 exec, -1
    L_noclr:
    """)
    a(f"s_mov_b32 s{S_KVB}, 0")
    a(f"s_mov_b32 s{S_CNT}, 0")
    a(f"s_mov_b32 s{S_SLOT}, 0")
    def rd_ks(ks):
        if OPT.get("nocomp"): return
        for dt in range(4):
            for hf in range(2):
                r = P_A + ks*16 + dt*4 + hf*2
                a(f"ds_read_b64_tr_b16 v[{r}:{r+1}], v{P_WA+dt} offset:{ks*16384 + hf*2048}")
    def rd_x(ks):
        if OPT.get("nocomp"): return
        for st in range(3):
            r = P_B + ks*12 + st*4
            a(f"ds_read_b128 v[{r}:{r+3}], v{P_XA+ks} offset:{st*2048}")
    def mm(ks):
        if OPT.get("nocomp"): return
        for dt in range(4):
            for st in range(3):
                ac = P_ACC + (dt*3+st)*4
                ra = P_A + ks*16 + dt*4; rb = P_B + ks*12 + st*4
                a(f"v_mfma_f32_16x16x32_bf16 v[{ac}:{ac+3}], v[{ra}:{ra+3}], v[{rb}:{rb+3}], v[{ac}:{ac+3}]")
    a.label("L_p1_c_loop")
    trace(a, 120, idx_sreg=S_CNT)
    a("s_barrier")
    if OPT.get("trace"): a(f"s_add_u32 s94, s{S_CNT}, 16")
    trace(a, 120, idx_sreg=94)
    rd_x(0); rd_ks(0)
    a(f"s_cmp_eq_u32 s{S_CNT}, 0")
    a("s_cbranch_scc1 L_p1_c_skip")
    mm(1)
    a.label("L_p1_c_skip")
    rd_x(1); rd_ks(1)
    a("s_waitcnt lgkmcnt(11)")
    mm(0)
    a(f"""
    s_add_u32 s{S_SLOT}, s{S_SLOT}, 1
    s_cmp_eq_u32 s{S_SLOT}, 3
    s_cselect_b32 s{S_SLOT}, 0, s{S_SLOT}
    s_mov_b32 s3, {AREA}
    s_cselect_b32 s3, {(-2*AREA) & 0xffffffff}, s3
    """)
    for r in list(range(P_WA, P_WA+4)) + [P_XA, P_XA+1]:
        a(f"v_add_u32 v{r}, s3, v{r}")
    a(f"""
    s_add_u32 s{S_CNT}, s{S_CNT}, 1
    s_cmp_lt_u32 s{S_CNT}, 16
    s_waitcnt lgkmcnt(0)
    s_cbranch_scc1 L_p1_c_loop
    s_barrier
    """)
    mm(1)
    a(f"""
    s_mov_b32 s{S_C}, {f2u(C_SCALE)}
    v_lshrrev_b32 v110, 4, v{L}
    v_and_b32 v111, 15, v{L}
    v_lshlrev_b32 v112, 8, v111
    v_and_b32 v113, 1, v110
    v_lshlrev_b32 v113, 3, v113
    v_add_u32 v112, v112, v113
    v_lshrrev_b32 v113, 1, v110
    s_and_b32 s{S_T0}, s{S_KQ}, 1
    s_lshl_b32 s{S_T0}, s{S_T0}, 3
    v_add_u32 v113, s{S_T0}, v113
    s_lshr_b32 s{S_T1}, s{S_KQ}, 1
    s_cmp_eq_u32 s{S_T1}, 0
    s_mov_b32 s76, {2*AREA+16384+4096}
    s_mov_b32 s77, {3*AREA+16384}
    s_mov_b32 s78, {3*AREA+16384+4096}
    s_cselect_b32 s76, {1*AREA+16384}, s76
    s_cselect_b32 s77, {1*AREA+16384+4096}, s77
    s_cselect_b32 s78, {2*AREA+16384}, s78
    """)
    for dt in range(4):
        a(f"v_add_u32 v114, {2*dt}, v113")
        a(f"v_xor_b32 v114, v114, v111")
        a(f"v_lshlrev_b32 v114, 4, v114")
        a(f"v_add_u32 v114, v114, v112")
        for st in range(3):
            ac = P_ACC + (dt*3+st)*4
            t = 116 + 2*(st & 1)
            for e in range(4): a(f"v_mul_f32 v{ac+e}, s{S_C}, v{ac+e}")
            a(f"v_cvt_pk_bf16_f32 v{t}, v{ac}, v{ac+1}")
            a(f"v_cvt_pk_bf16_f32 v{t+1}, v{ac+2}, v{ac+3}")
            a(f"v_add_u32 v{123+st}, s{76+st}, v114")
            a(f"ds_write_b64 v{123+st}, v[{t}:{t+1}]")
    a("s_waitcnt lgkmcnt(0)")

    a.label("L_p1_join")
    trace(a, 120, idx_imm=60)
    if OPT.get("lt") == 7: a("s_memtime s[100:101]")
    a("s_barrier")
    trace(a, 120, idx_imm=61)
    trace_dump(a, 120, 121, S_W, V_LANE, 0)
    if OPT.get("trace"): a("v_mov_b32 v167, 0")
    stamp(a, 1)
    a(f"""
    s_mov_b32 s{S_TC}, {f2u(T_HI)}
    s_mov_b32 s{S_NC}, {f2u(-T_LO)}
    s_mov_b64 s[{S_SLOW}:{S_SLOW+1}], 0
    v_and_b32 v{V_T0}, 31, v{L}
    v_lshlrev_b32 v{V_T0}, 8, v{V_T0}
    v_lshrrev_b32 v{V_T1}, 5, v{L}
    v_and_b32 v{V_T2}, 15, v{L}
    v_xor_b32 v{V_T1}, v{V_T1}, v{V_T2}
    v_lshlrev_b32 v{V_T1}, 4, v{V_T1}
    v_add_u32 v{V_T0}, v{V_T0}, v{V_T1}
    s_add_u32 s3, s{S_QT}, 1
    s_mul_i32 s3, s3, {AREA}
    s_add_u32 s3, s3, 16384
    s_mul_i32 s76, s{S_KQ}, {AREA}
    """)
    for st8 in range(8):
        a(f"v_xor_b32 v{V_T1}, {st8 << 5}, v{V_T0}")
        a(f"v_add_u32 v{V_F+st8}, s3, v{V_T1}")
        a(f"v_add_u32 v{V_KA+st8}, s76, v{V_T1}")
        a(f"ds_read_b128 v[{V_Q+4*st8}:{V_Q+4*st8+3}], v{V_F+st8}")
    a(f"""
    v_lshrrev_b32 v{V_T0}, 5, v{L}
    v_lshlrev_b32 v{V_T0}, 2, v{V_T0}
    v_bfe_u32 v{V_T1}, v{L}, 2, 2
    v_add_u32 v{V_T0}, v{V_T0}, v{V_T1}
    v_lshlrev_b32 v{V_T0}, 8, v{V_T0}
    v_bfe_u32 v{V_T2}, v{L}, 4, 1
    v_lshlrev_b32 v{V_T2}, 5, v{V_T2}
    v_add_u32 v{V_T0}, v{V_T0}, v{V_T2}
    v_and_b32 v{V_T2}, 3, v{L}
    v_lshlrev_b32 v{V_T2}, 3, v{V_T2}
    v_add_u32 v{V_T0}, v{V_T0}, v{V_T2}
    s_add_u32 s76, s76, 24576
    v_add_u32 v{V_T0}, s76, v{V_T0}
    """)
    for j in range(4):
        a(f"s_add_u32 s3, s{S_KQ}, {j}")
        a(f"s_and_b32 s3, s3, 3")
        a(f"v_xor_b32 v{V_T2}, s3, v{V_T1}")
        a(f"v_lshlrev_b32 v{V_T2}, 6, v{V_T2}")
        a(f"v_add_u32 v{V_VA+j}, v{V_T0}, v{V_T2}")
    for i in range(64):
        a(f"v_mov_b32 v{V_O+i}, 0")
    a(f"""
    v_mov_b32 v{V_M}, 0
    v_mov_b32 v{V_THR}, s{S_TC}
    v_mov_b32 v{V_L}, 0
    s_waitcnt lgkmcnt(0)
    """)

    S = V_S
    def tr2(idx):
        lt = OPT.get("lt")
        if lt and idx < 36:
            i, k = idx // 4, idx % 4
            if (lt == 1 and k == 1) or (lt == 2 and k == 0) or (lt == 3 and k == 2):
                a(f"s_memtime s[{80+2*i}:{81+2*i}]")
        if lt and lt != 7 and idx == 41: a("s_memtime s[98:99]")
        if lt and lt != 7 and idx == 40: a("s_memtime s[100:101]")
        if not OPT.get("trace"): return
        trace(a, 120 if False else 167, idx_imm=idx)
    def rd_k(step, st8):
        a(f"ds_read_b128 v[{V_F+4*st8}:{V_F+4*st8+3}], v{V_KA+st8} offset:{(step % 3) * 8192}")
    def rd_v(step, f):
        t, j = f // 4, f % 4
        for hf in range(2):
            r = V_F + 4*f + 2*hf
            a(f"ds_read_b64_tr_b16 v[{r}:{r+1}], v{V_VA+j} offset:{(step % 2) * 8192 + (16*t + 8*hf)*256}")
    def qk(step, pending_k):
        for st8 in range(8):
            a(f"s_waitcnt lgkmcnt({7 - st8 if st8 < 2 else min(15, 7 - st8 + 2*(st8-1))})")
            c = "0" if st8 == 0 else f"v[{S}:{S+15}]"
            a(f"v_mfma_f32_32x32x16_bf16 v[{S}:{S+15}], v[{V_F+4*st8}:{V_F+4*st8+3}], v[{V_Q+4*st8}:{V_Q+4*st8+3}], {c}")
            if st8 >= 1: rd_v(step, st8 - 1)
        rd_v(step, 7)
    def softmax_half(half):
        for i in range(8*half, 8*half+8):
            a(f"v_exp_f32 v{S+i}, v{S+i}")
        for i in range(8*half, 8*half+8):
            a(f"v_add_f32 v{V_L}, v{V_L}, v{S+i}")
        for j in range(4*half, 4*half+4):
            a(f"v_cvt_pk_bf16_f32 v{S+j}, v{S+2*j}, v{S+2*j+1}")
    def softmax_max(lab, first=False):
        a(f"v_max3_f32 v{V_T0}, v{S}, v{S+1}, v{S+2}")
        a(f"v_max3_f32 v{V_T1}, v{S+3}, v{S+4}, v{S+5}")
        a(f"v_max3_f32 v{V_T0}, v{V_T0}, v{S+6}, v{S+7}")
        a(f"v_max3_f32 v{V_T1}, v{V_T1}, v{S+8}, v{S+9}")
        a(f"v_max3_f32 v{V_T0}, v{V_T0}, v{S+10}, v{S+11}")
        a(f"v_max3_f32 v{V_T1}, v{V_T1}, v{S+12}, v{S+13}")
        a(f"v_max3_f32 v{V_T0}, v{V_T0}, v{S+14}, v{S+15}")
        a(f"v_max_f32 v{V_T0}, v{V_T0}, v{V_T1}")
        a(f"v_mov_b32 v{V_T1}, v{V_T0}")
        a(f"v_permlane32_swap_b32 v{V_T0}, v{V_T1}")
        a(f"v_max_f32 v{V_T0}, v{V_T0}, v{V_T1}")
        a(f"v_cmp_gt_f32 vcc, v{V_T0}, v{V_THR}")
        if first:
            a(f"v_cmp_gt_f32 s[52:53], s{S_NC}, v{V_T0}")
            a(f"s_or_b64 vcc, vcc, s[52:53]")
        a(f"s_or_b64 s[52:53], vcc, s[{S_SLOW}:{S_SLOW+1}]")
        a(f"s_cbranch_scc0 {lab}")
        a(f"s_call_b64 s[{S_RET}:{S_RET+1}], L_slow{'_first' if first else ''}")
        a.label(lab)
    def pv_mfma(f):
        t, j = f // 4, f % 4
        o = V_O + 16*j
        a(f"v_mfma_f32_32x32x16_bf16 v[{o}:{o+15}], v[{V_F+4*f}:{V_F+4*f+3}], v[{S+4*t}:{S+4*t+3}], v[{o}:{o+15}]")
    def pv_then_k(next_step):
        for f in range(8):
            pv_mfma(f)
            if next_step is not None and f >= 1: rd_k(next_step, f - 1)
        if next_step is not None: rd_k(next_step, 7)

    PR = OPT.get("prio", 1)
    def prio(p):
        if PR: a(f"s_setprio {p}")
    a(f"s_cmp_eq_u32 s{S_QT}, 1")
    a("s_cbranch_scc1 L_typeA")
    a(f"s_cmp_eq_u32 s{S_QT}, 2")
    a("s_cbranch_scc1 L_typeC")
    for i in range(8):
        a(f"s_waitcnt vmcnt({8 if i < 7 else 0})")
        tr2(4*i)
        a("s_barrier")
        tr2(4*i+1)
        prio(1)
        if i == 0:
            for st8 in range(8): rd_k(0, st8)
        else:
            pv_then_k(i)
        if i + 2 < 8: issue_k(i + 2)
        qk(i, 0)
        tr2(4*i+2)
        prio(2)
        softmax_max(f"L_D{i}", first=(i == 0))
        softmax_half(0); softmax_half(1)
        a("s_waitcnt lgkmcnt(0)")
    tr2(32)
    a("s_barrier")
    pv_then_k(None)
    a("s_branch L_merge")
    a.label("L_typeA")
    for i in range(8):
        a(f"s_waitcnt vmcnt(0)")
        tr2(4*i)
        a("s_barrier")
        tr2(4*i+1)
        prio(3)
        for st8 in range(8): rd_k(i, st8)
        if i + 1 < 8: issue_v(i + 1)
        qk(i, 0)
        tr2(4*i+2)
        prio(2)
        softmax_max(f"L_A{i}", first=(i == 0))
        softmax_half(0); softmax_half(1)
        prio(0)
        for f in range(8):
            a(f"s_waitcnt lgkmcnt({min(15, 2*(7-f))})")
            pv_mfma(f)
    tr2(32)
    a("s_barrier")
    a("s_branch L_merge")
    a.label("L_typeC")
    a(f"s_cmp_eq_u32 s{S_BLK}, 0")
    srd(a, 12, 56, 66, 4096*1024*2)
    a(f"""
    v_lshrrev_b32 v{V_DOFF+1}, 1, v{L}
    v_lshlrev_b32 v{V_DOFF+1}, 11, v{V_DOFF+1}
    v_and_b32 v{V_DOFF+2}, 1, v{L}
    v_lshlrev_b32 v{V_DOFF+2}, 7, v{V_DOFF+2}
    v_add_u32 v{V_DOFF+1}, v{V_DOFF+1}, v{V_DOFF+2}
    s_lshl_b32 s45, s{S_G}, 10
    s_lshl_b32 s3, s{S_BP}, 8
    s_add_u32 s45, s45, s3
    s_lshl_b32 s3, s{S_KQ}, 6
    s_add_u32 s45, s45, s3
    s_lshl_b32 s45, s45, 11
    s_lshl_b32 s3, s{S_NT8}, 8
    s_add_u32 s45, s45, s3
    """)
    PF_AT = {OPT.get("pf0", 2): 0, OPT.get("pf1", 5): 1}
    for i in range(9):
        tr2(4*i)
        a("s_barrier")
        tr2(4*i+1)
        prio(2)
        if i == 0:
            for st8 in range(8): rd_k(0, st8)
        else:
            softmax_max(f"L_C{i}", first=(i == 1))
            softmax_half(0); softmax_half(1)
            if i in PF_AT and OPT.get("wopf", 1):
                a(f"s_add_u32 s3, s45, {PF_AT[i] * 32 * 2048}")
                a(f"buffer_load_dword v{V_DOFF+2}, v{V_DOFF+1}, s[12:15], s3 offen {NTWO()}")
            pv_then_k(i if i < 8 else None)
        if i < 8:
            prio(1)
            qk(i, 0)
            a("s_waitcnt lgkmcnt(0)")
    def spin(label, load_lines, cmp_val, vreg):
        a(f"s_mov_b32 s{S_CNT}, 0")
        a.label(label)
        a(load_lines)
        a("s_waitcnt vmcnt(0)")
        a(f"v_cmp_ne_u32 vcc, s3, v{vreg}" if cmp_val is None else f"v_cmp_ne_u32 vcc, {cmp_val}, v{vreg}")
        a(f"s_cbranch_vccz {label}_ok")
        a(f"s_add_u32 s{S_CNT}, s{S_CNT}, 1")
        a(f"s_cmp_lt_u32 s{S_CNT}, {SPIN_MAX}")
        a("s_sleep 1")
        a(f"s_cbranch_scc1 {label}")
        a.label(f"{label}_ok")

    def gen_tail():
        T_ACC, T_FR, T_AA, T_BA, T_DOFF, T_X = 0, 48, 112, 113, 114, 116
        S_WOB, S_OB, S_ST = 45, 46, 47
        def ts(i):
            if OPT.get("lt") == 5: a(f"s_memtime s[{80+2*i}:{81+2*i}]")
        ts(0)
        a(f"s_cmp_eq_u32 s{S_BLK}, 0")
        srd(a, 12, 56, 66, 4096*1024*2)
        srd(a, 8, 68, 68, 8*48*2048*2, sel=False)
        a(f"""
        s_mov_b32 s16, s70
        s_mov_b32 s17, s71
        s_mov_b32 s18, 256
        s_mov_b32 s19, 0x00020000
        s_lshl_b32 s{S_WOB}, s{S_G}, 21
        s_lshl_b32 s3, s{S_NT8}, 8
        s_add_u32 s{S_WOB}, s{S_WOB}, s3
        s_mul_i32 s{S_OB}, s{S_G1}, {192*1024}
        s_add_u32 s{S_OB}, s{S_OB}, {O_OFF}
        s_cmp_ge_u32 s{S_W}, 8
        s_cbranch_scc1 L_t_compute
        """)
        a(f"""
        v_lshrrev_b32 v{T_X}, 4, v{L}
        v_and_b32 v{T_X+1}, 15, v{L}
        v_lshlrev_b32 v{T_X+2}, 2, v{T_X}
        v_xor_b32 v{T_X+2}, v{T_X+2}, v{T_X+1}
        v_lshlrev_b32 v{T_X+2}, 4, v{T_X+2}
        v_lshlrev_b32 v{T_X}, 11, v{T_X}
        v_add_u32 v{T_DOFF}, v{T_X}, v{T_X+2}
        v_lshlrev_b32 v{T_DOFF+1}, 4, v{L}
        s_lshl_b32 s{S_T0}, s{S_W}, 15
        s_add_u32 s{S_WOB}, s{S_WOB}, s{S_T0}
        s_lshl_b32 s{S_T2}, s{S_W}, 12
        s_mul_i32 s{S_T3}, s{S_W}, 3072
        s_add_u32 s{S_OB}, s{S_OB}, s{S_T3}
        """)
        def issue_wo(st_sreg_or_imm, slot):
            if isinstance(st_sreg_or_imm, int):
                a(f"s_add_u32 s3, s{S_NT8}, {st_sreg_or_imm}")
            a(f"s_and_b32 s3, s3, 7")
            a(f"s_lshl_b32 s76, s3, 18")
            a(f"s_add_u32 s76, s76, s{S_WOB}")
            a(f"s_add_u32 s77, s{S_T2}, {slot*32768}")
            for q in range(4):
                a(f"s_add_u32 m0, s77, {q*1024}")
                if q: a(f"s_add_u32 s76, s76, {4*2048}")
                a(f"buffer_load_dwordx4 v{T_DOFF}, s[12:15], s76 offen lds")
        def issue_o(st, slot):
            a(f"s_add_u32 s3, s{S_NT8}, {st}")
            a(f"s_and_b32 s3, s3, 7")
            a(f"s_mul_i32 s76, s3, 24576")
            a(f"s_add_u32 s76, s76, s{S_OB}")
            a(f"s_add_u32 m0, s{S_T3}, {98304 + slot*24576}")
            for q in range(3):
                a(f"buffer_load_dwordx4 v{T_DOFF+1}, s[24:27], s76 offen offset:{q*1024} {OSC()}lds")
        a("s_waitcnt vmcnt(0)")
        ts(1)
        a("s_barrier")
        a("s_sleep 1")
        for st in range(3): issue_wo(st, st)
        a("s_barrier")
        ts(2)
        issue_o(0, 0); issue_o(1, 1)
        for st in range(8):
            n = 3 if st == 0 else (0 if st in (1, 7) else 4)
            a(f"s_waitcnt vmcnt({n})")
            if OPT.get("lt") == 6: a(f"s_memtime s[{80+2*st}:{81+2*st}]")
            a("s_barrier")
            if st >= 1:
                if st + 1 <= 7: issue_o(st + 1, (st + 1) % 2)
                if st + 2 <= 7: issue_wo(st + 2, (st + 2) % 3)
        ts(3)
        a("s_branch L_t_join")
        a.label("L_t_compute")
        a(f"""
        v_lshrrev_b32 v{T_X}, 5, v{L}
        v_lshlrev_b32 v{T_X}, 3, v{T_X}
        v_bfe_u32 v{T_X+1}, v{L}, 2, 2
        v_add_u32 v{T_X}, v{T_X}, v{T_X+1}
        v_lshlrev_b32 v{T_X}, 8, v{T_X}
        v_bfe_u32 v{T_X+2}, v{L}, 4, 1
        v_lshlrev_b32 v{T_X+2}, 5, v{T_X+2}
        v_add_u32 v{T_X}, v{T_X}, v{T_X+2}
        v_and_b32 v{T_X+2}, 3, v{L}
        v_lshlrev_b32 v{T_X+2}, 3, v{T_X+2}
        v_add_u32 v{T_X}, v{T_X}, v{T_X+2}
        v_xor_b32 v{T_X+2}, s{S_KQ}, v{T_X+1}
        v_lshlrev_b32 v{T_X+2}, 6, v{T_X+2}
        v_add_u32 v{T_AA}, v{T_X}, v{T_X+2}
        v_lshlrev_b32 v{T_BA}, 4, v{L}
        v_add_u32 v{T_BA}, 98304, v{T_BA}
        """)
        for i in range(48):
            a(f"v_mov_b32 v{T_ACC+i}, 0")
        a("s_waitcnt vmcnt(0)")
        ts(1)
        a("s_barrier")
        a(f"s_cmp_eq_u32 s{S_W}, 8")
        a("s_cbranch_scc0 L_t_nopoll1")
        a("s_setprio 3")
        a(f"""
        s_lshl_b32 s3, s{S_G1}, 7
        s_add_u32 s76, s3, {FLAG_OFF}
        s_lshl_b32 s3, s{S_NT8}, 2
        s_add_u32 s77, s76, s3
        v_mov_b32 v{T_X}, 0
        v_mov_b32 v{T_X+1}, {TOK_A}
        s_mov_b64 exec, 1
        buffer_store_dword v{T_X+1}, v{T_X}, s[24:27], s77 offen sc1
        s_mov_b64 exec, -1
        v_and_b32 v{T_X}, 15, v{L}
        v_lshlrev_b32 v{T_X}, 2, v{T_X}
        v_and_b32 v{T_X+2}, 7, v{L}
        v_lshlrev_b32 v{T_X+2}, 2, v{T_X+2}
        """)
        spin("L_spin_dbg", f"buffer_load_dword v{T_X+1}, v{T_X}, s[16:19], 0 offen offset:128 sc1", 16, T_X+1)
        a(f"s_mov_b32 s3, {TOK_A}")
        spin("L_spin_a", f"buffer_load_dword v{T_X+1}, v{T_X+2}, s[24:27], s76 offen sc1", None, T_X+1)
        a("s_setprio 0")
        a.label("L_t_nopoll1")
        a("s_barrier")
        ts(2)
        def rd_list(j):
            b = T_FR + 16*(j % 4)
            out = []
            for hf in range(2):
                out.append(f"ds_read_b64_tr_b16 v[{b+2*hf}:{b+2*hf+1}], v{T_AA} offset:{j*4096 + hf*1024}")
            for m in range(3):
                out.append(f"ds_read_b128 v[{b+4+4*m}:{b+7+4*m}], v{T_BA} offset:{(j*3+m)*1024}")
            return out
        def mm_list(j):
            b = T_FR + 16*(j % 4)
            return [f"v_mfma_f32_32x32x16_bf16 v[{T_ACC+16*m}:{T_ACC+16*m+15}], v[{b}:{b+3}], v[{b+4+4*m}:{b+7+4*m}], v[{T_ACC+16*m}:{T_ACC+16*m+15}]" for m in range(3)]
        def mm3(j):
            for x in mm_list(j): a(x)
        def weave(mm, rd):
            groups = [rd[0:3], rd[3:4], rd[4:5]]
            for x, g in zip(mm, groups):
                a(x)
                for y in g: a(y)
        a(f"s_mov_b32 s{S_ST}, 0")
        a(f"s_mov_b32 s{S_SLOT}, 0")
        a.label("L_t_loop")
        if OPT.get("lt") == 6:
            for st in range(8):
                a(f"s_cmp_eq_u32 s{S_ST}, {st}")
                a(f"s_cbranch_scc0 L_lt6_{st}")
                a(f"s_memtime s[{80+2*st}:{81+2*st}]")
                a.label(f"L_lt6_{st}")
        a("s_barrier")
        a(f"s_cmp_eq_u32 s{S_ST}, 0")
        a("s_cbranch_scc0 L_t_left")
        for y in rd_list(0) + rd_list(1): a(y)
        a("s_branch L_t_skip")
        a.label("L_t_left")
        weave(mm_list(6), rd_list(0))
        weave(mm_list(7), rd_list(1))
        a.label("L_t_skip")
        for j in range(6):
            a("s_waitcnt lgkmcnt(5)")
            weave(mm_list(j), rd_list(j + 2))
        a(f"""
        s_add_u32 s{S_SLOT}, s{S_SLOT}, 1
        s_cmp_eq_u32 s{S_SLOT}, 3
        s_cselect_b32 s{S_SLOT}, 0, s{S_SLOT}
        s_mov_b32 s3, 32768
        s_cselect_b32 s3, {(-65536) & 0xffffffff}, s3
        v_add_u32 v{T_AA}, s3, v{T_AA}
        s_bitcmp1_b32 s{S_ST}, 0
        s_mov_b32 s3, 24576
        s_cselect_b32 s3, {(-24576) & 0xffffffff}, s3
        v_add_u32 v{T_BA}, s3, v{T_BA}
        s_add_u32 s{S_ST}, s{S_ST}, 1
        s_cmp_lt_u32 s{S_ST}, 8
        s_waitcnt lgkmcnt(0)
        s_cbranch_scc1 L_t_loop
        """)
        mm3(6); mm3(7)
        ts(3)
        a(f"""
        s_lshl_b32 s3, s{S_G2}, 2
        s_add_u32 s3, s3, s{S_KQ}
        s_lshl_b32 s3, s3, 2
        s_add_u32 s3, s3, s{S_G}
        s_mul_i32 s76, s3, 12288
        s_add_u32 s76, s76, {PART_OFF}
        v_lshlrev_b32 v{T_X}, 4, v{L}
        """)
        for m in range(3):
            for rq in range(4):
                r = T_ACC + 16*m + 4*rq
                a(f"buffer_store_dwordx4 v[{r}:{r+3}], v{T_X}, s[24:27], s76 offen offset:{rq*1024} sc1")
            if m < 2: a(f"s_add_u32 s76, s76, 4096")
        a("s_waitcnt vmcnt(0)")
        a.label("L_t_join")
        ts(4)
        a("s_barrier")
        a(f"s_cmp_eq_u32 s{S_W}, 8")
        a("s_cbranch_scc0 L_t_nopoll2")
        a(f"""
        s_lshl_b32 s3, s{S_G2}, 7
        s_add_u32 s76, s3, {FLAG_OFF + 8192}
        s_lshl_b32 s3, s{S_G}, 2
        s_add_u32 s77, s76, s3
        v_mov_b32 v{T_X}, 0
        v_mov_b32 v{T_X+1}, {TOK_B}
        s_mov_b64 exec, 1
        buffer_store_dword v{T_X+1}, v{T_X}, s[24:27], s77 offen sc1
        s_mov_b64 exec, -1
        v_and_b32 v{T_X+2}, 3, v{L}
        v_lshlrev_b32 v{T_X+2}, 2, v{T_X+2}
        s_mov_b32 s3, {TOK_B}
        """)
        spin("L_spin_b", f"buffer_load_dword v{T_X+1}, v{T_X+2}, s[24:27], s76 offen sc1", None, T_X+1)
        a.label("L_t_nopoll2")
        a("s_barrier")
        ts(5)
        a(f"""
        s_lshl_b32 s3, s{S_G2}, 2
        s_add_u32 s3, s3, s{S_G}
        s_mul_i32 s76, s3, {4*12288}
        s_lshl_b32 s3, s{S_W}, 10
        s_add_u32 s76, s76, s3
        s_add_u32 s76, s76, {PART_OFF}
        v_lshlrev_b32 v{T_X}, 4, v{L}
        """)
        for src in range(4):
            a(f"buffer_load_dwordx4 v[{16+4*src}:{19+4*src}], v{T_X}, s[24:27], s76 offen sc1")
            if src < 3: a(f"s_add_u32 s76, s76, 12288")
        a(f"""
        s_mul_i32 s3, s{S_BP}, 96
        s_lshl_b32 s77, s{S_QT}, 5
        s_add_u32 s3, s3, s77
        s_lshl_b32 s3, s3, 12
        s_lshl_b32 s77, s{S_BLK}, 11
        s_add_u32 s3, s3, s77
        s_lshl_b32 s77, s{S_NT8}, 8
        s_add_u32 s3, s3, s77
        s_lshl_b32 s77, s{S_G}, 6
        s_add_u32 s3, s3, s77
        s_lshl_b32 s77, s{S_KQ}, 4
        s_add_u32 s3, s3, s77
        v_and_b32 v{T_X+1}, 31, v{L}
        v_lshlrev_b32 v{T_X+1}, 12, v{T_X+1}
        v_lshrrev_b32 v{T_X+2}, 5, v{L}
        v_lshlrev_b32 v{T_X+2}, 3, v{T_X+2}
        v_add_u32 v{T_X+1}, v{T_X+1}, v{T_X+2}
        s_waitcnt vmcnt(0)
        """)
        for i in range(4):
            a(f"v_add_f32 v{16+i}, v{16+i}, v{20+i}")
            a(f"v_add_f32 v{24+i}, v{24+i}, v{28+i}")
        for i in range(4):
            a(f"v_add_f32 v{16+i}, v{16+i}, v{24+i}")
        a("v_cvt_pk_bf16_f32 v20, v16, v17")
        a("v_cvt_pk_bf16_f32 v21, v18, v19")
        a(f"buffer_store_dwordx2 v[20:21], v{T_X+1}, s[8:11], s3 offen")
        ts(6)

    a.label("L_merge")
    prio(0)
    stamp(a, 2)
    tr2(40)
    F = V_F
    def mt(i):
        if OPT.get("lt") == 4: a(f"s_memtime s[{80+2*i}:{81+2*i}]")
    mt(0)
    a(f"""
    v_mov_b32 v{V_T0}, v{V_L}
    v_mov_b32 v{V_T1}, v{V_L}
    s_mul_i32 s76, s{S_KQ}, {AREA}
    v_lshlrev_b32 v{V_T2}, 4, v{L}
    v_permlane32_swap_b32 v{V_T0}, v{V_T1}
    s_mul_i32 s3, s{S_QT}, 12288
    s_add_u32 s77, s76, s3
    v_add_f32 v{V_L}, v{V_T0}, v{V_T1}
    v_add_u32 v{V_T1}, s77, v{V_T2}
    """)
    for j in range(1, 4):
        for rq in range(4):
            r = V_O + 16*j + 4*rq
            a(f"ds_write_b128 v{V_T1}, v[{r}:{r+3}] offset:{(j-1)*4096 + rq*1024}")
    mt(1)
    a(f"""
    v_and_b32 v{V_T0}, 31, v{L}
    v_lshlrev_b32 v{V_T0}, 3, v{V_T0}
    s_lshl_b32 s3, s{S_QT}, 8
    s_add_u32 s3, s3, 36864
    v_add_u32 v{V_T0}, s3, v{V_T0}
    v_add_u32 v{V_T1}, s76, v{V_T0}
    ds_write_b64 v{V_T1}, v[{V_M}:{V_L}]
    """)
    for j in range(1, 4):
        a(f"s_sub_u32 s3, s{S_KQ}, {j}")
        a(f"s_and_b32 s3, s3, 3")
        a(f"s_mul_i32 s76, s3, {AREA}")
        a(f"v_add_u32 v{V_Q+j}, s76, v{V_T0}")
        a(f"s_mul_i32 s3, s{S_QT}, 12288")
        a(f"s_add_u32 s76, s76, s3")
        a(f"v_add_u32 v{V_Q+4+j}, s76, v{V_T2}")
    A0, A1, A2, A3 = V_Q+8, V_Q+9, V_Q+10, V_Q+11
    a(f"""
    v_and_b32 v{A1}, 31, v{L}
    s_lshl_b32 s3, s{S_QT}, 5
    v_add_u32 v{A1}, s3, v{A1}
    v_cmp_le_u32 vcc, 48, v{A1}
    v_subrev_u32 v{A2}, 48, v{A1}
    v_mov_b32 v{A0}, 0
    v_mov_b32 v{A3}, {8*3072}
    v_cndmask_b32 v{A1}, v{A1}, v{A2}, vcc
    v_cndmask_b32 v{A0}, v{A0}, v{A3}, vcc
    s_and_b32 s3, s{S_B}, 1
    s_mul_i32 s3, s3, 48
    v_add_u32 v{A1}, s3, v{A1}
    v_lshrrev_b32 v{A2}, 5, v{A1}
    v_lshlrev_b32 v{A2}, 10, v{A2}
    v_add_u32 v{A0}, v{A0}, v{A2}
    v_and_b32 v{A1}, 31, v{A1}
    v_lshlrev_b32 v{A1}, 4, v{A1}
    v_add_u32 v{A0}, v{A0}, v{A1}
    v_lshrrev_b32 v{A1}, 5, v{L}
    v_lshlrev_b32 v{A1}, 3, v{A1}
    v_add_u32 v{A0}, v{A0}, v{A1}
    s_lshl_b32 s3, s{S_HP}, 4
    s_lshl_b32 s76, s{S_KQ}, 1
    s_add_u32 s3, s3, s76
    s_mul_i32 s3, s3, 3072
    s_mul_i32 s79, s{S_G1}, {192*1024}
    s_add_u32 s79, s79, s3
    s_add_u32 s79, s79, {O_OFF}
    """)
    mt(2)
    a("s_waitcnt lgkmcnt(0)")
    mt(3)
    a("s_barrier")
    mt(4)
    for j in range(1, 4):
        a(f"ds_read_b64 v[{F+2*j}:{F+2*j+1}], v{V_Q+j}")
    for j in range(1, 4):
        for rq in range(4):
            r = V_O + 16*j + 4*rq
            a(f"ds_read_b128 v[{r}:{r+3}], v{V_Q+4+j} offset:{(j-1)*4096 + rq*1024}")
    a("s_waitcnt lgkmcnt(12)")
    mt(5)
    a(f"""
    v_max3_f32 v{F+8}, v{V_M}, v{F+2}, v{F+4}
    v_max_f32 v{F+8}, v{F+8}, v{F+6}
    v_sub_f32 v{F+10}, v{V_M}, v{F+8}
    v_sub_f32 v{F+12}, v{F+2}, v{F+8}
    v_sub_f32 v{F+14}, v{F+4}, v{F+8}
    v_sub_f32 v{F+16}, v{F+6}, v{F+8}
    v_exp_f32 v{F+10}, v{F+10}
    v_exp_f32 v{F+12}, v{F+12}
    v_exp_f32 v{F+14}, v{F+14}
    v_exp_f32 v{F+16}, v{F+16}
    v_mul_f32 v{F+18}, v{F+10}, v{V_L}
    v_fma_f32 v{F+18}, v{F+12}, v{F+3}, v{F+18}
    v_fma_f32 v{F+18}, v{F+14}, v{F+5}, v{F+18}
    v_fma_f32 v{F+18}, v{F+16}, v{F+7}, v{F+18}
    v_rcp_f32 v{F+18}, v{F+18}
    v_mul_f32 v{F+10}, v{F+10}, v{F+18}
    v_mul_f32 v{F+12}, v{F+12}, v{F+18}
    v_mul_f32 v{F+14}, v{F+14}, v{F+18}
    v_mul_f32 v{F+16}, v{F+16}, v{F+18}
    """)
    mt(6)
    for i in range(0, 16, 2):
        a(f"v_pk_mul_f32 v[{V_O+i}:{V_O+i+1}], v[{V_O+i}:{V_O+i+1}], v[{F+10}:{F+11}] op_sel_hi:[1,0]")
    for j in range(1, 4):
        a(f"s_waitcnt lgkmcnt({12 - 4*j})")
        if j == 3: a("s_barrier")
        for i in range(0, 16, 2):
            a(f"v_pk_fma_f32 v[{V_O+i}:{V_O+i+1}], v[{V_O+16*j+i}:{V_O+16*j+i+1}], v[{F+10+2*j}:{F+11+2*j}], v[{V_O+i}:{V_O+i+1}] op_sel_hi:[1,0,1]")
    mt(7)
    for rq in range(4):
        a(f"v_cvt_pk_bf16_f32 v{F+20+2*rq}, v{V_O+4*rq}, v{V_O+4*rq+1}")
        a(f"v_cvt_pk_bf16_f32 v{F+20+2*rq+1}, v{V_O+4*rq+2}, v{V_O+4*rq+3}")
    for rq in range(4):
        a(f"buffer_store_dwordx2 v[{F+20+2*rq}:{F+20+2*rq+1}], v{A0}, s[24:27], s79 offen offset:{(rq & 1)*512} sc1" if rq < 2 else
          f"buffer_store_dwordx2 v[{F+20+2*rq}:{F+20+2*rq+1}], v{A0}, s[24:27], s79 offen offset:{3072 + (rq & 1)*512} sc1")
    gen_tail()
    stamp(a, 3)
    tr2(41)
    trace_dump(a, 167, 100, S_W, V_LANE, 1)
    if OPT.get("lt"):
        a("s_waitcnt lgkmcnt(0)")
        a(f"s_lshl_b32 s3, s2, 4")
        a(f"s_add_u32 s3, s3, s{S_W}")
        a(f"s_lshl_b32 s3, s3, 8")
        a(f"s_add_u32 s3, s3, {(56 << 20) + (1 << 20)}")
        a("v_mov_b32 v102, s3")
        for i in range(11):
            a(f"v_mov_b32 v100, s{80+2*i}")
            a(f"buffer_store_dword v100, v102, s[24:27], 0 offen offset:{4*i}")
            a("s_waitcnt vmcnt(0)")
    if OPT["stamps"]: a("s_memtime s[90:91]")
    if OPT.get("dbgclk"):
        a(f"""
        s_waitcnt lgkmcnt(0)
        s_cmp_eq_u32 s2, {OPT.get("dbgwg", 77)}
        s_cbranch_scc0 L_nodbg
        s_cmp_eq_u32 s{S_W}, 0
        s_cbranch_scc0 L_nodbg
        s_sub_u32 s90, s90, s88
        s_sub_u32 s82, s82, s80
        s_sub_u32 s84, s84, s80
        s_sub_u32 s86, s86, s80
        v_mov_b32 v100, s90
        v_mov_b32 v101, s82
        v_mov_b32 v102, s84
        v_mov_b32 v103, s86
        v_mov_b32 v104, 0
        s_mov_b64 exec, 1
        buffer_store_dwordx4 v[100:103], v104, s[16:19], 0 offen
        s_mov_b64 exec, -1
        L_nodbg:
        """)
    else:
        stamp_flush(a, 6, 100, S_W, 0)
    a("s_endpgm")
    a.label("L_slow_first")
    a(f"v_cndmask_b32 v{V_M}, v{V_M}, v{V_T0}, vcc")
    a(f"s_mov_b64 s[{S_SLOW}:{S_SLOW+1}], -1")
    a(f"v_add_f32 v{V_THR}, s{S_TC}, v{V_M}")
    a("s_branch L_slow_sub")
    a.label("L_slow")
    a("s_cbranch_vccz L_slow_sub")
    a(f"v_max_f32 v{V_T1}, v{V_M}, v{V_T0}")
    a(f"v_cndmask_b32 v{V_T1}, v{V_M}, v{V_T1}, vcc")
    a.label("L_slow_upd")
    a(f"""
    s_mov_b64 s[{S_SLOW}:{S_SLOW+1}], -1
    v_sub_f32 v{V_T2}, v{V_M}, v{V_T1}
    v_exp_f32 v{V_T2}, v{V_T2}
    v_mov_b32 v{V_M}, v{V_T1}
    v_add_f32 v{V_THR}, s{S_TC}, v{V_T1}
    v_mul_f32 v{V_L}, v{V_L}, v{V_T2}
    """)
    for i in range(64):
        a(f"v_mul_f32 v{V_O+i}, v{V_T2}, v{V_O+i}")
    a.label("L_slow_sub")
    for i in range(16):
        a(f"v_sub_f32 v{V_S+i}, v{V_S+i}, v{V_M}")
    a("s_nop 1")
    a(f"s_setpc_b64 s[{S_RET}:{S_RET+1}]")
    a.label("L_k1_end")
    a("s_endpgm")
    return a

def build():
    k1 = gen_k1().finalize()
    h1, d1 = kernel_text("gqa_fused_kernel", k1, 168)
    hdr = open("concat_heads__gqa_block_cached__gqa_block_cached__near_ridge.s.ref").read().split("; Override")[0]
    txt = hdr
    txt += "; @launch kernel=gqa_fused_kernel grid=(256,1,1) block=(768,1,1) lds=163840\n"
    txt += '.amdgcn_target "amdgcn-amd-amdhsa--gfx950"\n.text\n' + h1
    txt += '.section .rodata,"a"\n.p2align 6\n' + d1
    return txt

if __name__ == "__main__":
    out = sys.argv[1]
    for kv in sys.argv[2:]:
        k, v = kv.split("=")
        OPT[k] = int(v, 0)
    open(out, "w").write(build())
    print("wrote", out)
```

```python
import sys, math, struct
from asmlib import *
import gen as G1
G1.OPT["stamp_off"] = 48 << 20
from gen import f2u, load_ptrs, srd, AREA, C_SCALE, T_LOG2

OPT = G1.OPT
stamp, stamp_flush, trace, trace_dump = G1.stamp, G1.stamp_flush, G1.trace, G1.trace_dump
NT = G1.NT

NTQ = lambda: 'nt ' if OPT.get('nt_wq') else ''
NTX = lambda: 'nt ' if OPT.get('nt_x') else ''
NTKV = lambda: 'nt ' if OPT.get('nt_kv') else ''
NTWO = lambda: 'nt ' if OPT.get('nt_wo') else ''
OSC = lambda: '' if OPT.get('o_plain') else 'sc1 '
O_OFF = 0
FLAG_OFF = 8 << 20
PART_OFF = 16 << 20
TOK_A, TOK_B = 0x5EED0A01, 0x5EED0B02
SPIN_MAX = 1 << 18

def emit_tile(a, dst, s_cnt, phi, m1, m3, win, r, t0, t1, t2):
    sc = f"s{s_cnt}" if isinstance(s_cnt, int) else str(s_cnt[1])
    a(f"s_add_u32 s{t0}, s{phi}, {win}")
    a(f"s_sub_u32 s{t1}, {win}, s{phi}")
    a(f"s_mov_b32 s{t2}, s{m3}")
    a(f"s_cmp_lt_u32 {sc}, s{t0}" if isinstance(s_cnt, int) else f"s_cmp_gt_u32 s{t0}, {sc}")
    a(f"s_cselect_b32 s{t0}, s{phi}, s{t0}")
    a(f"s_cselect_b32 s{t1}, {win}, s{t1}")
    a(f"s_cselect_b32 s{t2}, {256 // win}, s{t2}")
    a(f"s_cmp_lt_u32 {sc}, s{phi}" if isinstance(s_cnt, int) else f"s_cmp_gt_u32 s{phi}, {sc}")
    a(f"s_cselect_b32 s{t0}, 0, s{t0}")
    a(f"s_cselect_b32 s{t1}, s{phi}, s{t1}")
    a(f"s_cselect_b32 s{t2}, s{m1}, s{t2}")
    a(f"s_sub_u32 s{dst}, {sc}, s{t0}")
    a(f"s_add_u32 s{dst}, s{dst}, s{r}")
    a(f"s_mul_i32 s{t2}, s{dst}, s{t2}")
    a(f"s_lshr_b32 s{t2}, s{t2}, 8")
    a(f"s_mul_i32 s{t2}, s{t2}, s{t1}")
    a(f"s_sub_u32 s{dst}, s{dst}, s{t2}")
    a(f"s_add_u32 s{dst}, s{dst}, s{t0}")

def gen_k1():
    a = Asm()
    S_PHI, S_M1, S_M3, S_P2 = 4, 5, 6, 7
    S_BP, S_NT8, S_G1, S_G2 = 54, 55, 58, 59
    S_W, S_BLK, S_G, S_B, S_HP, S_KQ, S_QT = 28, 29, 30, 31, 32, 33, 34
    S_C, S_NC, S_TC = 35, 36, 37
    S_RET = 38
    S_SLOW = 50
    T_HI, T_LO = 16.0, 64.0
    S_T0, S_T1, S_T2, S_T3 = 41, 42, 43, 44
    S_WQB, S_XB, S_KVB = 45, 46, 47
    S_CNT, S_SLOT = 75, 78
    V_O, V_Q, V_S, V_F, V_KA, V_VA = 0, 64, 96, 112, 144, 152
    V_M, V_L, V_NMC, V_THR, V_T0, V_T1, V_T2, V_LANE, V_DOFF = 156, 157, 158, 159, 160, 161, 162, 163, 164
    L = V_LANE

    def group_ids():
        a(f"""
        s_lshr_b32 s{S_BP}, s{S_B}, 1
        s_and_b32 s{S_NT8}, s{S_B}, 1
        s_lshl_b32 s{S_NT8}, s{S_NT8}, 2
        s_add_u32 s{S_NT8}, s{S_NT8}, s{S_HP}
        s_lshl_b32 s{S_G1}, s{S_BLK}, 2
        s_add_u32 s{S_G1}, s{S_G1}, s{S_G}
        s_lshl_b32 s{S_G1}, s{S_G1}, 2
        s_add_u32 s{S_G1}, s{S_G1}, s{S_BP}
        s_lshl_b32 s{S_G2}, s{S_BLK}, 2
        s_add_u32 s{S_G2}, s{S_G2}, s{S_BP}
        s_lshl_b32 s{S_G2}, s{S_G2}, 3
        s_add_u32 s{S_G2}, s{S_G2}, s{S_NT8}
        """)
    a("s_cmp_ge_u32 s2, 256")
    a("s_cbranch_scc1 L_k1_end")
    stamp(a, 0)
    if OPT["stamps"]: a("s_memtime s[88:89]")
    if OPT.get("lt") == 7: a("s_memtime s[80:81]")
    load_ptrs(a)
    if OPT.get("trace"):
        a("v_mov_b32 v120, 0")
        a("v_mov_b32 v167, 0")
        trace(a, 120, idx_imm=63)
    a(f"""
    v_lshrrev_b32 v1, 6, v0
    v_and_b32 v{L}, 63, v0
    s_and_b32 s3, s2, 7
    v_readfirstlane_b32 s{S_W}, v1
    s_lshr_b32 s{S_BLK}, s3, 2
    s_and_b32 s{S_G}, s3, 3
    s_lshr_b32 s3, s2, 3
    s_lshr_b32 s{S_B}, s3, 2
    s_and_b32 s{S_HP}, s3, 3
    s_and_b32 s{S_KQ}, s{S_W}, 3
    s_lshr_b32 s{S_QT}, s{S_W}, 2
    s_lshl_b32 s{S_WQB}, s{S_G}, 11
    s_lshl_b32 s3, s{S_HP}, 9
    s_add_u32 s{S_WQB}, s{S_WQB}, s3
    s_mul_i32 s{S_XB}, s{S_B}, {48*2048}
    s_cmp_ge_u32 s{S_W}, 8
    s_cbranch_scc1 L_p1_compute
    """)
    a(f"""
    v_lshrrev_b32 v5, 5, v{L}
    v_and_b32 v6, 31, v{L}
    s_and_b32 s{S_T1}, s{S_W}, 1
    s_lshl_b32 s{S_T1}, s{S_T1}, 2
    v_or_b32 v7, s{S_T1}, v5
    v_lshlrev_b32 v8, 1, v7
    v_xor_b32 v8, v8, v6
    v_lshlrev_b32 v8, 4, v8
    v_lshlrev_b32 v9, 13, v5
    v_add_u32 v2, v9, v8
    v_xor_b32 v8, 64, v8
    v_add_u32 v3, v9, v8
    s_mul_i32 s{S_T1}, s{S_W}, 6
    v_lshrrev_b32 v5, 3, v{L}
    v_add_u32 v5, s{S_T1}, v5
    v_lshrrev_b32 v6, 1, v5
    v_xor_b32 v6, v6, v{L}
    v_and_b32 v6, 7, v6
    v_lshlrev_b32 v6, 4, v6
    v_lshlrev_b32 v5, 11, v5
    v_add_u32 v4, v5, v6
    s_lshl_b32 s{S_T2}, s{S_W}, 16
    s_add_u32 s{S_WQB}, s{S_WQB}, s{S_T2}
    s_lshl_b32 s{S_T2}, s{S_W}, 12
    s_mul_i32 s{S_T3}, s{S_W}, 768
    s_add_u32 s{S_T3}, s{S_T3}, 32768
    """)
    if OPT.get("stag1", 2) == 1:
        a(f"""
        s_add_u32 s{S_PHI}, s{S_HP}, 1
        s_lshl_b32 s3, s{S_HP}, 3
        s_lshr_b32 s{S_M1}, 0x3f557fff, s3
        s_and_b32 s{S_M1}, s{S_M1}, 0xff
        s_add_u32 s{S_M1}, s{S_M1}, 1
        s_lshr_b32 s{S_M3}, 0x40342b25, s3
        s_and_b32 s{S_M3}, s{S_M3}, 0xff
        """)
    else:
        pa, pb = OPT.get("phiA", 8), OPT.get("phiB", 4)
        Mt = lambda n: -(-256 // n) if n else 1
        a(f"""
        s_cmp_eq_u32 s{S_BLK}, 0
        s_mov_b32 s{S_PHI}, {pb}
        s_cselect_b32 s{S_PHI}, {pa}, s{S_PHI}
        s_mov_b32 s{S_M1}, {Mt(pb)}
        s_cselect_b32 s{S_M1}, {Mt(pa)}, s{S_M1}
        s_mov_b32 s{S_M3}, {Mt(8-pb)}
        s_cselect_b32 s{S_M3}, {Mt(8-pa)}, s{S_M3}
        """)
    a(f"""
    s_cmp_eq_u32 s{S_BLK}, 0
    s_waitcnt lgkmcnt(0)
    """)
    if OPT.get("lt") == 7: a("s_memtime s[82:83]")
    srd(a, 8, 48, 58, 8*48*1024*2)
    srd(a, 12, 54, 64, 1024*4096*2)
    def issue_tile():
        if OPT.get("stag1", 2):
            emit_tile(a, 3, S_CNT, S_PHI, S_M1, S_M3, 8, S_B, 76, 77, 79)
        else:
            a(f"""
            s_add_u32 s3, s{S_CNT}, s{S_B}
            s_and_b32 s3, s3, 7
            s_and_b32 s76, s{S_CNT}, 8
            s_or_b32 s3, s3, s76
            """)
        a(f"""
        s_lshl_b32 s76, s3, 19
        s_add_u32 s76, s76, s{S_WQB}
        s_add_u32 s77, s{S_SLOT}, s{S_T2}
        """)
        def wq4(nt):
            for q in range(4):
                a(f"s_add_u32 m0, s77, {q*1024}")
                if q: a(f"s_add_u32 s76, s76, {2*8192}")
                a(f"buffer_load_dwordx4 v{2 + (q & 1)}, s[12:15], s76 offen {nt}lds")
        if OPT.get("ntf_wq"):
            l1, l2 = a.newlabel("L_wqn"), a.newlabel("L_wqd")
            a(f"s_and_b32 s79, s{S_CNT}, 7")
            a(f"s_cbranch_scc1 {l1}")
            wq4("nt ")
            a(f"s_branch {l2}")
            a.label(l1)
            wq4("")
            a.label(l2)
        else:
            wq4(NTQ())
        a(f"""
        s_lshl_b32 s76, s3, 7
        s_add_u32 s76, s76, s{S_XB}
        s_add_u32 m0, s{S_SLOT}, s{S_T3}
        s_mov_b32 exec_hi, {'0xffff' if not OPT.get('xfull') else '-1'}
        buffer_load_dwordx4 v4, s[8:11], s76 offen {NTX()}lds
        s_mov_b32 exec_hi, -1
        """)
    a(f"s_mov_b32 s{S_CNT}, 0")
    a(f"s_mov_b32 s{S_SLOT}, 0")
    issue_tile()
    if OPT.get("b01", 1): a("s_barrier")
    a(f"s_mov_b32 s{S_CNT}, 1")
    a(f"s_mov_b32 s{S_SLOT}, {AREA}")
    issue_tile()
    a(f"s_mov_b32 s{S_CNT}, 2")
    a(f"s_mov_b32 s{S_SLOT}, {2*AREA}")
    if OPT.get("lt") == 7: a("s_memtime s[84:85]")
    a(f"s_cmp_eq_u32 s{S_BLK}, 0")
    srd(a, 16, 50, 60, 8*4*1024*128*2)
    srd(a, 20, 52, 62, 8*4*1024*128*2)
    srd(a, 24, 72, 72, 1 << 28, sel=False)
    group_ids()
    a(f"""
    s_lshl_b32 s3, s{S_B}, 2
    s_add_u32 s3, s3, s{S_G}
    s_lshl_b32 s{S_KVB}, s3, 18
    s_lshl_b32 s3, s{S_KQ}, 16
    s_add_u32 s{S_KVB}, s{S_KVB}, s3
    v_lshrrev_b32 v5, 4, v{L}
    v_and_b32 v6, 15, v{L}
    v_lshlrev_b32 v7, 8, v5
    v_xor_b32 v8, v6, v5
    v_lshlrev_b32 v9, 4, v8
    v_add_u32 v{V_DOFF}, v7, v9
    v_xor_b32 v9, 64, v9
    v_add_u32 v{V_DOFF+1}, v7, v9
    v_xor_b32 v9, 0xc0, v9
    v_add_u32 v{V_DOFF+2}, v7, v9
    v_xor_b32 v9, 64, v9
    v_add_u32 v{V_DOFF+3 if not OPT.get("trace") else V_T2}, v7, v9
    s_cmp_eq_u32 s{S_QT}, 0
    s_cbranch_scc1 L_voff_done
    v_lshlrev_b32 v8, 2, v5
    v_xor_b32 v8, v8, v6
    v_lshlrev_b32 v8, 4, v8
    v_add_u32 v{V_DOFF}, v7, v8
    L_voff_done:
    """)
    a(f"""
    s_and_b32 s3, s{S_B}, 3
    s_add_u32 s60, s3, 1
    s_lshl_b32 s3, s3, 3
    s_lshr_b32 s61, 0x3f557fff, s3
    s_and_b32 s61, s61, 0xff
    s_add_u32 s61, s61, 1
    s_lshr_b32 s62, 0x00ff7f55, s3
    s_and_b32 s62, s62, 0xff
    s_add_u32 s62, s62, 1
    s_mov_b32 s{S_P2}, 0
    """)
    for i in range(8):
        if OPT.get("stag2", 1):
            emit_tile(a, 63, ("imm", i), 60, 61, 62, 4, S_HP, 64, 65, 79)
        else:
            R2 = OPT.get("rot2", 4)
            a(f"s_add_u32 s63, s{S_HP}, {i}")
            a(f"s_and_b32 s63, s63, {R2 - 1}")
            a(f"s_or_b32 s63, s63, {i & ~(R2 - 1)}")
            if OPT.get("kvoff"):
                a(f"s_add_u32 s63, s63, s{S_B}")
                a(f"s_and_b32 s63, s63, 7")
        a(f"s_lshl_b32 s63, s63, {4*i}")
        a(f"s_or_b32 s{S_P2}, s{S_P2}, s63")
    a.label("L_p1_ld_loop")
    a("s_waitcnt vmcnt(5)")
    trace(a, 120, idx_sreg=S_CNT)
    if OPT.get("lt") == 7:
        for k, cnt in enumerate((2, 3, 4, 9, 10, 11, 15)):
            a(f"s_cmp_eq_u32 s{S_CNT}, {cnt}")
            a(f"s_cbranch_scc0 L_lt7_{k}")
            a(f"s_memtime s[{86+2*k}:{87+2*k}]")
            a.label(f"L_lt7_{k}")
    a("s_barrier")
    if OPT.get("trace"): a(f"s_add_u32 s94, s{S_CNT}, 16")
    trace(a, 120, idx_sreg=94)
    issue_tile()
    if OPT.get("trace"): a(f"s_add_u32 s94, s{S_CNT}, 32")
    trace(a, 120, idx_sreg=94)
    a(f"""
    s_add_u32 s{S_SLOT}, s{S_SLOT}, {AREA}
    s_cmp_eq_u32 s{S_SLOT}, {3*AREA}
    s_cselect_b32 s{S_SLOT}, 0, s{S_SLOT}
    s_add_u32 s{S_CNT}, s{S_CNT}, 1
    s_cmp_lt_u32 s{S_CNT}, 16
    s_cbranch_scc1 L_p1_ld_loop
    """)
    def tile_soff(step, dst):
        a(f"""
        s_bfe_u32 s{dst}, s{S_P2}, {(4 << 16) | (4*step)}
        s_lshl_b32 s{dst}, s{dst}, 13
        s_add_u32 s{dst}, s{dst}, s{S_KVB}
        """)
    def dma8(step, lds_off, voff_fn, srdb):
        ntk = "nt " if (OPT.get("nt_kv") or (OPT.get("ntf_kv") and step % OPT.get("rot2", 4) == 0)) else ""
        tile_soff(step, 76)
        a(f"s_mul_i32 s77, s{S_KQ}, {AREA}")
        a(f"s_add_u32 m0, s77, {lds_off}")
        for q in range(8):
            if q == 4:
                a(f"s_add_u32 m0, s77, {lds_off + 4096}")
                a(f"s_add_u32 s76, s76, 4096")
            a(f"buffer_load_dwordx4 v{voff_fn(q)}, s[{srdb}:{srdb+3}], s76 offen offset:{(q & 3) * 1024} {ntk}lds")
    def issue_k(step):
        if OPT.get("trace"):
            a(f"v_xor_b32 v{V_T2}, 64, v{V_DOFF+2}")
            dma8(step, (step % 3) * 8192, lambda q: (V_DOFF + (q & 3)) if (q & 3) != 3 else V_T2, 16)
        else:
            dma8(step, (step % 3) * 8192, lambda q: V_DOFF + (q & 3), 16)
    def issue_v(step): dma8(step, 24576 + (step % 2) * 8192, lambda q: V_DOFF, 20)
    def call_early_if(kq):
        lab = a.newlabel("L_ne")
        a(f"s_cmp_eq_u32 s{S_KQ}, {kq}")
        a(f"s_cbranch_scc0 {lab}")
        a(f"s_call_b64 s[{S_RET}:{S_RET+1}], L_early")
        a.label(lab)
    a("s_waitcnt vmcnt(5)")
    call_early_if(3)
    a("s_barrier")
    call_early_if(1)
    a(f"""
    s_and_b32 s3, s{S_KQ}, 1
    s_cmp_eq_u32 s3, 1
    s_cbranch_scc1 L_w15_early
    s_waitcnt vmcnt(0)
    s_branch L_w15_done
    L_w15_early:
    s_cmp_eq_u32 s{S_QT}, 0
    s_cbranch_scc1 L_w15_k
    s_waitcnt vmcnt(8)
    s_branch L_w15_done
    L_w15_k:
    s_waitcnt vmcnt(16)
    L_w15_done:
    """)
    a("s_barrier")
    call_early_if(2)
    a("s_barrier")
    call_early_if(0)
    a("s_branch L_p1_join")
    a.label("L_early")
    a(f"s_cmp_eq_u32 s{S_QT}, 0")
    a("s_cbranch_scc0 L_early_v")
    issue_k(0)
    issue_k(1)
    a(f"s_setpc_b64 s[{S_RET}:{S_RET+1}]")
    a.label("L_early_v")
    issue_v(0)
    a(f"s_setpc_b64 s[{S_RET}:{S_RET+1}]")

    a.label("L_p1_compute")
    P_ACC, P_A, P_B, P_WA, P_XA = 0, 48, 80, 104, 108
    a(f"""
    v_lshrrev_b32 v110, 4, v{L}
    v_and_b32 v111, 15, v{L}
    v_lshrrev_b32 v112, 2, v111
    v_and_b32 v113, 3, v111
    v_lshlrev_b32 v114, 3, v110
    v_add_u32 v114, v114, v112
    v_lshlrev_b32 v114, 9, v114
    v_lshlrev_b32 v113, 3, v113
    v_add_u32 v114, v114, v113
    v_and_b32 v115, 1, v110
    v_lshlrev_b32 v115, 2, v115
    v_or_b32 v115, v115, v112
    s_lshl_b32 s{S_T0}, s{S_KQ}, 2
    """)
    for dt in range(4):
        a(f"s_add_u32 s{S_T1}, s{S_T0}, {dt}")
        a(f"v_xor_b32 v116, s{S_T1}, v115")
        a(f"v_lshlrev_b32 v116, 5, v116")
        a(f"v_add_u32 v{P_WA+dt}, v114, v116")
    a(f"""
    v_lshrrev_b32 v112, 1, v111
    v_xor_b32 v112, v112, v110
    v_lshlrev_b32 v112, 4, v112
    v_lshlrev_b32 v113, 7, v111
    v_add_u32 v112, v112, v113
    v_add_u32 v{P_XA}, 32768, v112
    v_xor_b32 v{P_XA+1}, 64, v{P_XA}
    """)
    for i in range(48):
        a(f"v_mov_b32 v{P_ACC+i}, 0")
    for i in range(4):
        a(f"v_mov_b32 v{V_DOFF+i}, 0")
    a(f"s_waitcnt lgkmcnt(0)")
    srd(a, 24, 72, 72, 1 << 28, sel=False)
    a(f"s_cmp_eq_u32 s{S_BLK}, 0")
    srd(a, 16, 50, 60, 8*4*1024*128*2)
    srd(a, 20, 52, 62, 8*4*1024*128*2)
    if OPT.get("b01", 1) and OPT.get("xpf_late"): a("s_barrier")
    if OPT.get("xpf", 1):
        a(f"s_cmp_eq_u32 s{S_BLK}, 0")
        srd(a, 8, 48, 58, 8*48*1024*2)
        a(f"""
        s_cmp_eq_u32 s{S_KQ}, 3
        s_cbranch_scc1 L_noxpf
        s_mul_i32 s3, s{S_HP}, 24576
        s_add_u32 s3, s3, s{S_XB}
        s_lshl_b32 s76, s{S_KQ}, 13
        s_add_u32 s3, s3, s76
        v_lshlrev_b32 v126, 7, v{L}
        buffer_load_dword v128, v126, s[8:11], s3 offen
        L_noxpf:
        """)
    if OPT.get("b01", 1) and not OPT.get("xpf_late"): a("s_barrier")
    group_ids()
    a(f"s_cmp_eq_u32 s{S_W}, 8")
    a("s_cbranch_scc0 L_noclr")
    a(f"""
    s_mov_b32 s16, s70
    s_mov_b32 s17, s71
    s_mov_b32 s18, 256
    s_mov_b32 s19, 0x00020000
    s_lshl_b32 s3, s{S_G1}, 7
    s_lshl_b32 s76, s{S_NT8}, 2
    s_add_u32 s3, s3, s76
    s_add_u32 s3, s3, {FLAG_OFF}
    s_lshl_b32 s76, s{S_G2}, 7
    s_lshl_b32 s77, s{S_G}, 2
    s_add_u32 s76, s76, s77
    s_add_u32 s76, s76, {FLAG_OFF + 8192}
    v_mov_b32 v126, 0
    v_mov_b32 v127, 1
    s_mov_b64 exec, 1
    buffer_store_dword v126, v126, s[24:27], s3 offen sc1
    buffer_store_dword v126, v126, s[24:27], s76 offen sc1
    s_waitcnt vmcnt(0)
    s_and_b32 s3, s2, 15
    s_lshl_b32 s3, s3, 2
    s_add_u32 s3, s3, 128
    buffer_atomic_add v127, v126, s[16:19], s3 offen sc1
    s_mov_b64 exec, -1
    L_noclr:
    """)
    a(f"s_mov_b32 s{S_KVB}, 0")
    a(f"s_mov_b32 s{S_CNT}, 0")
    a(f"s_mov_b32 s{S_SLOT}, 0")
    def rd_ks(ks):
        if OPT.get("nocomp"): return
        for dt in range(4):
            for hf in range(2):
                r = P_A + ks*16 + dt*4 + hf*2
                a(f"ds_read_b64_tr_b16 v[{r}:{r+1}], v{P_WA+dt} offset:{ks*16384 + hf*2048}")
    def rd_x(ks):
        if OPT.get("nocomp"): return
        for st in range(3):
            r = P_B + ks*12 + st*4
            a(f"ds_read_b128 v[{r}:{r+3}], v{P_XA+ks} offset:{st*2048}")
    def mm(ks):
        if OPT.get("nocomp"): return
        for dt in range(4):
            for st in range(3):
                ac = P_ACC + (dt*3+st)*4
                ra = P_A + ks*16 + dt*4; rb = P_B + ks*12 + st*4
                a(f"v_mfma_f32_16x16x32_bf16 v[{ac}:{ac+3}], v[{ra}:{ra+3}], v[{rb}:{rb+3}], v[{ac}:{ac+3}]")
    a.label("L_p1_c_loop")
    trace(a, 120, idx_sreg=S_CNT)
    a("s_barrier")
    if OPT.get("trace"): a(f"s_add_u32 s94, s{S_CNT}, 16")
    trace(a, 120, idx_sreg=94)
    rd_x(0); rd_ks(0)
    a(f"s_cmp_eq_u32 s{S_CNT}, 0")
    a("s_cbranch_scc1 L_p1_c_skip")
    mm(1)
    a.label("L_p1_c_skip")
    rd_x(1); rd_ks(1)
    a("s_waitcnt lgkmcnt(11)")
    mm(0)
    a(f"""
    s_add_u32 s{S_SLOT}, s{S_SLOT}, 1
    s_cmp_eq_u32 s{S_SLOT}, 3
    s_cselect_b32 s{S_SLOT}, 0, s{S_SLOT}
    s_mov_b32 s3, {AREA}
    s_cselect_b32 s3, {(-2*AREA) & 0xffffffff}, s3
    """)
    for r in list(range(P_WA, P_WA+4)) + [P_XA, P_XA+1]:
        a(f"v_add_u32 v{r}, s3, v{r}")
    a(f"""
    s_add_u32 s{S_CNT}, s{S_CNT}, 1
    s_cmp_lt_u32 s{S_CNT}, 16
    s_waitcnt lgkmcnt(0)
    s_cbranch_scc1 L_p1_c_loop
    s_barrier
    """)
    mm(1)
    a(f"""
    s_mov_b32 s{S_C}, {f2u(C_SCALE)}
    v_lshrrev_b32 v110, 4, v{L}
    v_and_b32 v111, 15, v{L}
    v_lshlrev_b32 v112, 8, v111
    v_and_b32 v113, 1, v110
    v_lshlrev_b32 v113, 3, v113
    v_add_u32 v112, v112, v113
    v_lshrrev_b32 v113, 1, v110
    s_and_b32 s{S_T0}, s{S_KQ}, 1
    s_lshl_b32 s{S_T0}, s{S_T0}, 3
    v_add_u32 v113, s{S_T0}, v113
    s_lshr_b32 s{S_T1}, s{S_KQ}, 1
    s_cmp_eq_u32 s{S_T1}, 0
    s_mov_b32 s76, {2*AREA+16384+4096}
    s_mov_b32 s77, {3*AREA+16384}
    s_mov_b32 s78, {3*AREA+16384+4096}
    s_cselect_b32 s76, {1*AREA+16384}, s76
    s_cselect_b32 s77, {1*AREA+16384+4096}, s77
    s_cselect_b32 s78, {2*AREA+16384}, s78
    """)
    for dt in range(4):
        a(f"v_add_u32 v114, {2*dt}, v113")
        a(f"v_xor_b32 v114, v114, v111")
        a(f"v_lshlrev_b32 v114, 4, v114")
        a(f"v_add_u32 v114, v114, v112")
        for st in range(3):
            ac = P_ACC + (dt*3+st)*4
            t = 116 + 2*(st & 1)
            for e in range(4): a(f"v_mul_f32 v{ac+e}, s{S_C}, v{ac+e}")
            a(f"v_cvt_pk_bf16_f32 v{t}, v{ac}, v{ac+1}")
            a(f"v_cvt_pk_bf16_f32 v{t+1}, v{ac+2}, v{ac+3}")
            a(f"v_add_u32 v{123+st}, s{76+st}, v114")
            a(f"ds_write_b64 v{123+st}, v[{t}:{t+1}]")
    a("s_waitcnt lgkmcnt(0)")

    a.label("L_p1_join")
    trace(a, 120, idx_imm=60)
    if OPT.get("lt") == 7: a("s_memtime s[100:101]")
    a("s_barrier")
    trace(a, 120, idx_imm=61)
    trace_dump(a, 120, 121, S_W, V_LANE, 0)
    if OPT.get("trace"): a("v_mov_b32 v167, 0")
    stamp(a, 1)
    a(f"""
    s_mov_b32 s{S_TC}, {f2u(T_HI)}
    s_mov_b32 s{S_NC}, {f2u(-T_LO)}
    s_mov_b64 s[{S_SLOW}:{S_SLOW+1}], 0
    v_and_b32 v{V_T0}, 31, v{L}
    v_lshlrev_b32 v{V_T0}, 8, v{V_T0}
    v_lshrrev_b32 v{V_T1}, 5, v{L}
    v_and_b32 v{V_T2}, 15, v{L}
    v_xor_b32 v{V_T1}, v{V_T1}, v{V_T2}
    v_lshlrev_b32 v{V_T1}, 4, v{V_T1}
    v_add_u32 v{V_T0}, v{V_T0}, v{V_T1}
    s_add_u32 s3, s{S_QT}, 1
    s_mul_i32 s3, s3, {AREA}
    s_add_u32 s3, s3, 16384
    s_mul_i32 s76, s{S_KQ}, {AREA}
    """)
    for st8 in range(8):
        a(f"v_xor_b32 v{V_T1}, {st8 << 5}, v{V_T0}")
        a(f"v_add_u32 v{V_F+st8}, s3, v{V_T1}")
        a(f"v_add_u32 v{V_KA+st8}, s76, v{V_T1}")
        a(f"ds_read_b128 v[{V_Q+4*st8}:{V_Q+4*st8+3}], v{V_F+st8}")
    a(f"""
    v_lshrrev_b32 v{V_T0}, 5, v{L}
    v_lshlrev_b32 v{V_T0}, 2, v{V_T0}
    v_bfe_u32 v{V_T1}, v{L}, 2, 2
    v_add_u32 v{V_T0}, v{V_T0}, v{V_T1}
    v_lshlrev_b32 v{V_T0}, 8, v{V_T0}
    v_bfe_u32 v{V_T2}, v{L}, 4, 1
    v_lshlrev_b32 v{V_T2}, 5, v{V_T2}
    v_add_u32 v{V_T0}, v{V_T0}, v{V_T2}
    v_and_b32 v{V_T2}, 3, v{L}
    v_lshlrev_b32 v{V_T2}, 3, v{V_T2}
    v_add_u32 v{V_T0}, v{V_T0}, v{V_T2}
    s_add_u32 s76, s76, 24576
    v_add_u32 v{V_T0}, s76, v{V_T0}
    """)
    for j in range(4):
        a(f"s_add_u32 s3, s{S_KQ}, {j}")
        a(f"s_and_b32 s3, s3, 3")
        a(f"v_xor_b32 v{V_T2}, s3, v{V_T1}")
        a(f"v_lshlrev_b32 v{V_T2}, 6, v{V_T2}")
        a(f"v_add_u32 v{V_VA+j}, v{V_T0}, v{V_T2}")
    for i in range(64):
        a(f"v_mov_b32 v{V_O+i}, 0")
    a(f"""
    v_mov_b32 v{V_M}, 0
    v_mov_b32 v{V_THR}, s{S_TC}
    v_mov_b32 v{V_L}, 0
    s_waitcnt lgkmcnt(0)
    """)

    S = V_S
    def tr2(idx):
        lt = OPT.get("lt")
        if lt and idx < 36:
            i, k = idx // 4, idx % 4
            if (lt == 1 and k == 1) or (lt == 2 and k == 0) or (lt == 3 and k == 2):
                a(f"s_memtime s[{80+2*i}:{81+2*i}]")
        if lt and lt != 7 and idx == 41: a("s_memtime s[98:99]")
        if lt and lt != 7 and idx == 40: a("s_memtime s[100:101]")
        if not OPT.get("trace"): return
        trace(a, 120 if False else 167, idx_imm=idx)
    def rd_k(step, st8):
        a(f"ds_read_b128 v[{V_F+4*st8}:{V_F+4*st8+3}], v{V_KA+st8} offset:{(step % 3) * 8192}")
    def rd_v(step, f):
        t, j = f // 4, f % 4
        for hf in range(2):
            r = V_F + 4*f + 2*hf
            a(f"ds_read_b64_tr_b16 v[{r}:{r+1}], v{V_VA+j} offset:{(step % 2) * 8192 + (16*t + 8*hf)*256}")
    def qk(step, pending_k):
        for st8 in range(8):
            a(f"s_waitcnt lgkmcnt({7 - st8 if st8 < 2 else min(15, 7 - st8 + 2*(st8-1))})")
            c = "0" if st8 == 0 else f"v[{S}:{S+15}]"
            a(f"v_mfma_f32_32x32x16_bf16 v[{S}:{S+15}], v[{V_F+4*st8}:{V_F+4*st8+3}], v[{V_Q+4*st8}:{V_Q+4*st8+3}], {c}")
            if st8 >= 1: rd_v(step, st8 - 1)
        rd_v(step, 7)
    def softmax_half(half):
        for i in range(8*half, 8*half+8):
            a(f"v_exp_f32 v{S+i}, v{S+i}")
        for i in range(8*half, 8*half+8):
            a(f"v_add_f32 v{V_L}, v{V_L}, v{S+i}")
        for j in range(4*half, 4*half+4):
            a(f"v_cvt_pk_bf16_f32 v{S+j}, v{S+2*j}, v{S+2*j+1}")
    def softmax_max(lab, first=False):
        a(f"v_max3_f32 v{V_T0}, v{S}, v{S+1}, v{S+2}")
        a(f"v_max3_f32 v{V_T1}, v{S+3}, v{S+4}, v{S+5}")
        a(f"v_max3_f32 v{V_T0}, v{V_T0}, v{S+6}, v{S+7}")
        a(f"v_max3_f32 v{V_T1}, v{V_T1}, v{S+8}, v{S+9}")
        a(f"v_max3_f32 v{V_T0}, v{V_T0}, v{S+10}, v{S+11}")
        a(f"v_max3_f32 v{V_T1}, v{V_T1}, v{S+12}, v{S+13}")
        a(f"v_max3_f32 v{V_T0}, v{V_T0}, v{S+14}, v{S+15}")
        a(f"v_max_f32 v{V_T0}, v{V_T0}, v{V_T1}")
        a(f"v_mov_b32 v{V_T1}, v{V_T0}")
        a(f"v_permlane32_swap_b32 v{V_T0}, v{V_T1}")
        a(f"v_max_f32 v{V_T0}, v{V_T0}, v{V_T1}")
        a(f"v_cmp_gt_f32 vcc, v{V_T0}, v{V_THR}")
        if first:
            a(f"v_cmp_gt_f32 s[52:53], s{S_NC}, v{V_T0}")
            a(f"s_or_b64 vcc, vcc, s[52:53]")
        a(f"s_or_b64 s[52:53], vcc, s[{S_SLOW}:{S_SLOW+1}]")
        a(f"s_cbranch_scc0 {lab}")
        a(f"s_call_b64 s[{S_RET}:{S_RET+1}], L_slow{'_first' if first else ''}")
        a.label(lab)
    def pv_mfma(f):
        t, j = f // 4, f % 4
        o = V_O + 16*j
        a(f"v_mfma_f32_32x32x16_bf16 v[{o}:{o+15}], v[{V_F+4*f}:{V_F+4*f+3}], v[{S+4*t}:{S+4*t+3}], v[{o}:{o+15}]")
    def pv_then_k(next_step):
        for f in range(8):
            pv_mfma(f)
            if next_step is not None and f >= 1: rd_k(next_step, f - 1)
        if next_step is not None: rd_k(next_step, 7)

    PR = OPT.get("prio", 1)
    def prio(p):
        if PR: a(f"s_setprio {p}")
    a(f"s_cmp_eq_u32 s{S_QT}, 1")
    a("s_cbranch_scc1 L_typeA")
    a(f"s_cmp_eq_u32 s{S_QT}, 2")
    a("s_cbranch_scc1 L_typeC")
    for i in range(8):
        a(f"s_waitcnt vmcnt({8 if i < 7 else 0})")
        tr2(4*i)
        a("s_barrier")
        tr2(4*i+1)
        prio(1)
        if i == 0:
            for st8 in range(8): rd_k(0, st8)
        else:
            pv_then_k(i)
        if i + 2 < 8: issue_k(i + 2)
        qk(i, 0)
        tr2(4*i+2)
        prio(2)
        softmax_max(f"L_D{i}", first=(i == 0))
        softmax_half(0); softmax_half(1)
        a("s_waitcnt lgkmcnt(0)")
    tr2(32)
    a("s_barrier")
    pv_then_k(None)
    a("s_branch L_merge")
    a.label("L_typeA")
    for i in range(8):
        a(f"s_waitcnt vmcnt(0)")
        tr2(4*i)
        a("s_barrier")
        tr2(4*i+1)
        prio(3)
        for st8 in range(8): rd_k(i, st8)
        if i + 1 < 8: issue_v(i + 1)
        qk(i, 0)
        tr2(4*i+2)
        prio(2)
        softmax_max(f"L_A{i}", first=(i == 0))
        softmax_half(0); softmax_half(1)
        prio(0)
        for f in range(8):
            a(f"s_waitcnt lgkmcnt({min(15, 2*(7-f))})")
            pv_mfma(f)
    tr2(32)
    a("s_barrier")
    a("s_branch L_merge")
    a.label("L_typeC")
    a(f"s_cmp_eq_u32 s{S_BLK}, 0")
    srd(a, 12, 56, 66, 4096*1024*2)
    a(f"""
    v_lshrrev_b32 v{V_DOFF+1}, 1, v{L}
    v_lshlrev_b32 v{V_DOFF+1}, 11, v{V_DOFF+1}
    v_and_b32 v{V_DOFF+2}, 1, v{L}
    v_lshlrev_b32 v{V_DOFF+2}, 7, v{V_DOFF+2}
    v_add_u32 v{V_DOFF+1}, v{V_DOFF+1}, v{V_DOFF+2}
    s_lshl_b32 s45, s{S_G}, 10
    s_lshl_b32 s3, s{S_BP}, 8
    s_add_u32 s45, s45, s3
    s_lshl_b32 s3, s{S_KQ}, 6
    s_add_u32 s45, s45, s3
    s_lshl_b32 s45, s45, 11
    s_lshl_b32 s3, s{S_NT8}, 8
    s_add_u32 s45, s45, s3
    """)
    PF_AT = {}
    PF_AT.setdefault(OPT.get("pf0", 7), []).append(0)
    PF_AT.setdefault(OPT.get("pf1", 7), []).append(1)
    for i in range(9):
        tr2(4*i)
        a("s_barrier")
        tr2(4*i+1)
        prio(2)
        if i in PF_AT and OPT.get("wopf", 1) and OPT.get("pf_early"):
            for e in PF_AT[i]:
                a(f"s_add_u32 s3, s45, {e * 32 * 2048}")
                a(f"buffer_load_dword v{V_DOFF+2}, v{V_DOFF+1}, s[12:15], s3 offen {NTWO()}")
        if i == 0:
            for st8 in range(8): rd_k(0, st8)
        else:
            softmax_max(f"L_C{i}", first=(i == 1))
            softmax_half(0); softmax_half(1)
            if i in PF_AT and OPT.get("wopf", 1) and not OPT.get("pf_early"):
                for e in PF_AT[i]:
                    a(f"s_add_u32 s3, s45, {e * 32 * 2048}")
                    a(f"buffer_load_dword v{V_DOFF+2}, v{V_DOFF+1}, s[12:15], s3 offen {NTWO()}")
            pv_then_k(i if i < 8 else None)
        if i < 8:
            prio(1)
            qk(i, 0)
            a("s_waitcnt lgkmcnt(0)")
    def spin(label, load_lines, cmp_val, vreg):
        a(f"s_mov_b32 s{S_CNT}, 0")
        a.label(label)
        a(load_lines)
        a("s_waitcnt vmcnt(0)")
        a(f"v_cmp_ne_u32 vcc, s3, v{vreg}" if cmp_val is None else f"v_cmp_ne_u32 vcc, {cmp_val}, v{vreg}")
        a(f"s_cbranch_vccz {label}_ok")
        a(f"s_add_u32 s{S_CNT}, s{S_CNT}, 1")
        a(f"s_cmp_lt_u32 s{S_CNT}, {SPIN_MAX}")
        a("s_sleep 1")
        a(f"s_cbranch_scc1 {label}")
        a.label(f"{label}_ok")

    def gen_tail():
        T_ACC, T_FR, T_AA, T_BA, T_DOFF, T_X = 0, 48, 112, 113, 114, 116
        S_WOB, S_OB, S_ST = 45, 46, 47
        def ts(i):
            if OPT.get("lt") == 5: a(f"s_memtime s[{80+2*i}:{81+2*i}]")
        ts(0)
        a(f"s_cmp_eq_u32 s{S_BLK}, 0")
        srd(a, 12, 56, 66, 4096*1024*2)
        srd(a, 8, 68, 68, 8*48*2048*2, sel=False)
        a(f"""
        s_mov_b32 s16, s70
        s_mov_b32 s17, s71
        s_mov_b32 s18, 256
        s_mov_b32 s19, 0x00020000
        s_lshl_b32 s{S_WOB}, s{S_G}, 21
        s_lshl_b32 s3, s{S_NT8}, 8
        s_add_u32 s{S_WOB}, s{S_WOB}, s3
        s_mul_i32 s{S_OB}, s{S_G1}, {192*1024}
        s_add_u32 s{S_OB}, s{S_OB}, {O_OFF}
        s_cmp_ge_u32 s{S_W}, 8
        s_cbranch_scc1 L_t_compute
        """)
        a(f"""
        v_lshrrev_b32 v{T_X}, 4, v{L}
        v_and_b32 v{T_X+1}, 15, v{L}
        v_lshlrev_b32 v{T_X+2}, 2, v{T_X}
        v_xor_b32 v{T_X+2}, v{T_X+2}, v{T_X+1}
        v_lshlrev_b32 v{T_X+2}, 4, v{T_X+2}
        v_lshlrev_b32 v{T_X}, 11, v{T_X}
        v_add_u32 v{T_DOFF}, v{T_X}, v{T_X+2}
        v_lshlrev_b32 v{T_DOFF+1}, 4, v{L}
        s_lshl_b32 s{S_T0}, s{S_W}, 15
        s_add_u32 s{S_WOB}, s{S_WOB}, s{S_T0}
        s_lshl_b32 s{S_T2}, s{S_W}, 12
        s_mul_i32 s{S_T3}, s{S_W}, 3072
        s_add_u32 s{S_OB}, s{S_OB}, s{S_T3}
        """)
        def issue_wo(st_sreg_or_imm, slot):
            if isinstance(st_sreg_or_imm, int):
                a(f"s_add_u32 s3, s{S_NT8}, {st_sreg_or_imm}")
            a(f"s_and_b32 s3, s3, 7")
            a(f"s_lshl_b32 s76, s3, 18")
            a(f"s_add_u32 s76, s76, s{S_WOB}")
            a(f"s_add_u32 s77, s{S_T2}, {slot*32768}")
            for q in range(4):
                a(f"s_add_u32 m0, s77, {q*1024}")
                if q: a(f"s_add_u32 s76, s76, {4*2048}")
                a(f"buffer_load_dwordx4 v{T_DOFF}, s[12:15], s76 offen lds")
        def issue_o(st, slot):
            a(f"s_add_u32 s3, s{S_NT8}, {st}")
            a(f"s_and_b32 s3, s3, 7")
            a(f"s_mul_i32 s76, s3, 24576")
            a(f"s_add_u32 s76, s76, s{S_OB}")
            a(f"s_add_u32 m0, s{S_T3}, {98304 + slot*24576}")
            for q in range(3):
                a(f"buffer_load_dwordx4 v{T_DOFF+1}, s[24:27], s76 offen offset:{q*1024} {OSC()}lds")
        a("s_waitcnt vmcnt(0)")
        ts(1)
        a("s_barrier")
        a("s_sleep 1")
        for st in range(3): issue_wo(st, st)
        a("s_barrier")
        ts(2)
        issue_o(0, 0); issue_o(1, 1)
        for st in range(8):
            n = 3 if st == 0 else (0 if st in (1, 7) else 4)
            a(f"s_waitcnt vmcnt({n})")
            if OPT.get("lt") == 6: a(f"s_memtime s[{80+2*st}:{81+2*st}]")
            a("s_barrier")
            if st >= 1:
                if st + 1 <= 7: issue_o(st + 1, (st + 1) % 2)
                if st + 2 <= 7: issue_wo(st + 2, (st + 2) % 3)
        ts(3)
        a("s_branch L_t_join")
        a.label("L_t_compute")
        a(f"""
        v_lshrrev_b32 v{T_X}, 5, v{L}
        v_lshlrev_b32 v{T_X}, 3, v{T_X}
        v_bfe_u32 v{T_X+1}, v{L}, 2, 2
        v_add_u32 v{T_X}, v{T_X}, v{T_X+1}
        v_lshlrev_b32 v{T_X}, 8, v{T_X}
        v_bfe_u32 v{T_X+2}, v{L}, 4, 1
        v_lshlrev_b32 v{T_X+2}, 5, v{T_X+2}
        v_add_u32 v{T_X}, v{T_X}, v{T_X+2}
        v_and_b32 v{T_X+2}, 3, v{L}
        v_lshlrev_b32 v{T_X+2}, 3, v{T_X+2}
        v_add_u32 v{T_X}, v{T_X}, v{T_X+2}
        v_xor_b32 v{T_X+2}, s{S_KQ}, v{T_X+1}
        v_lshlrev_b32 v{T_X+2}, 6, v{T_X+2}
        v_add_u32 v{T_AA}, v{T_X}, v{T_X+2}
        v_lshlrev_b32 v{T_BA}, 4, v{L}
        v_add_u32 v{T_BA}, 98304, v{T_BA}
        """)
        for i in range(48):
            a(f"v_mov_b32 v{T_ACC+i}, 0")
        a("s_waitcnt vmcnt(0)")
        ts(1)
        a("s_barrier")
        a(f"s_cmp_eq_u32 s{S_W}, 8")
        a("s_cbranch_scc0 L_t_nopoll1")
        a("s_setprio 3")
        a(f"""
        s_lshl_b32 s3, s{S_G1}, 7
        s_add_u32 s76, s3, {FLAG_OFF}
        s_lshl_b32 s3, s{S_NT8}, 2
        s_add_u32 s77, s76, s3
        v_mov_b32 v{T_X}, 0
        v_mov_b32 v{T_X+1}, {TOK_A}
        s_mov_b64 exec, 1
        buffer_store_dword v{T_X+1}, v{T_X}, s[24:27], s77 offen sc1
        s_mov_b64 exec, -1
        v_and_b32 v{T_X}, 15, v{L}
        v_lshlrev_b32 v{T_X}, 2, v{T_X}
        v_and_b32 v{T_X+2}, 7, v{L}
        v_lshlrev_b32 v{T_X+2}, 2, v{T_X+2}
        """)
        spin("L_spin_dbg", f"buffer_load_dword v{T_X+1}, v{T_X}, s[16:19], 0 offen offset:128 sc1", 16, T_X+1)
        a(f"s_mov_b32 s3, {TOK_A}")
        spin("L_spin_a", f"buffer_load_dword v{T_X+1}, v{T_X+2}, s[24:27], s76 offen sc1", None, T_X+1)
        a("s_setprio 0")
        a.label("L_t_nopoll1")
        a("s_barrier")
        ts(2)
        def rd_list(j):
            b = T_FR + 16*(j % 4)
            out = []
            for hf in range(2):
                out.append(f"ds_read_b64_tr_b16 v[{b+2*hf}:{b+2*hf+1}], v{T_AA} offset:{j*4096 + hf*1024}")
            for m in range(3):
                out.append(f"ds_read_b128 v[{b+4+4*m}:{b+7+4*m}], v{T_BA} offset:{(j*3+m)*1024}")
            return out
        def mm_list(j):
            b = T_FR + 16*(j % 4)
            return [f"v_mfma_f32_32x32x16_bf16 v[{T_ACC+16*m}:{T_ACC+16*m+15}], v[{b}:{b+3}], v[{b+4+4*m}:{b+7+4*m}], v[{T_ACC+16*m}:{T_ACC+16*m+15}]" for m in range(3)]
        def mm3(j):
            for x in mm_list(j): a(x)
        def weave(mm, rd):
            groups = [rd[0:3], rd[3:4], rd[4:5]]
            for x, g in zip(mm, groups):
                a(x)
                for y in g: a(y)
        a(f"s_mov_b32 s{S_ST}, 0")
        a(f"s_mov_b32 s{S_SLOT}, 0")
        a.label("L_t_loop")
        if OPT.get("lt") == 6:
            for st in range(8):
                a(f"s_cmp_eq_u32 s{S_ST}, {st}")
                a(f"s_cbranch_scc0 L_lt6_{st}")
                a(f"s_memtime s[{80+2*st}:{81+2*st}]")
                a.label(f"L_lt6_{st}")
        a("s_barrier")
        a(f"s_cmp_eq_u32 s{S_ST}, 0")
        a("s_cbranch_scc0 L_t_left")
        for y in rd_list(0) + rd_list(1): a(y)
        a("s_branch L_t_skip")
        a.label("L_t_left")
        weave(mm_list(6), rd_list(0))
        weave(mm_list(7), rd_list(1))
        a.label("L_t_skip")
        for j in range(6):
            a("s_waitcnt lgkmcnt(5)")
            weave(mm_list(j), rd_list(j + 2))
        a(f"""
        s_add_u32 s{S_SLOT}, s{S_SLOT}, 1
        s_cmp_eq_u32 s{S_SLOT}, 3
        s_cselect_b32 s{S_SLOT}, 0, s{S_SLOT}
        s_mov_b32 s3, 32768
        s_cselect_b32 s3, {(-65536) & 0xffffffff}, s3
        v_add_u32 v{T_AA}, s3, v{T_AA}
        s_bitcmp1_b32 s{S_ST}, 0
        s_mov_b32 s3, 24576
        s_cselect_b32 s3, {(-24576) & 0xffffffff}, s3
        v_add_u32 v{T_BA}, s3, v{T_BA}
        s_add_u32 s{S_ST}, s{S_ST}, 1
        s_cmp_lt_u32 s{S_ST}, 8
        s_waitcnt lgkmcnt(0)
        s_cbranch_scc1 L_t_loop
        """)
        mm3(6); mm3(7)
        ts(3)
        a(f"""
        s_lshl_b32 s3, s{S_G2}, 2
        s_add_u32 s3, s3, s{S_KQ}
        s_lshl_b32 s3, s3, 2
        s_add_u32 s3, s3, s{S_G}
        s_mul_i32 s76, s3, 12288
        s_add_u32 s76, s76, {PART_OFF}
        v_lshlrev_b32 v{T_X}, 4, v{L}
        """)
        for m in range(3):
            for rq in range(4):
                r = T_ACC + 16*m + 4*rq
                a(f"buffer_store_dwordx4 v[{r}:{r+3}], v{T_X}, s[24:27], s76 offen offset:{rq*1024} sc1")
            if m < 2: a(f"s_add_u32 s76, s76, 4096")
        a("s_waitcnt vmcnt(0)")
        a.label("L_t_join")
        ts(4)
        a("s_barrier")
        a(f"s_cmp_eq_u32 s{S_W}, 8")
        a("s_cbranch_scc0 L_t_nopoll2")
        a(f"""
        s_lshl_b32 s3, s{S_G2}, 7
        s_add_u32 s76, s3, {FLAG_OFF + 8192}
        s_lshl_b32 s3, s{S_G}, 2
        s_add_u32 s77, s76, s3
        v_mov_b32 v{T_X}, 0
        v_mov_b32 v{T_X+1}, {TOK_B}
        s_mov_b64 exec, 1
        buffer_store_dword v{T_X+1}, v{T_X}, s[24:27], s77 offen sc1
        s_mov_b64 exec, -1
        v_and_b32 v{T_X+2}, 3, v{L}
        v_lshlrev_b32 v{T_X+2}, 2, v{T_X+2}
        s_mov_b32 s3, {TOK_B}
        """)
        spin("L_spin_b", f"buffer_load_dword v{T_X+1}, v{T_X+2}, s[24:27], s76 offen sc1", None, T_X+1)
        a.label("L_t_nopoll2")
        a("s_barrier")
        ts(5)
        a(f"""
        s_lshl_b32 s3, s{S_G2}, 2
        s_add_u32 s3, s3, s{S_G}
        s_mul_i32 s76, s3, {4*12288}
        s_lshl_b32 s3, s{S_W}, 10
        s_add_u32 s76, s76, s3
        s_add_u32 s76, s76, {PART_OFF}
        v_lshlrev_b32 v{T_X}, 4, v{L}
        """)
        for src in range(4):
            a(f"buffer_load_dwordx4 v[{16+4*src}:{19+4*src}], v{T_X}, s[24:27], s76 offen sc1")
            if src < 3: a(f"s_add_u32 s76, s76, 12288")
        a(f"""
        s_mul_i32 s3, s{S_BP}, 96
        s_lshl_b32 s77, s{S_QT}, 5
        s_add_u32 s3, s3, s77
        s_lshl_b32 s3, s3, 12
        s_lshl_b32 s77, s{S_BLK}, 11
        s_add_u32 s3, s3, s77
        s_lshl_b32 s77, s{S_NT8}, 8
        s_add_u32 s3, s3, s77
        s_lshl_b32 s77, s{S_G}, 6
        s_add_u32 s3, s3, s77
        s_lshl_b32 s77, s{S_KQ}, 4
        s_add_u32 s3, s3, s77
        v_and_b32 v{T_X+1}, 31, v{L}
        v_lshlrev_b32 v{T_X+1}, 12, v{T_X+1}
        v_lshrrev_b32 v{T_X+2}, 5, v{L}
        v_lshlrev_b32 v{T_X+2}, 3, v{T_X+2}
        v_add_u32 v{T_X+1}, v{T_X+1}, v{T_X+2}
        s_waitcnt vmcnt(0)
        """)
        for i in range(4):
            a(f"v_add_f32 v{16+i}, v{16+i}, v{20+i}")
            a(f"v_add_f32 v{24+i}, v{24+i}, v{28+i}")
        for i in range(4):
            a(f"v_add_f32 v{16+i}, v{16+i}, v{24+i}")
        a("v_cvt_pk_bf16_f32 v20, v16, v17")
        a("v_cvt_pk_bf16_f32 v21, v18, v19")
        a(f"buffer_store_dwordx2 v[20:21], v{T_X+1}, s[8:11], s3 offen")
        ts(6)

    a.label("L_merge")
    prio(0)
    stamp(a, 2)
    tr2(40)
    F = V_F
    def mt(i):
        if OPT.get("lt") == 4: a(f"s_memtime s[{80+2*i}:{81+2*i}]")
    mt(0)
    a(f"""
    v_mov_b32 v{V_T0}, v{V_L}
    v_mov_b32 v{V_T1}, v{V_L}
    s_mul_i32 s76, s{S_KQ}, {AREA}
    v_lshlrev_b32 v{V_T2}, 4, v{L}
    v_permlane32_swap_b32 v{V_T0}, v{V_T1}
    s_mul_i32 s3, s{S_QT}, 12288
    s_add_u32 s77, s76, s3
    v_add_f32 v{V_L}, v{V_T0}, v{V_T1}
    v_add_u32 v{V_T1}, s77, v{V_T2}
    """)
    for j in range(1, 4):
        for rq in range(4):
            r = V_O + 16*j + 4*rq
            a(f"ds_write_b128 v{V_T1}, v[{r}:{r+3}] offset:{(j-1)*4096 + rq*1024}")
    mt(1)
    a(f"""
    v_and_b32 v{V_T0}, 31, v{L}
    v_lshlrev_b32 v{V_T0}, 3, v{V_T0}
    s_lshl_b32 s3, s{S_QT}, 8
    s_add_u32 s3, s3, 36864
    v_add_u32 v{V_T0}, s3, v{V_T0}
    v_add_u32 v{V_T1}, s76, v{V_T0}
    ds_write_b64 v{V_T1}, v[{V_M}:{V_L}]
    """)
    for j in range(1, 4):
        a(f"s_sub_u32 s3, s{S_KQ}, {j}")
        a(f"s_and_b32 s3, s3, 3")
        a(f"s_mul_i32 s76, s3, {AREA}")
        a(f"v_add_u32 v{V_Q+j}, s76, v{V_T0}")
        a(f"s_mul_i32 s3, s{S_QT}, 12288")
        a(f"s_add_u32 s76, s76, s3")
        a(f"v_add_u32 v{V_Q+4+j}, s76, v{V_T2}")
    A0, A1, A2, A3 = V_Q+8, V_Q+9, V_Q+10, V_Q+11
    a(f"""
    v_and_b32 v{A1}, 31, v{L}
    s_lshl_b32 s3, s{S_QT}, 5
    v_add_u32 v{A1}, s3, v{A1}
    v_cmp_le_u32 vcc, 48, v{A1}
    v_subrev_u32 v{A2}, 48, v{A1}
    v_mov_b32 v{A0}, 0
    v_mov_b32 v{A3}, {8*3072}
    v_cndmask_b32 v{A1}, v{A1}, v{A2}, vcc
    v_cndmask_b32 v{A0}, v{A0}, v{A3}, vcc
    s_and_b32 s3, s{S_B}, 1
    s_mul_i32 s3, s3, 48
    v_add_u32 v{A1}, s3, v{A1}
    v_lshrrev_b32 v{A2}, 5, v{A1}
    v_lshlrev_b32 v{A2}, 10, v{A2}
    v_add_u32 v{A0}, v{A0}, v{A2}
    v_and_b32 v{A1}, 31, v{A1}
    v_lshlrev_b32 v{A1}, 4, v{A1}
    v_add_u32 v{A0}, v{A0}, v{A1}
    v_lshrrev_b32 v{A1}, 5, v{L}
    v_lshlrev_b32 v{A1}, 3, v{A1}
    v_add_u32 v{A0}, v{A0}, v{A1}
    s_lshl_b32 s3, s{S_HP}, 4
    s_lshl_b32 s76, s{S_KQ}, 1
    s_add_u32 s3, s3, s76
    s_mul_i32 s3, s3, 3072
    s_mul_i32 s79, s{S_G1}, {192*1024}
    s_add_u32 s79, s79, s3
    s_add_u32 s79, s79, {O_OFF}
    """)
    mt(2)
    a("s_waitcnt lgkmcnt(0)")
    mt(3)
    a("s_barrier")
    mt(4)
    for j in range(1, 4):
        a(f"ds_read_b64 v[{F+2*j}:{F+2*j+1}], v{V_Q+j}")
    for j in range(1, 4):
        for rq in range(4):
            r = V_O + 16*j + 4*rq
            a(f"ds_read_b128 v[{r}:{r+3}], v{V_Q+4+j} offset:{(j-1)*4096 + rq*1024}")
    a("s_waitcnt lgkmcnt(12)")
    mt(5)
    a(f"""
    v_max3_f32 v{F+8}, v{V_M}, v{F+2}, v{F+4}
    v_max_f32 v{F+8}, v{F+8}, v{F+6}
    v_sub_f32 v{F+10}, v{V_M}, v{F+8}
    v_sub_f32 v{F+12}, v{F+2}, v{F+8}
    v_sub_f32 v{F+14}, v{F+4}, v{F+8}
    v_sub_f32 v{F+16}, v{F+6}, v{F+8}
    v_exp_f32 v{F+10}, v{F+10}
    v_exp_f32 v{F+12}, v{F+12}
    v_exp_f32 v{F+14}, v{F+14}
    v_exp_f32 v{F+16}, v{F+16}
    v_mul_f32 v{F+18}, v{F+10}, v{V_L}
    v_fma_f32 v{F+18}, v{F+12}, v{F+3}, v{F+18}
    v_fma_f32 v{F+18}, v{F+14}, v{F+5}, v{F+18}
    v_fma_f32 v{F+18}, v{F+16}, v{F+7}, v{F+18}
    v_rcp_f32 v{F+18}, v{F+18}
    v_mul_f32 v{F+10}, v{F+10}, v{F+18}
    v_mul_f32 v{F+12}, v{F+12}, v{F+18}
    v_mul_f32 v{F+14}, v{F+14}, v{F+18}
    v_mul_f32 v{F+16}, v{F+16}, v{F+18}
    """)
    mt(6)
    for i in range(0, 16, 2):
        a(f"v_pk_mul_f32 v[{V_O+i}:{V_O+i+1}], v[{V_O+i}:{V_O+i+1}], v[{F+10}:{F+11}] op_sel_hi:[1,0]")
    for j in range(1, 4):
        a(f"s_waitcnt lgkmcnt({12 - 4*j})")
        if j == 3: a("s_barrier")
        for i in range(0, 16, 2):
            a(f"v_pk_fma_f32 v[{V_O+i}:{V_O+i+1}], v[{V_O+16*j+i}:{V_O+16*j+i+1}], v[{F+10+2*j}:{F+11+2*j}], v[{V_O+i}:{V_O+i+1}] op_sel_hi:[1,0,1]")
    mt(7)
    for rq in range(4):
        a(f"v_cvt_pk_bf16_f32 v{F+20+2*rq}, v{V_O+4*rq}, v{V_O+4*rq+1}")
        a(f"v_cvt_pk_bf16_f32 v{F+20+2*rq+1}, v{V_O+4*rq+2}, v{V_O+4*rq+3}")
    for rq in range(4):
        a(f"buffer_store_dwordx2 v[{F+20+2*rq}:{F+20+2*rq+1}], v{A0}, s[24:27], s79 offen offset:{(rq & 1)*512} sc1" if rq < 2 else
          f"buffer_store_dwordx2 v[{F+20+2*rq}:{F+20+2*rq+1}], v{A0}, s[24:27], s79 offen offset:{3072 + (rq & 1)*512} sc1")
    gen_tail()
    stamp(a, 3)
    tr2(41)
    trace_dump(a, 167, 100, S_W, V_LANE, 1)
    if OPT.get("lt"):
        a("s_waitcnt lgkmcnt(0)")
        a(f"s_lshl_b32 s3, s2, 4")
        a(f"s_add_u32 s3, s3, s{S_W}")
        a(f"s_lshl_b32 s3, s3, 8")
        a(f"s_add_u32 s3, s3, {(56 << 20) + (1 << 20)}")
        a("v_mov_b32 v102, s3")
        for i in range(11):
            a(f"v_mov_b32 v100, s{80+2*i}")
            a(f"buffer_store_dword v100, v102, s[24:27], 0 offen offset:{4*i}")
            a("s_waitcnt vmcnt(0)")
    if OPT["stamps"]: a("s_memtime s[90:91]")
    if OPT.get("dbgclk"):
        a(f"""
        s_waitcnt lgkmcnt(0)
        s_cmp_eq_u32 s2, {OPT.get("dbgwg", 77)}
        s_cbranch_scc0 L_nodbg
        s_cmp_eq_u32 s{S_W}, 0
        s_cbranch_scc0 L_nodbg
        s_sub_u32 s90, s90, s88
        s_sub_u32 s82, s82, s80
        s_sub_u32 s84, s84, s80
        s_sub_u32 s86, s86, s80
        v_mov_b32 v100, s90
        v_mov_b32 v101, s82
        v_mov_b32 v102, s84
        v_mov_b32 v103, s86
        v_mov_b32 v104, 0
        s_mov_b64 exec, 1
        buffer_store_dwordx4 v[100:103], v104, s[16:19], 0 offen
        s_mov_b64 exec, -1
        L_nodbg:
        """)
    else:
        stamp_flush(a, 6, 100, S_W, 0)
    a("s_endpgm")
    a.label("L_slow_first")
    a(f"v_cndmask_b32 v{V_M}, v{V_M}, v{V_T0}, vcc")
    a(f"s_mov_b64 s[{S_SLOW}:{S_SLOW+1}], -1")
    a(f"v_add_f32 v{V_THR}, s{S_TC}, v{V_M}")
    a("s_branch L_slow_sub")
    a.label("L_slow")
    a("s_cbranch_vccz L_slow_sub")
    a(f"v_max_f32 v{V_T1}, v{V_M}, v{V_T0}")
    a(f"v_cndmask_b32 v{V_T1}, v{V_M}, v{V_T1}, vcc")
    a.label("L_slow_upd")
    a(f"""
    s_mov_b64 s[{S_SLOW}:{S_SLOW+1}], -1
    v_sub_f32 v{V_T2}, v{V_M}, v{V_T1}
    v_exp_f32 v{V_T2}, v{V_T2}
    v_mov_b32 v{V_M}, v{V_T1}
    v_add_f32 v{V_THR}, s{S_TC}, v{V_T1}
    v_mul_f32 v{V_L}, v{V_L}, v{V_T2}
    """)
    for i in range(64):
        a(f"v_mul_f32 v{V_O+i}, v{V_T2}, v{V_O+i}")
    a.label("L_slow_sub")
    for i in range(16):
        a(f"v_sub_f32 v{V_S+i}, v{V_S+i}, v{V_M}")
    a("s_nop 1")
    a(f"s_setpc_b64 s[{S_RET}:{S_RET+1}]")
    a.label("L_k1_end")
    a("s_endpgm")
    return a

def build():
    k1 = gen_k1().finalize()
    h1, d1 = kernel_text("gqa_fused_kernel", k1, 168)
    hdr = open("concat_heads__gqa_block_cached__gqa_block_cached__near_ridge.s.ref").read().split("; Override")[0]
    txt = hdr
    txt += "; @launch kernel=gqa_fused_kernel grid=(256,1,1) block=(768,1,1) lds=163840\n"
    txt += '.amdgcn_target "amdgcn-amd-amdhsa--gfx950"\n.text\n' + h1
    txt += '.section .rodata,"a"\n.p2align 6\n' + d1
    return txt

if __name__ == "__main__":
    out = sys.argv[1]
    for kv in sys.argv[2:]:
        k, v = kv.split("=")
        OPT[k] = int(v, 0)
    open(out, "w").write(build())
    print("wrote", out)
```

```python
import sys, math, struct
from asmlib import *
import gen as G1
G1.OPT["stamp_off"] = 48 << 20
from gen import f2u, load_ptrs, srd, AREA, C_SCALE, T_LOG2

OPT = G1.OPT
stamp, stamp_flush, trace, trace_dump = G1.stamp, G1.stamp_flush, G1.trace, G1.trace_dump
NT = G1.NT

NTQ = lambda: 'nt ' if OPT.get('nt_wq') else ''
NTX = lambda: 'nt ' if OPT.get('nt_x') else ''
NTKV = lambda: 'nt ' if OPT.get('nt_kv') else ''
NTWO = lambda: 'nt ' if OPT.get('nt_wo') else ''
OSC = lambda: '' if OPT.get('o_plain') else 'sc1 '
LT6 = (0, 1, 2, 3, 4, 6, 8, 10, 12, 14, 15)
O_OFF = 0
FLAG_OFF = 8 << 20
PART_OFF = 16 << 20
TOK_A, TOK_B = 0x5EED0A01, 0x5EED0B02
SPIN_MAX = 1 << 18

def emit_tile(a, dst, s_cnt, phi, m1, m3, win, r, t0, t1, t2):
    sc = f"s{s_cnt}" if isinstance(s_cnt, int) else str(s_cnt[1])
    a(f"s_add_u32 s{t0}, s{phi}, {win}")
    a(f"s_sub_u32 s{t1}, {win}, s{phi}")
    a(f"s_mov_b32 s{t2}, s{m3}")
    a(f"s_cmp_lt_u32 {sc}, s{t0}" if isinstance(s_cnt, int) else f"s_cmp_gt_u32 s{t0}, {sc}")
    a(f"s_cselect_b32 s{t0}, s{phi}, s{t0}")
    a(f"s_cselect_b32 s{t1}, {win}, s{t1}")
    a(f"s_cselect_b32 s{t2}, {256 // win}, s{t2}")
    a(f"s_cmp_lt_u32 {sc}, s{phi}" if isinstance(s_cnt, int) else f"s_cmp_gt_u32 s{phi}, {sc}")
    a(f"s_cselect_b32 s{t0}, 0, s{t0}")
    a(f"s_cselect_b32 s{t1}, s{phi}, s{t1}")
    a(f"s_cselect_b32 s{t2}, s{m1}, s{t2}")
    a(f"s_sub_u32 s{dst}, {sc}, s{t0}")
    a(f"s_add_u32 s{dst}, s{dst}, s{r}")
    a(f"s_mul_i32 s{t2}, s{dst}, s{t2}")
    a(f"s_lshr_b32 s{t2}, s{t2}, 8")
    a(f"s_mul_i32 s{t2}, s{t2}, s{t1}")
    a(f"s_sub_u32 s{dst}, s{dst}, s{t2}")
    a(f"s_add_u32 s{dst}, s{dst}, s{t0}")

def gen_k1():
    a = Asm()
    S_PHI, S_M1, S_M3, S_P2 = 4, 5, 6, 7
    S_BP, S_NT8, S_G1, S_G2 = 54, 55, 58, 59
    S_W, S_BLK, S_G, S_B, S_HP, S_KQ, S_QT = 28, 29, 30, 31, 32, 33, 34
    S_C, S_NC, S_TC = 35, 36, 37
    S_RET = 38
    S_SLOW = 50
    T_HI, T_LO = 16.0, 64.0
    S_T0, S_T1, S_T2, S_T3 = 41, 42, 43, 44
    S_WQB, S_XB, S_KVB = 45, 46, 47
    S_CNT, S_SLOT = 75, 78
    V_O, V_Q, V_S, V_F, V_KA, V_VA = 0, 64, 96, 112, 144, 152
    V_M, V_L, V_NMC, V_THR, V_T0, V_T1, V_T2, V_LANE, V_DOFF = 156, 157, 158, 159, 160, 161, 162, 163, 164
    L = V_LANE

    def group_ids():
        a(f"""
        s_lshr_b32 s{S_BP}, s{S_B}, 1
        s_and_b32 s{S_NT8}, s{S_B}, 1
        s_lshl_b32 s{S_NT8}, s{S_NT8}, 2
        s_add_u32 s{S_NT8}, s{S_NT8}, s{S_HP}
        s_lshl_b32 s{S_G1}, s{S_BLK}, 2
        s_add_u32 s{S_G1}, s{S_G1}, s{S_G}
        s_lshl_b32 s{S_G1}, s{S_G1}, 2
        s_add_u32 s{S_G1}, s{S_G1}, s{S_BP}
        s_lshl_b32 s{S_G2}, s{S_BLK}, 2
        s_add_u32 s{S_G2}, s{S_G2}, s{S_BP}
        s_lshl_b32 s{S_G2}, s{S_G2}, 3
        s_add_u32 s{S_G2}, s{S_G2}, s{S_NT8}
        """)
    a("s_cmp_ge_u32 s2, 256")
    a("s_cbranch_scc1 L_k1_end")
    stamp(a, 0)
    if OPT["stamps"]: a("s_memtime s[88:89]")
    if OPT.get("lt") == 7: a("s_memtime s[80:81]")
    load_ptrs(a)
    if OPT.get("trace"):
        a("v_mov_b32 v120, 0")
        a("v_mov_b32 v167, 0")
        trace(a, 120, idx_imm=63)
    a(f"""
    v_lshrrev_b32 v1, 6, v0
    v_and_b32 v{L}, 63, v0
    s_and_b32 s3, s2, 7
    v_readfirstlane_b32 s{S_W}, v1
    s_lshr_b32 s{S_BLK}, s3, 2
    s_and_b32 s{S_G}, s3, 3
    s_lshr_b32 s3, s2, 3
    s_lshr_b32 s{S_B}, s3, 2
    s_and_b32 s{S_HP}, s3, 3
    s_and_b32 s{S_KQ}, s{S_W}, 3
    s_lshr_b32 s{S_QT}, s{S_W}, 2
    s_lshl_b32 s{S_WQB}, s{S_G}, 11
    s_lshl_b32 s3, s{S_HP}, 9
    s_add_u32 s{S_WQB}, s{S_WQB}, s3
    s_mul_i32 s{S_XB}, s{S_B}, {48*2048}
    s_cmp_ge_u32 s{S_W}, 8
    s_cbranch_scc1 L_p1_compute
    """)
    a(f"""
    v_lshrrev_b32 v5, 5, v{L}
    v_and_b32 v6, 31, v{L}
    s_and_b32 s{S_T1}, s{S_W}, 1
    s_lshl_b32 s{S_T1}, s{S_T1}, 2
    v_or_b32 v7, s{S_T1}, v5
    v_lshlrev_b32 v8, 1, v7
    v_xor_b32 v8, v8, v6
    v_lshlrev_b32 v8, 4, v8
    v_lshlrev_b32 v9, 13, v5
    v_add_u32 v2, v9, v8
    v_xor_b32 v8, 64, v8
    v_add_u32 v3, v9, v8
    s_mul_i32 s{S_T1}, s{S_W}, 6
    v_lshrrev_b32 v5, 3, v{L}
    v_add_u32 v5, s{S_T1}, v5
    v_lshrrev_b32 v6, 1, v5
    v_xor_b32 v6, v6, v{L}
    v_and_b32 v6, 7, v6
    v_lshlrev_b32 v6, 4, v6
    v_lshlrev_b32 v5, 11, v5
    v_add_u32 v4, v5, v6
    s_lshl_b32 s{S_T2}, s{S_W}, 16
    s_add_u32 s{S_WQB}, s{S_WQB}, s{S_T2}
    s_lshl_b32 s{S_T2}, s{S_W}, 12
    s_mul_i32 s{S_T3}, s{S_W}, 768
    s_add_u32 s{S_T3}, s{S_T3}, 32768
    """)
    if OPT.get("stag1", 2) == 1:
        a(f"""
        s_add_u32 s{S_PHI}, s{S_HP}, 1
        s_lshl_b32 s3, s{S_HP}, 3
        s_lshr_b32 s{S_M1}, 0x3f557fff, s3
        s_and_b32 s{S_M1}, s{S_M1}, 0xff
        s_add_u32 s{S_M1}, s{S_M1}, 1
        s_lshr_b32 s{S_M3}, 0x40342b25, s3
        s_and_b32 s{S_M3}, s{S_M3}, 0xff
        """)
    else:
        pa, pb = OPT.get("phiA", 8), OPT.get("phiB", 4)
        Mt = lambda n: -(-256 // n) if n else 1
        a(f"""
        s_cmp_eq_u32 s{S_BLK}, 0
        s_mov_b32 s{S_PHI}, {pb}
        s_cselect_b32 s{S_PHI}, {pa}, s{S_PHI}
        s_mov_b32 s{S_M1}, {Mt(pb)}
        s_cselect_b32 s{S_M1}, {Mt(pa)}, s{S_M1}
        s_mov_b32 s{S_M3}, {Mt(8-pb)}
        s_cselect_b32 s{S_M3}, {Mt(8-pa)}, s{S_M3}
        """)
    a(f"""
    s_cmp_eq_u32 s{S_BLK}, 0
    s_waitcnt lgkmcnt(0)
    """)
    if OPT.get("lt") == 7: a("s_memtime s[82:83]")
    srd(a, 8, 48, 58, 8*48*1024*2)
    srd(a, 12, 54, 64, 1024*4096*2)
    def issue_tile():
        if OPT.get("stag1", 2):
            emit_tile(a, 3, S_CNT, S_PHI, S_M1, S_M3, 8, S_B, 76, 77, 79)
        else:
            a(f"""
            s_add_u32 s3, s{S_CNT}, s{S_B}
            s_and_b32 s3, s3, 7
            s_and_b32 s76, s{S_CNT}, 8
            s_or_b32 s3, s3, s76
            """)
        a(f"""
        s_lshl_b32 s76, s3, 19
        s_add_u32 s76, s76, s{S_WQB}
        s_add_u32 s77, s{S_SLOT}, s{S_T2}
        """)
        def wq4(nt):
            for q in range(4):
                a(f"s_add_u32 m0, s77, {q*1024}")
                if q: a(f"s_add_u32 s76, s76, {2*8192}")
                a(f"buffer_load_dwordx4 v{2 + (q & 1)}, s[12:15], s76 offen {nt}lds")
        if OPT.get("ntf_wq"):
            l1, l2 = a.newlabel("L_wqn"), a.newlabel("L_wqd")
            a(f"s_and_b32 s79, s{S_CNT}, 7")
            a(f"s_cbranch_scc1 {l1}")
            wq4("nt ")
            a(f"s_branch {l2}")
            a.label(l1)
            wq4("")
            a.label(l2)
        else:
            wq4(NTQ())
        a(f"""
        s_lshl_b32 s76, s3, 7
        s_add_u32 s76, s76, s{S_XB}
        s_add_u32 m0, s{S_SLOT}, s{S_T3}
        s_mov_b32 exec_hi, {'0xffff' if not OPT.get('xfull') else '-1'}
        buffer_load_dwordx4 v4, s[8:11], s76 offen {NTX()}lds
        s_mov_b32 exec_hi, -1
        """)
    a(f"s_mov_b32 s{S_CNT}, 0")
    a(f"s_mov_b32 s{S_SLOT}, 0")
    issue_tile()
    a(f"""
    s_or_b32 s3, s2, s{S_W}
    s_cmp_eq_u32 s3, 0
    s_cbranch_scc0 L_notok
    s_memrealtime s[76:77]
    s_mov_b32 s16, s70
    s_mov_b32 s17, s71
    s_mov_b32 s18, 256
    s_mov_b32 s19, 0x00020000
    v_mov_b32 v10, 0
    s_waitcnt lgkmcnt(0)
    s_or_b32 s76, s76, 1
    v_mov_b32 v11, s76
    s_mov_b64 exec, 1
    buffer_store_dword v11, v10, s[16:19], 0 offen sc1
    s_mov_b64 exec, -1
    L_notok:
    """)
    if OPT.get("tlbw", 1):
        a(f"s_cmp_eq_u32 s{S_W}, {OPT.get('tlbw_wave', 0)}")
        a("s_cbranch_scc0 L_notlb")
        a(f"""
        v_lshlrev_b32 v10, 21, v{L}
        s_mov_b64 exec, 0xf
        buffer_load_dword v11, v10, s[12:15], 0 offen
        s_cmp_eq_u32 s{S_BLK}, 0
        """)
        srd(a, 16, 50, 60, 8*4*1024*128*2)
        srd(a, 20, 52, 62, 8*4*1024*128*2)
        a(f"""
        s_lshl_b32 s3, s{S_B}, 2
        s_add_u32 s3, s3, s{S_G}
        s_lshl_b32 s3, s3, 18
        s_mov_b64 exec, 1
        v_mov_b32 v10, 0
        buffer_load_dword v11, v10, s[16:19], s3 offen
        buffer_load_dword v11, v10, s[20:23], s3 offen
        s_cmp_eq_u32 s{S_BLK}, 0
        s_cselect_b32 s16, s56, s66
        s_cselect_b32 s17, s57, s67
        s_mov_b32 s18, {4096*1024*2}
        s_lshl_b32 s3, s{S_G}, 21
        buffer_load_dword v11, v10, s[16:19], s3 offen
        s_mov_b32 s16, s72
        s_mov_b32 s17, s73
        s_mov_b32 s18, {1 << 28}
        s_mov_b64 exec, -1
        v_lshlrev_b32 v10, 21, v{L}
        s_mov_b64 exec, 0x7fff
        buffer_load_dword v11, v10, s[16:19], 0 offen
        s_mov_b32 s16, s68
        s_mov_b32 s17, s69
        s_mov_b32 s18, {8*48*2048*2}
        s_mov_b64 exec, 1
        v_mov_b32 v10, 0
        buffer_load_dword v11, v10, s[16:19], 0 offen
        s_mov_b64 exec, -1
        L_notlb:
        """)
    if OPT.get("b01", 1): a("s_barrier")
    a(f"s_mov_b32 s{S_CNT}, 1")
    a(f"s_mov_b32 s{S_SLOT}, {AREA}")
    issue_tile()
    a(f"s_mov_b32 s{S_CNT}, 2")
    a(f"s_mov_b32 s{S_SLOT}, {2*AREA}")
    if OPT.get("lt") == 7: a("s_memtime s[84:85]")
    a(f"s_cmp_eq_u32 s{S_BLK}, 0")
    srd(a, 16, 50, 60, 8*4*1024*128*2)
    srd(a, 20, 52, 62, 8*4*1024*128*2)
    srd(a, 24, 72, 72, 1 << 28, sel=False)
    group_ids()
    a(f"""
    s_lshl_b32 s3, s{S_B}, 2
    s_add_u32 s3, s3, s{S_G}
    s_lshl_b32 s{S_KVB}, s3, 18
    s_lshl_b32 s3, s{S_KQ}, 16
    s_add_u32 s{S_KVB}, s{S_KVB}, s3
    v_lshrrev_b32 v5, 4, v{L}
    v_and_b32 v6, 15, v{L}
    v_lshlrev_b32 v7, 8, v5
    v_xor_b32 v8, v6, v5
    v_lshlrev_b32 v9, 4, v8
    v_add_u32 v{V_DOFF}, v7, v9
    v_xor_b32 v9, 64, v9
    v_add_u32 v{V_DOFF+1}, v7, v9
    v_xor_b32 v9, 0xc0, v9
    v_add_u32 v{V_DOFF+2}, v7, v9
    v_xor_b32 v9, 64, v9
    v_add_u32 v{V_DOFF+3 if not OPT.get("trace") else V_T2}, v7, v9
    s_cmp_eq_u32 s{S_QT}, 0
    s_cbranch_scc1 L_voff_done
    v_lshlrev_b32 v8, 2, v5
    v_xor_b32 v8, v8, v6
    v_lshlrev_b32 v8, 4, v8
    v_add_u32 v{V_DOFF}, v7, v8
    L_voff_done:
    """)
    a(f"""
    s_and_b32 s3, s{S_B}, 3
    s_add_u32 s60, s3, 1
    s_lshl_b32 s3, s3, 3
    s_lshr_b32 s61, 0x3f557fff, s3
    s_and_b32 s61, s61, 0xff
    s_add_u32 s61, s61, 1
    s_lshr_b32 s62, 0x00ff7f55, s3
    s_and_b32 s62, s62, 0xff
    s_add_u32 s62, s62, 1
    s_mov_b32 s{S_P2}, 0
    """)
    for i in range(8):
        if OPT.get("stag2", 1):
            emit_tile(a, 63, ("imm", i), 60, 61, 62, 4, S_HP, 64, 65, 79)
        else:
            R2 = OPT.get("rot2", 4)
            a(f"s_add_u32 s63, s{S_HP}, {i}")
            a(f"s_and_b32 s63, s63, {R2 - 1}")
            a(f"s_or_b32 s63, s63, {i & ~(R2 - 1)}")
            if OPT.get("kvoff"):
                a(f"s_add_u32 s63, s63, s{S_B}")
                a(f"s_and_b32 s63, s63, 7")
        a(f"s_lshl_b32 s63, s63, {4*i}")
        a(f"s_or_b32 s{S_P2}, s{S_P2}, s63")
    a.label("L_p1_ld_loop")
    a("s_waitcnt vmcnt(5)")
    trace(a, 120, idx_sreg=S_CNT)
    if OPT.get("lt") == 7:
        for k, cnt in enumerate((2, 3, 4, 9, 10, 11, 15)):
            a(f"s_cmp_eq_u32 s{S_CNT}, {cnt}")
            a(f"s_cbranch_scc0 L_lt7_{k}")
            a(f"s_memtime s[{86+2*k}:{87+2*k}]")
            a.label(f"L_lt7_{k}")
    a("s_barrier")
    if OPT.get("trace"): a(f"s_add_u32 s94, s{S_CNT}, 16")
    trace(a, 120, idx_sreg=94)
    issue_tile()
    if OPT.get("trace"): a(f"s_add_u32 s94, s{S_CNT}, 32")
    trace(a, 120, idx_sreg=94)
    a(f"""
    s_add_u32 s{S_SLOT}, s{S_SLOT}, {AREA}
    s_cmp_eq_u32 s{S_SLOT}, {3*AREA}
    s_cselect_b32 s{S_SLOT}, 0, s{S_SLOT}
    s_add_u32 s{S_CNT}, s{S_CNT}, 1
    s_cmp_lt_u32 s{S_CNT}, 16
    s_cbranch_scc1 L_p1_ld_loop
    """)
    def tile_soff(step, dst):
        a(f"""
        s_bfe_u32 s{dst}, s{S_P2}, {(4 << 16) | (4*step)}
        s_lshl_b32 s{dst}, s{dst}, 13
        s_add_u32 s{dst}, s{dst}, s{S_KVB}
        """)
    def dma8(step, lds_off, voff_fn, srdb):
        ntk = "nt " if (OPT.get("nt_kv") or (OPT.get("ntf_kv") and step % OPT.get("rot2", 4) == 0)) else ""
        tile_soff(step, 76)
        a(f"s_mul_i32 s77, s{S_KQ}, {AREA}")
        a(f"s_add_u32 m0, s77, {lds_off}")
        for q in range(8):
            if q == 4:
                a(f"s_add_u32 m0, s77, {lds_off + 4096}")
                a(f"s_add_u32 s76, s76, 4096")
            a(f"buffer_load_dwordx4 v{voff_fn(q)}, s[{srdb}:{srdb+3}], s76 offen offset:{(q & 3) * 1024} {ntk}lds")
    def issue_k(step):
        if OPT.get("trace"):
            a(f"v_xor_b32 v{V_T2}, 64, v{V_DOFF+2}")
            dma8(step, (step % 3) * 8192, lambda q: (V_DOFF + (q & 3)) if (q & 3) != 3 else V_T2, 16)
        else:
            dma8(step, (step % 3) * 8192, lambda q: V_DOFF + (q & 3), 16)
    def issue_v(step): dma8(step, 24576 + (step % 2) * 8192, lambda q: V_DOFF, 20)
    def call_early_if(kq):
        lab = a.newlabel("L_ne")
        a(f"s_cmp_eq_u32 s{S_KQ}, {kq}")
        a(f"s_cbranch_scc0 {lab}")
        a(f"s_call_b64 s[{S_RET}:{S_RET+1}], L_early")
        a.label(lab)
    a("s_waitcnt vmcnt(5)")
    call_early_if(3)
    a("s_barrier")
    call_early_if(1)
    a(f"""
    s_and_b32 s3, s{S_KQ}, 1
    s_cmp_eq_u32 s3, 1
    s_cbranch_scc1 L_w15_early
    s_waitcnt vmcnt(0)
    s_branch L_w15_done
    L_w15_early:
    s_cmp_eq_u32 s{S_QT}, 0
    s_cbranch_scc1 L_w15_k
    s_waitcnt vmcnt(8)
    s_branch L_w15_done
    L_w15_k:
    s_waitcnt vmcnt(16)
    L_w15_done:
    """)
    a("s_barrier")
    call_early_if(2)
    a("s_barrier")
    call_early_if(0)
    a("s_branch L_p1_join")
    a.label("L_early")
    a(f"s_cmp_eq_u32 s{S_QT}, 0")
    a("s_cbranch_scc0 L_early_v")
    issue_k(0)
    issue_k(1)
    a(f"s_setpc_b64 s[{S_RET}:{S_RET+1}]")
    a.label("L_early_v")
    issue_v(0)
    a(f"s_setpc_b64 s[{S_RET}:{S_RET+1}]")

    a.label("L_p1_compute")
    P_ACC, P_A, P_B, P_WA, P_XA = 0, 48, 80, 104, 108
    a(f"""
    v_lshrrev_b32 v110, 4, v{L}
    v_and_b32 v111, 15, v{L}
    v_lshrrev_b32 v112, 2, v111
    v_and_b32 v113, 3, v111
    v_lshlrev_b32 v114, 3, v110
    v_add_u32 v114, v114, v112
    v_lshlrev_b32 v114, 9, v114
    v_lshlrev_b32 v113, 3, v113
    v_add_u32 v114, v114, v113
    v_and_b32 v115, 1, v110
    v_lshlrev_b32 v115, 2, v115
    v_or_b32 v115, v115, v112
    s_lshl_b32 s{S_T0}, s{S_KQ}, 2
    """)
    for dt in range(4):
        a(f"s_add_u32 s{S_T1}, s{S_T0}, {dt}")
        a(f"v_xor_b32 v116, s{S_T1}, v115")
        a(f"v_lshlrev_b32 v116, 5, v116")
        a(f"v_add_u32 v{P_WA+dt}, v114, v116")
    a(f"""
    v_lshrrev_b32 v112, 1, v111
    v_xor_b32 v112, v112, v110
    v_lshlrev_b32 v112, 4, v112
    v_lshlrev_b32 v113, 7, v111
    v_add_u32 v112, v112, v113
    v_add_u32 v{P_XA}, 32768, v112
    v_xor_b32 v{P_XA+1}, 64, v{P_XA}
    """)
    for i in range(48):
        a(f"v_mov_b32 v{P_ACC+i}, 0")
    for i in range(4):
        a(f"v_mov_b32 v{V_DOFF+i}, 0")
    a(f"s_waitcnt lgkmcnt(0)")
    srd(a, 24, 72, 72, 1 << 28, sel=False)
    a(f"s_cmp_eq_u32 s{S_BLK}, 0")
    srd(a, 16, 50, 60, 8*4*1024*128*2)
    srd(a, 20, 52, 62, 8*4*1024*128*2)
    if OPT.get("b01", 1) and OPT.get("xpf_late"): a("s_barrier")
    if OPT.get("xpf", 1):
        a(f"s_cmp_eq_u32 s{S_BLK}, 0")
        srd(a, 8, 48, 58, 8*48*1024*2)
        a(f"""
        s_cmp_eq_u32 s{S_KQ}, 3
        s_cbranch_scc1 L_noxpf
        s_mul_i32 s3, s{S_HP}, 24576
        s_add_u32 s3, s3, s{S_XB}
        s_lshl_b32 s76, s{S_KQ}, 13
        s_add_u32 s3, s3, s76
        v_lshlrev_b32 v126, 7, v{L}
        buffer_load_dword v128, v126, s[8:11], s3 offen
        L_noxpf:
        """)
    if OPT.get("b01", 1) and not OPT.get("xpf_late"): a("s_barrier")
    group_ids()
    a(f"""
    s_mov_b32 s16, s70
    s_mov_b32 s17, s71
    s_mov_b32 s18, 256
    s_mov_b32 s19, 0x00020000
    s_mov_b32 s40, 0
    v_mov_b32 v126, 0
    v_mov_b32 v127, 1
    """)
    a(f"s_mov_b32 s{S_KVB}, 0")
    a(f"s_mov_b32 s{S_CNT}, 0")
    a(f"s_mov_b32 s{S_SLOT}, 0")
    def rd_ks(ks):
        if OPT.get("nocomp"): return
        for dt in range(4):
            for hf in range(2):
                r = P_A + ks*16 + dt*4 + hf*2
                a(f"ds_read_b64_tr_b16 v[{r}:{r+1}], v{P_WA+dt} offset:{ks*16384 + hf*2048}")
    def rd_x(ks):
        if OPT.get("nocomp"): return
        for st in range(3):
            r = P_B + ks*12 + st*4
            a(f"ds_read_b128 v[{r}:{r+3}], v{P_XA+ks} offset:{st*2048}")
    def mm(ks):
        if OPT.get("nocomp"): return
        for dt in range(4):
            for st in range(3):
                ac = P_ACC + (dt*3+st)*4
                ra = P_A + ks*16 + dt*4; rb = P_B + ks*12 + st*4
                a(f"v_mfma_f32_16x16x32_bf16 v[{ac}:{ac+3}], v[{ra}:{ra+3}], v[{rb}:{rb+3}], v[{ac}:{ac+3}]")
    a.label("L_p1_c_loop")
    trace(a, 120, idx_sreg=S_CNT)
    a("s_barrier")

    if OPT.get("trace"): a(f"s_add_u32 s94, s{S_CNT}, 16")
    trace(a, 120, idx_sreg=94)
    rd_x(0); rd_ks(0)
    a(f"s_cmp_eq_u32 s{S_CNT}, 0")
    a("s_cbranch_scc1 L_p1_c_skip")
    mm(1)
    a.label("L_p1_c_skip")
    rd_x(1); rd_ks(1)
    a("s_waitcnt lgkmcnt(11)")
    mm(0)
    a(f"""
    s_add_u32 s{S_SLOT}, s{S_SLOT}, 1
    s_cmp_eq_u32 s{S_SLOT}, 3
    s_cselect_b32 s{S_SLOT}, 0, s{S_SLOT}
    s_mov_b32 s3, {AREA}
    s_cselect_b32 s3, {(-2*AREA) & 0xffffffff}, s3
    """)
    for r in list(range(P_WA, P_WA+4)) + [P_XA, P_XA+1]:
        a(f"v_add_u32 v{r}, s3, v{r}")
    a(f"""
    s_add_u32 s{S_CNT}, s{S_CNT}, 1
    s_cmp_lt_u32 s{S_CNT}, 16
    s_waitcnt lgkmcnt(0)
    s_cbranch_scc1 L_p1_c_loop
    s_barrier
    """)
    mm(1)
    a(f"""
    s_mov_b32 s{S_C}, {f2u(C_SCALE)}
    v_lshrrev_b32 v110, 4, v{L}
    v_and_b32 v111, 15, v{L}
    v_lshlrev_b32 v112, 8, v111
    v_and_b32 v113, 1, v110
    v_lshlrev_b32 v113, 3, v113
    v_add_u32 v112, v112, v113
    v_lshrrev_b32 v113, 1, v110
    s_and_b32 s{S_T0}, s{S_KQ}, 1
    s_lshl_b32 s{S_T0}, s{S_T0}, 3
    v_add_u32 v113, s{S_T0}, v113
    s_lshr_b32 s{S_T1}, s{S_KQ}, 1
    s_cmp_eq_u32 s{S_T1}, 0
    s_mov_b32 s76, {2*AREA+16384+4096}
    s_mov_b32 s77, {3*AREA+16384}
    s_mov_b32 s78, {3*AREA+16384+4096}
    s_cselect_b32 s76, {1*AREA+16384}, s76
    s_cselect_b32 s77, {1*AREA+16384+4096}, s77
    s_cselect_b32 s78, {2*AREA+16384}, s78
    """)
    for dt in range(4):
        a(f"v_add_u32 v114, {2*dt}, v113")
        a(f"v_xor_b32 v114, v114, v111")
        a(f"v_lshlrev_b32 v114, 4, v114")
        a(f"v_add_u32 v114, v114, v112")
        for st in range(3):
            ac = P_ACC + (dt*3+st)*4
            t = 116 + 2*(st & 1)
            for e in range(4): a(f"v_mul_f32 v{ac+e}, s{S_C}, v{ac+e}")
            a(f"v_cvt_pk_bf16_f32 v{t}, v{ac}, v{ac+1}")
            a(f"v_cvt_pk_bf16_f32 v{t+1}, v{ac+2}, v{ac+3}")
            a(f"v_add_u32 v{123+st}, s{76+st}, v114")
            a(f"ds_write_b64 v{123+st}, v[{t}:{t+1}]")
    a("s_waitcnt lgkmcnt(0)")

    a.label("L_p1_join")
    trace(a, 120, idx_imm=60)
    if OPT.get("lt") == 7: a("s_memtime s[100:101]")
    a("s_barrier")
    trace(a, 120, idx_imm=61)
    trace_dump(a, 120, 121, S_W, V_LANE, 0)
    if OPT.get("trace"): a("v_mov_b32 v167, 0")
    stamp(a, 1)
    a(f"""
    s_mov_b32 s{S_TC}, {f2u(T_HI)}
    s_mov_b32 s{S_NC}, {f2u(-T_LO)}
    s_mov_b64 s[{S_SLOW}:{S_SLOW+1}], 0
    v_and_b32 v{V_T0}, 31, v{L}
    v_lshlrev_b32 v{V_T0}, 8, v{V_T0}
    v_lshrrev_b32 v{V_T1}, 5, v{L}
    v_and_b32 v{V_T2}, 15, v{L}
    v_xor_b32 v{V_T1}, v{V_T1}, v{V_T2}
    v_lshlrev_b32 v{V_T1}, 4, v{V_T1}
    v_add_u32 v{V_T0}, v{V_T0}, v{V_T1}
    s_add_u32 s3, s{S_QT}, 1
    s_mul_i32 s3, s3, {AREA}
    s_add_u32 s3, s3, 16384
    s_mul_i32 s76, s{S_KQ}, {AREA}
    """)
    for st8 in range(8):
        a(f"v_xor_b32 v{V_T1}, {st8 << 5}, v{V_T0}")
        a(f"v_add_u32 v{V_F+st8}, s3, v{V_T1}")
        a(f"v_add_u32 v{V_KA+st8}, s76, v{V_T1}")
        a(f"ds_read_b128 v[{V_Q+4*st8}:{V_Q+4*st8+3}], v{V_F+st8}")
    a(f"""
    v_lshrrev_b32 v{V_T0}, 5, v{L}
    v_lshlrev_b32 v{V_T0}, 2, v{V_T0}
    v_bfe_u32 v{V_T1}, v{L}, 2, 2
    v_add_u32 v{V_T0}, v{V_T0}, v{V_T1}
    v_lshlrev_b32 v{V_T0}, 8, v{V_T0}
    v_bfe_u32 v{V_T2}, v{L}, 4, 1
    v_lshlrev_b32 v{V_T2}, 5, v{V_T2}
    v_add_u32 v{V_T0}, v{V_T0}, v{V_T2}
    v_and_b32 v{V_T2}, 3, v{L}
    v_lshlrev_b32 v{V_T2}, 3, v{V_T2}
    v_add_u32 v{V_T0}, v{V_T0}, v{V_T2}
    s_add_u32 s76, s76, 24576
    v_add_u32 v{V_T0}, s76, v{V_T0}
    """)
    for j in range(4):
        a(f"s_add_u32 s3, s{S_KQ}, {j}")
        a(f"s_and_b32 s3, s3, 3")
        a(f"v_xor_b32 v{V_T2}, s3, v{V_T1}")
        a(f"v_lshlrev_b32 v{V_T2}, 6, v{V_T2}")
        a(f"v_add_u32 v{V_VA+j}, v{V_T0}, v{V_T2}")
    for i in range(64):
        a(f"v_mov_b32 v{V_O+i}, 0")
    a(f"""
    v_mov_b32 v{V_M}, 0
    v_mov_b32 v{V_THR}, s{S_TC}
    v_mov_b32 v{V_L}, 0
    s_waitcnt lgkmcnt(0)
    """)

    S = V_S
    def tr2(idx):
        lt = OPT.get("lt")
        if lt and idx < 36:
            i, k = idx // 4, idx % 4
            if (lt == 1 and k == 1) or (lt == 2 and k == 0) or (lt == 3 and k == 2):
                a(f"s_memtime s[{80+2*i}:{81+2*i}]")
        if lt and lt not in (6, 7) and idx == 41: a("s_memtime s[98:99]")
        if lt and lt not in (6, 7) and idx == 40: a("s_memtime s[100:101]")
        if not OPT.get("trace"): return
        trace(a, 120 if False else 167, idx_imm=idx)
    def rd_k(step, st8):
        a(f"ds_read_b128 v[{V_F+4*st8}:{V_F+4*st8+3}], v{V_KA+st8} offset:{(step % 3) * 8192}")
    def rd_v(step, f):
        t, j = f // 4, f % 4
        for hf in range(2):
            r = V_F + 4*f + 2*hf
            a(f"ds_read_b64_tr_b16 v[{r}:{r+1}], v{V_VA+j} offset:{(step % 2) * 8192 + (16*t + 8*hf)*256}")
    def qk(step, pending_k):
        for st8 in range(8):
            a(f"s_waitcnt lgkmcnt({7 - st8 if st8 < 2 else min(15, 7 - st8 + 2*(st8-1))})")
            c = "0" if st8 == 0 else f"v[{S}:{S+15}]"
            a(f"v_mfma_f32_32x32x16_bf16 v[{S}:{S+15}], v[{V_F+4*st8}:{V_F+4*st8+3}], v[{V_Q+4*st8}:{V_Q+4*st8+3}], {c}")
            if st8 >= 1: rd_v(step, st8 - 1)
        rd_v(step, 7)
    def softmax_half(half):
        for i in range(8*half, 8*half+8):
            a(f"v_exp_f32 v{S+i}, v{S+i}")
        for i in range(8*half, 8*half+8):
            a(f"v_add_f32 v{V_L}, v{V_L}, v{S+i}")
        for j in range(4*half, 4*half+4):
            a(f"v_cvt_pk_bf16_f32 v{S+j}, v{S+2*j}, v{S+2*j+1}")
    def softmax_max(lab, first=False):
        a(f"v_max3_f32 v{V_T0}, v{S}, v{S+1}, v{S+2}")
        a(f"v_max3_f32 v{V_T1}, v{S+3}, v{S+4}, v{S+5}")
        a(f"v_max3_f32 v{V_T0}, v{V_T0}, v{S+6}, v{S+7}")
        a(f"v_max3_f32 v{V_T1}, v{V_T1}, v{S+8}, v{S+9}")
        a(f"v_max3_f32 v{V_T0}, v{V_T0}, v{S+10}, v{S+11}")
        a(f"v_max3_f32 v{V_T1}, v{V_T1}, v{S+12}, v{S+13}")
        a(f"v_max3_f32 v{V_T0}, v{V_T0}, v{S+14}, v{S+15}")
        a(f"v_max_f32 v{V_T0}, v{V_T0}, v{V_T1}")
        a(f"v_mov_b32 v{V_T1}, v{V_T0}")
        a(f"v_permlane32_swap_b32 v{V_T0}, v{V_T1}")
        a(f"v_max_f32 v{V_T0}, v{V_T0}, v{V_T1}")
        a(f"v_cmp_gt_f32 vcc, v{V_T0}, v{V_THR}")
        if first:
            a(f"v_cmp_gt_f32 s[52:53], s{S_NC}, v{V_T0}")
            a(f"s_or_b64 vcc, vcc, s[52:53]")
        a(f"s_or_b64 s[52:53], vcc, s[{S_SLOW}:{S_SLOW+1}]")
        a(f"s_cbranch_scc0 {lab}")
        a(f"s_call_b64 s[{S_RET}:{S_RET+1}], L_slow{'_first' if first else ''}")
        a.label(lab)
    def pv_mfma(f):
        t, j = f // 4, f % 4
        o = V_O + 16*j
        a(f"v_mfma_f32_32x32x16_bf16 v[{o}:{o+15}], v[{V_F+4*f}:{V_F+4*f+3}], v[{S+4*t}:{S+4*t+3}], v[{o}:{o+15}]")
    def pv_then_k(next_step):
        for f in range(8):
            pv_mfma(f)
            if next_step is not None and f >= 1: rd_k(next_step, f - 1)
        if next_step is not None: rd_k(next_step, 7)

    PR = OPT.get("prio", 1)
    def prio(p):
        if PR: a(f"s_setprio {p}")
    a(f"s_cmp_eq_u32 s{S_QT}, 1")
    a("s_cbranch_scc1 L_typeA")
    a(f"s_cmp_eq_u32 s{S_QT}, 2")
    a("s_cbranch_scc1 L_typeC")
    for i in range(8):
        a(f"s_waitcnt vmcnt({8 if i < 7 else 0})")
        tr2(4*i)
        a("s_barrier")
        tr2(4*i+1)
        prio(1)
        if i == 0:
            for st8 in range(8): rd_k(0, st8)
        else:
            pv_then_k(i)
        if i + 2 < 8: issue_k(i + 2)
        qk(i, 0)
        tr2(4*i+2)
        prio(2)
        softmax_max(f"L_D{i}", first=(i == 0))
        softmax_half(0); softmax_half(1)
        a("s_waitcnt lgkmcnt(0)")
    tr2(32)
    a("s_barrier")
    pv_then_k(None)
    a("s_branch L_merge")
    a.label("L_typeA")
    for i in range(8):
        a(f"s_waitcnt vmcnt(0)")
        tr2(4*i)
        a("s_barrier")
        tr2(4*i+1)
        prio(3)
        for st8 in range(8): rd_k(i, st8)
        if i + 1 < 8: issue_v(i + 1)
        qk(i, 0)
        tr2(4*i+2)
        prio(2)
        softmax_max(f"L_A{i}", first=(i == 0))
        softmax_half(0); softmax_half(1)
        prio(0)
        for f in range(8):
            a(f"s_waitcnt lgkmcnt({min(15, 2*(7-f))})")
            pv_mfma(f)
    tr2(32)
    a("s_barrier")
    a("s_branch L_merge")
    a.label("L_typeC")
    a(f"s_cmp_eq_u32 s{S_BLK}, 0")
    srd(a, 12, 56, 66, 4096*1024*2)
    a(f"""
    v_lshrrev_b32 v{V_DOFF+1}, 1, v{L}
    v_lshlrev_b32 v{V_DOFF+1}, 11, v{V_DOFF+1}
    v_and_b32 v{V_DOFF+2}, 1, v{L}
    v_lshlrev_b32 v{V_DOFF+2}, 7, v{V_DOFF+2}
    v_add_u32 v{V_DOFF+1}, v{V_DOFF+1}, v{V_DOFF+2}
    s_lshl_b32 s45, s{S_G}, 10
    s_lshl_b32 s3, s{S_BP}, 8
    s_add_u32 s45, s45, s3
    s_lshl_b32 s3, s{S_KQ}, 6
    s_add_u32 s45, s45, s3
    s_lshl_b32 s45, s45, 11
    s_lshl_b32 s3, s{S_NT8}, 8
    s_add_u32 s45, s45, s3
    """)
    a(f"""
    s_cmp_eq_u32 s{S_W}, 8
    s_cbranch_scc0 L_notokrd
    v_mov_b32 v{V_DOFF}, 0
    s_mov_b32 s{S_CNT}, 0
    L_tokspin:
    buffer_load_dword v{V_DOFF+3}, v{V_DOFF}, s[16:19], 0 offen sc1
    s_waitcnt vmcnt(0)
    v_readfirstlane_b32 s40, v{V_DOFF+3}
    s_add_u32 s{S_CNT}, s{S_CNT}, 1
    s_cmp_lt_u32 s{S_CNT}, {SPIN_MAX}
    s_cbranch_scc0 L_notokrd
    s_cmp_eq_u32 s40, 0
    s_cbranch_scc1 L_tokspin
    L_notokrd:
    """)
    PF_AT = {}
    PF_AT.setdefault(OPT.get("pf0", 7), []).append(0)
    PF_AT.setdefault(OPT.get("pf1", 7), []).append(1)
    for i in range(9):
        tr2(4*i)
        a("s_barrier")
        tr2(4*i+1)
        prio(2)
        if i in PF_AT and OPT.get("wopf", 1) and OPT.get("pf_early"):
            for e in PF_AT[i]:
                a(f"s_add_u32 s3, s45, {e * 32 * 2048}")
                a(f"buffer_load_dword v{V_DOFF+2}, v{V_DOFF+1}, s[12:15], s3 offen {NTWO()}")
        if i == 0:
            for st8 in range(8): rd_k(0, st8)
        else:
            softmax_max(f"L_C{i}", first=(i == 1))
            softmax_half(0); softmax_half(1)
            if i in PF_AT and OPT.get("wopf", 1) and not OPT.get("pf_early"):
                for e in PF_AT[i]:
                    a(f"s_add_u32 s3, s45, {e * 32 * 2048}")
                    a(f"buffer_load_dword v{V_DOFF+2}, v{V_DOFF+1}, s[12:15], s3 offen {NTWO()}")
            pv_then_k(i if i < 8 else None)
        if i < 8:
            prio(1)
            qk(i, 0)
            a("s_waitcnt lgkmcnt(0)")
    def spin(label, load_lines, cmp_val, vreg):
        a(f"s_mov_b32 s{S_CNT}, 0")
        a.label(label)
        a(load_lines)
        a("s_waitcnt vmcnt(0)")
        a(f"v_cmp_ne_u32 vcc, s3, v{vreg}" if cmp_val is None else f"v_cmp_ne_u32 vcc, {cmp_val}, v{vreg}")
        a(f"s_cbranch_vccz {label}_ok")
        a(f"s_add_u32 s{S_CNT}, s{S_CNT}, 1")
        a(f"s_cmp_lt_u32 s{S_CNT}, {SPIN_MAX}")
        a("s_sleep 1")
        a(f"s_cbranch_scc1 {label}")
        a.label(f"{label}_ok")

    def gen_tail():
        T_ACC, T_FR, T_AA, T_BA, T_DOFF, T_X = 0, 48, 112, 113, 114, 116
        S_WOB, S_OB, S_ST = 45, 46, 47
        NW, NO = 7, 4
        OB0 = NW * 16384
        OWN = 4 * 16384
        def ts(i):
            if OPT.get("lt") == 5: a(f"s_memtime s[{80+2*i}:{81+2*i}]")
        ts(0)
        a(f"s_cmp_eq_u32 s{S_BLK}, 0")
        srd(a, 12, 56, 66, 4096*1024*2)
        srd(a, 8, 68, 68, 8*48*2048*2, sel=False)
        a(f"""
        s_lshl_b32 s{S_WOB}, s{S_G}, 21
        s_lshl_b32 s3, s{S_NT8}, 8
        s_add_u32 s{S_WOB}, s{S_WOB}, s3
        s_mul_i32 s{S_OB}, s{S_G1}, {192*1024}
        s_add_u32 s{S_OB}, s{S_OB}, {O_OFF}
        s_lshl_b32 s74, s{S_NT8}, 1
        s_cmp_ge_u32 s{S_W}, 8
        s_cbranch_scc1 L_t_compute
        s_cmp_ge_u32 s{S_W}, 4
        s_cbranch_scc1 L_t_oload
        """)
        a(f"""
        v_lshrrev_b32 v{T_X}, 4, v{L}
        v_and_b32 v{T_X+1}, 15, v{L}
        v_lshlrev_b32 v{T_X+2}, 2, v{T_X}
        v_xor_b32 v{T_X+2}, v{T_X+2}, v{T_X+1}
        v_lshlrev_b32 v{T_X+2}, 4, v{T_X+2}
        v_lshlrev_b32 v{T_X}, 11, v{T_X}
        v_add_u32 v{T_DOFF}, v{T_X}, v{T_X+2}
        s_lshl_b32 s{S_T0}, s{S_W}, 15
        s_add_u32 s{S_WOB}, s{S_WOB}, s{S_T0}
        s_lshl_b32 s{S_T2}, s{S_W}, 12
        """)
        def issue_wo(st):
            a(f"s_add_u32 s3, s74, {st}")
            a(f"s_and_b32 s3, s3, 15")
            a(f"s_lshl_b32 s76, s3, 17")
            a(f"s_add_u32 s76, s76, s{S_WOB}")
            for q in range(4):
                a(f"s_add_u32 m0, s{S_T2}, {(st % NW)*16384 + q*1024}")
                if q: a(f"s_add_u32 s76, s76, {4*2048}")
                a(f"buffer_load_dwordx4 v{T_DOFF}, s[12:15], s76 offen lds")
        a("s_waitcnt vmcnt(0)")
        ts(1)
        a("s_barrier")
        a("s_sleep 1")
        for st in range(NW): issue_wo(st)
        a("s_barrier")
        ts(2)
        for st in range(16):
            last = min(15, max(NW - 1, st + NW - 3))
            a(f"s_waitcnt vmcnt({4 * (last - st)})")
            if OPT.get("lt") == 6 and st in LT6: a(f"s_memtime s[{80+2*LT6.index(st)}:{81+2*LT6.index(st)}]")
            a("s_barrier")
            if st >= 2 and st + NW - 2 <= 15: issue_wo(st + NW - 2)
        ts(3)
        a("s_branch L_t_join")
        a.label("L_t_oload")
        a(f"""
        v_lshlrev_b32 v{T_DOFF+1}, 4, v{L}
        s_sub_u32 s{S_T3}, s{S_W}, 4
        s_mul_i32 s{S_T3}, s{S_T3}, 3072
        s_add_u32 s{S_OB}, s{S_OB}, s{S_T3}
        """)
        def issue_o(st):
            a(f"s_add_u32 s3, s74, {st}")
            a(f"s_and_b32 s3, s3, 15")
            a(f"s_mul_i32 s76, s3, 12288")
            a(f"s_add_u32 s76, s76, s{S_OB}")
            a(f"s_add_u32 m0, s{S_T3}, {OB0 + (st % NO)*12288}")
            for q in range(3):
                a(f"buffer_load_dwordx4 v{T_DOFF+1}, s[24:27], s76 offen offset:{q*1024} {OSC()}lds")
        a("s_waitcnt vmcnt(0)")
        ts(1)
        a("s_barrier")
        a("s_barrier")
        ts(2)
        for st in range(NO): issue_o(st)
        for st in range(16):
            last = min(15, max(NO - 1, st + NO - 3))
            a(f"s_waitcnt vmcnt({3 * (last - st)})")
            if OPT.get("lt") == 6 and st in LT6: a(f"s_memtime s[{80+2*LT6.index(st)}:{81+2*LT6.index(st)}]")
            a("s_barrier")
            if st >= 2 and st + NO - 2 <= 15: issue_o(st + NO - 2)
        ts(3)
        a("s_branch L_t_join")
        a.label("L_t_compute")
        a(f"""
        v_lshrrev_b32 v{T_X}, 5, v{L}
        v_lshlrev_b32 v{T_X}, 3, v{T_X}
        v_bfe_u32 v{T_X+1}, v{L}, 2, 2
        v_add_u32 v{T_X}, v{T_X}, v{T_X+1}
        v_lshlrev_b32 v{T_X}, 8, v{T_X}
        v_bfe_u32 v{T_X+2}, v{L}, 4, 1
        v_lshlrev_b32 v{T_X+2}, 5, v{T_X+2}
        v_add_u32 v{T_X}, v{T_X}, v{T_X+2}
        v_and_b32 v{T_X+2}, 3, v{L}
        v_lshlrev_b32 v{T_X+2}, 3, v{T_X+2}
        v_add_u32 v{T_X}, v{T_X}, v{T_X+2}
        v_xor_b32 v{T_X+2}, s{S_KQ}, v{T_X+1}
        v_lshlrev_b32 v{T_X+2}, 6, v{T_X+2}
        v_add_u32 v{T_AA}, v{T_X}, v{T_X+2}
        v_lshlrev_b32 v{T_BA}, 4, v{L}
        v_add_u32 v{T_BA}, {OB0}, v{T_BA}
        """)
        for i in range(48):
            a(f"v_mov_b32 v{T_ACC+i}, 0")
        a("s_waitcnt vmcnt(0)")
        ts(1)
        a("s_barrier")
        a(f"s_cmp_eq_u32 s{S_W}, 8")
        a("s_cbranch_scc0 L_t_nopoll1")
        a("s_setprio 3")
        a(f"""
        s_lshl_b32 s3, s{S_G1}, 7
        s_add_u32 s76, s3, {FLAG_OFF}
        s_lshl_b32 s3, s{S_NT8}, 2
        s_add_u32 s77, s76, s3
        v_mov_b32 v{T_X}, 0
        v_mov_b32 v{T_X+1}, s40
        s_mov_b64 exec, 1
        buffer_store_dword v{T_X+1}, v{T_X}, s[24:27], s77 offen sc1
        s_mov_b64 exec, -1
        v_and_b32 v{T_X+2}, 7, v{L}
        v_lshlrev_b32 v{T_X+2}, 2, v{T_X+2}
        """)
        a(f"s_mov_b32 s3, s40")
        spin("L_spin_a", f"buffer_load_dword v{T_X+1}, v{T_X+2}, s[24:27], s76 offen sc1", None, T_X+1)
        a("s_setprio 0")
        a.label("L_t_nopoll1")
        a("s_barrier")
        ts(2)
        def rd_list(j):
            b = T_FR + 16*j
            out = []
            for hf in range(2):
                out.append(f"ds_read_b64_tr_b16 v[{b+2*hf}:{b+2*hf+1}], v{T_AA} offset:{j*4096 + hf*1024}")
            for m in range(3):
                out.append(f"ds_read_b128 v[{b+4+4*m}:{b+7+4*m}], v{T_BA} offset:{(j*3+m)*1024}")
            return out
        def mm_list(j):
            b = T_FR + 16*j
            return [f"v_mfma_f32_32x32x16_bf16 v[{T_ACC+16*m}:{T_ACC+16*m+15}], v[{b}:{b+3}], v[{b+4+4*m}:{b+7+4*m}], v[{T_ACC+16*m}:{T_ACC+16*m+15}]" for m in range(3)]
        def mm3(j):
            for x in mm_list(j): a(x)
        def weave(mm, rd):
            groups = [rd[0:3], rd[3:4], rd[4:5]]
            for x, g in zip(mm, groups):
                a(x)
                for y in g: a(y)
        a(f"s_mov_b32 s{S_ST}, 0")
        a(f"s_mov_b32 s{S_SLOT}, 0")
        a.label("L_t_loop")
        if OPT.get("lt") == 6:
            for k, st in enumerate(LT6):
                a(f"s_cmp_eq_u32 s{S_ST}, {st}")
                a(f"s_cbranch_scc0 L_lt6_{k}")
                a(f"s_memtime s[{80+2*k}:{81+2*k}]")
                a.label(f"L_lt6_{k}")
        a("s_barrier")
        a(f"s_cmp_eq_u32 s{S_ST}, 0")
        a("s_cbranch_scc0 L_t_left")
        for y in rd_list(0) + rd_list(1): a(y)
        a("s_branch L_t_skip")
        a.label("L_t_left")
        a("s_waitcnt lgkmcnt(5)")
        weave(mm_list(2), rd_list(0))
        a("s_waitcnt lgkmcnt(5)")
        weave(mm_list(3), rd_list(1))
        a.label("L_t_skip")
        a("s_waitcnt lgkmcnt(5)")
        weave(mm_list(0), rd_list(2))
        a("s_waitcnt lgkmcnt(5)")
        weave(mm_list(1), rd_list(3))
        a(f"""
        s_add_u32 s{S_SLOT}, s{S_SLOT}, 1
        s_cmp_eq_u32 s{S_SLOT}, {NW}
        s_cselect_b32 s{S_SLOT}, 0, s{S_SLOT}
        s_mov_b32 s3, 16384
        s_cselect_b32 s3, {(-(NW-1)*16384) & 0xffffffff}, s3
        v_add_u32 v{T_AA}, s3, v{T_AA}
        s_add_u32 s{S_ST}, s{S_ST}, 1
        s_and_b32 s3, s{S_ST}, 3
        s_mov_b32 s3, 12288
        s_cselect_b32 s3, s3, {(-3*12288) & 0xffffffff}
        v_add_u32 v{T_BA}, s3, v{T_BA}
        s_cmp_lt_u32 s{S_ST}, 16
        s_cbranch_scc1 L_t_loop
        s_waitcnt lgkmcnt(0)
        """)
        mm3(2); mm3(3)
        ts(3)
        a(f"s_cmp_eq_u32 s{S_KQ}, s{S_G}")
        a("s_cbranch_scc0 L_t_pub")
        a(f"v_lshlrev_b32 v{T_X}, 4, v{L}")
        a(f"v_add_u32 v{T_X}, {OWN}, v{T_X}")
        for m in range(3):
            for rq in range(4):
                r = T_ACC + 16*m + 4*rq
                a(f"ds_write_b128 v{T_X}, v[{r}:{r+3}] offset:{(m*4+rq)*1024}")
        a("s_waitcnt lgkmcnt(0)")
        a("s_branch L_t_join")
        a.label("L_t_pub")
        a(f"""
        s_lshl_b32 s3, s{S_G2}, 2
        s_add_u32 s3, s3, s{S_KQ}
        s_lshl_b32 s3, s3, 2
        s_add_u32 s3, s3, s{S_G}
        s_mul_i32 s76, s3, 6144
        s_add_u32 s76, s76, {PART_OFF}
        v_lshlrev_b32 v{T_X}, 3, v{L}
        """)
        for m in range(3):
            for rq in range(4):
                r = T_ACC + 16*m + 4*rq
                d = T_FR + 2*(m*4+rq)
                a(f"v_cvt_pk_bf16_f32 v{d}, v{r}, v{r+1}")
                a(f"v_cvt_pk_bf16_f32 v{d+1}, v{r+2}, v{r+3}")
        for m in range(3):
            for rq in range(4):
                d = T_FR + 2*(m*4+rq)
                off = (m*4+rq)*512
                if off == 4096: a("s_add_u32 s76, s76, 4096")
                a(f"buffer_store_dwordx2 v[{d}:{d+1}], v{T_X}, s[24:27], s76 offen offset:{off % 4096} sc1")
        a("s_waitcnt vmcnt(0)")
        a.label("L_t_join")
        ts(4)
        a("s_barrier")
        a(f"s_cmp_eq_u32 s{S_W}, 8")
        a("s_cbranch_scc0 L_t_nopoll2")
        a(f"""
        s_lshl_b32 s3, s{S_G2}, 7
        s_add_u32 s76, s3, {FLAG_OFF + 8192}
        s_lshl_b32 s3, s{S_G}, 2
        s_add_u32 s77, s76, s3
        v_mov_b32 v{T_X}, 0
        v_mov_b32 v{T_X+1}, s40
        s_mov_b64 exec, 1
        buffer_store_dword v{T_X+1}, v{T_X}, s[24:27], s77 offen sc1
        s_mov_b64 exec, -1
        v_and_b32 v{T_X+2}, 3, v{L}
        v_lshlrev_b32 v{T_X+2}, 2, v{T_X+2}
        s_mov_b32 s3, s40
        """)
        spin("L_spin_b", f"buffer_load_dword v{T_X+1}, v{T_X+2}, s[24:27], s76 offen sc1", None, T_X+1)
        a.label("L_t_nopoll2")
        a("s_barrier")
        ts(5)
        a(f"""
        s_lshl_b32 s3, s{S_G2}, 2
        s_add_u32 s3, s3, s{S_G}
        s_mul_i32 s76, s3, {4*6144}
        s_lshl_b32 s3, s{S_W}, 9
        s_add_u32 s76, s76, s3
        s_add_u32 s76, s76, {PART_OFF}
        v_lshlrev_b32 v{T_X}, 3, v{L}
        """)
        for d in range(1, 4):
            a(f"s_add_u32 s3, s{S_G}, {d}")
            a(f"s_and_b32 s3, s3, 3")
            a(f"s_mul_i32 s3, s3, 6144")
            a(f"s_add_u32 s77, s76, s3")
            a(f"buffer_load_dwordx2 v[{18+2*d}:{19+2*d}], v{T_X}, s[24:27], s77 offen sc1")
        a(f"""
        s_lshl_b32 s3, s{S_W}, 10
        s_add_u32 s3, s3, {OWN}
        v_lshlrev_b32 v{T_X+3}, 4, v{L}
        v_add_u32 v{T_X+3}, s3, v{T_X+3}
        ds_read_b128 v[16:19], v{T_X+3}
        s_mul_i32 s3, s{S_BP}, 96
        s_lshl_b32 s77, s{S_QT}, 5
        s_add_u32 s3, s3, s77
        s_lshl_b32 s3, s3, 12
        s_lshl_b32 s77, s{S_BLK}, 11
        s_add_u32 s3, s3, s77
        s_lshl_b32 s77, s{S_NT8}, 8
        s_add_u32 s3, s3, s77
        s_lshl_b32 s77, s{S_G}, 6
        s_add_u32 s3, s3, s77
        s_lshl_b32 s77, s{S_KQ}, 4
        s_add_u32 s3, s3, s77
        v_and_b32 v{T_X+1}, 31, v{L}
        v_lshlrev_b32 v{T_X+1}, 12, v{T_X+1}
        v_lshrrev_b32 v{T_X+2}, 5, v{L}
        v_lshlrev_b32 v{T_X+2}, 3, v{T_X+2}
        v_add_u32 v{T_X+1}, v{T_X+1}, v{T_X+2}
        s_waitcnt lgkmcnt(0)
        """)
        for d in range(1, 4):
            a(f"s_waitcnt vmcnt({3-d})")
            lo, hi = 18 + 2*d, 19 + 2*d
            a(f"v_lshlrev_b32 v28, 16, v{lo}")
            a(f"v_and_b32 v29, 0xffff0000, v{lo}")
            a(f"v_lshlrev_b32 v30, 16, v{hi}")
            a(f"v_and_b32 v31, 0xffff0000, v{hi}")
            for i in range(4): a(f"v_add_f32 v{16+i}, v{16+i}, v{28+i}")
        a("v_cvt_pk_bf16_f32 v20, v16, v17")
        a("v_cvt_pk_bf16_f32 v21, v18, v19")
        a(f"buffer_store_dwordx2 v[20:21], v{T_X+1}, s[8:11], s3 offen")
        ts(6)

    a.label("L_merge")
    prio(0)
    stamp(a, 2)
    tr2(40)
    F = V_F
    def mt(i):
        if OPT.get("lt") == 4: a(f"s_memtime s[{80+2*i}:{81+2*i}]")
    mt(0)
    a(f"""
    v_mov_b32 v{V_T0}, v{V_L}
    v_mov_b32 v{V_T1}, v{V_L}
    s_mul_i32 s76, s{S_KQ}, {AREA}
    v_lshlrev_b32 v{V_T2}, 4, v{L}
    v_permlane32_swap_b32 v{V_T0}, v{V_T1}
    s_mul_i32 s3, s{S_QT}, 12288
    s_add_u32 s77, s76, s3
    v_add_f32 v{V_L}, v{V_T0}, v{V_T1}
    v_add_u32 v{V_T1}, s77, v{V_T2}
    """)
    for j in range(1, 4):
        for rq in range(4):
            r = V_O + 16*j + 4*rq
            a(f"ds_write_b128 v{V_T1}, v[{r}:{r+3}] offset:{(j-1)*4096 + rq*1024}")
    mt(1)
    a(f"""
    v_and_b32 v{V_T0}, 31, v{L}
    v_lshlrev_b32 v{V_T0}, 3, v{V_T0}
    s_lshl_b32 s3, s{S_QT}, 8
    s_add_u32 s3, s3, 36864
    v_add_u32 v{V_T0}, s3, v{V_T0}
    v_add_u32 v{V_T1}, s76, v{V_T0}
    ds_write_b64 v{V_T1}, v[{V_M}:{V_L}]
    """)
    for j in range(1, 4):
        a(f"s_sub_u32 s3, s{S_KQ}, {j}")
        a(f"s_and_b32 s3, s3, 3")
        a(f"s_mul_i32 s76, s3, {AREA}")
        a(f"v_add_u32 v{V_Q+j}, s76, v{V_T0}")
        a(f"s_mul_i32 s3, s{S_QT}, 12288")
        a(f"s_add_u32 s76, s76, s3")
        a(f"v_add_u32 v{V_Q+4+j}, s76, v{V_T2}")
    A0, A1, A2, A3 = V_Q+8, V_Q+9, V_Q+10, V_Q+11
    a(f"""
    v_and_b32 v{A1}, 31, v{L}
    s_lshl_b32 s3, s{S_QT}, 5
    v_add_u32 v{A1}, s3, v{A1}
    v_cmp_le_u32 vcc, 48, v{A1}
    v_subrev_u32 v{A2}, 48, v{A1}
    v_mov_b32 v{A0}, 0
    v_mov_b32 v{A3}, {8*3072}
    v_cndmask_b32 v{A1}, v{A1}, v{A2}, vcc
    v_cndmask_b32 v{A0}, v{A0}, v{A3}, vcc
    s_and_b32 s3, s{S_B}, 1
    s_mul_i32 s3, s3, 48
    v_add_u32 v{A1}, s3, v{A1}
    v_lshrrev_b32 v{A2}, 5, v{A1}
    v_lshlrev_b32 v{A2}, 10, v{A2}
    v_add_u32 v{A0}, v{A0}, v{A2}
    v_and_b32 v{A1}, 31, v{A1}
    v_lshlrev_b32 v{A1}, 4, v{A1}
    v_add_u32 v{A0}, v{A0}, v{A1}
    v_lshrrev_b32 v{A1}, 5, v{L}
    v_lshlrev_b32 v{A1}, 3, v{A1}
    v_add_u32 v{A0}, v{A0}, v{A1}
    s_lshl_b32 s3, s{S_HP}, 4
    s_lshl_b32 s76, s{S_KQ}, 1
    s_add_u32 s3, s3, s76
    s_mul_i32 s3, s3, 3072
    s_mul_i32 s79, s{S_G1}, {192*1024}
    s_add_u32 s79, s79, s3
    s_add_u32 s79, s79, {O_OFF}
    """)
    mt(2)
    a("s_waitcnt lgkmcnt(0)")
    mt(3)
    a("s_barrier")
    mt(4)
    for j in range(1, 4):
        a(f"ds_read_b64 v[{F+2*j}:{F+2*j+1}], v{V_Q+j}")
    for j in range(1, 4):
        for rq in range(4):
            r = V_O + 16*j + 4*rq
            a(f"ds_read_b128 v[{r}:{r+3}], v{V_Q+4+j} offset:{(j-1)*4096 + rq*1024}")
    a("s_waitcnt lgkmcnt(12)")
    mt(5)
    a(f"""
    v_max3_f32 v{F+8}, v{V_M}, v{F+2}, v{F+4}
    v_max_f32 v{F+8}, v{F+8}, v{F+6}
    v_sub_f32 v{F+10}, v{V_M}, v{F+8}
    v_sub_f32 v{F+12}, v{F+2}, v{F+8}
    v_sub_f32 v{F+14}, v{F+4}, v{F+8}
    v_sub_f32 v{F+16}, v{F+6}, v{F+8}
    v_exp_f32 v{F+10}, v{F+10}
    v_exp_f32 v{F+12}, v{F+12}
    v_exp_f32 v{F+14}, v{F+14}
    v_exp_f32 v{F+16}, v{F+16}
    v_mul_f32 v{F+18}, v{F+10}, v{V_L}
    v_fma_f32 v{F+18}, v{F+12}, v{F+3}, v{F+18}
    v_fma_f32 v{F+18}, v{F+14}, v{F+5}, v{F+18}
    v_fma_f32 v{F+18}, v{F+16}, v{F+7}, v{F+18}
    v_rcp_f32 v{F+18}, v{F+18}
    v_mul_f32 v{F+10}, v{F+10}, v{F+18}
    v_mul_f32 v{F+12}, v{F+12}, v{F+18}
    v_mul_f32 v{F+14}, v{F+14}, v{F+18}
    v_mul_f32 v{F+16}, v{F+16}, v{F+18}
    """)
    mt(6)
    for i in range(0, 16, 2):
        a(f"v_pk_mul_f32 v[{V_O+i}:{V_O+i+1}], v[{V_O+i}:{V_O+i+1}], v[{F+10}:{F+11}] op_sel_hi:[1,0]")
    for j in range(1, 4):
        a(f"s_waitcnt lgkmcnt({12 - 4*j})")
        if j == 3: a("s_barrier")
        for i in range(0, 16, 2):
            a(f"v_pk_fma_f32 v[{V_O+i}:{V_O+i+1}], v[{V_O+16*j+i}:{V_O+16*j+i+1}], v[{F+10+2*j}:{F+11+2*j}], v[{V_O+i}:{V_O+i+1}] op_sel_hi:[1,0,1]")
    mt(7)
    for rq in range(4):
        a(f"v_cvt_pk_bf16_f32 v{F+20+2*rq}, v{V_O+4*rq}, v{V_O+4*rq+1}")
        a(f"v_cvt_pk_bf16_f32 v{F+20+2*rq+1}, v{V_O+4*rq+2}, v{V_O+4*rq+3}")
    for rq in range(4):
        a(f"buffer_store_dwordx2 v[{F+20+2*rq}:{F+20+2*rq+1}], v{A0}, s[24:27], s79 offen offset:{(rq & 1)*512} sc1" if rq < 2 else
          f"buffer_store_dwordx2 v[{F+20+2*rq}:{F+20+2*rq+1}], v{A0}, s[24:27], s79 offen offset:{3072 + (rq & 1)*512} sc1")
    gen_tail()
    stamp(a, 3)
    tr2(41)
    trace_dump(a, 167, 100, S_W, V_LANE, 1)
    if OPT.get("lt"):
        a("s_waitcnt lgkmcnt(0)")
        a(f"s_lshl_b32 s3, s2, 4")
        a(f"s_add_u32 s3, s3, s{S_W}")
        a(f"s_lshl_b32 s3, s3, 8")
        a(f"s_add_u32 s3, s3, {(56 << 20) + (1 << 20)}")
        a("v_mov_b32 v102, s3")
        for i in range(11):
            a(f"v_mov_b32 v100, s{80+2*i}")
            a(f"buffer_store_dword v100, v102, s[24:27], 0 offen offset:{4*i}")
            a("s_waitcnt vmcnt(0)")
    if OPT["stamps"]: a("s_memtime s[90:91]")
    if OPT.get("dbgclk"):
        a(f"""
        s_waitcnt lgkmcnt(0)
        s_cmp_eq_u32 s2, {OPT.get("dbgwg", 77)}
        s_cbranch_scc0 L_nodbg
        s_cmp_eq_u32 s{S_W}, 0
        s_cbranch_scc0 L_nodbg
        s_sub_u32 s90, s90, s88
        s_sub_u32 s82, s82, s80
        s_sub_u32 s84, s84, s80
        s_sub_u32 s86, s86, s80
        v_mov_b32 v100, s90
        v_mov_b32 v101, s82
        v_mov_b32 v102, s84
        v_mov_b32 v103, s86
        v_mov_b32 v104, 0
        s_mov_b64 exec, 1
        buffer_store_dwordx4 v[100:103], v104, s[16:19], 0 offen
        s_mov_b64 exec, -1
        L_nodbg:
        """)
    else:
        stamp_flush(a, 6, 100, S_W, 0)
    a("s_endpgm")
    a.label("L_slow_first")
    a(f"v_cndmask_b32 v{V_M}, v{V_M}, v{V_T0}, vcc")
    a(f"s_mov_b64 s[{S_SLOW}:{S_SLOW+1}], -1")
    a(f"v_add_f32 v{V_THR}, s{S_TC}, v{V_M}")
    a("s_branch L_slow_sub")
    a.label("L_slow")
    a("s_cbranch_vccz L_slow_sub")
    a(f"v_max_f32 v{V_T1}, v{V_M}, v{V_T0}")
    a(f"v_cndmask_b32 v{V_T1}, v{V_M}, v{V_T1}, vcc")
    a.label("L_slow_upd")
    a(f"""
    s_mov_b64 s[{S_SLOW}:{S_SLOW+1}], -1
    v_sub_f32 v{V_T2}, v{V_M}, v{V_T1}
    v_exp_f32 v{V_T2}, v{V_T2}
    v_mov_b32 v{V_M}, v{V_T1}
    v_add_f32 v{V_THR}, s{S_TC}, v{V_T1}
    v_mul_f32 v{V_L}, v{V_L}, v{V_T2}
    """)
    for i in range(64):
        a(f"v_mul_f32 v{V_O+i}, v{V_T2}, v{V_O+i}")
    a.label("L_slow_sub")
    for i in range(16):
        a(f"v_sub_f32 v{V_S+i}, v{V_S+i}, v{V_M}")
    a("s_nop 1")
    a(f"s_setpc_b64 s[{S_RET}:{S_RET+1}]")
    a.label("L_k1_end")
    a("s_endpgm")
    return a

def build():
    k1 = gen_k1().finalize()
    h1, d1 = kernel_text("gqa_fused_kernel", k1, 168)
    hdr = open("concat_heads__gqa_block_cached__gqa_block_cached__near_ridge.s.ref").read().split("; Override")[0]
    txt = hdr
    txt += "; @launch kernel=gqa_fused_kernel grid=(256,1,1) block=(768,1,1) lds=163840\n"
    txt += '.amdgcn_target "amdgcn-amd-amdhsa--gfx950"\n.text\n' + h1
    txt += '.section .rodata,"a"\n.p2align 6\n' + d1
    return txt

if __name__ == "__main__":
    out = sys.argv[1]
    for kv in sys.argv[2:]:
        k, v = kv.split("=")
        OPT[k] = int(v, 0)
    open(out, "w").write(build())
    print("wrote", out)
```

```python
import sys, math, struct
from asmlib import *
import gen as G1
G1.OPT["stamp_off"] = 48 << 20
from gen import f2u, load_ptrs, srd, AREA, C_SCALE, T_LOG2

OPT = G1.OPT
stamp, stamp_flush, trace, trace_dump = G1.stamp, G1.stamp_flush, G1.trace, G1.trace_dump
NT = G1.NT

NTQ = lambda: 'nt ' if OPT.get('nt_wq') else ''
NTX = lambda: 'nt ' if OPT.get('nt_x') else ''
NTKV = lambda: 'nt ' if OPT.get('nt_kv') else ''
NTWO = lambda: 'nt ' if OPT.get('nt_wo') else ''
OSC = lambda: '' if OPT.get('o_plain') else 'sc1 '
LT6 = (0, 1, 2, 3, 4, 6, 8, 10, 12, 14, 15)
O_OFF = 0
FLAG_OFF = 8 << 20
PART_OFF = 16 << 20
TOK_A, TOK_B = 0x5EED0A01, 0x5EED0B02
SPIN_MAX = 1 << 18

def emit_tile(a, dst, s_cnt, phi, m1, m3, win, r, t0, t1, t2):
    sc = f"s{s_cnt}" if isinstance(s_cnt, int) else str(s_cnt[1])
    a(f"s_add_u32 s{t0}, s{phi}, {win}")
    a(f"s_sub_u32 s{t1}, {win}, s{phi}")
    a(f"s_mov_b32 s{t2}, s{m3}")
    a(f"s_cmp_lt_u32 {sc}, s{t0}" if isinstance(s_cnt, int) else f"s_cmp_gt_u32 s{t0}, {sc}")
    a(f"s_cselect_b32 s{t0}, s{phi}, s{t0}")
    a(f"s_cselect_b32 s{t1}, {win}, s{t1}")
    a(f"s_cselect_b32 s{t2}, {256 // win}, s{t2}")
    a(f"s_cmp_lt_u32 {sc}, s{phi}" if isinstance(s_cnt, int) else f"s_cmp_gt_u32 s{phi}, {sc}")
    a(f"s_cselect_b32 s{t0}, 0, s{t0}")
    a(f"s_cselect_b32 s{t1}, s{phi}, s{t1}")
    a(f"s_cselect_b32 s{t2}, s{m1}, s{t2}")
    a(f"s_sub_u32 s{dst}, {sc}, s{t0}")
    a(f"s_add_u32 s{dst}, s{dst}, s{r}")
    a(f"s_mul_i32 s{t2}, s{dst}, s{t2}")
    a(f"s_lshr_b32 s{t2}, s{t2}, 8")
    a(f"s_mul_i32 s{t2}, s{t2}, s{t1}")
    a(f"s_sub_u32 s{dst}, s{dst}, s{t2}")
    a(f"s_add_u32 s{dst}, s{dst}, s{t0}")

def gen_k1():
    a = Asm()
    S_PHI, S_M1, S_M3, S_P2 = 4, 5, 6, 7
    S_BP, S_NT8, S_G1, S_G2 = 54, 55, 58, 59
    S_W, S_BLK, S_G, S_B, S_HP, S_KQ, S_QT = 28, 29, 30, 31, 32, 33, 34
    S_C, S_NC, S_TC = 35, 36, 37
    S_RET = 38
    S_SLOW = 50
    T_HI, T_LO = 16.0, 64.0
    S_T0, S_T1, S_T2, S_T3 = 41, 42, 43, 44
    S_WQB, S_XB, S_KVB = 45, 46, 47
    S_CNT, S_SLOT = 75, 78
    V_O, V_Q, V_S, V_F, V_KA, V_VA = 0, 64, 96, 112, 144, 152
    V_M, V_L, V_NMC, V_THR, V_T0, V_T1, V_T2, V_LANE, V_DOFF = 156, 157, 158, 159, 160, 161, 162, 163, 164
    L = V_LANE

    def group_ids():
        a(f"""
        s_lshr_b32 s{S_BP}, s{S_B}, 1
        s_and_b32 s{S_NT8}, s{S_B}, 1
        s_lshl_b32 s{S_NT8}, s{S_NT8}, 2
        s_add_u32 s{S_NT8}, s{S_NT8}, s{S_HP}
        s_lshl_b32 s{S_G1}, s{S_BLK}, 2
        s_add_u32 s{S_G1}, s{S_G1}, s{S_G}
        s_lshl_b32 s{S_G1}, s{S_G1}, 2
        s_add_u32 s{S_G1}, s{S_G1}, s{S_BP}
        s_lshl_b32 s{S_G2}, s{S_BLK}, 2
        s_add_u32 s{S_G2}, s{S_G2}, s{S_BP}
        s_lshl_b32 s{S_G2}, s{S_G2}, 3
        s_add_u32 s{S_G2}, s{S_G2}, s{S_NT8}
        """)
    a("s_cmp_ge_u32 s2, 256")
    a("s_cbranch_scc1 L_k1_end")
    stamp(a, 0)
    if OPT["stamps"]: a("s_memtime s[88:89]")
    if OPT.get("lt") == 7: a("s_memtime s[80:81]")
    load_ptrs(a)
    if OPT.get("trace"):
        a("v_mov_b32 v120, 0")
        a("v_mov_b32 v167, 0")
        trace(a, 120, idx_imm=63)
    a(f"""
    v_lshrrev_b32 v1, 6, v0
    v_and_b32 v{L}, 63, v0
    s_and_b32 s3, s2, 7
    v_readfirstlane_b32 s{S_W}, v1
    s_lshr_b32 s{S_BLK}, s3, 2
    s_and_b32 s{S_G}, s3, 3
    s_lshr_b32 s3, s2, 3
    s_lshr_b32 s{S_B}, s3, 2
    s_and_b32 s{S_HP}, s3, 3
    s_and_b32 s{S_KQ}, s{S_W}, 3
    s_lshr_b32 s{S_QT}, s{S_W}, 2
    s_lshl_b32 s{S_WQB}, s{S_G}, 11
    s_lshl_b32 s3, s{S_HP}, 9
    s_add_u32 s{S_WQB}, s{S_WQB}, s3
    s_mul_i32 s{S_XB}, s{S_B}, {48*2048}
    s_cmp_ge_u32 s{S_W}, 8
    s_cbranch_scc1 L_p1_compute
    """)
    a(f"""
    v_lshrrev_b32 v5, 5, v{L}
    v_and_b32 v6, 31, v{L}
    s_and_b32 s{S_T1}, s{S_W}, 1
    s_lshl_b32 s{S_T1}, s{S_T1}, 2
    v_or_b32 v7, s{S_T1}, v5
    v_lshlrev_b32 v8, 1, v7
    v_xor_b32 v8, v8, v6
    v_lshlrev_b32 v8, 4, v8
    v_lshlrev_b32 v9, 13, v5
    v_add_u32 v2, v9, v8
    v_xor_b32 v8, 64, v8
    v_add_u32 v3, v9, v8
    s_mul_i32 s{S_T1}, s{S_W}, 6
    v_lshrrev_b32 v5, 3, v{L}
    v_add_u32 v5, s{S_T1}, v5
    v_lshrrev_b32 v6, 1, v5
    v_xor_b32 v6, v6, v{L}
    v_and_b32 v6, 7, v6
    v_lshlrev_b32 v6, 4, v6
    v_lshlrev_b32 v5, 11, v5
    v_add_u32 v4, v5, v6
    s_lshl_b32 s{S_T2}, s{S_W}, 16
    s_add_u32 s{S_WQB}, s{S_WQB}, s{S_T2}
    s_lshl_b32 s{S_T2}, s{S_W}, 12
    s_mul_i32 s{S_T3}, s{S_W}, 768
    s_add_u32 s{S_T3}, s{S_T3}, 32768
    """)
    if OPT.get("stag1", 2) == 1:
        a(f"""
        s_add_u32 s{S_PHI}, s{S_HP}, 1
        s_lshl_b32 s3, s{S_HP}, 3
        s_lshr_b32 s{S_M1}, 0x3f557fff, s3
        s_and_b32 s{S_M1}, s{S_M1}, 0xff
        s_add_u32 s{S_M1}, s{S_M1}, 1
        s_lshr_b32 s{S_M3}, 0x40342b25, s3
        s_and_b32 s{S_M3}, s{S_M3}, 0xff
        """)
    else:
        pa, pb = OPT.get("phiA", 8), OPT.get("phiB", 4)
        Mt = lambda n: -(-256 // n) if n else 1
        a(f"""
        s_cmp_eq_u32 s{S_BLK}, 0
        s_mov_b32 s{S_PHI}, {pb}
        s_cselect_b32 s{S_PHI}, {pa}, s{S_PHI}
        s_mov_b32 s{S_M1}, {Mt(pb)}
        s_cselect_b32 s{S_M1}, {Mt(pa)}, s{S_M1}
        s_mov_b32 s{S_M3}, {Mt(8-pb)}
        s_cselect_b32 s{S_M3}, {Mt(8-pa)}, s{S_M3}
        """)
    a(f"""
    s_cmp_eq_u32 s{S_BLK}, 0
    s_waitcnt lgkmcnt(0)
    """)
    if OPT.get("lt") == 7: a("s_memtime s[82:83]")
    srd(a, 8, 48, 58, 8*48*1024*2)
    srd(a, 12, 54, 64, 1024*4096*2)
    def issue_tile():
        if OPT.get("stag1", 2):
            emit_tile(a, 3, S_CNT, S_PHI, S_M1, S_M3, 8, S_B, 76, 77, 79)
        else:
            a(f"""
            s_add_u32 s3, s{S_CNT}, s{S_B}
            s_and_b32 s3, s3, 7
            s_and_b32 s76, s{S_CNT}, 8
            s_or_b32 s3, s3, s76
            """)
        a(f"""
        s_lshl_b32 s76, s3, 19
        s_add_u32 s76, s76, s{S_WQB}
        s_add_u32 s77, s{S_SLOT}, s{S_T2}
        """)
        def wq4(nt):
            for q in range(4):
                a(f"s_add_u32 m0, s77, {q*1024}")
                if q: a(f"s_add_u32 s76, s76, {2*8192}")
                a(f"buffer_load_dwordx4 v{2 + (q & 1)}, s[12:15], s76 offen {nt}lds")
        if OPT.get("ntf_wq"):
            l1, l2 = a.newlabel("L_wqn"), a.newlabel("L_wqd")
            a(f"s_and_b32 s79, s{S_CNT}, 7")
            a(f"s_cbranch_scc1 {l1}")
            wq4("nt ")
            a(f"s_branch {l2}")
            a.label(l1)
            wq4("")
            a.label(l2)
        else:
            wq4(NTQ())
        a(f"""
        s_lshl_b32 s76, s3, 7
        s_add_u32 s76, s76, s{S_XB}
        s_add_u32 m0, s{S_SLOT}, s{S_T3}
        s_mov_b32 exec_hi, {'0xffff' if not OPT.get('xfull') else '-1'}
        buffer_load_dwordx4 v4, s[8:11], s76 offen {NTX()}lds
        s_mov_b32 exec_hi, -1
        """)
    a(f"s_mov_b32 s{S_CNT}, 0")
    a(f"s_mov_b32 s{S_SLOT}, 0")
    issue_tile()
    a(f"""
    s_or_b32 s3, s2, s{S_W}
    s_cmp_eq_u32 s3, 0
    s_cbranch_scc0 L_notok
    s_memrealtime s[76:77]
    s_mov_b32 s16, s70
    s_mov_b32 s17, s71
    s_mov_b32 s18, 256
    s_mov_b32 s19, 0x00020000
    v_mov_b32 v10, 0
    s_waitcnt lgkmcnt(0)
    s_or_b32 s76, s76, 1
    v_mov_b32 v11, s76
    s_mov_b64 exec, 1
    buffer_store_dword v11, v10, s[16:19], 0 offen sc1
    s_mov_b64 exec, -1
    L_notok:
    """)
    if OPT.get("tlbw", 1):
        a(f"s_cmp_eq_u32 s{S_W}, {OPT.get('tlbw_wave', 0)}")
        a("s_cbranch_scc0 L_notlb")
        a(f"""
        v_lshlrev_b32 v10, 21, v{L}
        s_mov_b64 exec, 0xf
        buffer_load_dword v11, v10, s[12:15], 0 offen
        s_cmp_eq_u32 s{S_BLK}, 0
        """)
        srd(a, 16, 50, 60, 8*4*1024*128*2)
        srd(a, 20, 52, 62, 8*4*1024*128*2)
        a(f"""
        s_lshl_b32 s3, s{S_B}, 2
        s_add_u32 s3, s3, s{S_G}
        s_lshl_b32 s3, s3, 18
        s_mov_b64 exec, 1
        v_mov_b32 v10, 0
        buffer_load_dword v11, v10, s[16:19], s3 offen
        buffer_load_dword v11, v10, s[20:23], s3 offen
        s_cmp_eq_u32 s{S_BLK}, 0
        s_cselect_b32 s16, s56, s66
        s_cselect_b32 s17, s57, s67
        s_mov_b32 s18, {4096*1024*2}
        s_lshl_b32 s3, s{S_G}, 21
        buffer_load_dword v11, v10, s[16:19], s3 offen
        s_mov_b32 s16, s72
        s_mov_b32 s17, s73
        s_mov_b32 s18, {1 << 28}
        s_mov_b64 exec, -1
        v_lshlrev_b32 v10, 21, v{L}
        s_mov_b64 exec, 0x7fff
        buffer_load_dword v11, v10, s[16:19], 0 offen
        s_mov_b32 s16, s68
        s_mov_b32 s17, s69
        s_mov_b32 s18, {8*48*2048*2}
        s_mov_b64 exec, 1
        v_mov_b32 v10, 0
        buffer_load_dword v11, v10, s[16:19], 0 offen
        s_mov_b64 exec, -1
        L_notlb:
        """)
    if OPT.get("b01", 1): a("s_barrier")
    a(f"s_mov_b32 s{S_CNT}, 1")
    a(f"s_mov_b32 s{S_SLOT}, {AREA}")
    issue_tile()
    a(f"s_mov_b32 s{S_CNT}, 2")
    a(f"s_mov_b32 s{S_SLOT}, {2*AREA}")
    if OPT.get("lt") == 7: a("s_memtime s[84:85]")
    a(f"s_cmp_eq_u32 s{S_BLK}, 0")
    srd(a, 16, 50, 60, 8*4*1024*128*2)
    srd(a, 20, 52, 62, 8*4*1024*128*2)
    srd(a, 24, 72, 72, 1 << 28, sel=False)
    group_ids()
    a(f"""
    s_lshl_b32 s3, s{S_B}, 2
    s_add_u32 s3, s3, s{S_G}
    s_lshl_b32 s{S_KVB}, s3, 18
    s_lshl_b32 s3, s{S_KQ}, 16
    s_add_u32 s{S_KVB}, s{S_KVB}, s3
    v_lshrrev_b32 v5, 4, v{L}
    v_and_b32 v6, 15, v{L}
    v_lshlrev_b32 v7, 8, v5
    v_xor_b32 v8, v6, v5
    v_lshlrev_b32 v9, 4, v8
    v_add_u32 v{V_DOFF}, v7, v9
    v_xor_b32 v9, 64, v9
    v_add_u32 v{V_DOFF+1}, v7, v9
    v_xor_b32 v9, 0xc0, v9
    v_add_u32 v{V_DOFF+2}, v7, v9
    v_xor_b32 v9, 64, v9
    v_add_u32 v{V_DOFF+3 if not OPT.get("trace") else V_T2}, v7, v9
    s_cmp_eq_u32 s{S_QT}, 0
    s_cbranch_scc1 L_voff_done
    v_lshlrev_b32 v8, 2, v5
    v_xor_b32 v8, v8, v6
    v_lshlrev_b32 v8, 4, v8
    v_add_u32 v{V_DOFF}, v7, v8
    L_voff_done:
    """)
    a(f"""
    s_and_b32 s3, s{S_B}, 3
    s_add_u32 s60, s3, 1
    s_lshl_b32 s3, s3, 3
    s_lshr_b32 s61, 0x3f557fff, s3
    s_and_b32 s61, s61, 0xff
    s_add_u32 s61, s61, 1
    s_lshr_b32 s62, 0x00ff7f55, s3
    s_and_b32 s62, s62, 0xff
    s_add_u32 s62, s62, 1
    s_mov_b32 s{S_P2}, 0
    """)
    for i in range(8):
        if OPT.get("stag2", 1):
            emit_tile(a, 63, ("imm", i), 60, 61, 62, 4, S_HP, 64, 65, 79)
        else:
            R2 = OPT.get("rot2", 4)
            a(f"s_add_u32 s63, s{S_HP}, {i}")
            a(f"s_and_b32 s63, s63, {R2 - 1}")
            a(f"s_or_b32 s63, s63, {i & ~(R2 - 1)}")
            if OPT.get("kvoff"):
                a(f"s_add_u32 s63, s63, s{S_B}")
                a(f"s_and_b32 s63, s63, 7")
        a(f"s_lshl_b32 s63, s63, {4*i}")
        a(f"s_or_b32 s{S_P2}, s{S_P2}, s63")
    a.label("L_p1_ld_loop")
    a("s_waitcnt vmcnt(5)")
    trace(a, 120, idx_sreg=S_CNT)
    if OPT.get("lt") == 7:
        for k, cnt in enumerate((2, 3, 4, 9, 10, 11, 15)):
            a(f"s_cmp_eq_u32 s{S_CNT}, {cnt}")
            a(f"s_cbranch_scc0 L_lt7_{k}")
            a(f"s_memtime s[{86+2*k}:{87+2*k}]")
            a.label(f"L_lt7_{k}")
    a("s_barrier")
    if OPT.get("trace"): a(f"s_add_u32 s94, s{S_CNT}, 16")
    trace(a, 120, idx_sreg=94)
    issue_tile()
    if OPT.get("trace"): a(f"s_add_u32 s94, s{S_CNT}, 32")
    trace(a, 120, idx_sreg=94)
    a(f"""
    s_add_u32 s{S_SLOT}, s{S_SLOT}, {AREA}
    s_cmp_eq_u32 s{S_SLOT}, {3*AREA}
    s_cselect_b32 s{S_SLOT}, 0, s{S_SLOT}
    s_add_u32 s{S_CNT}, s{S_CNT}, 1
    s_cmp_lt_u32 s{S_CNT}, 16
    s_cbranch_scc1 L_p1_ld_loop
    """)
    def tile_soff(step, dst):
        a(f"""
        s_bfe_u32 s{dst}, s{S_P2}, {(4 << 16) | (4*step)}
        s_lshl_b32 s{dst}, s{dst}, 13
        s_add_u32 s{dst}, s{dst}, s{S_KVB}
        """)
    def dma8(step, lds_off, voff_fn, srdb):
        ntk = "nt " if (OPT.get("nt_kv") or (OPT.get("ntf_kv") and step % OPT.get("rot2", 4) == 0)) else ""
        tile_soff(step, 76)
        a(f"s_mul_i32 s77, s{S_KQ}, {AREA}")
        a(f"s_add_u32 m0, s77, {lds_off}")
        for q in range(8):
            if q == 4:
                a(f"s_add_u32 m0, s77, {lds_off + 4096}")
                a(f"s_add_u32 s76, s76, 4096")
            a(f"buffer_load_dwordx4 v{voff_fn(q)}, s[{srdb}:{srdb+3}], s76 offen offset:{(q & 3) * 1024} {ntk}lds")
    def issue_k(step):
        if OPT.get("trace"):
            a(f"v_xor_b32 v{V_T2}, 64, v{V_DOFF+2}")
            dma8(step, (step % 3) * 8192, lambda q: (V_DOFF + (q & 3)) if (q & 3) != 3 else V_T2, 16)
        else:
            dma8(step, (step % 3) * 8192, lambda q: V_DOFF + (q & 3), 16)
    def issue_v(step): dma8(step, 24576 + (step % 2) * 8192, lambda q: V_DOFF, 20)
    def call_early_if(kq):
        lab = a.newlabel("L_ne")
        a(f"s_cmp_eq_u32 s{S_KQ}, {kq}")
        a(f"s_cbranch_scc0 {lab}")
        a(f"s_call_b64 s[{S_RET}:{S_RET+1}], L_early")
        a.label(lab)
    a("s_waitcnt vmcnt(5)")
    call_early_if(3)
    a("s_barrier")
    call_early_if(1)
    a(f"""
    s_and_b32 s3, s{S_KQ}, 1
    s_cmp_eq_u32 s3, 1
    s_cbranch_scc1 L_w15_early
    s_waitcnt vmcnt(0)
    s_branch L_w15_done
    L_w15_early:
    s_cmp_eq_u32 s{S_QT}, 0
    s_cbranch_scc1 L_w15_k
    s_waitcnt vmcnt(8)
    s_branch L_w15_done
    L_w15_k:
    s_waitcnt vmcnt(16)
    L_w15_done:
    """)
    a("s_barrier")
    call_early_if(2)
    a("s_barrier")
    call_early_if(0)
    a("s_branch L_p1_join")
    a.label("L_early")
    a(f"s_cmp_eq_u32 s{S_QT}, 0")
    a("s_cbranch_scc0 L_early_v")
    issue_k(0)
    issue_k(1)
    a(f"s_setpc_b64 s[{S_RET}:{S_RET+1}]")
    a.label("L_early_v")
    issue_v(0)
    a(f"s_setpc_b64 s[{S_RET}:{S_RET+1}]")

    a.label("L_p1_compute")
    P_ACC, P_A, P_B, P_WA, P_XA = 0, 48, 80, 104, 108
    a(f"""
    v_lshrrev_b32 v110, 4, v{L}
    v_and_b32 v111, 15, v{L}
    v_lshrrev_b32 v112, 2, v111
    v_and_b32 v113, 3, v111
    v_lshlrev_b32 v114, 3, v110
    v_add_u32 v114, v114, v112
    v_lshlrev_b32 v114, 9, v114
    v_lshlrev_b32 v113, 3, v113
    v_add_u32 v114, v114, v113
    v_and_b32 v115, 1, v110
    v_lshlrev_b32 v115, 2, v115
    v_or_b32 v115, v115, v112
    s_lshl_b32 s{S_T0}, s{S_KQ}, 2
    """)
    for dt in range(4):
        a(f"s_add_u32 s{S_T1}, s{S_T0}, {dt}")
        a(f"v_xor_b32 v116, s{S_T1}, v115")
        a(f"v_lshlrev_b32 v116, 5, v116")
        a(f"v_add_u32 v{P_WA+dt}, v114, v116")
    a(f"""
    v_lshrrev_b32 v112, 1, v111
    v_xor_b32 v112, v112, v110
    v_lshlrev_b32 v112, 4, v112
    v_lshlrev_b32 v113, 7, v111
    v_add_u32 v112, v112, v113
    v_add_u32 v{P_XA}, 32768, v112
    v_xor_b32 v{P_XA+1}, 64, v{P_XA}
    """)
    for i in range(48):
        a(f"v_mov_b32 v{P_ACC+i}, 0")
    for i in range(4):
        a(f"v_mov_b32 v{V_DOFF+i}, 0")
    a(f"s_waitcnt lgkmcnt(0)")
    srd(a, 24, 72, 72, 1 << 28, sel=False)
    a(f"s_cmp_eq_u32 s{S_BLK}, 0")
    srd(a, 16, 50, 60, 8*4*1024*128*2)
    srd(a, 20, 52, 62, 8*4*1024*128*2)
    if OPT.get("b01", 1) and OPT.get("xpf_late"): a("s_barrier")
    if OPT.get("xpf", 1):
        a(f"s_cmp_eq_u32 s{S_BLK}, 0")
        srd(a, 8, 48, 58, 8*48*1024*2)
        a(f"""
        s_cmp_eq_u32 s{S_KQ}, 3
        s_cbranch_scc1 L_noxpf
        s_mul_i32 s3, s{S_HP}, 24576
        s_add_u32 s3, s3, s{S_XB}
        s_lshl_b32 s76, s{S_KQ}, 13
        s_add_u32 s3, s3, s76
        v_lshlrev_b32 v126, 7, v{L}
        buffer_load_dword v128, v126, s[8:11], s3 offen
        L_noxpf:
        """)
    if OPT.get("b01", 1) and not OPT.get("xpf_late"): a("s_barrier")
    group_ids()
    a(f"""
    s_mov_b32 s16, s70
    s_mov_b32 s17, s71
    s_mov_b32 s18, 256
    s_mov_b32 s19, 0x00020000
    s_mov_b32 s40, 0
    v_mov_b32 v126, 0
    v_mov_b32 v127, 1
    """)
    a(f"s_mov_b32 s{S_KVB}, 0")
    a(f"s_mov_b32 s{S_CNT}, 0")
    a(f"s_mov_b32 s{S_SLOT}, 0")
    def rd_ks(ks):
        if OPT.get("nocomp"): return
        for dt in range(4):
            for hf in range(2):
                r = P_A + ks*16 + dt*4 + hf*2
                a(f"ds_read_b64_tr_b16 v[{r}:{r+1}], v{P_WA+dt} offset:{ks*16384 + hf*2048}")
    def rd_x(ks):
        if OPT.get("nocomp"): return
        for st in range(3):
            r = P_B + ks*12 + st*4
            a(f"ds_read_b128 v[{r}:{r+3}], v{P_XA+ks} offset:{st*2048}")
    def mm(ks):
        if OPT.get("nocomp"): return
        for dt in range(4):
            for st in range(3):
                ac = P_ACC + (dt*3+st)*4
                ra = P_A + ks*16 + dt*4; rb = P_B + ks*12 + st*4
                a(f"v_mfma_f32_16x16x32_bf16 v[{ac}:{ac+3}], v[{ra}:{ra+3}], v[{rb}:{rb+3}], v[{ac}:{ac+3}]")
    a.label("L_p1_c_loop")
    trace(a, 120, idx_sreg=S_CNT)
    a("s_barrier")

    if OPT.get("trace"): a(f"s_add_u32 s94, s{S_CNT}, 16")
    trace(a, 120, idx_sreg=94)
    rd_x(0); rd_ks(0)
    a(f"s_cmp_eq_u32 s{S_CNT}, 0")
    a("s_cbranch_scc1 L_p1_c_skip")
    mm(1)
    a.label("L_p1_c_skip")
    rd_x(1); rd_ks(1)
    a("s_waitcnt lgkmcnt(11)")
    mm(0)
    a(f"""
    s_add_u32 s{S_SLOT}, s{S_SLOT}, 1
    s_cmp_eq_u32 s{S_SLOT}, 3
    s_cselect_b32 s{S_SLOT}, 0, s{S_SLOT}
    s_mov_b32 s3, {AREA}
    s_cselect_b32 s3, {(-2*AREA) & 0xffffffff}, s3
    """)
    for r in list(range(P_WA, P_WA+4)) + [P_XA, P_XA+1]:
        a(f"v_add_u32 v{r}, s3, v{r}")
    a(f"""
    s_add_u32 s{S_CNT}, s{S_CNT}, 1
    s_cmp_lt_u32 s{S_CNT}, 16
    s_waitcnt lgkmcnt(0)
    s_cbranch_scc1 L_p1_c_loop
    s_barrier
    """)
    mm(1)
    a(f"""
    s_mov_b32 s{S_C}, {f2u(C_SCALE)}
    v_lshrrev_b32 v110, 4, v{L}
    v_and_b32 v111, 15, v{L}
    v_lshlrev_b32 v112, 8, v111
    v_and_b32 v113, 1, v110
    v_lshlrev_b32 v113, 3, v113
    v_add_u32 v112, v112, v113
    v_lshrrev_b32 v113, 1, v110
    s_and_b32 s{S_T0}, s{S_KQ}, 1
    s_lshl_b32 s{S_T0}, s{S_T0}, 3
    v_add_u32 v113, s{S_T0}, v113
    s_lshr_b32 s{S_T1}, s{S_KQ}, 1
    s_cmp_eq_u32 s{S_T1}, 0
    s_mov_b32 s76, {2*AREA+16384+4096}
    s_mov_b32 s77, {3*AREA+16384}
    s_mov_b32 s78, {3*AREA+16384+4096}
    s_cselect_b32 s76, {1*AREA+16384}, s76
    s_cselect_b32 s77, {1*AREA+16384+4096}, s77
    s_cselect_b32 s78, {2*AREA+16384}, s78
    """)
    for dt in range(4):
        a(f"v_add_u32 v114, {2*dt}, v113")
        a(f"v_xor_b32 v114, v114, v111")
        a(f"v_lshlrev_b32 v114, 4, v114")
        a(f"v_add_u32 v114, v114, v112")
        for st in range(3):
            ac = P_ACC + (dt*3+st)*4
            t = 116 + 2*(st & 1)
            for e in range(4): a(f"v_mul_f32 v{ac+e}, s{S_C}, v{ac+e}")
            a(f"v_cvt_pk_bf16_f32 v{t}, v{ac}, v{ac+1}")
            a(f"v_cvt_pk_bf16_f32 v{t+1}, v{ac+2}, v{ac+3}")
            a(f"v_add_u32 v{123+st}, s{76+st}, v114")
            a(f"ds_write_b64 v{123+st}, v[{t}:{t+1}]")
    a("s_waitcnt lgkmcnt(0)")

    a.label("L_p1_join")
    trace(a, 120, idx_imm=60)
    if OPT.get("lt") == 7: a("s_memtime s[100:101]")
    a("s_barrier")
    trace(a, 120, idx_imm=61)
    trace_dump(a, 120, 121, S_W, V_LANE, 0)
    if OPT.get("trace"): a("v_mov_b32 v167, 0")
    stamp(a, 1)
    a(f"""
    s_mov_b32 s{S_TC}, {f2u(T_HI)}
    s_mov_b32 s{S_NC}, {f2u(-T_LO)}
    s_mov_b64 s[{S_SLOW}:{S_SLOW+1}], 0
    v_and_b32 v{V_T0}, 31, v{L}
    v_lshlrev_b32 v{V_T0}, 8, v{V_T0}
    v_lshrrev_b32 v{V_T1}, 5, v{L}
    v_and_b32 v{V_T2}, 15, v{L}
    v_xor_b32 v{V_T1}, v{V_T1}, v{V_T2}
    v_lshlrev_b32 v{V_T1}, 4, v{V_T1}
    v_add_u32 v{V_T0}, v{V_T0}, v{V_T1}
    s_add_u32 s3, s{S_QT}, 1
    s_mul_i32 s3, s3, {AREA}
    s_add_u32 s3, s3, 16384
    s_mul_i32 s76, s{S_KQ}, {AREA}
    """)
    for st8 in range(8):
        a(f"v_xor_b32 v{V_T1}, {st8 << 5}, v{V_T0}")
        a(f"v_add_u32 v{V_F+st8}, s3, v{V_T1}")
        a(f"v_add_u32 v{V_KA+st8}, s76, v{V_T1}")
        a(f"ds_read_b128 v[{V_Q+4*st8}:{V_Q+4*st8+3}], v{V_F+st8}")
    a(f"""
    v_lshrrev_b32 v{V_T0}, 5, v{L}
    v_lshlrev_b32 v{V_T0}, 2, v{V_T0}
    v_bfe_u32 v{V_T1}, v{L}, 2, 2
    v_add_u32 v{V_T0}, v{V_T0}, v{V_T1}
    v_lshlrev_b32 v{V_T0}, 8, v{V_T0}
    v_bfe_u32 v{V_T2}, v{L}, 4, 1
    v_lshlrev_b32 v{V_T2}, 5, v{V_T2}
    v_add_u32 v{V_T0}, v{V_T0}, v{V_T2}
    v_and_b32 v{V_T2}, 3, v{L}
    v_lshlrev_b32 v{V_T2}, 3, v{V_T2}
    v_add_u32 v{V_T0}, v{V_T0}, v{V_T2}
    s_add_u32 s76, s76, 24576
    v_add_u32 v{V_T0}, s76, v{V_T0}
    """)
    for j in range(4):
        a(f"s_add_u32 s3, s{S_KQ}, {j}")
        a(f"s_and_b32 s3, s3, 3")
        a(f"v_xor_b32 v{V_T2}, s3, v{V_T1}")
        a(f"v_lshlrev_b32 v{V_T2}, 6, v{V_T2}")
        a(f"v_add_u32 v{V_VA+j}, v{V_T0}, v{V_T2}")
    for i in range(64):
        a(f"v_mov_b32 v{V_O+i}, 0")
    a(f"""
    v_mov_b32 v{V_M}, 0
    v_mov_b32 v{V_THR}, s{S_TC}
    v_mov_b32 v{V_L}, 0
    s_waitcnt lgkmcnt(0)
    """)

    S = V_S
    def tr2(idx):
        lt = OPT.get("lt")
        if lt and idx < 36:
            i, k = idx // 4, idx % 4
            if (lt == 1 and k == 1) or (lt == 2 and k == 0) or (lt == 3 and k == 2):
                a(f"s_memtime s[{80+2*i}:{81+2*i}]")
        if lt and lt not in (6, 7) and idx == 41: a("s_memtime s[98:99]")
        if lt and lt not in (6, 7) and idx == 40: a("s_memtime s[100:101]")
        if not OPT.get("trace"): return
        trace(a, 120 if False else 167, idx_imm=idx)
    def rd_k(step, st8):
        a(f"ds_read_b128 v[{V_F+4*st8}:{V_F+4*st8+3}], v{V_KA+st8} offset:{(step % 3) * 8192}")
    def rd_v(step, f):
        t, j = f // 4, f % 4
        for hf in range(2):
            r = V_F + 4*f + 2*hf
            a(f"ds_read_b64_tr_b16 v[{r}:{r+1}], v{V_VA+j} offset:{(step % 2) * 8192 + (16*t + 8*hf)*256}")
    def qk(step, pending_k):
        for st8 in range(8):
            a(f"s_waitcnt lgkmcnt({7 - st8 if st8 < 2 else min(15, 7 - st8 + 2*(st8-1))})")
            c = "0" if st8 == 0 else f"v[{S}:{S+15}]"
            a(f"v_mfma_f32_32x32x16_bf16 v[{S}:{S+15}], v[{V_F+4*st8}:{V_F+4*st8+3}], v[{V_Q+4*st8}:{V_Q+4*st8+3}], {c}")
            if st8 >= 1: rd_v(step, st8 - 1)
        rd_v(step, 7)
    def softmax_half(half):
        for i in range(8*half, 8*half+8):
            a(f"v_exp_f32 v{S+i}, v{S+i}")
        for i in range(8*half, 8*half+8):
            a(f"v_add_f32 v{V_L}, v{V_L}, v{S+i}")
        for j in range(4*half, 4*half+4):
            a(f"v_cvt_pk_bf16_f32 v{S+j}, v{S+2*j}, v{S+2*j+1}")
    def softmax_max(lab, first=False):
        a(f"v_max3_f32 v{V_T0}, v{S}, v{S+1}, v{S+2}")
        a(f"v_max3_f32 v{V_T1}, v{S+3}, v{S+4}, v{S+5}")
        a(f"v_max3_f32 v{V_T0}, v{V_T0}, v{S+6}, v{S+7}")
        a(f"v_max3_f32 v{V_T1}, v{V_T1}, v{S+8}, v{S+9}")
        a(f"v_max3_f32 v{V_T0}, v{V_T0}, v{S+10}, v{S+11}")
        a(f"v_max3_f32 v{V_T1}, v{V_T1}, v{S+12}, v{S+13}")
        a(f"v_max3_f32 v{V_T0}, v{V_T0}, v{S+14}, v{S+15}")
        a(f"v_max_f32 v{V_T0}, v{V_T0}, v{V_T1}")
        a(f"v_mov_b32 v{V_T1}, v{V_T0}")
        a(f"v_permlane32_swap_b32 v{V_T0}, v{V_T1}")
        a(f"v_max_f32 v{V_T0}, v{V_T0}, v{V_T1}")
        a(f"v_cmp_gt_f32 vcc, v{V_T0}, v{V_THR}")
        if first:
            a(f"v_cmp_gt_f32 s[52:53], s{S_NC}, v{V_T0}")
            a(f"s_or_b64 vcc, vcc, s[52:53]")
        a(f"s_or_b64 s[52:53], vcc, s[{S_SLOW}:{S_SLOW+1}]")
        a(f"s_cbranch_scc0 {lab}")
        a(f"s_call_b64 s[{S_RET}:{S_RET+1}], L_slow{'_first' if first else ''}")
        a.label(lab)
    def pv_mfma(f):
        t, j = f // 4, f % 4
        o = V_O + 16*j
        a(f"v_mfma_f32_32x32x16_bf16 v[{o}:{o+15}], v[{V_F+4*f}:{V_F+4*f+3}], v[{S+4*t}:{S+4*t+3}], v[{o}:{o+15}]")
    def pv_then_k(next_step):
        for f in range(8):
            pv_mfma(f)
            if next_step is not None and f >= 1: rd_k(next_step, f - 1)
        if next_step is not None: rd_k(next_step, 7)

    PR = OPT.get("prio", 1)
    def prio(p):
        if PR: a(f"s_setprio {p}")
    a(f"s_cmp_eq_u32 s{S_QT}, 1")
    a("s_cbranch_scc1 L_typeA")
    a(f"s_cmp_eq_u32 s{S_QT}, 2")
    a("s_cbranch_scc1 L_typeC")
    for i in range(8):
        a(f"s_waitcnt vmcnt({8 if i < 7 else 0})")
        tr2(4*i)
        a("s_barrier")
        tr2(4*i+1)
        prio(1)
        if i == 0:
            for st8 in range(8): rd_k(0, st8)
        else:
            pv_then_k(i)
        if i + 2 < 8: issue_k(i + 2)
        qk(i, 0)
        tr2(4*i+2)
        prio(2)
        softmax_max(f"L_D{i}", first=(i == 0))
        softmax_half(0); softmax_half(1)
        a("s_waitcnt lgkmcnt(0)")
    tr2(32)
    a("s_barrier")
    pv_then_k(None)
    a("s_branch L_merge")
    a.label("L_typeA")
    for i in range(8):
        a(f"s_waitcnt vmcnt(0)")
        tr2(4*i)
        a("s_barrier")
        tr2(4*i+1)
        prio(3)
        for st8 in range(8): rd_k(i, st8)
        if i + 1 < 8: issue_v(i + 1)
        qk(i, 0)
        tr2(4*i+2)
        prio(2)
        softmax_max(f"L_A{i}", first=(i == 0))
        softmax_half(0); softmax_half(1)
        prio(0)
        for f in range(8):
            a(f"s_waitcnt lgkmcnt({min(15, 2*(7-f))})")
            pv_mfma(f)
    tr2(32)
    a("s_barrier")
    a("s_branch L_merge")
    a.label("L_typeC")
    a(f"s_cmp_eq_u32 s{S_BLK}, 0")
    srd(a, 12, 56, 66, 4096*1024*2)
    a(f"""
    v_lshrrev_b32 v{V_DOFF+1}, 1, v{L}
    v_lshlrev_b32 v{V_DOFF+1}, 11, v{V_DOFF+1}
    v_and_b32 v{V_DOFF+2}, 1, v{L}
    v_lshlrev_b32 v{V_DOFF+2}, 7, v{V_DOFF+2}
    v_add_u32 v{V_DOFF+1}, v{V_DOFF+1}, v{V_DOFF+2}
    s_lshl_b32 s45, s{S_G}, 10
    s_lshl_b32 s3, s{S_BP}, 8
    s_add_u32 s45, s45, s3
    s_lshl_b32 s3, s{S_KQ}, 6
    s_add_u32 s45, s45, s3
    s_lshl_b32 s45, s45, 11
    s_lshl_b32 s3, s{S_NT8}, 8
    s_add_u32 s45, s45, s3
    """)
    a(f"""
    s_cmp_eq_u32 s{S_W}, 8
    s_cbranch_scc0 L_notokrd
    v_mov_b32 v{V_DOFF}, 0
    s_mov_b32 s{S_CNT}, 0
    L_tokspin:
    buffer_load_dword v{V_DOFF+3}, v{V_DOFF}, s[16:19], 0 offen sc1
    s_waitcnt vmcnt(0)
    v_readfirstlane_b32 s40, v{V_DOFF+3}
    s_add_u32 s{S_CNT}, s{S_CNT}, 1
    s_cmp_lt_u32 s{S_CNT}, {SPIN_MAX}
    s_cbranch_scc0 L_notokrd
    s_cmp_eq_u32 s40, 0
    s_cbranch_scc1 L_tokspin
    L_notokrd:
    """)
    PF_AT = {}
    PF_AT.setdefault(OPT.get("pf0", 7), []).append(0)
    PF_AT.setdefault(OPT.get("pf1", 7), []).append(1)
    for i in range(9):
        tr2(4*i)
        a("s_barrier")
        tr2(4*i+1)
        prio(2)
        if i in PF_AT and OPT.get("wopf", 1) and OPT.get("pf_early"):
            for e in PF_AT[i]:
                a(f"s_add_u32 s3, s45, {e * 32 * 2048}")
                a(f"buffer_load_dword v{V_DOFF+2}, v{V_DOFF+1}, s[12:15], s3 offen {NTWO()}")
        if i == 0:
            for st8 in range(8): rd_k(0, st8)
        else:
            softmax_max(f"L_C{i}", first=(i == 1))
            softmax_half(0); softmax_half(1)
            if i in PF_AT and OPT.get("wopf", 1) and not OPT.get("pf_early"):
                for e in PF_AT[i]:
                    a(f"s_add_u32 s3, s45, {e * 32 * 2048}")
                    a(f"buffer_load_dword v{V_DOFF+2}, v{V_DOFF+1}, s[12:15], s3 offen {NTWO()}")
            pv_then_k(i if i < 8 else None)
        if i < 8:
            prio(1)
            qk(i, 0)
            a("s_waitcnt lgkmcnt(0)")
    def spin(label, load_lines, cmp_val, vreg):
        a(f"s_mov_b32 s{S_CNT}, 0")
        a.label(label)
        a(load_lines)
        a("s_waitcnt vmcnt(0)")
        a(f"v_cmp_ne_u32 vcc, s3, v{vreg}" if cmp_val is None else f"v_cmp_ne_u32 vcc, {cmp_val}, v{vreg}")
        a(f"s_cbranch_vccz {label}_ok")
        a(f"s_add_u32 s{S_CNT}, s{S_CNT}, 1")
        a(f"s_cmp_lt_u32 s{S_CNT}, {SPIN_MAX}")
        a("s_sleep 1")
        a(f"s_cbranch_scc1 {label}")
        a.label(f"{label}_ok")

    def gen_tail():
        T_ACC, T_FR, T_AA, T_BA, T_DOFF, T_X = 0, 48, 112, 113, 114, 116
        S_WOB, S_OB, S_ST = 45, 46, 47
        NW, NO = 7, 4
        OB0 = NW * 16384
        OWN = 4 * 16384
        def ts(i):
            if OPT.get("lt") == 5: a(f"s_memtime s[{80+2*i}:{81+2*i}]")
        ts(0)
        a(f"s_cmp_eq_u32 s{S_BLK}, 0")
        srd(a, 12, 56, 66, 4096*1024*2)
        srd(a, 8, 68, 68, 8*48*2048*2, sel=False)
        a(f"""
        s_lshl_b32 s{S_WOB}, s{S_G}, 21
        s_lshl_b32 s3, s{S_NT8}, 8
        s_add_u32 s{S_WOB}, s{S_WOB}, s3
        s_mul_i32 s{S_OB}, s{S_G1}, {192*1024}
        s_add_u32 s{S_OB}, s{S_OB}, {O_OFF}
        s_lshl_b32 s74, s{S_NT8}, 1
        s_cmp_ge_u32 s{S_W}, 8
        s_cbranch_scc1 L_t_compute
        s_cmp_ge_u32 s{S_W}, 4
        s_cbranch_scc1 L_t_oload
        """)
        a(f"""
        v_lshrrev_b32 v{T_X}, 4, v{L}
        v_and_b32 v{T_X+1}, 15, v{L}
        v_lshlrev_b32 v{T_X+2}, 2, v{T_X}
        v_xor_b32 v{T_X+2}, v{T_X+2}, v{T_X+1}
        v_lshlrev_b32 v{T_X+2}, 4, v{T_X+2}
        v_lshlrev_b32 v{T_X}, 11, v{T_X}
        v_add_u32 v{T_DOFF}, v{T_X}, v{T_X+2}
        s_lshl_b32 s{S_T0}, s{S_W}, 15
        s_add_u32 s{S_WOB}, s{S_WOB}, s{S_T0}
        s_lshl_b32 s{S_T2}, s{S_W}, 12
        """)
        def issue_wo(st):
            a(f"s_add_u32 s3, s74, {st}")
            a(f"s_and_b32 s3, s3, 15")
            a(f"s_lshl_b32 s76, s3, 17")
            a(f"s_add_u32 s76, s76, s{S_WOB}")
            for q in range(4):
                a(f"s_add_u32 m0, s{S_T2}, {(st % NW)*16384 + q*1024}")
                if q: a(f"s_add_u32 s76, s76, {4*2048}")
                a(f"buffer_load_dwordx4 v{T_DOFF}, s[12:15], s76 offen lds")
        a("s_waitcnt vmcnt(0)")
        ts(1)
        a("s_barrier")
        a("s_sleep 1")
        for st in range(NW): issue_wo(st)
        a("s_barrier")
        ts(2)
        for st in range(16):
            last = min(15, max(NW - 1, st + NW - 3))
            a(f"s_waitcnt vmcnt({4 * (last - st)})")
            if OPT.get("lt") == 6 and st in LT6: a(f"s_memtime s[{80+2*LT6.index(st)}:{81+2*LT6.index(st)}]")
            a("s_barrier")
            if st >= 2 and st + NW - 2 <= 15: issue_wo(st + NW - 2)
        ts(3)
        a("s_branch L_t_join")
        a.label("L_t_oload")
        a(f"""
        v_lshlrev_b32 v{T_DOFF+1}, 4, v{L}
        s_sub_u32 s{S_T3}, s{S_W}, 4
        s_mul_i32 s{S_T3}, s{S_T3}, 3072
        s_add_u32 s{S_OB}, s{S_OB}, s{S_T3}
        """)
        def issue_o(st):
            a(f"s_add_u32 s3, s74, {st}")
            a(f"s_and_b32 s3, s3, 15")
            a(f"s_mul_i32 s76, s3, 12288")
            a(f"s_add_u32 s76, s76, s{S_OB}")
            a(f"s_add_u32 m0, s{S_T3}, {OB0 + (st % NO)*12288}")
            for q in range(3):
                a(f"buffer_load_dwordx4 v{T_DOFF+1}, s[24:27], s76 offen offset:{q*1024} {OSC()}lds")
        a("s_waitcnt vmcnt(0)")
        ts(1)
        a("s_barrier")
        a("s_barrier")
        ts(2)
        for st in range(NO): issue_o(st)
        for st in range(16):
            last = min(15, max(NO - 1, st + NO - 3))
            a(f"s_waitcnt vmcnt({3 * (last - st)})")
            if OPT.get("lt") == 6 and st in LT6: a(f"s_memtime s[{80+2*LT6.index(st)}:{81+2*LT6.index(st)}]")
            a("s_barrier")
            if st >= 2 and st + NO - 2 <= 15: issue_o(st + NO - 2)
        ts(3)
        a("s_branch L_t_join")
        a.label("L_t_compute")
        a(f"""
        v_lshrrev_b32 v{T_X}, 5, v{L}
        v_lshlrev_b32 v{T_X}, 3, v{T_X}
        v_bfe_u32 v{T_X+1}, v{L}, 2, 2
        v_add_u32 v{T_X}, v{T_X}, v{T_X+1}
        v_lshlrev_b32 v{T_X}, 8, v{T_X}
        v_bfe_u32 v{T_X+2}, v{L}, 4, 1
        v_lshlrev_b32 v{T_X+2}, 5, v{T_X+2}
        v_add_u32 v{T_X}, v{T_X}, v{T_X+2}
        v_and_b32 v{T_X+2}, 3, v{L}
        v_lshlrev_b32 v{T_X+2}, 3, v{T_X+2}
        v_add_u32 v{T_X}, v{T_X}, v{T_X+2}
        v_xor_b32 v{T_X+2}, s{S_KQ}, v{T_X+1}
        v_lshlrev_b32 v{T_X+2}, 6, v{T_X+2}
        v_add_u32 v{T_AA}, v{T_X}, v{T_X+2}
        v_lshlrev_b32 v{T_BA}, 4, v{L}
        v_add_u32 v{T_BA}, {OB0}, v{T_BA}
        """)
        for i in range(48):
            a(f"v_mov_b32 v{T_ACC+i}, 0")
        a("s_waitcnt vmcnt(0)")
        ts(1)
        a("s_barrier")
        a(f"s_cmp_eq_u32 s{S_W}, 8")
        a("s_cbranch_scc0 L_t_nopoll1")
        a("s_setprio 3")
        a(f"""
        s_lshl_b32 s3, s{S_G1}, 7
        s_add_u32 s76, s3, {FLAG_OFF}
        s_lshl_b32 s3, s{S_NT8}, 2
        s_add_u32 s77, s76, s3
        v_mov_b32 v{T_X}, 0
        v_mov_b32 v{T_X+1}, s40
        s_mov_b64 exec, 1
        buffer_store_dword v{T_X+1}, v{T_X}, s[24:27], s77 offen sc1
        s_mov_b64 exec, -1
        v_and_b32 v{T_X+2}, 7, v{L}
        v_lshlrev_b32 v{T_X+2}, 2, v{T_X+2}
        """)
        a(f"s_mov_b32 s3, s40")
        spin("L_spin_a", f"buffer_load_dword v{T_X+1}, v{T_X+2}, s[24:27], s76 offen sc1", None, T_X+1)
        a("s_setprio 0")
        a.label("L_t_nopoll1")
        a("s_barrier")
        ts(2)
        def rd_list(j):
            b = T_FR + 16*j
            out = []
            for hf in range(2):
                out.append(f"ds_read_b64_tr_b16 v[{b+2*hf}:{b+2*hf+1}], v{T_AA} offset:{j*4096 + hf*1024}")
            for m in range(3):
                out.append(f"ds_read_b128 v[{b+4+4*m}:{b+7+4*m}], v{T_BA} offset:{(j*3+m)*1024}")
            return out
        def mm_list(j):
            b = T_FR + 16*j
            return [f"v_mfma_f32_32x32x16_bf16 v[{T_ACC+16*m}:{T_ACC+16*m+15}], v[{b}:{b+3}], v[{b+4+4*m}:{b+7+4*m}], v[{T_ACC+16*m}:{T_ACC+16*m+15}]" for m in range(3)]
        def mm3(j):
            for x in mm_list(j): a(x)
        def weave(mm, rd):
            groups = [rd[0:3], rd[3:4], rd[4:5]]
            for x, g in zip(mm, groups):
                a(x)
                for y in g: a(y)
        a(f"s_mov_b32 s{S_ST}, 0")
        a(f"s_mov_b32 s{S_SLOT}, 0")
        a.label("L_t_loop")
        if OPT.get("lt") == 6:
            for k, st in enumerate(LT6):
                a(f"s_cmp_eq_u32 s{S_ST}, {st}")
                a(f"s_cbranch_scc0 L_lt6_{k}")
                a(f"s_memtime s[{80+2*k}:{81+2*k}]")
                a.label(f"L_lt6_{k}")
        a("s_barrier")
        a(f"s_cmp_eq_u32 s{S_ST}, 0")
        a("s_cbranch_scc0 L_t_left")
        for y in rd_list(0) + rd_list(1): a(y)
        a("s_branch L_t_skip")
        a.label("L_t_left")
        a("s_waitcnt lgkmcnt(5)")
        weave(mm_list(2), rd_list(0))
        a("s_waitcnt lgkmcnt(5)")
        weave(mm_list(3), rd_list(1))
        a.label("L_t_skip")
        a("s_waitcnt lgkmcnt(5)")
        weave(mm_list(0), rd_list(2))
        a("s_waitcnt lgkmcnt(5)")
        weave(mm_list(1), rd_list(3))
        a(f"""
        s_add_u32 s{S_SLOT}, s{S_SLOT}, 1
        s_cmp_eq_u32 s{S_SLOT}, {NW}
        s_cselect_b32 s{S_SLOT}, 0, s{S_SLOT}
        s_mov_b32 s3, 16384
        s_cselect_b32 s3, {(-(NW-1)*16384) & 0xffffffff}, s3
        v_add_u32 v{T_AA}, s3, v{T_AA}
        s_add_u32 s{S_ST}, s{S_ST}, 1
        s_and_b32 s3, s{S_ST}, 3
        s_mov_b32 s3, 12288
        s_cselect_b32 s3, s3, {(-3*12288) & 0xffffffff}
        v_add_u32 v{T_BA}, s3, v{T_BA}
        s_cmp_lt_u32 s{S_ST}, 16
        s_cbranch_scc1 L_t_loop
        s_waitcnt lgkmcnt(0)
        """)
        mm3(2); mm3(3)
        ts(3)
        a(f"s_cmp_eq_u32 s{S_KQ}, s{S_G}")
        a("s_cbranch_scc0 L_t_pub")
        a(f"v_lshlrev_b32 v{T_X}, 4, v{L}")
        a(f"v_add_u32 v{T_X}, {OWN}, v{T_X}")
        for m in range(3):
            for rq in range(4):
                r = T_ACC + 16*m + 4*rq
                a(f"ds_write_b128 v{T_X}, v[{r}:{r+3}] offset:{(m*4+rq)*1024}")
        a("s_waitcnt lgkmcnt(0)")
        a("s_branch L_t_join")
        a.label("L_t_pub")
        a(f"""
        s_lshl_b32 s3, s{S_G2}, 2
        s_add_u32 s3, s3, s{S_KQ}
        s_lshl_b32 s3, s3, 2
        s_add_u32 s3, s3, s{S_G}
        s_mul_i32 s76, s3, 6144
        s_add_u32 s76, s76, {PART_OFF}
        v_lshlrev_b32 v{T_X}, 3, v{L}
        """)
        for m in range(3):
            for rq in range(4):
                r = T_ACC + 16*m + 4*rq
                d = T_FR + 2*(m*4+rq)
                a(f"v_cvt_pk_bf16_f32 v{d}, v{r}, v{r+1}")
                a(f"v_cvt_pk_bf16_f32 v{d+1}, v{r+2}, v{r+3}")
        for m in range(3):
            for rq in range(4):
                d = T_FR + 2*(m*4+rq)
                off = (m*4+rq)*512
                if off == 4096: a("s_add_u32 s76, s76, 4096")
                a(f"buffer_store_dwordx2 v[{d}:{d+1}], v{T_X}, s[24:27], s76 offen offset:{off % 4096} sc1")
        a("s_waitcnt vmcnt(0)")
        a.label("L_t_join")
        ts(4)
        a("s_barrier")
        a(f"s_cmp_eq_u32 s{S_W}, 8")
        a("s_cbranch_scc0 L_t_nopoll2")
        a(f"""
        s_lshl_b32 s3, s{S_G2}, 7
        s_add_u32 s76, s3, {FLAG_OFF + 8192}
        s_lshl_b32 s3, s{S_G}, 2
        s_add_u32 s77, s76, s3
        v_mov_b32 v{T_X}, 0
        v_mov_b32 v{T_X+1}, s40
        s_mov_b64 exec, 1
        buffer_store_dword v{T_X+1}, v{T_X}, s[24:27], s77 offen sc1
        s_mov_b64 exec, -1
        v_and_b32 v{T_X+2}, 3, v{L}
        v_lshlrev_b32 v{T_X+2}, 2, v{T_X+2}
        s_mov_b32 s3, s40
        """)
        spin("L_spin_b", f"buffer_load_dword v{T_X+1}, v{T_X+2}, s[24:27], s76 offen sc1", None, T_X+1)
        a.label("L_t_nopoll2")
        a("s_barrier")
        ts(5)
        a(f"""
        s_lshl_b32 s3, s{S_G2}, 2
        s_add_u32 s3, s3, s{S_G}
        s_mul_i32 s76, s3, {4*6144}
        s_lshl_b32 s3, s{S_W}, 9
        s_add_u32 s76, s76, s3
        s_add_u32 s76, s76, {PART_OFF}
        v_lshlrev_b32 v{T_X}, 3, v{L}
        """)
        for d in range(1, 4):
            a(f"s_add_u32 s3, s{S_G}, {d}")
            a(f"s_and_b32 s3, s3, 3")
            a(f"s_mul_i32 s3, s3, 6144")
            a(f"s_add_u32 s77, s76, s3")
            a(f"buffer_load_dwordx2 v[{18+2*d}:{19+2*d}], v{T_X}, s[24:27], s77 offen sc1")
        a(f"""
        s_lshl_b32 s3, s{S_W}, 10
        s_add_u32 s3, s3, {OWN}
        v_lshlrev_b32 v{T_X+3}, 4, v{L}
        v_add_u32 v{T_X+3}, s3, v{T_X+3}
        ds_read_b128 v[16:19], v{T_X+3}
        s_mul_i32 s3, s{S_BP}, 96
        s_lshl_b32 s77, s{S_QT}, 5
        s_add_u32 s3, s3, s77
        s_lshl_b32 s3, s3, 12
        s_lshl_b32 s77, s{S_BLK}, 11
        s_add_u32 s3, s3, s77
        s_lshl_b32 s77, s{S_NT8}, 8
        s_add_u32 s3, s3, s77
        s_lshl_b32 s77, s{S_G}, 6
        s_add_u32 s3, s3, s77
        s_lshl_b32 s77, s{S_KQ}, 4
        s_add_u32 s3, s3, s77
        v_and_b32 v{T_X+1}, 31, v{L}
        v_lshlrev_b32 v{T_X+1}, 12, v{T_X+1}
        v_lshrrev_b32 v{T_X+2}, 5, v{L}
        v_lshlrev_b32 v{T_X+2}, 3, v{T_X+2}
        v_add_u32 v{T_X+1}, v{T_X+1}, v{T_X+2}
        s_waitcnt lgkmcnt(0)
        """)
        for d in range(1, 4):
            a(f"s_waitcnt vmcnt({3-d})")
            lo, hi = 18 + 2*d, 19 + 2*d
            a(f"v_lshlrev_b32 v28, 16, v{lo}")
            a(f"v_and_b32 v29, 0xffff0000, v{lo}")
            a(f"v_lshlrev_b32 v30, 16, v{hi}")
            a(f"v_and_b32 v31, 0xffff0000, v{hi}")
            for i in range(4): a(f"v_add_f32 v{16+i}, v{16+i}, v{28+i}")
        a("v_cvt_pk_bf16_f32 v20, v16, v17")
        a("v_cvt_pk_bf16_f32 v21, v18, v19")
        a(f"buffer_store_dwordx2 v[20:21], v{T_X+1}, s[8:11], s3 offen")
        ts(6)

    a.label("L_merge")
    prio(0)
    stamp(a, 2)
    tr2(40)
    F = V_F
    def mt(i):
        if OPT.get("lt") == 4: a(f"s_memtime s[{80+2*i}:{81+2*i}]")
    mt(0)
    a(f"""
    v_mov_b32 v{V_T0}, v{V_L}
    v_mov_b32 v{V_T1}, v{V_L}
    s_mul_i32 s76, s{S_KQ}, {AREA}
    v_lshlrev_b32 v{V_T2}, 4, v{L}
    v_permlane32_swap_b32 v{V_T0}, v{V_T1}
    s_mul_i32 s3, s{S_QT}, 12288
    s_add_u32 s77, s76, s3
    v_add_f32 v{V_L}, v{V_T0}, v{V_T1}
    v_add_u32 v{V_T1}, s77, v{V_T2}
    """)
    for j in range(1, 4):
        for rq in range(4):
            r = V_O + 16*j + 4*rq
            a(f"ds_write_b128 v{V_T1}, v[{r}:{r+3}] offset:{(j-1)*4096 + rq*1024}")
    mt(1)
    a(f"""
    v_and_b32 v{V_T0}, 31, v{L}
    v_lshlrev_b32 v{V_T0}, 3, v{V_T0}
    s_lshl_b32 s3, s{S_QT}, 8
    s_add_u32 s3, s3, 36864
    v_add_u32 v{V_T0}, s3, v{V_T0}
    v_add_u32 v{V_T1}, s76, v{V_T0}
    ds_write_b64 v{V_T1}, v[{V_M}:{V_L}]
    """)
    for j in range(1, 4):
        a(f"s_sub_u32 s3, s{S_KQ}, {j}")
        a(f"s_and_b32 s3, s3, 3")
        a(f"s_mul_i32 s76, s3, {AREA}")
        a(f"v_add_u32 v{V_Q+j}, s76, v{V_T0}")
        a(f"s_mul_i32 s3, s{S_QT}, 12288")
        a(f"s_add_u32 s76, s76, s3")
        a(f"v_add_u32 v{V_Q+4+j}, s76, v{V_T2}")
    A0, A1, A2, A3 = V_Q+8, V_Q+9, V_Q+10, V_Q+11
    a(f"""
    v_and_b32 v{A1}, 31, v{L}
    s_lshl_b32 s3, s{S_QT}, 5
    v_add_u32 v{A1}, s3, v{A1}
    v_cmp_le_u32 vcc, 48, v{A1}
    v_subrev_u32 v{A2}, 48, v{A1}
    v_mov_b32 v{A0}, 0
    v_mov_b32 v{A3}, {8*3072}
    v_cndmask_b32 v{A1}, v{A1}, v{A2}, vcc
    v_cndmask_b32 v{A0}, v{A0}, v{A3}, vcc
    s_and_b32 s3, s{S_B}, 1
    s_mul_i32 s3, s3, 48
    v_add_u32 v{A1}, s3, v{A1}
    v_lshrrev_b32 v{A2}, 5, v{A1}
    v_lshlrev_b32 v{A2}, 10, v{A2}
    v_add_u32 v{A0}, v{A0}, v{A2}
    v_and_b32 v{A1}, 31, v{A1}
    v_lshlrev_b32 v{A1}, 4, v{A1}
    v_add_u32 v{A0}, v{A0}, v{A1}
    v_lshrrev_b32 v{A1}, 5, v{L}
    v_lshlrev_b32 v{A1}, 3, v{A1}
    v_add_u32 v{A0}, v{A0}, v{A1}
    s_lshl_b32 s3, s{S_HP}, 4
    s_lshl_b32 s76, s{S_KQ}, 1
    s_add_u32 s3, s3, s76
    s_mul_i32 s3, s3, 3072
    s_mul_i32 s79, s{S_G1}, {192*1024}
    s_add_u32 s79, s79, s3
    s_add_u32 s79, s79, {O_OFF}
    """)
    mt(2)
    a("s_waitcnt lgkmcnt(0)")
    mt(3)
    a("s_barrier")
    mt(4)
    for j in range(1, 4):
        a(f"ds_read_b64 v[{F+2*j}:{F+2*j+1}], v{V_Q+j}")
    for j in range(1, 4):
        for rq in range(4):
            r = V_O + 16*j + 4*rq
            a(f"ds_read_b128 v[{r}:{r+3}], v{V_Q+4+j} offset:{(j-1)*4096 + rq*1024}")
    a("s_waitcnt lgkmcnt(12)")
    mt(5)
    a(f"""
    v_max3_f32 v{F+8}, v{V_M}, v{F+2}, v{F+4}
    v_max_f32 v{F+8}, v{F+8}, v{F+6}
    v_sub_f32 v{F+10}, v{V_M}, v{F+8}
    v_sub_f32 v{F+12}, v{F+2}, v{F+8}
    v_sub_f32 v{F+14}, v{F+4}, v{F+8}
    v_sub_f32 v{F+16}, v{F+6}, v{F+8}
    v_exp_f32 v{F+10}, v{F+10}
    v_exp_f32 v{F+12}, v{F+12}
    v_exp_f32 v{F+14}, v{F+14}
    v_exp_f32 v{F+16}, v{F+16}
    v_mul_f32 v{F+18}, v{F+10}, v{V_L}
    v_fma_f32 v{F+18}, v{F+12}, v{F+3}, v{F+18}
    v_fma_f32 v{F+18}, v{F+14}, v{F+5}, v{F+18}
    v_fma_f32 v{F+18}, v{F+16}, v{F+7}, v{F+18}
    v_rcp_f32 v{F+18}, v{F+18}
    v_mul_f32 v{F+10}, v{F+10}, v{F+18}
    v_mul_f32 v{F+12}, v{F+12}, v{F+18}
    v_mul_f32 v{F+14}, v{F+14}, v{F+18}
    v_mul_f32 v{F+16}, v{F+16}, v{F+18}
    """)
    mt(6)
    for i in range(0, 16, 2):
        a(f"v_pk_mul_f32 v[{V_O+i}:{V_O+i+1}], v[{V_O+i}:{V_O+i+1}], v[{F+10}:{F+11}] op_sel_hi:[1,0]")
    for j in range(1, 4):
        a(f"s_waitcnt lgkmcnt({12 - 4*j})")
        if j == 3: a("s_barrier")
        for i in range(0, 16, 2):
            a(f"v_pk_fma_f32 v[{V_O+i}:{V_O+i+1}], v[{V_O+16*j+i}:{V_O+16*j+i+1}], v[{F+10+2*j}:{F+11+2*j}], v[{V_O+i}:{V_O+i+1}] op_sel_hi:[1,0,1]")
    mt(7)
    for rq in range(4):
        a(f"v_cvt_pk_bf16_f32 v{F+20+2*rq}, v{V_O+4*rq}, v{V_O+4*rq+1}")
        a(f"v_cvt_pk_bf16_f32 v{F+20+2*rq+1}, v{V_O+4*rq+2}, v{V_O+4*rq+3}")
    for rq in range(4):
        a(f"buffer_store_dwordx2 v[{F+20+2*rq}:{F+20+2*rq+1}], v{A0}, s[24:27], s79 offen offset:{(rq & 1)*512} sc1" if rq < 2 else
          f"buffer_store_dwordx2 v[{F+20+2*rq}:{F+20+2*rq+1}], v{A0}, s[24:27], s79 offen offset:{3072 + (rq & 1)*512} sc1")
    gen_tail()
    stamp(a, 3)
    tr2(41)
    trace_dump(a, 167, 100, S_W, V_LANE, 1)
    if OPT.get("lt"):
        a("s_waitcnt lgkmcnt(0)")
        a(f"s_lshl_b32 s3, s2, 4")
        a(f"s_add_u32 s3, s3, s{S_W}")
        a(f"s_lshl_b32 s3, s3, 8")
        a(f"s_add_u32 s3, s3, {(56 << 20) + (1 << 20)}")
        a("v_mov_b32 v102, s3")
        for i in range(11):
            a(f"v_mov_b32 v100, s{80+2*i}")
            a(f"buffer_store_dword v100, v102, s[24:27], 0 offen offset:{4*i}")
            a("s_waitcnt vmcnt(0)")
    if OPT["stamps"]: a("s_memtime s[90:91]")
    if OPT.get("dbgclk"):
        a(f"""
        s_waitcnt lgkmcnt(0)
        s_cmp_eq_u32 s2, {OPT.get("dbgwg", 77)}
        s_cbranch_scc0 L_nodbg
        s_cmp_eq_u32 s{S_W}, 0
        s_cbranch_scc0 L_nodbg
        s_sub_u32 s90, s90, s88
        s_sub_u32 s82, s82, s80
        s_sub_u32 s84, s84, s80
        s_sub_u32 s86, s86, s80
        v_mov_b32 v100, s90
        v_mov_b32 v101, s82
        v_mov_b32 v102, s84
        v_mov_b32 v103, s86
        v_mov_b32 v104, 0
        s_mov_b64 exec, 1
        buffer_store_dwordx4 v[100:103], v104, s[16:19], 0 offen
        s_mov_b64 exec, -1
        L_nodbg:
        """)
    else:
        stamp_flush(a, 6, 100, S_W, 0)
    a("s_endpgm")
    a.label("L_slow_first")
    a(f"v_cndmask_b32 v{V_M}, v{V_M}, v{V_T0}, vcc")
    a(f"s_mov_b64 s[{S_SLOW}:{S_SLOW+1}], -1")
    a(f"v_add_f32 v{V_THR}, s{S_TC}, v{V_M}")
    a("s_branch L_slow_sub")
    a.label("L_slow")
    a("s_cbranch_vccz L_slow_sub")
    a(f"v_max_f32 v{V_T1}, v{V_M}, v{V_T0}")
    a(f"v_cndmask_b32 v{V_T1}, v{V_M}, v{V_T1}, vcc")
    a.label("L_slow_upd")
    a(f"""
    s_mov_b64 s[{S_SLOW}:{S_SLOW+1}], -1
    v_sub_f32 v{V_T2}, v{V_M}, v{V_T1}
    v_exp_f32 v{V_T2}, v{V_T2}
    v_mov_b32 v{V_M}, v{V_T1}
    v_add_f32 v{V_THR}, s{S_TC}, v{V_T1}
    v_mul_f32 v{V_L}, v{V_L}, v{V_T2}
    """)
    for i in range(64):
        a(f"v_mul_f32 v{V_O+i}, v{V_T2}, v{V_O+i}")
    a.label("L_slow_sub")
    for i in range(16):
        a(f"v_sub_f32 v{V_S+i}, v{V_S+i}, v{V_M}")
    a("s_nop 1")
    a(f"s_setpc_b64 s[{S_RET}:{S_RET+1}]")
    a.label("L_k1_end")
    a("s_endpgm")
    return a

def build():
    k1 = gen_k1().finalize()
    h1, d1 = kernel_text("gqa_fused_kernel", k1, 168)
    hdr = open("concat_heads__gqa_block_cached__gqa_block_cached__near_ridge.s.ref").read().split("; Override")[0]
    txt = hdr
    he = de = ""
    e = OPT.get("empty")
    if e:
        he, de = kernel_text("empty_kernel", "    s_endpgm\n", 168 if e in (2, 4) else 8, sgpr=16)
        de = ".p2align 6\n" + de
        line = "; @launch kernel=empty_kernel grid=(256,1,1) block=(768,1,1) lds=163840\n" if e in (2, 4) else "; @launch kernel=empty_kernel grid=(256,1,1) block=(64,1,1) lds=0\n"
    if e in (1, 2): txt += line
    txt += "; @launch kernel=gqa_fused_kernel grid=(256,1,1) block=(768,1,1) lds=163840\n"
    if e in (3, 4): txt += line
    txt += '.amdgcn_target "amdgcn-amd-amdhsa--gfx950"\n.text\n' + h1 + he
    txt += '.section .rodata,"a"\n.p2align 6\n' + d1 + de
    return txt

if __name__ == "__main__":
    out = sys.argv[1]
    for kv in sys.argv[2:]:
        k, v = kv.split("=")
        OPT[k] = int(v, 0)
    open(out, "w").write(build())
    print("wrote", out)
```

```python
import sys, math, struct
from asmlib import *
import gen as G1
G1.OPT["stamp_off"] = 48 << 20
from gen import f2u, load_ptrs, srd, AREA, C_SCALE, T_LOG2

OPT = G1.OPT
stamp, stamp_flush, trace, trace_dump = G1.stamp, G1.stamp_flush, G1.trace, G1.trace_dump
NT = G1.NT

NTQ = lambda: 'nt ' if OPT.get('nt_wq') else ''
NTX = lambda: 'nt ' if OPT.get('nt_x') else ''
NTKV = lambda: 'nt ' if OPT.get('nt_kv') else ''
NTWO = lambda: 'nt ' if OPT.get('nt_wo') else ''
OSC = lambda: '' if OPT.get('o_plain') else 'sc1 '
LT6 = (0, 1, 2, 3, 4, 6, 8, 10, 12, 14, 15)
O_OFF = 0
FLAG_OFF = 8 << 20
PART_OFF = 16 << 20
TOK_A, TOK_B = 0x5EED0A01, 0x5EED0B02
SPIN_MAX = 1 << 18

def emit_tile(a, dst, s_cnt, phi, m1, m3, win, r, t0, t1, t2):
    sc = f"s{s_cnt}" if isinstance(s_cnt, int) else str(s_cnt[1])
    a(f"s_add_u32 s{t0}, s{phi}, {win}")
    a(f"s_sub_u32 s{t1}, {win}, s{phi}")
    a(f"s_mov_b32 s{t2}, s{m3}")
    a(f"s_cmp_lt_u32 {sc}, s{t0}" if isinstance(s_cnt, int) else f"s_cmp_gt_u32 s{t0}, {sc}")
    a(f"s_cselect_b32 s{t0}, s{phi}, s{t0}")
    a(f"s_cselect_b32 s{t1}, {win}, s{t1}")
    a(f"s_cselect_b32 s{t2}, {256 // win}, s{t2}")
    a(f"s_cmp_lt_u32 {sc}, s{phi}" if isinstance(s_cnt, int) else f"s_cmp_gt_u32 s{phi}, {sc}")
    a(f"s_cselect_b32 s{t0}, 0, s{t0}")
    a(f"s_cselect_b32 s{t1}, s{phi}, s{t1}")
    a(f"s_cselect_b32 s{t2}, s{m1}, s{t2}")
    a(f"s_sub_u32 s{dst}, {sc}, s{t0}")
    a(f"s_add_u32 s{dst}, s{dst}, s{r}")
    a(f"s_mul_i32 s{t2}, s{dst}, s{t2}")
    a(f"s_lshr_b32 s{t2}, s{t2}, 8")
    a(f"s_mul_i32 s{t2}, s{t2}, s{t1}")
    a(f"s_sub_u32 s{dst}, s{dst}, s{t2}")
    a(f"s_add_u32 s{dst}, s{dst}, s{t0}")

def gen_k1():
    a = Asm()
    S_PHI, S_M1, S_M3, S_P2 = 4, 5, 6, 7
    S_BP, S_NT8, S_G1, S_G2 = 54, 55, 58, 59
    S_W, S_BLK, S_G, S_B, S_HP, S_KQ, S_QT = 28, 29, 30, 31, 32, 33, 34
    S_C, S_NC, S_TC = 35, 36, 37
    S_RET = 38
    S_SLOW = 50
    T_HI, T_LO = 16.0, 64.0
    S_T0, S_T1, S_T2, S_T3 = 41, 42, 43, 44
    S_WQB, S_XB, S_KVB = 45, 46, 47
    S_CNT, S_SLOT = 75, 78
    V_O, V_Q, V_S, V_F, V_KA, V_VA = 0, 64, 96, 112, 144, 152
    V_M, V_L, V_NMC, V_THR, V_T0, V_T1, V_T2, V_LANE, V_DOFF = 156, 157, 158, 159, 160, 161, 162, 163, 164
    L = V_LANE

    def group_ids():
        a(f"""
        s_lshr_b32 s{S_BP}, s{S_B}, 1
        s_and_b32 s{S_NT8}, s{S_B}, 1
        s_lshl_b32 s{S_NT8}, s{S_NT8}, 2
        s_add_u32 s{S_NT8}, s{S_NT8}, s{S_HP}
        s_lshl_b32 s{S_G1}, s{S_BLK}, 2
        s_add_u32 s{S_G1}, s{S_G1}, s{S_G}
        s_lshl_b32 s{S_G1}, s{S_G1}, 2
        s_add_u32 s{S_G1}, s{S_G1}, s{S_BP}
        s_lshl_b32 s{S_G2}, s{S_BLK}, 2
        s_add_u32 s{S_G2}, s{S_G2}, s{S_BP}
        s_lshl_b32 s{S_G2}, s{S_G2}, 3
        s_add_u32 s{S_G2}, s{S_G2}, s{S_NT8}
        """)
    a("s_cmp_ge_u32 s2, 256")
    a("s_cbranch_scc1 L_k1_end")
    stamp(a, 0)
    if OPT["stamps"]: a("s_memtime s[88:89]")
    if OPT.get("lt") == 7: a("s_memtime s[80:81]")
    load_ptrs(a)
    if OPT.get("trace"):
        a("v_mov_b32 v120, 0")
        a("v_mov_b32 v167, 0")
        trace(a, 120, idx_imm=63)
    a(f"""
    v_lshrrev_b32 v1, 6, v0
    v_and_b32 v{L}, 63, v0
    s_and_b32 s3, s2, 7
    v_readfirstlane_b32 s{S_W}, v1
    s_lshr_b32 s{S_BLK}, s3, 2
    s_and_b32 s{S_G}, s3, 3
    s_lshr_b32 s3, s2, 3
    s_lshr_b32 s{S_B}, s3, 2
    s_and_b32 s{S_HP}, s3, 3
    s_and_b32 s{S_KQ}, s{S_W}, 3
    s_lshr_b32 s{S_QT}, s{S_W}, 2
    s_lshl_b32 s{S_WQB}, s{S_G}, 11
    s_lshl_b32 s3, s{S_HP}, 9
    s_add_u32 s{S_WQB}, s{S_WQB}, s3
    s_mul_i32 s{S_XB}, s{S_B}, {48*2048}
    s_cmp_ge_u32 s{S_W}, 8
    s_cbranch_scc1 L_p1_compute
    """)
    a(f"""
    v_lshrrev_b32 v5, 5, v{L}
    v_and_b32 v6, 31, v{L}
    s_and_b32 s{S_T1}, s{S_W}, 1
    s_lshl_b32 s{S_T1}, s{S_T1}, 2
    v_or_b32 v7, s{S_T1}, v5
    v_lshlrev_b32 v8, 1, v7
    v_xor_b32 v8, v8, v6
    v_lshlrev_b32 v8, 4, v8
    v_lshlrev_b32 v9, 13, v5
    v_add_u32 v2, v9, v8
    v_xor_b32 v8, 64, v8
    v_add_u32 v3, v9, v8
    s_mul_i32 s{S_T1}, s{S_W}, 6
    v_lshrrev_b32 v5, 3, v{L}
    v_add_u32 v5, s{S_T1}, v5
    v_lshrrev_b32 v6, 1, v5
    v_xor_b32 v6, v6, v{L}
    v_and_b32 v6, 7, v6
    v_lshlrev_b32 v6, 4, v6
    v_lshlrev_b32 v5, 11, v5
    v_add_u32 v4, v5, v6
    s_lshl_b32 s{S_T2}, s{S_W}, 16
    s_add_u32 s{S_WQB}, s{S_WQB}, s{S_T2}
    s_lshl_b32 s{S_T2}, s{S_W}, 12
    s_mul_i32 s{S_T3}, s{S_W}, 768
    s_add_u32 s{S_T3}, s{S_T3}, 32768
    """)
    if OPT.get("stag1", 2) == 1:
        a(f"""
        s_add_u32 s{S_PHI}, s{S_HP}, 1
        s_lshl_b32 s3, s{S_HP}, 3
        s_lshr_b32 s{S_M1}, 0x3f557fff, s3
        s_and_b32 s{S_M1}, s{S_M1}, 0xff
        s_add_u32 s{S_M1}, s{S_M1}, 1
        s_lshr_b32 s{S_M3}, 0x40342b25, s3
        s_and_b32 s{S_M3}, s{S_M3}, 0xff
        """)
    else:
        pa, pb = OPT.get("phiA", 8), OPT.get("phiB", 4)
        Mt = lambda n: -(-256 // n) if n else 1
        a(f"""
        s_cmp_eq_u32 s{S_BLK}, 0
        s_mov_b32 s{S_PHI}, {pb}
        s_cselect_b32 s{S_PHI}, {pa}, s{S_PHI}
        s_mov_b32 s{S_M1}, {Mt(pb)}
        s_cselect_b32 s{S_M1}, {Mt(pa)}, s{S_M1}
        s_mov_b32 s{S_M3}, {Mt(8-pb)}
        s_cselect_b32 s{S_M3}, {Mt(8-pa)}, s{S_M3}
        """)
    a(f"""
    s_cmp_eq_u32 s{S_BLK}, 0
    s_waitcnt lgkmcnt(0)
    """)
    if OPT.get("lt") == 7: a("s_memtime s[82:83]")
    srd(a, 8, 48, 58, 8*48*1024*2)
    srd(a, 12, 54, 64, 1024*4096*2)
    def issue_tile():
        if OPT.get("stag1", 2):
            emit_tile(a, 3, S_CNT, S_PHI, S_M1, S_M3, 8, S_B, 76, 77, 79)
        else:
            a(f"""
            s_add_u32 s3, s{S_CNT}, s{S_B}
            s_and_b32 s3, s3, 7
            s_and_b32 s76, s{S_CNT}, 8
            s_or_b32 s3, s3, s76
            """)
        a(f"""
        s_lshl_b32 s76, s3, 19
        s_add_u32 s76, s76, s{S_WQB}
        s_add_u32 s77, s{S_SLOT}, s{S_T2}
        """)
        def wq4(nt):
            for q in range(4):
                a(f"s_add_u32 m0, s77, {q*1024}")
                if q: a(f"s_add_u32 s76, s76, {2*8192}")
                a(f"buffer_load_dwordx4 v{2 + (q & 1)}, s[12:15], s76 offen {nt}lds")
        if OPT.get("ntf_wq"):
            l1, l2 = a.newlabel("L_wqn"), a.newlabel("L_wqd")
            a(f"s_and_b32 s79, s{S_CNT}, 7")
            a(f"s_cbranch_scc1 {l1}")
            wq4("nt ")
            a(f"s_branch {l2}")
            a.label(l1)
            wq4("")
            a.label(l2)
        else:
            wq4(NTQ())
        a(f"""
        s_lshl_b32 s76, s3, 7
        s_add_u32 s76, s76, s{S_XB}
        s_add_u32 m0, s{S_SLOT}, s{S_T3}
        s_mov_b32 exec_hi, {'0xffff' if not OPT.get('xfull') else '-1'}
        buffer_load_dwordx4 v4, s[8:11], s76 offen {NTX()}lds
        s_mov_b32 exec_hi, -1
        """)
    a(f"s_mov_b32 s{S_CNT}, 0")
    a(f"s_mov_b32 s{S_SLOT}, 0")
    issue_tile()
    a(f"""
    s_or_b32 s3, s2, s{S_W}
    s_cmp_eq_u32 s3, 0
    s_cbranch_scc0 L_notok
    s_memrealtime s[76:77]
    s_mov_b32 s16, s70
    s_mov_b32 s17, s71
    s_mov_b32 s18, 256
    s_mov_b32 s19, 0x00020000
    v_mov_b32 v10, 0
    s_waitcnt lgkmcnt(0)
    s_or_b32 s76, s76, 1
    v_mov_b32 v11, s76
    s_mov_b64 exec, 1
    buffer_store_dword v11, v10, s[16:19], 0 offen sc1
    s_mov_b64 exec, -1
    L_notok:
    """)
    if OPT.get("tlbw", 1):
        a(f"s_cmp_eq_u32 s{S_W}, {OPT.get('tlbw_wave', 0)}")
        a("s_cbranch_scc0 L_notlb")
        a(f"""
        v_lshlrev_b32 v10, 21, v{L}
        s_mov_b64 exec, 0xf
        buffer_load_dword v11, v10, s[12:15], 0 offen
        s_cmp_eq_u32 s{S_BLK}, 0
        """)
        srd(a, 16, 50, 60, 8*4*1024*128*2)
        srd(a, 20, 52, 62, 8*4*1024*128*2)
        a(f"""
        s_lshl_b32 s3, s{S_B}, 2
        s_add_u32 s3, s3, s{S_G}
        s_lshl_b32 s3, s3, 18
        s_mov_b64 exec, 1
        v_mov_b32 v10, 0
        buffer_load_dword v11, v10, s[16:19], s3 offen
        buffer_load_dword v11, v10, s[20:23], s3 offen
        s_cmp_eq_u32 s{S_BLK}, 0
        s_cselect_b32 s16, s56, s66
        s_cselect_b32 s17, s57, s67
        s_mov_b32 s18, {4096*1024*2}
        s_lshl_b32 s3, s{S_G}, 21
        buffer_load_dword v11, v10, s[16:19], s3 offen
        s_mov_b32 s16, s72
        s_mov_b32 s17, s73
        s_mov_b32 s18, {1 << 28}
        s_mov_b64 exec, -1
        v_lshlrev_b32 v10, 21, v{L}
        s_mov_b64 exec, 0x7fff
        buffer_load_dword v11, v10, s[16:19], 0 offen
        s_mov_b32 s16, s68
        s_mov_b32 s17, s69
        s_mov_b32 s18, {8*48*2048*2}
        s_mov_b64 exec, 1
        v_mov_b32 v10, 0
        buffer_load_dword v11, v10, s[16:19], 0 offen
        s_mov_b64 exec, -1
        L_notlb:
        """)
    if OPT.get("b01", 1): a("s_barrier")
    a(f"s_mov_b32 s{S_CNT}, 1")
    a(f"s_mov_b32 s{S_SLOT}, {AREA}")
    issue_tile()
    a(f"s_mov_b32 s{S_CNT}, 2")
    a(f"s_mov_b32 s{S_SLOT}, {2*AREA}")
    if OPT.get("lt") == 7: a("s_memtime s[84:85]")
    a(f"s_cmp_eq_u32 s{S_BLK}, 0")
    srd(a, 16, 50, 60, 8*4*1024*128*2)
    srd(a, 20, 52, 62, 8*4*1024*128*2)
    srd(a, 24, 72, 72, 1 << 28, sel=False)
    group_ids()
    a(f"""
    s_lshl_b32 s3, s{S_B}, 2
    s_add_u32 s3, s3, s{S_G}
    s_lshl_b32 s{S_KVB}, s3, 18
    s_lshl_b32 s3, s{S_KQ}, 16
    s_add_u32 s{S_KVB}, s{S_KVB}, s3
    v_lshrrev_b32 v5, 4, v{L}
    v_and_b32 v6, 15, v{L}
    v_lshlrev_b32 v7, 8, v5
    v_xor_b32 v8, v6, v5
    v_lshlrev_b32 v9, 4, v8
    v_add_u32 v{V_DOFF}, v7, v9
    v_xor_b32 v9, 64, v9
    v_add_u32 v{V_DOFF+1}, v7, v9
    v_xor_b32 v9, 0xc0, v9
    v_add_u32 v{V_DOFF+2}, v7, v9
    v_xor_b32 v9, 64, v9
    v_add_u32 v{V_DOFF+3 if not OPT.get("trace") else V_T2}, v7, v9
    s_cmp_eq_u32 s{S_QT}, 0
    s_cbranch_scc1 L_voff_done
    v_lshlrev_b32 v8, 2, v5
    v_xor_b32 v8, v8, v6
    v_lshlrev_b32 v8, 4, v8
    v_add_u32 v{V_DOFF}, v7, v8
    L_voff_done:
    """)
    a(f"""
    s_and_b32 s3, s{S_B}, 3
    s_add_u32 s60, s3, 1
    s_lshl_b32 s3, s3, 3
    s_lshr_b32 s61, 0x3f557fff, s3
    s_and_b32 s61, s61, 0xff
    s_add_u32 s61, s61, 1
    s_lshr_b32 s62, 0x00ff7f55, s3
    s_and_b32 s62, s62, 0xff
    s_add_u32 s62, s62, 1
    s_mov_b32 s{S_P2}, 0
    """)
    for i in range(8):
        if OPT.get("stag2", 1):
            emit_tile(a, 63, ("imm", i), 60, 61, 62, 4, S_HP, 64, 65, 79)
        else:
            R2 = OPT.get("rot2", 4)
            a(f"s_add_u32 s63, s{S_HP}, {i}")
            a(f"s_and_b32 s63, s63, {R2 - 1}")
            a(f"s_or_b32 s63, s63, {i & ~(R2 - 1)}")
            if OPT.get("kvoff"):
                a(f"s_add_u32 s63, s63, s{S_B}")
                a(f"s_and_b32 s63, s63, 7")
        a(f"s_lshl_b32 s63, s63, {4*i}")
        a(f"s_or_b32 s{S_P2}, s{S_P2}, s63")
    a.label("L_p1_ld_loop")
    a("s_waitcnt vmcnt(5)")
    trace(a, 120, idx_sreg=S_CNT)
    if OPT.get("lt") == 7:
        for k, cnt in enumerate((2, 3, 4, 9, 10, 11, 15)):
            a(f"s_cmp_eq_u32 s{S_CNT}, {cnt}")
            a(f"s_cbranch_scc0 L_lt7_{k}")
            a(f"s_memtime s[{86+2*k}:{87+2*k}]")
            a.label(f"L_lt7_{k}")
    a("s_barrier")
    if OPT.get("trace"): a(f"s_add_u32 s94, s{S_CNT}, 16")
    trace(a, 120, idx_sreg=94)
    issue_tile()
    if OPT.get("trace"): a(f"s_add_u32 s94, s{S_CNT}, 32")
    trace(a, 120, idx_sreg=94)
    a(f"""
    s_add_u32 s{S_SLOT}, s{S_SLOT}, {AREA}
    s_cmp_eq_u32 s{S_SLOT}, {3*AREA}
    s_cselect_b32 s{S_SLOT}, 0, s{S_SLOT}
    s_add_u32 s{S_CNT}, s{S_CNT}, 1
    s_cmp_lt_u32 s{S_CNT}, 16
    s_cbranch_scc1 L_p1_ld_loop
    """)
    def tile_soff(step, dst):
        a(f"""
        s_bfe_u32 s{dst}, s{S_P2}, {(4 << 16) | (4*step)}
        s_lshl_b32 s{dst}, s{dst}, 13
        s_add_u32 s{dst}, s{dst}, s{S_KVB}
        """)
    def dma8(step, lds_off, voff_fn, srdb):
        ntk = "nt " if (OPT.get("nt_kv") or (OPT.get("ntf_kv") and step % OPT.get("rot2", 4) == 0)) else ""
        tile_soff(step, 76)
        a(f"s_mul_i32 s77, s{S_KQ}, {AREA}")
        a(f"s_add_u32 m0, s77, {lds_off}")
        for q in range(8):
            if q == 4:
                a(f"s_add_u32 m0, s77, {lds_off + 4096}")
                a(f"s_add_u32 s76, s76, 4096")
            a(f"buffer_load_dwordx4 v{voff_fn(q)}, s[{srdb}:{srdb+3}], s76 offen offset:{(q & 3) * 1024} {ntk}lds")
    def issue_k(step):
        if OPT.get("trace"):
            a(f"v_xor_b32 v{V_T2}, 64, v{V_DOFF+2}")
            dma8(step, (step % 3) * 8192, lambda q: (V_DOFF + (q & 3)) if (q & 3) != 3 else V_T2, 16)
        else:
            dma8(step, (step % 3) * 8192, lambda q: V_DOFF + (q & 3), 16)
    def issue_v(step): dma8(step, 24576 + (step % 2) * 8192, lambda q: V_DOFF, 20)
    def call_early_if(kq):
        lab = a.newlabel("L_ne")
        a(f"s_cmp_eq_u32 s{S_KQ}, {kq}")
        a(f"s_cbranch_scc0 {lab}")
        a(f"s_call_b64 s[{S_RET}:{S_RET+1}], L_early")
        a.label(lab)
    a("s_waitcnt vmcnt(5)")
    call_early_if(3)
    a("s_barrier")
    call_early_if(1)
    a(f"""
    s_and_b32 s3, s{S_KQ}, 1
    s_cmp_eq_u32 s3, 1
    s_cbranch_scc1 L_w15_early
    s_waitcnt vmcnt(0)
    s_branch L_w15_done
    L_w15_early:
    s_cmp_eq_u32 s{S_QT}, 0
    s_cbranch_scc1 L_w15_k
    s_waitcnt vmcnt(8)
    s_branch L_w15_done
    L_w15_k:
    s_waitcnt vmcnt(16)
    L_w15_done:
    """)
    a("s_barrier")
    call_early_if(2)
    a("s_barrier")
    call_early_if(0)
    a("s_branch L_p1_join")
    a.label("L_early")
    a(f"s_cmp_eq_u32 s{S_QT}, 0")
    a("s_cbranch_scc0 L_early_v")
    issue_k(0)
    issue_k(1)
    a(f"s_setpc_b64 s[{S_RET}:{S_RET+1}]")
    a.label("L_early_v")
    issue_v(0)
    a(f"s_setpc_b64 s[{S_RET}:{S_RET+1}]")

    a.label("L_p1_compute")
    P_ACC, P_A, P_B, P_WA, P_XA = 0, 48, 80, 104, 108
    a(f"""
    v_lshrrev_b32 v110, 4, v{L}
    v_and_b32 v111, 15, v{L}
    v_lshrrev_b32 v112, 2, v111
    v_and_b32 v113, 3, v111
    v_lshlrev_b32 v114, 3, v110
    v_add_u32 v114, v114, v112
    v_lshlrev_b32 v114, 9, v114
    v_lshlrev_b32 v113, 3, v113
    v_add_u32 v114, v114, v113
    v_and_b32 v115, 1, v110
    v_lshlrev_b32 v115, 2, v115
    v_or_b32 v115, v115, v112
    s_lshl_b32 s{S_T0}, s{S_KQ}, 2
    """)
    for dt in range(4):
        a(f"s_add_u32 s{S_T1}, s{S_T0}, {dt}")
        a(f"v_xor_b32 v116, s{S_T1}, v115")
        a(f"v_lshlrev_b32 v116, 5, v116")
        a(f"v_add_u32 v{P_WA+dt}, v114, v116")
    a(f"""
    v_lshrrev_b32 v112, 1, v111
    v_xor_b32 v112, v112, v110
    v_lshlrev_b32 v112, 4, v112
    v_lshlrev_b32 v113, 7, v111
    v_add_u32 v112, v112, v113
    v_add_u32 v{P_XA}, 32768, v112
    v_xor_b32 v{P_XA+1}, 64, v{P_XA}
    """)
    for i in range(48):
        a(f"v_mov_b32 v{P_ACC+i}, 0")
    for i in range(4):
        a(f"v_mov_b32 v{V_DOFF+i}, 0")
    a(f"s_waitcnt lgkmcnt(0)")
    srd(a, 24, 72, 72, 1 << 28, sel=False)
    a(f"s_cmp_eq_u32 s{S_BLK}, 0")
    srd(a, 16, 50, 60, 8*4*1024*128*2)
    srd(a, 20, 52, 62, 8*4*1024*128*2)
    if OPT.get("b01", 1) and OPT.get("xpf_late"): a("s_barrier")
    if OPT.get("xpf", 1):
        a(f"s_cmp_eq_u32 s{S_BLK}, 0")
        srd(a, 8, 48, 58, 8*48*1024*2)
        a(f"""
        s_cmp_eq_u32 s{S_KQ}, 3
        s_cbranch_scc1 L_noxpf
        s_mul_i32 s3, s{S_HP}, 24576
        s_add_u32 s3, s3, s{S_XB}
        s_lshl_b32 s76, s{S_KQ}, 13
        s_add_u32 s3, s3, s76
        v_lshlrev_b32 v126, 7, v{L}
        buffer_load_dword v128, v126, s[8:11], s3 offen
        L_noxpf:
        """)
    if OPT.get("b01", 1) and not OPT.get("xpf_late"): a("s_barrier")
    group_ids()
    a(f"""
    s_mov_b32 s16, s70
    s_mov_b32 s17, s71
    s_mov_b32 s18, 256
    s_mov_b32 s19, 0x00020000
    s_mov_b32 s40, 0
    v_mov_b32 v126, 0
    v_mov_b32 v127, 1
    """)
    a(f"s_mov_b32 s{S_KVB}, 0")
    a(f"s_mov_b32 s{S_CNT}, 0")
    a(f"s_mov_b32 s{S_SLOT}, 0")
    def rd_ks(ks):
        if OPT.get("nocomp"): return
        for dt in range(4):
            for hf in range(2):
                r = P_A + ks*16 + dt*4 + hf*2
                a(f"ds_read_b64_tr_b16 v[{r}:{r+1}], v{P_WA+dt} offset:{ks*16384 + hf*2048}")
    def rd_x(ks):
        if OPT.get("nocomp"): return
        for st in range(3):
            r = P_B + ks*12 + st*4
            a(f"ds_read_b128 v[{r}:{r+3}], v{P_XA+ks} offset:{st*2048}")
    def mm(ks):
        if OPT.get("nocomp"): return
        for dt in range(4):
            for st in range(3):
                ac = P_ACC + (dt*3+st)*4
                ra = P_A + ks*16 + dt*4; rb = P_B + ks*12 + st*4
                a(f"v_mfma_f32_16x16x32_bf16 v[{ac}:{ac+3}], v[{ra}:{ra+3}], v[{rb}:{rb+3}], v[{ac}:{ac+3}]")
    a.label("L_p1_c_loop")
    trace(a, 120, idx_sreg=S_CNT)
    a("s_barrier")

    if OPT.get("trace"): a(f"s_add_u32 s94, s{S_CNT}, 16")
    trace(a, 120, idx_sreg=94)
    rd_x(0); rd_ks(0)
    a(f"s_cmp_eq_u32 s{S_CNT}, 0")
    a("s_cbranch_scc1 L_p1_c_skip")
    mm(1)
    a.label("L_p1_c_skip")
    rd_x(1); rd_ks(1)
    a("s_waitcnt lgkmcnt(11)")
    mm(0)
    a(f"""
    s_add_u32 s{S_SLOT}, s{S_SLOT}, 1
    s_cmp_eq_u32 s{S_SLOT}, 3
    s_cselect_b32 s{S_SLOT}, 0, s{S_SLOT}
    s_mov_b32 s3, {AREA}
    s_cselect_b32 s3, {(-2*AREA) & 0xffffffff}, s3
    """)
    for r in list(range(P_WA, P_WA+4)) + [P_XA, P_XA+1]:
        a(f"v_add_u32 v{r}, s3, v{r}")
    a(f"""
    s_add_u32 s{S_CNT}, s{S_CNT}, 1
    s_cmp_lt_u32 s{S_CNT}, 16
    s_waitcnt lgkmcnt(0)
    s_cbranch_scc1 L_p1_c_loop
    s_barrier
    """)
    mm(1)
    a(f"""
    s_mov_b32 s{S_C}, {f2u(C_SCALE)}
    v_lshrrev_b32 v110, 4, v{L}
    v_and_b32 v111, 15, v{L}
    v_lshlrev_b32 v112, 8, v111
    v_and_b32 v113, 1, v110
    v_lshlrev_b32 v113, 3, v113
    v_add_u32 v112, v112, v113
    v_lshrrev_b32 v113, 1, v110
    s_and_b32 s{S_T0}, s{S_KQ}, 1
    s_lshl_b32 s{S_T0}, s{S_T0}, 3
    v_add_u32 v113, s{S_T0}, v113
    s_lshr_b32 s{S_T1}, s{S_KQ}, 1
    s_cmp_eq_u32 s{S_T1}, 0
    s_mov_b32 s76, {2*AREA+16384+4096}
    s_mov_b32 s77, {3*AREA+16384}
    s_mov_b32 s78, {3*AREA+16384+4096}
    s_cselect_b32 s76, {1*AREA+16384}, s76
    s_cselect_b32 s77, {1*AREA+16384+4096}, s77
    s_cselect_b32 s78, {2*AREA+16384}, s78
    """)
    for dt in range(4):
        a(f"v_add_u32 v114, {2*dt}, v113")
        a(f"v_xor_b32 v114, v114, v111")
        a(f"v_lshlrev_b32 v114, 4, v114")
        a(f"v_add_u32 v114, v114, v112")
        for st in range(3):
            ac = P_ACC + (dt*3+st)*4
            t = 116 + 2*(st & 1)
            for e in range(4): a(f"v_mul_f32 v{ac+e}, s{S_C}, v{ac+e}")
            a(f"v_cvt_pk_bf16_f32 v{t}, v{ac}, v{ac+1}")
            a(f"v_cvt_pk_bf16_f32 v{t+1}, v{ac+2}, v{ac+3}")
            a(f"v_add_u32 v{123+st}, s{76+st}, v114")
            a(f"ds_write_b64 v{123+st}, v[{t}:{t+1}]")
    a("s_waitcnt lgkmcnt(0)")

    a.label("L_p1_join")
    trace(a, 120, idx_imm=60)
    if OPT.get("lt") == 7: a("s_memtime s[100:101]")
    a("s_barrier")
    trace(a, 120, idx_imm=61)
    trace_dump(a, 120, 121, S_W, V_LANE, 0)
    if OPT.get("trace"): a("v_mov_b32 v167, 0")
    stamp(a, 1)
    a(f"""
    s_mov_b32 s{S_TC}, {f2u(T_HI)}
    s_mov_b32 s{S_NC}, {f2u(-T_LO)}
    s_mov_b64 s[{S_SLOW}:{S_SLOW+1}], 0
    v_and_b32 v{V_T0}, 31, v{L}
    v_lshlrev_b32 v{V_T0}, 8, v{V_T0}
    v_lshrrev_b32 v{V_T1}, 5, v{L}
    v_and_b32 v{V_T2}, 15, v{L}
    v_xor_b32 v{V_T1}, v{V_T1}, v{V_T2}
    v_lshlrev_b32 v{V_T1}, 4, v{V_T1}
    v_add_u32 v{V_T0}, v{V_T0}, v{V_T1}
    s_add_u32 s3, s{S_QT}, 1
    s_mul_i32 s3, s3, {AREA}
    s_add_u32 s3, s3, 16384
    s_mul_i32 s76, s{S_KQ}, {AREA}
    """)
    for st8 in range(8):
        a(f"v_xor_b32 v{V_T1}, {st8 << 5}, v{V_T0}")
        a(f"v_add_u32 v{V_F+st8}, s3, v{V_T1}")
        a(f"v_add_u32 v{V_KA+st8}, s76, v{V_T1}")
        a(f"ds_read_b128 v[{V_Q+4*st8}:{V_Q+4*st8+3}], v{V_F+st8}")
    a(f"""
    v_lshrrev_b32 v{V_T0}, 5, v{L}
    v_lshlrev_b32 v{V_T0}, 2, v{V_T0}
    v_bfe_u32 v{V_T1}, v{L}, 2, 2
    v_add_u32 v{V_T0}, v{V_T0}, v{V_T1}
    v_lshlrev_b32 v{V_T0}, 8, v{V_T0}
    v_bfe_u32 v{V_T2}, v{L}, 4, 1
    v_lshlrev_b32 v{V_T2}, 5, v{V_T2}
    v_add_u32 v{V_T0}, v{V_T0}, v{V_T2}
    v_and_b32 v{V_T2}, 3, v{L}
    v_lshlrev_b32 v{V_T2}, 3, v{V_T2}
    v_add_u32 v{V_T0}, v{V_T0}, v{V_T2}
    s_add_u32 s76, s76, 24576
    v_add_u32 v{V_T0}, s76, v{V_T0}
    """)
    for j in range(4):
        a(f"s_add_u32 s3, s{S_KQ}, {j}")
        a(f"s_and_b32 s3, s3, 3")
        a(f"v_xor_b32 v{V_T2}, s3, v{V_T1}")
        a(f"v_lshlrev_b32 v{V_T2}, 6, v{V_T2}")
        a(f"v_add_u32 v{V_VA+j}, v{V_T0}, v{V_T2}")
    for i in range(64):
        a(f"v_mov_b32 v{V_O+i}, 0")
    a(f"""
    v_mov_b32 v{V_M}, 0
    v_mov_b32 v{V_THR}, s{S_TC}
    v_mov_b32 v{V_L}, 0
    s_waitcnt lgkmcnt(0)
    """)

    S = V_S
    def tr2(idx):
        lt = OPT.get("lt")
        if lt and idx < 36:
            i, k = idx // 4, idx % 4
            if (lt == 1 and k == 1) or (lt == 2 and k == 0) or (lt == 3 and k == 2):
                a(f"s_memtime s[{80+2*i}:{81+2*i}]")
        if lt and lt not in (6, 7) and idx == 41: a("s_memtime s[98:99]")
        if lt and lt not in (6, 7) and idx == 40: a("s_memtime s[100:101]")
        if not OPT.get("trace"): return
        trace(a, 120 if False else 167, idx_imm=idx)
    def rd_k(step, st8):
        a(f"ds_read_b128 v[{V_F+4*st8}:{V_F+4*st8+3}], v{V_KA+st8} offset:{(step % 3) * 8192}")
    def rd_v(step, f):
        t, j = f // 4, f % 4
        for hf in range(2):
            r = V_F + 4*f + 2*hf
            a(f"ds_read_b64_tr_b16 v[{r}:{r+1}], v{V_VA+j} offset:{(step % 2) * 8192 + (16*t + 8*hf)*256}")
    def qk(step, pending_k):
        for st8 in range(8):
            a(f"s_waitcnt lgkmcnt({7 - st8 if st8 < 2 else min(15, 7 - st8 + 2*(st8-1))})")
            c = "0" if st8 == 0 else f"v[{S}:{S+15}]"
            a(f"v_mfma_f32_32x32x16_bf16 v[{S}:{S+15}], v[{V_F+4*st8}:{V_F+4*st8+3}], v[{V_Q+4*st8}:{V_Q+4*st8+3}], {c}")
            if st8 >= 1: rd_v(step, st8 - 1)
        rd_v(step, 7)
    def softmax_half(half):
        for i in range(8*half, 8*half+8):
            a(f"v_exp_f32 v{S+i}, v{S+i}")
        for i in range(8*half, 8*half+8):
            a(f"v_add_f32 v{V_L}, v{V_L}, v{S+i}")
        for j in range(4*half, 4*half+4):
            a(f"v_cvt_pk_bf16_f32 v{S+j}, v{S+2*j}, v{S+2*j+1}")
    def softmax_max(lab, first=False):
        a(f"v_max3_f32 v{V_T0}, v{S}, v{S+1}, v{S+2}")
        a(f"v_max3_f32 v{V_T1}, v{S+3}, v{S+4}, v{S+5}")
        a(f"v_max3_f32 v{V_T0}, v{V_T0}, v{S+6}, v{S+7}")
        a(f"v_max3_f32 v{V_T1}, v{V_T1}, v{S+8}, v{S+9}")
        a(f"v_max3_f32 v{V_T0}, v{V_T0}, v{S+10}, v{S+11}")
        a(f"v_max3_f32 v{V_T1}, v{V_T1}, v{S+12}, v{S+13}")
        a(f"v_max3_f32 v{V_T0}, v{V_T0}, v{S+14}, v{S+15}")
        a(f"v_max_f32 v{V_T0}, v{V_T0}, v{V_T1}")
        a(f"v_mov_b32 v{V_T1}, v{V_T0}")
        a(f"v_permlane32_swap_b32 v{V_T0}, v{V_T1}")
        a(f"v_max_f32 v{V_T0}, v{V_T0}, v{V_T1}")
        a(f"v_cmp_gt_f32 vcc, v{V_T0}, v{V_THR}")
        if first:
            a(f"v_cmp_gt_f32 s[52:53], s{S_NC}, v{V_T0}")
            a(f"s_or_b64 vcc, vcc, s[52:53]")
        a(f"s_or_b64 s[52:53], vcc, s[{S_SLOW}:{S_SLOW+1}]")
        a(f"s_cbranch_scc0 {lab}")
        a(f"s_call_b64 s[{S_RET}:{S_RET+1}], L_slow{'_first' if first else ''}")
        a.label(lab)
    def pv_mfma(f):
        t, j = f // 4, f % 4
        o = V_O + 16*j
        a(f"v_mfma_f32_32x32x16_bf16 v[{o}:{o+15}], v[{V_F+4*f}:{V_F+4*f+3}], v[{S+4*t}:{S+4*t+3}], v[{o}:{o+15}]")
    def pv_then_k(next_step):
        for f in range(8):
            pv_mfma(f)
            if next_step is not None and f >= 1: rd_k(next_step, f - 1)
        if next_step is not None: rd_k(next_step, 7)

    PR = OPT.get("prio", 1)
    def prio(p):
        if PR: a(f"s_setprio {p}")
    a(f"s_cmp_eq_u32 s{S_QT}, 1")
    a("s_cbranch_scc1 L_typeA")
    a(f"s_cmp_eq_u32 s{S_QT}, 2")
    a("s_cbranch_scc1 L_typeC")
    for i in range(8):
        a(f"s_waitcnt vmcnt({8 if i < 7 else 0})")
        tr2(4*i)
        a("s_barrier")
        tr2(4*i+1)
        prio(1)
        if i == 0:
            for st8 in range(8): rd_k(0, st8)
        else:
            pv_then_k(i)
        if i + 2 < 8: issue_k(i + 2)
        qk(i, 0)
        tr2(4*i+2)
        prio(2)
        softmax_max(f"L_D{i}", first=(i == 0))
        softmax_half(0); softmax_half(1)
        a("s_waitcnt lgkmcnt(0)")
    tr2(32)
    a("s_barrier")
    pv_then_k(None)
    a("s_branch L_merge")
    a.label("L_typeA")
    for i in range(8):
        a(f"s_waitcnt vmcnt(0)")
        tr2(4*i)
        a("s_barrier")
        tr2(4*i+1)
        prio(3)
        for st8 in range(8): rd_k(i, st8)
        if i + 1 < 8: issue_v(i + 1)
        qk(i, 0)
        tr2(4*i+2)
        prio(2)
        softmax_max(f"L_A{i}", first=(i == 0))
        softmax_half(0); softmax_half(1)
        prio(0)
        for f in range(8):
            a(f"s_waitcnt lgkmcnt({min(15, 2*(7-f))})")
            pv_mfma(f)
    tr2(32)
    a("s_barrier")
    a("s_branch L_merge")
    a.label("L_typeC")
    a(f"s_cmp_eq_u32 s{S_BLK}, 0")
    srd(a, 12, 56, 66, 4096*1024*2)
    a(f"""
    v_lshrrev_b32 v{V_DOFF+1}, 1, v{L}
    v_lshlrev_b32 v{V_DOFF+1}, 11, v{V_DOFF+1}
    v_and_b32 v{V_DOFF+2}, 1, v{L}
    v_lshlrev_b32 v{V_DOFF+2}, 7, v{V_DOFF+2}
    v_add_u32 v{V_DOFF+1}, v{V_DOFF+1}, v{V_DOFF+2}
    s_lshl_b32 s45, s{S_G}, 10
    s_lshl_b32 s3, s{S_BP}, 8
    s_add_u32 s45, s45, s3
    s_lshl_b32 s3, s{S_KQ}, 6
    s_add_u32 s45, s45, s3
    s_lshl_b32 s45, s45, 11
    s_lshl_b32 s3, s{S_NT8}, 8
    s_add_u32 s45, s45, s3
    """)
    a(f"""
    s_cmp_eq_u32 s{S_W}, 8
    s_cbranch_scc0 L_notokrd
    v_mov_b32 v{V_DOFF}, 0
    s_mov_b32 s{S_CNT}, 0
    L_tokspin:
    buffer_load_dword v{V_DOFF+3}, v{V_DOFF}, s[16:19], 0 offen sc1
    s_waitcnt vmcnt(0)
    v_readfirstlane_b32 s40, v{V_DOFF+3}
    s_add_u32 s{S_CNT}, s{S_CNT}, 1
    s_cmp_lt_u32 s{S_CNT}, {SPIN_MAX}
    s_cbranch_scc0 L_notokrd
    s_cmp_eq_u32 s40, 0
    s_cbranch_scc1 L_tokspin
    L_notokrd:
    """)
    PF_AT = {}
    PF_AT.setdefault(OPT.get("pf0", 7), []).append(0)
    PF_AT.setdefault(OPT.get("pf1", 7), []).append(1)
    for i in range(9):
        tr2(4*i)
        a("s_barrier")
        tr2(4*i+1)
        prio(2)
        if i in PF_AT and OPT.get("wopf", 1) and OPT.get("pf_early"):
            for e in PF_AT[i]:
                a(f"s_add_u32 s3, s45, {e * 32 * 2048}")
                a(f"buffer_load_dword v{V_DOFF+2}, v{V_DOFF+1}, s[12:15], s3 offen {NTWO()}")
        if i == 0:
            for st8 in range(8): rd_k(0, st8)
        else:
            softmax_max(f"L_C{i}", first=(i == 1))
            softmax_half(0); softmax_half(1)
            if i in PF_AT and OPT.get("wopf", 1) and not OPT.get("pf_early"):
                for e in PF_AT[i]:
                    a(f"s_add_u32 s3, s45, {e * 32 * 2048}")
                    a(f"buffer_load_dword v{V_DOFF+2}, v{V_DOFF+1}, s[12:15], s3 offen {NTWO()}")
            pv_then_k(i if i < 8 else None)
        if i < 8:
            prio(1)
            qk(i, 0)
            a("s_waitcnt lgkmcnt(0)")
    def spin(label, load_lines, cmp_val, vreg):
        a(f"s_mov_b32 s{S_CNT}, 0")
        a.label(label)
        a(load_lines)
        a("s_waitcnt vmcnt(0)")
        a(f"v_cmp_ne_u32 vcc, s3, v{vreg}" if cmp_val is None else f"v_cmp_ne_u32 vcc, {cmp_val}, v{vreg}")
        a(f"s_cbranch_vccz {label}_ok")
        a(f"s_add_u32 s{S_CNT}, s{S_CNT}, 1")
        a(f"s_cmp_lt_u32 s{S_CNT}, {SPIN_MAX}")
        a("s_sleep 1")
        a(f"s_cbranch_scc1 {label}")
        a.label(f"{label}_ok")

    def gen_tail():
        T_ACC, T_FR, T_AA, T_BA, T_DOFF, T_X = 0, 48, 112, 113, 114, 116
        S_WOB, S_OB, S_ST = 45, 46, 47
        NW, NO = 7, 4
        OB0 = NW * 16384
        OWN = 4 * 16384
        def ts(i):
            if OPT.get("lt") == 5: a(f"s_memtime s[{80+2*i}:{81+2*i}]")
        ts(0)
        a(f"s_cmp_eq_u32 s{S_BLK}, 0")
        srd(a, 12, 56, 66, 4096*1024*2)
        srd(a, 8, 68, 68, 8*48*2048*2, sel=False)
        a(f"""
        s_lshl_b32 s{S_WOB}, s{S_G}, 21
        s_lshl_b32 s3, s{S_NT8}, 8
        s_add_u32 s{S_WOB}, s{S_WOB}, s3
        s_mul_i32 s{S_OB}, s{S_G1}, {192*1024}
        s_add_u32 s{S_OB}, s{S_OB}, {O_OFF}
        s_lshl_b32 s74, s{S_NT8}, 1
        s_cmp_ge_u32 s{S_W}, 8
        s_cbranch_scc1 L_t_compute
        s_cmp_ge_u32 s{S_W}, 4
        s_cbranch_scc1 L_t_oload
        """)
        a(f"""
        v_lshrrev_b32 v{T_X}, 4, v{L}
        v_and_b32 v{T_X+1}, 15, v{L}
        v_lshlrev_b32 v{T_X+2}, 2, v{T_X}
        v_xor_b32 v{T_X+2}, v{T_X+2}, v{T_X+1}
        v_lshlrev_b32 v{T_X+2}, 4, v{T_X+2}
        v_lshlrev_b32 v{T_X}, 11, v{T_X}
        v_add_u32 v{T_DOFF}, v{T_X}, v{T_X+2}
        s_lshl_b32 s{S_T0}, s{S_W}, 15
        s_add_u32 s{S_WOB}, s{S_WOB}, s{S_T0}
        s_lshl_b32 s{S_T2}, s{S_W}, 12
        """)
        def issue_wo(st):
            a(f"s_add_u32 s3, s74, {st}")
            a(f"s_and_b32 s3, s3, 15")
            a(f"s_lshl_b32 s76, s3, 17")
            a(f"s_add_u32 s76, s76, s{S_WOB}")
            for q in range(4):
                a(f"s_add_u32 m0, s{S_T2}, {(st % NW)*16384 + q*1024}")
                if q: a(f"s_add_u32 s76, s76, {4*2048}")
                a(f"buffer_load_dwordx4 v{T_DOFF}, s[12:15], s76 offen lds")
        a("s_waitcnt vmcnt(0)")
        ts(1)
        a("s_barrier")
        a("s_sleep 1")
        for st in range(NW): issue_wo(st)
        a("s_barrier")
        ts(2)
        for st in range(16):
            last = min(15, max(NW - 1, st + NW - 3))
            a(f"s_waitcnt vmcnt({4 * (last - st)})")
            if OPT.get("lt") == 6 and st in LT6: a(f"s_memtime s[{80+2*LT6.index(st)}:{81+2*LT6.index(st)}]")
            a("s_barrier")
            if st >= 2 and st + NW - 2 <= 15: issue_wo(st + NW - 2)
        ts(3)
        a("s_branch L_t_join")
        a.label("L_t_oload")
        a(f"""
        v_lshlrev_b32 v{T_DOFF+1}, 4, v{L}
        s_sub_u32 s{S_T3}, s{S_W}, 4
        s_mul_i32 s{S_T3}, s{S_T3}, 3072
        s_add_u32 s{S_OB}, s{S_OB}, s{S_T3}
        """)
        def issue_o(st):
            a(f"s_add_u32 s3, s74, {st}")
            a(f"s_and_b32 s3, s3, 15")
            a(f"s_mul_i32 s76, s3, 12288")
            a(f"s_add_u32 s76, s76, s{S_OB}")
            a(f"s_add_u32 m0, s{S_T3}, {OB0 + (st % NO)*12288}")
            for q in range(3):
                a(f"buffer_load_dwordx4 v{T_DOFF+1}, s[24:27], s76 offen offset:{q*1024} {OSC()}lds")
        a("s_waitcnt vmcnt(0)")
        ts(1)
        a("s_barrier")
        a("s_barrier")
        ts(2)
        for st in range(NO): issue_o(st)
        for st in range(16):
            last = min(15, max(NO - 1, st + NO - 3))
            a(f"s_waitcnt vmcnt({3 * (last - st)})")
            if OPT.get("lt") == 6 and st in LT6: a(f"s_memtime s[{80+2*LT6.index(st)}:{81+2*LT6.index(st)}]")
            a("s_barrier")
            if st >= 2 and st + NO - 2 <= 15: issue_o(st + NO - 2)
        ts(3)
        a("s_branch L_t_join")
        a.label("L_t_compute")
        a(f"""
        v_lshrrev_b32 v{T_X}, 5, v{L}
        v_lshlrev_b32 v{T_X}, 3, v{T_X}
        v_bfe_u32 v{T_X+1}, v{L}, 2, 2
        v_add_u32 v{T_X}, v{T_X}, v{T_X+1}
        v_lshlrev_b32 v{T_X}, 8, v{T_X}
        v_bfe_u32 v{T_X+2}, v{L}, 4, 1
        v_lshlrev_b32 v{T_X+2}, 5, v{T_X+2}
        v_add_u32 v{T_X}, v{T_X}, v{T_X+2}
        v_and_b32 v{T_X+2}, 3, v{L}
        v_lshlrev_b32 v{T_X+2}, 3, v{T_X+2}
        v_add_u32 v{T_X}, v{T_X}, v{T_X+2}
        v_xor_b32 v{T_X+2}, s{S_KQ}, v{T_X+1}
        v_lshlrev_b32 v{T_X+2}, 6, v{T_X+2}
        v_add_u32 v{T_AA}, v{T_X}, v{T_X+2}
        v_lshlrev_b32 v{T_BA}, 4, v{L}
        v_add_u32 v{T_BA}, {OB0}, v{T_BA}
        """)
        for i in range(48):
            a(f"v_mov_b32 v{T_ACC+i}, 0")
        a("s_waitcnt vmcnt(0)")
        ts(1)
        a("s_barrier")
        a(f"s_cmp_eq_u32 s{S_W}, 8")
        a("s_cbranch_scc0 L_t_nopoll1")
        a("s_setprio 3")
        a(f"""
        s_lshl_b32 s3, s{S_G1}, 7
        s_add_u32 s76, s3, {FLAG_OFF}
        s_lshl_b32 s3, s{S_NT8}, 2
        s_add_u32 s77, s76, s3
        v_mov_b32 v{T_X}, 0
        v_mov_b32 v{T_X+1}, s40
        s_mov_b64 exec, 1
        buffer_store_dword v{T_X+1}, v{T_X}, s[24:27], s77 offen sc1
        s_mov_b64 exec, -1
        v_and_b32 v{T_X+2}, 7, v{L}
        v_lshlrev_b32 v{T_X+2}, 2, v{T_X+2}
        """)
        a(f"s_mov_b32 s3, s40")
        spin("L_spin_a", f"buffer_load_dword v{T_X+1}, v{T_X+2}, s[24:27], s76 offen sc1", None, T_X+1)
        a("s_setprio 0")
        a.label("L_t_nopoll1")
        a("s_barrier")
        ts(2)
        def rd_list(j):
            b = T_FR + 16*j
            out = []
            for hf in range(2):
                out.append(f"ds_read_b64_tr_b16 v[{b+2*hf}:{b+2*hf+1}], v{T_AA} offset:{j*4096 + hf*1024}")
            for m in range(3):
                out.append(f"ds_read_b128 v[{b+4+4*m}:{b+7+4*m}], v{T_BA} offset:{(j*3+m)*1024}")
            return out
        def mm_list(j):
            b = T_FR + 16*j
            return [f"v_mfma_f32_32x32x16_bf16 v[{T_ACC+16*m}:{T_ACC+16*m+15}], v[{b}:{b+3}], v[{b+4+4*m}:{b+7+4*m}], v[{T_ACC+16*m}:{T_ACC+16*m+15}]" for m in range(3)]
        def mm3(j):
            for x in mm_list(j): a(x)
        def weave(mm, rd):
            groups = [rd[0:3], rd[3:4], rd[4:5]]
            for x, g in zip(mm, groups):
                a(x)
                for y in g: a(y)
        a(f"s_mov_b32 s{S_ST}, 0")
        a(f"s_mov_b32 s{S_SLOT}, 0")
        a.label("L_t_loop")
        if OPT.get("lt") == 6:
            for k, st in enumerate(LT6):
                a(f"s_cmp_eq_u32 s{S_ST}, {st}")
                a(f"s_cbranch_scc0 L_lt6_{k}")
                a(f"s_memtime s[{80+2*k}:{81+2*k}]")
                a.label(f"L_lt6_{k}")
        a("s_barrier")
        a(f"s_cmp_eq_u32 s{S_ST}, 0")
        a("s_cbranch_scc0 L_t_left")
        for y in rd_list(0) + rd_list(1): a(y)
        a("s_branch L_t_skip")
        a.label("L_t_left")
        a("s_waitcnt lgkmcnt(5)")
        weave(mm_list(2), rd_list(0))
        a("s_waitcnt lgkmcnt(5)")
        weave(mm_list(3), rd_list(1))
        a.label("L_t_skip")
        a("s_waitcnt lgkmcnt(5)")
        weave(mm_list(0), rd_list(2))
        a("s_waitcnt lgkmcnt(5)")
        weave(mm_list(1), rd_list(3))
        a(f"""
        s_add_u32 s{S_SLOT}, s{S_SLOT}, 1
        s_cmp_eq_u32 s{S_SLOT}, {NW}
        s_cselect_b32 s{S_SLOT}, 0, s{S_SLOT}
        s_mov_b32 s3, 16384
        s_cselect_b32 s3, {(-(NW-1)*16384) & 0xffffffff}, s3
        v_add_u32 v{T_AA}, s3, v{T_AA}
        s_add_u32 s{S_ST}, s{S_ST}, 1
        s_and_b32 s3, s{S_ST}, 3
        s_mov_b32 s3, 12288
        s_cselect_b32 s3, s3, {(-3*12288) & 0xffffffff}
        v_add_u32 v{T_BA}, s3, v{T_BA}
        s_cmp_lt_u32 s{S_ST}, 16
        s_cbranch_scc1 L_t_loop
        s_waitcnt lgkmcnt(0)
        """)
        mm3(2); mm3(3)
        ts(3)
        a(f"s_cmp_eq_u32 s{S_KQ}, s{S_G}")
        a("s_cbranch_scc0 L_t_pub")
        a(f"v_lshlrev_b32 v{T_X}, 4, v{L}")
        a(f"v_add_u32 v{T_X}, {OWN}, v{T_X}")
        for m in range(3):
            for rq in range(4):
                r = T_ACC + 16*m + 4*rq
                a(f"ds_write_b128 v{T_X}, v[{r}:{r+3}] offset:{(m*4+rq)*1024}")
        a("s_waitcnt lgkmcnt(0)")
        a("s_branch L_t_join")
        a.label("L_t_pub")
        a(f"""
        s_lshl_b32 s3, s{S_G2}, 2
        s_add_u32 s3, s3, s{S_KQ}
        s_lshl_b32 s3, s3, 2
        s_add_u32 s3, s3, s{S_G}
        s_mul_i32 s76, s3, 6144
        s_add_u32 s76, s76, {PART_OFF}
        v_lshlrev_b32 v{T_X}, 3, v{L}
        """)
        for m in range(3):
            for rq in range(4):
                r = T_ACC + 16*m + 4*rq
                d = T_FR + 2*(m*4+rq)
                a(f"v_cvt_pk_bf16_f32 v{d}, v{r}, v{r+1}")
                a(f"v_cvt_pk_bf16_f32 v{d+1}, v{r+2}, v{r+3}")
        for m in range(3):
            for rq in range(4):
                d = T_FR + 2*(m*4+rq)
                off = (m*4+rq)*512
                if off == 4096: a("s_add_u32 s76, s76, 4096")
                a(f"buffer_store_dwordx2 v[{d}:{d+1}], v{T_X}, s[24:27], s76 offen offset:{off % 4096} sc1")
        a("s_waitcnt vmcnt(0)")
        a.label("L_t_join")
        ts(4)
        a("s_barrier")
        a(f"s_cmp_eq_u32 s{S_W}, 8")
        a("s_cbranch_scc0 L_t_nopoll2")
        a(f"""
        s_lshl_b32 s3, s{S_G2}, 7
        s_add_u32 s76, s3, {FLAG_OFF + 8192}
        s_lshl_b32 s3, s{S_G}, 2
        s_add_u32 s77, s76, s3
        v_mov_b32 v{T_X}, 0
        v_mov_b32 v{T_X+1}, s40
        s_mov_b64 exec, 1
        buffer_store_dword v{T_X+1}, v{T_X}, s[24:27], s77 offen sc1
        s_mov_b64 exec, -1
        v_and_b32 v{T_X+2}, 3, v{L}
        v_lshlrev_b32 v{T_X+2}, 2, v{T_X+2}
        s_mov_b32 s3, s40
        """)
        spin("L_spin_b", f"buffer_load_dword v{T_X+1}, v{T_X+2}, s[24:27], s76 offen sc1", None, T_X+1)
        a.label("L_t_nopoll2")
        a("s_barrier")
        ts(5)
        a(f"""
        s_lshl_b32 s3, s{S_G2}, 2
        s_add_u32 s3, s3, s{S_G}
        s_mul_i32 s76, s3, {4*6144}
        s_lshl_b32 s3, s{S_W}, 9
        s_add_u32 s76, s76, s3
        s_add_u32 s76, s76, {PART_OFF}
        v_lshlrev_b32 v{T_X}, 3, v{L}
        """)
        for d in range(1, 4):
            a(f"s_add_u32 s3, s{S_G}, {d}")
            a(f"s_and_b32 s3, s3, 3")
            a(f"s_mul_i32 s3, s3, 6144")
            a(f"s_add_u32 s77, s76, s3")
            a(f"buffer_load_dwordx2 v[{18+2*d}:{19+2*d}], v{T_X}, s[24:27], s77 offen sc1")
        a(f"""
        s_lshl_b32 s3, s{S_W}, 10
        s_add_u32 s3, s3, {OWN}
        v_lshlrev_b32 v{T_X+3}, 4, v{L}
        v_add_u32 v{T_X+3}, s3, v{T_X+3}
        ds_read_b128 v[16:19], v{T_X+3}
        s_mul_i32 s3, s{S_BP}, 96
        s_lshl_b32 s77, s{S_QT}, 5
        s_add_u32 s3, s3, s77
        s_lshl_b32 s3, s3, 12
        s_lshl_b32 s77, s{S_BLK}, 11
        s_add_u32 s3, s3, s77
        s_lshl_b32 s77, s{S_NT8}, 8
        s_add_u32 s3, s3, s77
        s_lshl_b32 s77, s{S_G}, 6
        s_add_u32 s3, s3, s77
        s_lshl_b32 s77, s{S_KQ}, 4
        s_add_u32 s3, s3, s77
        v_and_b32 v{T_X+1}, 31, v{L}
        v_lshlrev_b32 v{T_X+1}, 12, v{T_X+1}
        v_lshrrev_b32 v{T_X+2}, 5, v{L}
        v_lshlrev_b32 v{T_X+2}, 3, v{T_X+2}
        v_add_u32 v{T_X+1}, v{T_X+1}, v{T_X+2}
        s_waitcnt lgkmcnt(0)
        """)
        for d in range(1, 4):
            a(f"s_waitcnt vmcnt({3-d})")
            lo, hi = 18 + 2*d, 19 + 2*d
            a(f"v_lshlrev_b32 v28, 16, v{lo}")
            a(f"v_and_b32 v29, 0xffff0000, v{lo}")
            a(f"v_lshlrev_b32 v30, 16, v{hi}")
            a(f"v_and_b32 v31, 0xffff0000, v{hi}")
            for i in range(4): a(f"v_add_f32 v{16+i}, v{16+i}, v{28+i}")
        a("v_cvt_pk_bf16_f32 v20, v16, v17")
        a("v_cvt_pk_bf16_f32 v21, v18, v19")
        a(f"buffer_store_dwordx2 v[20:21], v{T_X+1}, s[8:11], s3 offen")
        ts(6)

    a.label("L_merge")
    prio(0)
    stamp(a, 2)
    tr2(40)
    F = V_F
    def mt(i):
        if OPT.get("lt") == 4: a(f"s_memtime s[{80+2*i}:{81+2*i}]")
    mt(0)
    a(f"""
    v_mov_b32 v{V_T0}, v{V_L}
    v_mov_b32 v{V_T1}, v{V_L}
    s_mul_i32 s76, s{S_KQ}, {AREA}
    v_lshlrev_b32 v{V_T2}, 4, v{L}
    v_permlane32_swap_b32 v{V_T0}, v{V_T1}
    s_mul_i32 s3, s{S_QT}, 12288
    s_add_u32 s77, s76, s3
    v_add_f32 v{V_L}, v{V_T0}, v{V_T1}
    v_add_u32 v{V_T1}, s77, v{V_T2}
    """)
    for j in range(1, 4):
        for rq in range(4):
            r = V_O + 16*j + 4*rq
            a(f"ds_write_b128 v{V_T1}, v[{r}:{r+3}] offset:{(j-1)*4096 + rq*1024}")
    mt(1)
    a(f"""
    v_and_b32 v{V_T0}, 31, v{L}
    v_lshlrev_b32 v{V_T0}, 3, v{V_T0}
    s_lshl_b32 s3, s{S_QT}, 8
    s_add_u32 s3, s3, 36864
    v_add_u32 v{V_T0}, s3, v{V_T0}
    v_add_u32 v{V_T1}, s76, v{V_T0}
    ds_write_b64 v{V_T1}, v[{V_M}:{V_L}]
    """)
    for j in range(1, 4):
        a(f"s_sub_u32 s3, s{S_KQ}, {j}")
        a(f"s_and_b32 s3, s3, 3")
        a(f"s_mul_i32 s76, s3, {AREA}")
        a(f"v_add_u32 v{V_Q+j}, s76, v{V_T0}")
        a(f"s_mul_i32 s3, s{S_QT}, 12288")
        a(f"s_add_u32 s76, s76, s3")
        a(f"v_add_u32 v{V_Q+4+j}, s76, v{V_T2}")
    A0, A1, A2, A3 = V_Q+8, V_Q+9, V_Q+10, V_Q+11
    a(f"""
    v_and_b32 v{A1}, 31, v{L}
    s_lshl_b32 s3, s{S_QT}, 5
    v_add_u32 v{A1}, s3, v{A1}
    v_cmp_le_u32 vcc, 48, v{A1}
    v_subrev_u32 v{A2}, 48, v{A1}
    v_mov_b32 v{A0}, 0
    v_mov_b32 v{A3}, {8*3072}
    v_cndmask_b32 v{A1}, v{A1}, v{A2}, vcc
    v_cndmask_b32 v{A0}, v{A0}, v{A3}, vcc
    s_and_b32 s3, s{S_B}, 1
    s_mul_i32 s3, s3, 48
    v_add_u32 v{A1}, s3, v{A1}
    v_lshrrev_b32 v{A2}, 5, v{A1}
    v_lshlrev_b32 v{A2}, 10, v{A2}
    v_add_u32 v{A0}, v{A0}, v{A2}
    v_and_b32 v{A1}, 31, v{A1}
    v_lshlrev_b32 v{A1}, 4, v{A1}
    v_add_u32 v{A0}, v{A0}, v{A1}
    v_lshrrev_b32 v{A1}, 5, v{L}
    v_lshlrev_b32 v{A1}, 3, v{A1}
    v_add_u32 v{A0}, v{A0}, v{A1}
    s_lshl_b32 s3, s{S_HP}, 4
    s_lshl_b32 s76, s{S_KQ}, 1
    s_add_u32 s3, s3, s76
    s_mul_i32 s3, s3, 3072
    s_mul_i32 s79, s{S_G1}, {192*1024}
    s_add_u32 s79, s79, s3
    s_add_u32 s79, s79, {O_OFF}
    """)
    mt(2)
    a("s_waitcnt lgkmcnt(0)")
    mt(3)
    a("s_barrier")
    mt(4)
    for j in range(1, 4):
        a(f"ds_read_b64 v[{F+2*j}:{F+2*j+1}], v{V_Q+j}")
    for j in range(1, 4):
        for rq in range(4):
            r = V_O + 16*j + 4*rq
            a(f"ds_read_b128 v[{r}:{r+3}], v{V_Q+4+j} offset:{(j-1)*4096 + rq*1024}")
    a("s_waitcnt lgkmcnt(12)")
    mt(5)
    a(f"""
    v_max3_f32 v{F+8}, v{V_M}, v{F+2}, v{F+4}
    v_max_f32 v{F+8}, v{F+8}, v{F+6}
    v_sub_f32 v{F+10}, v{V_M}, v{F+8}
    v_sub_f32 v{F+12}, v{F+2}, v{F+8}
    v_sub_f32 v{F+14}, v{F+4}, v{F+8}
    v_sub_f32 v{F+16}, v{F+6}, v{F+8}
    v_exp_f32 v{F+10}, v{F+10}
    v_exp_f32 v{F+12}, v{F+12}
    v_exp_f32 v{F+14}, v{F+14}
    v_exp_f32 v{F+16}, v{F+16}
    v_mul_f32 v{F+18}, v{F+10}, v{V_L}
    v_fma_f32 v{F+18}, v{F+12}, v{F+3}, v{F+18}
    v_fma_f32 v{F+18}, v{F+14}, v{F+5}, v{F+18}
    v_fma_f32 v{F+18}, v{F+16}, v{F+7}, v{F+18}
    v_rcp_f32 v{F+18}, v{F+18}
    v_mul_f32 v{F+10}, v{F+10}, v{F+18}
    v_mul_f32 v{F+12}, v{F+12}, v{F+18}
    v_mul_f32 v{F+14}, v{F+14}, v{F+18}
    v_mul_f32 v{F+16}, v{F+16}, v{F+18}
    """)
    mt(6)
    for i in range(0, 16, 2):
        a(f"v_pk_mul_f32 v[{V_O+i}:{V_O+i+1}], v[{V_O+i}:{V_O+i+1}], v[{F+10}:{F+11}] op_sel_hi:[1,0]")
    for j in range(1, 4):
        a(f"s_waitcnt lgkmcnt({12 - 4*j})")
        if j == 3: a("s_barrier")
        for i in range(0, 16, 2):
            a(f"v_pk_fma_f32 v[{V_O+i}:{V_O+i+1}], v[{V_O+16*j+i}:{V_O+16*j+i+1}], v[{F+10+2*j}:{F+11+2*j}], v[{V_O+i}:{V_O+i+1}] op_sel_hi:[1,0,1]")
    mt(7)
    for rq in range(4):
        a(f"v_cvt_pk_bf16_f32 v{F+20+2*rq}, v{V_O+4*rq}, v{V_O+4*rq+1}")
        a(f"v_cvt_pk_bf16_f32 v{F+20+2*rq+1}, v{V_O+4*rq+2}, v{V_O+4*rq+3}")
    for rq in range(4):
        a(f"buffer_store_dwordx2 v[{F+20+2*rq}:{F+20+2*rq+1}], v{A0}, s[24:27], s79 offen offset:{(rq & 1)*512} sc1" if rq < 2 else
          f"buffer_store_dwordx2 v[{F+20+2*rq}:{F+20+2*rq+1}], v{A0}, s[24:27], s79 offen offset:{3072 + (rq & 1)*512} sc1")
    gen_tail()
    stamp(a, 3)
    if OPT.get("pad"):
        a(f"""
        L_pad:
        s_memrealtime s[76:77]
        s_waitcnt lgkmcnt(0)
        s_sub_u32 s76, s76, s80
        s_cmp_lt_u32 s76, {OPT["pad"]}
        s_cbranch_scc1 L_pad
        """)
    tr2(41)
    trace_dump(a, 167, 100, S_W, V_LANE, 1)
    if OPT.get("lt"):
        a("s_waitcnt lgkmcnt(0)")
        a(f"s_lshl_b32 s3, s2, 4")
        a(f"s_add_u32 s3, s3, s{S_W}")
        a(f"s_lshl_b32 s3, s3, 8")
        a(f"s_add_u32 s3, s3, {(56 << 20) + (1 << 20)}")
        a("v_mov_b32 v102, s3")
        for i in range(11):
            a(f"v_mov_b32 v100, s{80+2*i}")
            a(f"buffer_store_dword v100, v102, s[24:27], 0 offen offset:{4*i}")
            a("s_waitcnt vmcnt(0)")
    if OPT["stamps"]: a("s_memtime s[90:91]")
    if OPT.get("dbgclk"):
        a(f"""
        s_waitcnt lgkmcnt(0)
        s_cmp_eq_u32 s2, {OPT.get("dbgwg", 77)}
        s_cbranch_scc0 L_nodbg
        s_cmp_eq_u32 s{S_W}, 0
        s_cbranch_scc0 L_nodbg
        s_sub_u32 s90, s90, s88
        s_sub_u32 s82, s82, s80
        s_sub_u32 s84, s84, s80
        s_sub_u32 s86, s86, s80
        v_mov_b32 v100, s90
        v_mov_b32 v101, s82
        v_mov_b32 v102, s84
        v_mov_b32 v103, s86
        v_mov_b32 v104, 0
        s_mov_b32 s16, s70
        s_mov_b32 s17, s71
        s_mov_b32 s18, 256
        s_mov_b32 s19, 0x00020000
        s_mov_b64 exec, 1
        buffer_store_dwordx4 v[100:103], v104, s[16:19], 0 offen offset:16
        s_mov_b64 exec, -1
        L_nodbg:
        """)
    else:
        stamp_flush(a, 6, 100, S_W, 0)
    a("s_endpgm")
    a.label("L_slow_first")
    a(f"v_cndmask_b32 v{V_M}, v{V_M}, v{V_T0}, vcc")
    a(f"s_mov_b64 s[{S_SLOW}:{S_SLOW+1}], -1")
    a(f"v_add_f32 v{V_THR}, s{S_TC}, v{V_M}")
    a("s_branch L_slow_sub")
    a.label("L_slow")
    a("s_cbranch_vccz L_slow_sub")
    a(f"v_max_f32 v{V_T1}, v{V_M}, v{V_T0}")
    a(f"v_cndmask_b32 v{V_T1}, v{V_M}, v{V_T1}, vcc")
    a.label("L_slow_upd")
    a(f"""
    s_mov_b64 s[{S_SLOW}:{S_SLOW+1}], -1
    v_sub_f32 v{V_T2}, v{V_M}, v{V_T1}
    v_exp_f32 v{V_T2}, v{V_T2}
    v_mov_b32 v{V_M}, v{V_T1}
    v_add_f32 v{V_THR}, s{S_TC}, v{V_T1}
    v_mul_f32 v{V_L}, v{V_L}, v{V_T2}
    """)
    for i in range(64):
        a(f"v_mul_f32 v{V_O+i}, v{V_T2}, v{V_O+i}")
    a.label("L_slow_sub")
    for i in range(16):
        a(f"v_sub_f32 v{V_S+i}, v{V_S+i}, v{V_M}")
    a("s_nop 1")
    a(f"s_setpc_b64 s[{S_RET}:{S_RET+1}]")
    a.label("L_k1_end")
    a("s_endpgm")
    return a

def build():
    k1 = gen_k1().finalize()
    h1, d1 = kernel_text("gqa_fused_kernel", k1, 168)
    hdr = open("concat_heads__gqa_block_cached__gqa_block_cached__near_ridge.s.ref").read().split("; Override")[0]
    txt = hdr
    he = de = ""
    e = OPT.get("empty")
    if e:
        he, de = kernel_text("empty_kernel", "    s_endpgm\n", 168 if e in (2, 4) else 8, sgpr=16)
        de = ".p2align 6\n" + de
        line = "; @launch kernel=empty_kernel grid=(256,1,1) block=(768,1,1) lds=163840\n" if e in (2, 4) else "; @launch kernel=empty_kernel grid=(256,1,1) block=(64,1,1) lds=0\n"
    if e in (1, 2): txt += line
    txt += "; @launch kernel=gqa_fused_kernel grid=(256,1,1) block=(768,1,1) lds=163840\n"
    if e in (3, 4): txt += line
    txt += '.amdgcn_target "amdgcn-amd-amdhsa--gfx950"\n.text\n' + h1 + he
    txt += '.section .rodata,"a"\n.p2align 6\n' + d1 + de
    return txt

if __name__ == "__main__":
    out = sys.argv[1]
    for kv in sys.argv[2:]:
        k, v = kv.split("=")
        OPT[k] = int(v, 0)
    open(out, "w").write(build())
    print("wrote", out)
```

```python
import sys, math, struct
from asmlib import *
import gen as G1
G1.OPT["stamp_off"] = 48 << 20
from gen import f2u, load_ptrs, srd, AREA, C_SCALE, T_LOG2

OPT = G1.OPT
stamp, stamp_flush, trace, trace_dump = G1.stamp, G1.stamp_flush, G1.trace, G1.trace_dump
NT = G1.NT

NTQ = lambda: 'nt ' if OPT.get('nt_wq') else ''
NTX = lambda: 'nt ' if OPT.get('nt_x') else ''
NTKV = lambda: 'nt ' if OPT.get('nt_kv') else ''
NTWO = lambda: 'nt ' if OPT.get('nt_wo') else ''
OSC = lambda: '' if OPT.get('o_plain') else 'sc1 '
LT6 = (0, 1, 2, 3, 4, 6, 8, 10, 12, 14, 15)
OUTF = lambda: {0: '', 1: 'sc1', 2: 'nt', 3: 'sc0 sc1'}[OPT.get('outf', 0)]
O_OFF = 0
FLAG_OFF = 8 << 20
PART_OFF = 16 << 20
TOK_A, TOK_B = 0x5EED0A01, 0x5EED0B02
SPIN_MAX = 1 << 18

def emit_tile(a, dst, s_cnt, phi, m1, m3, win, r, t0, t1, t2):
    sc = f"s{s_cnt}" if isinstance(s_cnt, int) else str(s_cnt[1])
    a(f"s_add_u32 s{t0}, s{phi}, {win}")
    a(f"s_sub_u32 s{t1}, {win}, s{phi}")
    a(f"s_mov_b32 s{t2}, s{m3}")
    a(f"s_cmp_lt_u32 {sc}, s{t0}" if isinstance(s_cnt, int) else f"s_cmp_gt_u32 s{t0}, {sc}")
    a(f"s_cselect_b32 s{t0}, s{phi}, s{t0}")
    a(f"s_cselect_b32 s{t1}, {win}, s{t1}")
    a(f"s_cselect_b32 s{t2}, {256 // win}, s{t2}")
    a(f"s_cmp_lt_u32 {sc}, s{phi}" if isinstance(s_cnt, int) else f"s_cmp_gt_u32 s{phi}, {sc}")
    a(f"s_cselect_b32 s{t0}, 0, s{t0}")
    a(f"s_cselect_b32 s{t1}, s{phi}, s{t1}")
    a(f"s_cselect_b32 s{t2}, s{m1}, s{t2}")
    a(f"s_sub_u32 s{dst}, {sc}, s{t0}")
    a(f"s_add_u32 s{dst}, s{dst}, s{r}")
    a(f"s_mul_i32 s{t2}, s{dst}, s{t2}")
    a(f"s_lshr_b32 s{t2}, s{t2}, 8")
    a(f"s_mul_i32 s{t2}, s{t2}, s{t1}")
    a(f"s_sub_u32 s{dst}, s{dst}, s{t2}")
    a(f"s_add_u32 s{dst}, s{dst}, s{t0}")

def gen_k1():
    a = Asm()
    def mk(i):
        if OPT.get('lt') == 9: a(f"{'s_memrealtime' if OPT.get('rt') else 's_memtime'} s[{80+2*i}:{81+2*i}]")
    S_PHI, S_M1, S_M3, S_P2 = 4, 5, 6, 7
    S_BP, S_NT8, S_G1, S_G2 = 54, 55, 58, 59
    S_W, S_BLK, S_G, S_B, S_HP, S_KQ, S_QT = 28, 29, 30, 31, 32, 33, 34
    S_C, S_NC, S_TC = 35, 36, 37
    S_RET = 38
    S_SLOW = 50
    T_HI, T_LO = 16.0, 64.0
    S_T0, S_T1, S_T2, S_T3 = 41, 42, 43, 44
    S_WQB, S_XB, S_KVB = 45, 46, 47
    S_CNT, S_SLOT = 75, 78
    V_O, V_Q, V_S, V_F, V_KA, V_VA = 0, 64, 96, 112, 144, 152
    V_M, V_L, V_NMC, V_THR, V_T0, V_T1, V_T2, V_LANE, V_DOFF = 156, 157, 158, 159, 160, 161, 162, 163, 164
    L = V_LANE

    def group_ids():
        a(f"""
        s_lshr_b32 s{S_BP}, s{S_B}, 1
        s_and_b32 s{S_NT8}, s{S_B}, 1
        s_lshl_b32 s{S_NT8}, s{S_NT8}, 2
        s_add_u32 s{S_NT8}, s{S_NT8}, s{S_HP}
        s_lshl_b32 s{S_G1}, s{S_BLK}, 2
        s_add_u32 s{S_G1}, s{S_G1}, s{S_G}
        s_lshl_b32 s{S_G1}, s{S_G1}, 2
        s_add_u32 s{S_G1}, s{S_G1}, s{S_BP}
        s_lshl_b32 s{S_G2}, s{S_BLK}, 2
        s_add_u32 s{S_G2}, s{S_G2}, s{S_BP}
        s_lshl_b32 s{S_G2}, s{S_G2}, 3
        s_add_u32 s{S_G2}, s{S_G2}, s{S_NT8}
        """)
    a("s_cmp_ge_u32 s2, 256")
    a("s_cbranch_scc1 L_k1_end")
    stamp(a, 0)
    if OPT["stamps"]: a("s_memtime s[88:89]")
    if OPT.get("lt") == 7: a("s_memtime s[80:81]")
    mk(0)
    if OPT.get("lt") == 8: a("s_memtime s[80:81]")
    load_ptrs(a)
    if OPT.get("trace"):
        a("v_mov_b32 v120, 0")
        a("v_mov_b32 v167, 0")
        trace(a, 120, idx_imm=63)
    a(f"""
    v_lshrrev_b32 v1, 6, v0
    v_and_b32 v{L}, 63, v0
    s_and_b32 s3, s2, 7
    v_readfirstlane_b32 s{S_W}, v1
    s_lshr_b32 s{S_BLK}, s3, 2
    s_and_b32 s{S_G}, s3, 3
    s_lshr_b32 s3, s2, 3
    s_lshr_b32 s{S_B}, s3, 2
    s_and_b32 s{S_HP}, s3, 3
    s_and_b32 s{S_KQ}, s{S_W}, 3
    s_lshr_b32 s{S_QT}, s{S_W}, 2
    s_lshl_b32 s{S_WQB}, s{S_G}, 11
    s_lshl_b32 s3, s{S_HP}, 9
    s_add_u32 s{S_WQB}, s{S_WQB}, s3
    s_mul_i32 s{S_XB}, s{S_B}, {48*2048}
    s_cmp_ge_u32 s{S_W}, 8
    s_cbranch_scc1 L_p1_compute
    """)
    a(f"""
    v_lshrrev_b32 v5, 5, v{L}
    v_and_b32 v6, 31, v{L}
    s_and_b32 s{S_T1}, s{S_W}, 1
    s_lshl_b32 s{S_T1}, s{S_T1}, 2
    v_or_b32 v7, s{S_T1}, v5
    v_lshlrev_b32 v8, 1, v7
    v_xor_b32 v8, v8, v6
    v_lshlrev_b32 v8, 4, v8
    v_lshlrev_b32 v9, 13, v5
    v_add_u32 v2, v9, v8
    v_xor_b32 v8, 64, v8
    v_add_u32 v3, v9, v8
    s_mul_i32 s{S_T1}, s{S_W}, 6
    v_lshrrev_b32 v5, 3, v{L}
    v_add_u32 v5, s{S_T1}, v5
    v_lshrrev_b32 v6, 1, v5
    v_xor_b32 v6, v6, v{L}
    v_and_b32 v6, 7, v6
    v_lshlrev_b32 v6, 4, v6
    v_lshlrev_b32 v5, 11, v5
    v_add_u32 v4, v5, v6
    s_lshl_b32 s{S_T2}, s{S_W}, 16
    s_add_u32 s{S_WQB}, s{S_WQB}, s{S_T2}
    s_lshl_b32 s{S_T2}, s{S_W}, 12
    s_mul_i32 s{S_T3}, s{S_W}, 768
    s_add_u32 s{S_T3}, s{S_T3}, 32768
    """)
    if OPT.get("stag1", 0) == 1:
        a(f"""
        s_add_u32 s{S_PHI}, s{S_HP}, 1
        s_lshl_b32 s3, s{S_HP}, 3
        s_lshr_b32 s{S_M1}, 0x3f557fff, s3
        s_and_b32 s{S_M1}, s{S_M1}, 0xff
        s_add_u32 s{S_M1}, s{S_M1}, 1
        s_lshr_b32 s{S_M3}, 0x40342b25, s3
        s_and_b32 s{S_M3}, s{S_M3}, 0xff
        """)
    else:
        pa, pb = OPT.get("phiA", 8), OPT.get("phiB", 4)
        Mt = lambda n: -(-256 // n) if n else 1
        a(f"""
        s_cmp_eq_u32 s{S_BLK}, 0
        s_mov_b32 s{S_PHI}, {pb}
        s_cselect_b32 s{S_PHI}, {pa}, s{S_PHI}
        s_mov_b32 s{S_M1}, {Mt(pb)}
        s_cselect_b32 s{S_M1}, {Mt(pa)}, s{S_M1}
        s_mov_b32 s{S_M3}, {Mt(8-pb)}
        s_cselect_b32 s{S_M3}, {Mt(8-pa)}, s{S_M3}
        """)
    a(f"""
    s_cmp_eq_u32 s{S_BLK}, 0
    s_waitcnt lgkmcnt(0)
    """)
    if OPT.get("lt") == 7: a("s_memtime s[82:83]")
    srd(a, 8, 48, 58, 8*48*1024*2)
    srd(a, 12, 54, 64, 1024*4096*2)
    def prep_tile():
        if OPT.get("stag1", 0):
            emit_tile(a, 3, S_CNT, S_PHI, S_M1, S_M3, 8, S_B, 76, 77, 79)
        else:
            a(f"""
            s_add_u32 s3, s{S_CNT}, s{S_B}
            s_and_b32 s3, s3, 7
            s_and_b32 s76, s{S_CNT}, 8
            s_or_b32 s3, s3, s76
            """)
        a(f"""
        s_lshl_b32 s76, s3, 19
        s_add_u32 s76, s76, s{S_WQB}
        s_add_u32 s77, s{S_SLOT}, s{S_T2}
        s_lshl_b32 s79, s3, 7
        s_add_u32 s79, s79, s{S_XB}
        s_add_u32 s74, s{S_SLOT}, s{S_T3}
        s_mov_b32 m0, s77
        """)
    def fire_tile():
        for q in range(4):
            if q:
                a(f"s_add_u32 m0, s77, {q*1024}")
                a(f"s_add_u32 s76, s76, {2*8192}")
            a(f"buffer_load_dwordx4 v{2 + (q & 1)}, s[12:15], s76 offen {NTQ()}lds")
        a(f"""
        s_mov_b32 m0, s74
        s_mov_b32 exec_hi, 0xffff
        buffer_load_dwordx4 v4, s[8:11], s79 offen {NTX()}lds
        s_mov_b32 exec_hi, -1
        """)
    def issue_tile():
        prep_tile(); fire_tile()
    a(f"s_mov_b32 s{S_CNT}, 0")
    a(f"s_mov_b32 s{S_SLOT}, 0")
    issue_tile()
    a(f"""
    s_or_b32 s3, s2, s{S_W}
    s_cmp_eq_u32 s3, 0
    s_cbranch_scc0 L_notok
    s_memrealtime s[76:77]
    s_mov_b32 s16, s70
    s_mov_b32 s17, s71
    s_mov_b32 s18, 256
    s_mov_b32 s19, 0x00020000
    v_mov_b32 v10, 0
    s_waitcnt lgkmcnt(0)
    s_or_b32 s76, s76, 1
    v_mov_b32 v11, s76
    s_mov_b64 exec, 1
    buffer_store_dword v11, v10, s[16:19], 0 offen sc1
    s_mov_b64 exec, -1
    L_notok:
    """)
    if OPT.get("tlbw", 0):
        a(f"s_cmp_eq_u32 s{S_W}, {OPT.get('tlbw_wave', 0)}")
        a("s_cbranch_scc0 L_notlb")
        a(f"""
        v_lshlrev_b32 v10, 21, v{L}
        s_mov_b64 exec, 0xf
        buffer_load_dword v11, v10, s[12:15], 0 offen
        s_cmp_eq_u32 s{S_BLK}, 0
        """)
        srd(a, 16, 50, 60, 8*4*1024*128*2)
        srd(a, 20, 52, 62, 8*4*1024*128*2)
        a(f"""
        s_lshl_b32 s3, s{S_B}, 2
        s_add_u32 s3, s3, s{S_G}
        s_lshl_b32 s3, s3, 18
        s_mov_b64 exec, 1
        v_mov_b32 v10, 0
        buffer_load_dword v11, v10, s[16:19], s3 offen
        buffer_load_dword v11, v10, s[20:23], s3 offen
        s_cmp_eq_u32 s{S_BLK}, 0
        s_cselect_b32 s16, s56, s66
        s_cselect_b32 s17, s57, s67
        s_mov_b32 s18, {4096*1024*2}
        s_lshl_b32 s3, s{S_G}, 21
        buffer_load_dword v11, v10, s[16:19], s3 offen
        s_mov_b32 s16, s72
        s_mov_b32 s17, s73
        s_mov_b32 s18, {1 << 28}
        s_mov_b64 exec, -1
        v_lshlrev_b32 v10, 21, v{L}
        s_mov_b64 exec, 0x7fff
        buffer_load_dword v11, v10, s[16:19], 0 offen
        s_mov_b32 s16, s68
        s_mov_b32 s17, s69
        s_mov_b32 s18, {8*48*2048*2}
        s_mov_b64 exec, 1
        v_mov_b32 v10, 0
        buffer_load_dword v11, v10, s[16:19], 0 offen
        s_mov_b64 exec, -1
        L_notlb:
        """)
    if OPT.get("b01", 0): a("s_barrier")
    a(f"s_mov_b32 s{S_CNT}, 1")
    a(f"s_mov_b32 s{S_SLOT}, {AREA}")
    issue_tile()
    a(f"s_mov_b32 s{S_CNT}, 2")
    a(f"s_mov_b32 s{S_SLOT}, {2*AREA}")
    if OPT.get("lt") == 7: a("s_memtime s[84:85]")
    a(f"s_cmp_eq_u32 s{S_BLK}, 0")
    srd(a, 16, 50, 60, 8*4*1024*128*2)
    srd(a, 20, 52, 62, 8*4*1024*128*2)
    srd(a, 24, 72, 72, 1 << 28, sel=False)
    group_ids()
    a(f"""
    s_lshl_b32 s3, s{S_B}, 2
    s_add_u32 s3, s3, s{S_G}
    s_lshl_b32 s{S_KVB}, s3, 18
    s_lshl_b32 s3, s{S_KQ}, 16
    s_add_u32 s{S_KVB}, s{S_KVB}, s3
    v_lshrrev_b32 v5, 4, v{L}
    v_and_b32 v6, 15, v{L}
    v_lshlrev_b32 v7, 8, v5
    v_xor_b32 v8, v6, v5
    v_lshlrev_b32 v9, 4, v8
    v_add_u32 v{V_DOFF}, v7, v9
    v_xor_b32 v9, 64, v9
    v_add_u32 v{V_DOFF+1}, v7, v9
    v_xor_b32 v9, 0xc0, v9
    v_add_u32 v{V_DOFF+2}, v7, v9
    v_xor_b32 v9, 64, v9
    v_add_u32 v{V_DOFF+3 if not OPT.get("trace") else V_T2}, v7, v9
    s_cmp_eq_u32 s{S_QT}, 0
    s_cbranch_scc1 L_voff_done
    v_lshlrev_b32 v8, 2, v5
    v_xor_b32 v8, v8, v6
    v_lshlrev_b32 v8, 4, v8
    v_add_u32 v{V_DOFF}, v7, v8
    L_voff_done:
    """)
    a(f"""
    s_and_b32 s3, s{S_B}, 3
    s_add_u32 s60, s3, 1
    s_lshl_b32 s3, s3, 3
    s_lshr_b32 s61, 0x3f557fff, s3
    s_and_b32 s61, s61, 0xff
    s_add_u32 s61, s61, 1
    s_lshr_b32 s62, 0x00ff7f55, s3
    s_and_b32 s62, s62, 0xff
    s_add_u32 s62, s62, 1
    s_mov_b32 s{S_P2}, 0
    """)
    for i in range(8):
        if OPT.get("stag2", 0):
            emit_tile(a, 63, ("imm", i), 60, 61, 62, 4, S_HP, 64, 65, 79)
        else:
            R2 = OPT.get("rot2", 4)
            a(f"s_add_u32 s63, s{S_HP}, {i}")
            a(f"s_and_b32 s63, s63, {R2 - 1}")
            a(f"s_or_b32 s63, s63, {i & ~(R2 - 1)}")
            if OPT.get("kvoff"):
                a(f"s_add_u32 s63, s63, s{S_B}")
                a(f"s_and_b32 s63, s63, 7")
        a(f"s_lshl_b32 s63, s63, {4*i}")
        a(f"s_or_b32 s{S_P2}, s{S_P2}, s63")
    if OPT.get("lt") == 8:
        LT8 = (0, 1, 2, 3, 4, 6, 8, 9, 10, 13)
        for st in range(14):
            prep_tile()
            a("s_waitcnt vmcnt(5)")
            a("s_barrier")
            if st in LT8: a(f"s_memtime s[{82+2*LT8.index(st)}:{83+2*LT8.index(st)}]")
            fire_tile()
            a(f"""
            s_add_u32 s{S_SLOT}, s{S_SLOT}, {AREA}
            s_cmp_eq_u32 s{S_SLOT}, {3*AREA}
            s_cselect_b32 s{S_SLOT}, 0, s{S_SLOT}
            s_add_u32 s{S_CNT}, s{S_CNT}, 1
            """)
    else:
        a.label("L_p1_ld_loop")
        prep_tile()
        a("s_waitcnt vmcnt(5)")
        trace(a, 120, idx_sreg=S_CNT)
        if OPT.get("lt") == 7:
            for k, cnt in enumerate((2, 3, 4, 9, 10, 11, 15)):
                a(f"s_cmp_eq_u32 s{S_CNT}, {cnt}")
                a(f"s_cbranch_scc0 L_lt7_{k}")
                a(f"s_memtime s[{86+2*k}:{87+2*k}]")
                a.label(f"L_lt7_{k}")
        a("s_barrier")
        if OPT.get("trace"): a(f"s_add_u32 s94, s{S_CNT}, 16")
        trace(a, 120, idx_sreg=94)
        fire_tile()
        if OPT.get("trace"): a(f"s_add_u32 s94, s{S_CNT}, 32")
        trace(a, 120, idx_sreg=94)
        a(f"""
        s_add_u32 s{S_SLOT}, s{S_SLOT}, {AREA}
        s_cmp_eq_u32 s{S_SLOT}, {3*AREA}
        s_cselect_b32 s{S_SLOT}, 0, s{S_SLOT}
        s_add_u32 s{S_CNT}, s{S_CNT}, 1
        s_cmp_lt_u32 s{S_CNT}, 16
        s_cbranch_scc1 L_p1_ld_loop
        """)

    def tile_soff(step, dst):
        a(f"""
        s_bfe_u32 s{dst}, s{S_P2}, {(4 << 16) | (4*step)}
        s_lshl_b32 s{dst}, s{dst}, 13
        s_add_u32 s{dst}, s{dst}, s{S_KVB}
        """)
    def dma8(step, lds_off, voff_fn, srdb):
        ntk = "nt " if (OPT.get("nt_kv") or (OPT.get("ntf_kv") and step % OPT.get("rot2", 4) == 0)) else ""
        tile_soff(step, 76)
        a(f"s_mul_i32 s77, s{S_KQ}, {AREA}")
        a(f"s_add_u32 m0, s77, {lds_off}")
        for q in range(8):
            if q == 4:
                a(f"s_add_u32 m0, s77, {lds_off + 4096}")
                a(f"s_add_u32 s76, s76, 4096")
            a(f"buffer_load_dwordx4 v{voff_fn(q)}, s[{srdb}:{srdb+3}], s76 offen offset:{(q & 3) * 1024} {ntk}lds")
    def issue_k(step):
        if OPT.get("trace"):
            a(f"v_xor_b32 v{V_T2}, 64, v{V_DOFF+2}")
            dma8(step, (step % 3) * 8192, lambda q: (V_DOFF + (q & 3)) if (q & 3) != 3 else V_T2, 16)
        else:
            dma8(step, (step % 3) * 8192, lambda q: V_DOFF + (q & 3), 16)
    def issue_v(step): dma8(step, 24576 + (step % 2) * 8192, lambda q: V_DOFF, 20)
    def call_early_if(kq):
        lab = a.newlabel("L_ne")
        a(f"s_cmp_eq_u32 s{S_KQ}, {kq}")
        a(f"s_cbranch_scc0 {lab}")
        a(f"s_call_b64 s[{S_RET}:{S_RET+1}], L_early")
        a.label(lab)
    a("s_waitcnt vmcnt(5)")
    a("s_barrier")
    a(f"""
    s_and_b32 s3, s{S_KQ}, 1
    s_cmp_eq_u32 s3, 1
    s_cbranch_scc1 L_w15_early
    s_waitcnt vmcnt(0)
    s_branch L_w15_done
    L_w15_early:
    s_call_b64 s[{S_RET}:{S_RET+1}], L_early
    s_waitcnt vmcnt(8)
    L_w15_done:
    """)
    a("s_barrier")
    call_early_if(2)
    a("s_barrier")
    call_early_if(0)
    a("s_branch L_p1_join")
    a.label("L_early")
    a(f"s_cmp_eq_u32 s{S_QT}, 0")
    a("s_cbranch_scc0 L_early_v")
    issue_k(0)
    a(f"s_setpc_b64 s[{S_RET}:{S_RET+1}]")
    a.label("L_early_v")
    issue_v(0)
    a(f"s_setpc_b64 s[{S_RET}:{S_RET+1}]")

    a.label("L_p1_compute")
    P_ACC, P_A, P_B, P_WA, P_XA = 0, 48, 80, 104, 108
    a(f"""
    v_lshrrev_b32 v110, 4, v{L}
    v_and_b32 v111, 15, v{L}
    v_lshrrev_b32 v112, 2, v111
    v_and_b32 v113, 3, v111
    v_lshlrev_b32 v114, 3, v110
    v_add_u32 v114, v114, v112
    v_lshlrev_b32 v114, 9, v114
    v_lshlrev_b32 v113, 3, v113
    v_add_u32 v114, v114, v113
    v_and_b32 v115, 1, v110
    v_lshlrev_b32 v115, 2, v115
    v_or_b32 v115, v115, v112
    s_lshl_b32 s{S_T0}, s{S_KQ}, 2
    """)
    for dt in range(4):
        a(f"s_add_u32 s{S_T1}, s{S_T0}, {dt}")
        a(f"v_xor_b32 v116, s{S_T1}, v115")
        a(f"v_lshlrev_b32 v116, 5, v116")
        a(f"v_add_u32 v{P_WA+dt}, v114, v116")
    a(f"""
    v_lshrrev_b32 v112, 1, v111
    v_xor_b32 v112, v112, v110
    v_lshlrev_b32 v112, 4, v112
    v_lshlrev_b32 v113, 7, v111
    v_add_u32 v112, v112, v113
    v_add_u32 v{P_XA}, 32768, v112
    v_xor_b32 v{P_XA+1}, 64, v{P_XA}
    """)
    for i in range(48):
        a(f"v_mov_b32 v{P_ACC+i}, 0")
    for i in range(4):
        a(f"v_mov_b32 v{V_DOFF+i}, 0")
    a(f"s_waitcnt lgkmcnt(0)")
    srd(a, 24, 72, 72, 1 << 28, sel=False)
    a(f"s_cmp_eq_u32 s{S_BLK}, 0")
    srd(a, 16, 50, 60, 8*4*1024*128*2)
    srd(a, 20, 52, 62, 8*4*1024*128*2)
    if OPT.get("b01", 0) and OPT.get("xpf_late"): a("s_barrier")
    if OPT.get("xpf", 0):
        a(f"s_cmp_eq_u32 s{S_BLK}, 0")
        srd(a, 8, 48, 58, 8*48*1024*2)
        a(f"""
        s_cmp_eq_u32 s{S_KQ}, 3
        s_cbranch_scc1 L_noxpf
        s_mul_i32 s3, s{S_HP}, 24576
        s_add_u32 s3, s3, s{S_XB}
        s_lshl_b32 s76, s{S_KQ}, 13
        s_add_u32 s3, s3, s76
        v_lshlrev_b32 v126, 7, v{L}
        v_add_u32 v126, 60, v126
        buffer_load_dwordx2 v[128:129], v126, s[8:11], s3 offen
        L_noxpf:
        """)
    if OPT.get("b01", 0) and not OPT.get("xpf_late"): a("s_barrier")
    group_ids()
    a(f"""
    s_mov_b32 s16, s70
    s_mov_b32 s17, s71
    s_mov_b32 s18, 256
    s_mov_b32 s19, 0x00020000
    s_mov_b32 s40, 0
    v_mov_b32 v126, 0
    v_mov_b32 v127, 1
    """)
    a(f"s_mov_b32 s{S_KVB}, 0")
    a(f"s_mov_b32 s{S_CNT}, 0")
    a(f"s_mov_b32 s{S_SLOT}, 0")
    def rd_ks(ks):
        if OPT.get("nocomp"): return
        for dt in range(4):
            for hf in range(2):
                r = P_A + ks*16 + dt*4 + hf*2
                a(f"ds_read_b64_tr_b16 v[{r}:{r+1}], v{P_WA+dt} offset:{ks*16384 + hf*2048}")
    def rd_x(ks):
        if OPT.get("nocomp"): return
        for st in range(3):
            r = P_B + ks*12 + st*4
            a(f"ds_read_b128 v[{r}:{r+3}], v{P_XA+ks} offset:{st*2048}")
    def mm(ks):
        if OPT.get("nocomp"): return
        for dt in range(4):
            for st in range(3):
                ac = P_ACC + (dt*3+st)*4
                ra = P_A + ks*16 + dt*4; rb = P_B + ks*12 + st*4
                a(f"v_mfma_f32_16x16x32_bf16 v[{ac}:{ac+3}], v[{ra}:{ra+3}], v[{rb}:{rb+3}], v[{ac}:{ac+3}]")
    a.label("L_p1_c_loop")
    trace(a, 120, idx_sreg=S_CNT)
    a("s_barrier")

    if OPT.get("trace"): a(f"s_add_u32 s94, s{S_CNT}, 16")
    trace(a, 120, idx_sreg=94)
    rd_x(0); rd_ks(0)
    a(f"s_cmp_eq_u32 s{S_CNT}, 0")
    a("s_cbranch_scc1 L_p1_c_skip")
    mm(1)
    a.label("L_p1_c_skip")
    rd_x(1); rd_ks(1)
    a("s_waitcnt lgkmcnt(11)")
    mm(0)
    a(f"""
    s_add_u32 s{S_SLOT}, s{S_SLOT}, 1
    s_cmp_eq_u32 s{S_SLOT}, 3
    s_cselect_b32 s{S_SLOT}, 0, s{S_SLOT}
    s_mov_b32 s3, {AREA}
    s_cselect_b32 s3, {(-2*AREA) & 0xffffffff}, s3
    """)
    for r in list(range(P_WA, P_WA+4)) + [P_XA, P_XA+1]:
        a(f"v_add_u32 v{r}, s3, v{r}")
    a(f"""
    s_add_u32 s{S_CNT}, s{S_CNT}, 1
    s_cmp_lt_u32 s{S_CNT}, 16
    s_waitcnt lgkmcnt(0)
    s_cbranch_scc1 L_p1_c_loop
    s_barrier
    """)
    mm(1)
    a(f"""
    s_mov_b32 s{S_C}, {f2u(C_SCALE)}
    v_lshrrev_b32 v110, 4, v{L}
    v_and_b32 v111, 15, v{L}
    v_lshlrev_b32 v112, 8, v111
    v_and_b32 v113, 1, v110
    v_lshlrev_b32 v113, 3, v113
    v_add_u32 v112, v112, v113
    v_lshrrev_b32 v113, 1, v110
    s_and_b32 s{S_T0}, s{S_KQ}, 1
    s_lshl_b32 s{S_T0}, s{S_T0}, 3
    v_add_u32 v113, s{S_T0}, v113
    s_lshr_b32 s{S_T1}, s{S_KQ}, 1
    s_cmp_eq_u32 s{S_T1}, 0
    s_mov_b32 s76, {2*AREA+16384+4096}
    s_mov_b32 s77, {3*AREA+16384}
    s_mov_b32 s78, {3*AREA+16384+4096}
    s_cselect_b32 s76, {1*AREA+16384}, s76
    s_cselect_b32 s77, {1*AREA+16384+4096}, s77
    s_cselect_b32 s78, {2*AREA+16384}, s78
    """)
    for dt in range(4):
        a(f"v_add_u32 v114, {2*dt}, v113")
        a(f"v_xor_b32 v114, v114, v111")
        a(f"v_lshlrev_b32 v114, 4, v114")
        a(f"v_add_u32 v114, v114, v112")
        for st in range(3):
            ac = P_ACC + (dt*3+st)*4
            t = 116 + 2*(st & 1)
            for e in range(4): a(f"v_mul_f32 v{ac+e}, s{S_C}, v{ac+e}")
            a(f"v_cvt_pk_bf16_f32 v{t}, v{ac}, v{ac+1}")
            a(f"v_cvt_pk_bf16_f32 v{t+1}, v{ac+2}, v{ac+3}")
            a(f"v_add_u32 v{123+st}, s{76+st}, v114")
            a(f"ds_write_b64 v{123+st}, v[{t}:{t+1}]")
    a("s_waitcnt lgkmcnt(0)")

    a.label("L_p1_join")
    trace(a, 120, idx_imm=60)
    if OPT.get("lt") == 7: a("s_memtime s[100:101]")
    a("s_barrier")
    mk(1)
    trace(a, 120, idx_imm=61)
    trace_dump(a, 120, 121, S_W, V_LANE, 0)
    if OPT.get("trace"): a("v_mov_b32 v167, 0")
    stamp(a, 1)
    a(f"""
    s_mov_b32 s{S_TC}, {f2u(T_HI)}
    s_mov_b32 s{S_NC}, {f2u(-T_LO)}
    s_mov_b64 s[{S_SLOW}:{S_SLOW+1}], 0
    v_and_b32 v{V_T0}, 31, v{L}
    v_lshlrev_b32 v{V_T0}, 8, v{V_T0}
    v_lshrrev_b32 v{V_T1}, 5, v{L}
    v_and_b32 v{V_T2}, 15, v{L}
    v_xor_b32 v{V_T1}, v{V_T1}, v{V_T2}
    v_lshlrev_b32 v{V_T1}, 4, v{V_T1}
    v_add_u32 v{V_T0}, v{V_T0}, v{V_T1}
    s_add_u32 s3, s{S_QT}, 1
    s_mul_i32 s3, s3, {AREA}
    s_add_u32 s3, s3, 16384
    s_mul_i32 s76, s{S_KQ}, {AREA}
    """)
    for st8 in range(8):
        a(f"v_xor_b32 v{V_T1}, {st8 << 5}, v{V_T0}")
        a(f"v_add_u32 v{V_F+st8}, s3, v{V_T1}")
        a(f"v_add_u32 v{V_KA+st8}, s76, v{V_T1}")
        a(f"ds_read_b128 v[{V_Q+4*st8}:{V_Q+4*st8+3}], v{V_F+st8}")
    a(f"""
    v_lshrrev_b32 v{V_T0}, 5, v{L}
    v_lshlrev_b32 v{V_T0}, 2, v{V_T0}
    v_bfe_u32 v{V_T1}, v{L}, 2, 2
    v_add_u32 v{V_T0}, v{V_T0}, v{V_T1}
    v_lshlrev_b32 v{V_T0}, 8, v{V_T0}
    v_bfe_u32 v{V_T2}, v{L}, 4, 1
    v_lshlrev_b32 v{V_T2}, 5, v{V_T2}
    v_add_u32 v{V_T0}, v{V_T0}, v{V_T2}
    v_and_b32 v{V_T2}, 3, v{L}
    v_lshlrev_b32 v{V_T2}, 3, v{V_T2}
    v_add_u32 v{V_T0}, v{V_T0}, v{V_T2}
    s_add_u32 s76, s76, 24576
    v_add_u32 v{V_T0}, s76, v{V_T0}
    """)
    for j in range(4):
        a(f"s_add_u32 s3, s{S_KQ}, {j}")
        a(f"s_and_b32 s3, s3, 3")
        a(f"v_xor_b32 v{V_T2}, s3, v{V_T1}")
        a(f"v_lshlrev_b32 v{V_T2}, 6, v{V_T2}")
        a(f"v_add_u32 v{V_VA+j}, v{V_T0}, v{V_T2}")
    for i in range(64):
        a(f"v_mov_b32 v{V_O+i}, 0")
    a(f"""
    v_mov_b32 v{V_M}, 0
    v_mov_b32 v{V_THR}, s{S_TC}
    v_mov_b32 v{V_L}, 0
    s_waitcnt lgkmcnt(0)
    """)

    S = V_S
    def tr2(idx):
        lt = OPT.get("lt")
        if lt == 9:
            if idx == 1: mk(2)
            if idx == 17: mk(3)
            if idx == 40: mk(4)
            return
        if lt and idx < 36:
            i, k = idx // 4, idx % 4
            if (lt == 1 and k == 1) or (lt == 2 and k == 0) or (lt == 3 and k == 2):
                a(f"s_memtime s[{80+2*i}:{81+2*i}]")
        if lt and lt not in (6, 7, 8, 11) and idx == 41: a("s_memtime s[98:99]")
        if lt and lt not in (6, 7, 8, 11) and idx == 40: a("s_memtime s[100:101]")
        if not OPT.get("trace"): return
        trace(a, 120 if False else 167, idx_imm=idx)
    def rd_k(step, st8):
        a(f"ds_read_b128 v[{V_F+4*st8}:{V_F+4*st8+3}], v{V_KA+st8} offset:{(step % 3) * 8192}")
    def rd_v(step, f):
        t, j = f // 4, f % 4
        for hf in range(2):
            r = V_F + 4*f + 2*hf
            a(f"ds_read_b64_tr_b16 v[{r}:{r+1}], v{V_VA+j} offset:{(step % 2) * 8192 + (16*t + 8*hf)*256}")
    def qk(step, pending_k):
        for st8 in range(8):
            a(f"s_waitcnt lgkmcnt({7 - st8 if st8 < 2 else min(15, 7 - st8 + 2*(st8-1))})")
            c = "0" if st8 == 0 else f"v[{S}:{S+15}]"
            a(f"v_mfma_f32_32x32x16_bf16 v[{S}:{S+15}], v[{V_F+4*st8}:{V_F+4*st8+3}], v[{V_Q+4*st8}:{V_Q+4*st8+3}], {c}")
            if st8 >= 1: rd_v(step, st8 - 1)
        rd_v(step, 7)
    def softmax_half(half):
        for i in range(8*half, 8*half+8):
            a(f"v_exp_f32 v{S+i}, v{S+i}")
        for i in range(8*half, 8*half+8):
            a(f"v_add_f32 v{V_L}, v{V_L}, v{S+i}")
        for j in range(4*half, 4*half+4):
            a(f"v_cvt_pk_bf16_f32 v{S+j}, v{S+2*j}, v{S+2*j+1}")
    def softmax_max(lab, first=False):
        a(f"v_max3_f32 v{V_T0}, v{S}, v{S+1}, v{S+2}")
        a(f"v_max3_f32 v{V_T1}, v{S+3}, v{S+4}, v{S+5}")
        a(f"v_max3_f32 v{V_T0}, v{V_T0}, v{S+6}, v{S+7}")
        a(f"v_max3_f32 v{V_T1}, v{V_T1}, v{S+8}, v{S+9}")
        a(f"v_max3_f32 v{V_T0}, v{V_T0}, v{S+10}, v{S+11}")
        a(f"v_max3_f32 v{V_T1}, v{V_T1}, v{S+12}, v{S+13}")
        a(f"v_max3_f32 v{V_T0}, v{V_T0}, v{S+14}, v{S+15}")
        a(f"v_max_f32 v{V_T0}, v{V_T0}, v{V_T1}")
        a(f"v_mov_b32 v{V_T1}, v{V_T0}")
        a(f"v_permlane32_swap_b32 v{V_T0}, v{V_T1}")
        a(f"v_max_f32 v{V_T0}, v{V_T0}, v{V_T1}")
        a(f"v_cmp_gt_f32 vcc, v{V_T0}, v{V_THR}")
        if first:
            a(f"v_cmp_gt_f32 s[52:53], s{S_NC}, v{V_T0}")
            a(f"s_or_b64 vcc, vcc, s[52:53]")
        a(f"s_or_b64 s[52:53], vcc, s[{S_SLOW}:{S_SLOW+1}]")
        a(f"s_cbranch_scc0 {lab}")
        a(f"s_call_b64 s[{S_RET}:{S_RET+1}], L_slow{'_first' if first else ''}")
        a.label(lab)
    def pv_mfma(f):
        t, j = f // 4, f % 4
        o = V_O + 16*j
        a(f"v_mfma_f32_32x32x16_bf16 v[{o}:{o+15}], v[{V_F+4*f}:{V_F+4*f+3}], v[{S+4*t}:{S+4*t+3}], v[{o}:{o+15}]")
    def pv_then_k(next_step):
        for f in range(8):
            pv_mfma(f)
            if next_step is not None and f >= 1: rd_k(next_step, f - 1)
        if next_step is not None: rd_k(next_step, 7)

    PR = OPT.get("prio", 1)
    def prio(p):
        if PR: a(f"s_setprio {p}")
    a(f"s_cmp_eq_u32 s{S_QT}, 1")
    a("s_cbranch_scc1 L_typeA")
    a(f"s_cmp_eq_u32 s{S_QT}, 2")
    a("s_cbranch_scc1 L_typeC")
    for i in range(8):
        a(f"s_waitcnt vmcnt({8 if 0 < i < 7 else 0})")
        tr2(4*i)
        a("s_barrier")
        tr2(4*i+1)
        prio(1)
        if i == 0:
            for st8 in range(8): rd_k(0, st8)
        else:
            pv_then_k(i)
        if i == 0: issue_k(1)
        if i + 2 < 8: issue_k(i + 2)
        qk(i, 0)
        tr2(4*i+2)
        prio(2)
        softmax_max(f"L_D{i}", first=(i == 0))
        softmax_half(0); softmax_half(1)
        a("s_waitcnt lgkmcnt(0)")
    tr2(32)
    a("s_barrier")
    pv_then_k(None)
    a("s_branch L_merge")
    a.label("L_typeA")
    a(f"""
    s_cmp_eq_u32 s{S_W}, 4
    s_cbranch_scc0 L_notokrd4
    s_mov_b32 s8, s70
    s_mov_b32 s9, s71
    s_mov_b32 s10, 256
    s_mov_b32 s11, 0x00020000
    v_mov_b32 v{V_T0}, 0
    s_mov_b32 s{S_CNT}, 0
    L_tokspin4:
    buffer_load_dword v{V_T1}, v{V_T0}, s[8:11], 0 offen sc1
    s_waitcnt vmcnt(0)
    v_readfirstlane_b32 s40, v{V_T1}
    s_add_u32 s{S_CNT}, s{S_CNT}, 1
    s_cmp_lt_u32 s{S_CNT}, {SPIN_MAX}
    s_cbranch_scc0 L_notokrd4
    s_cmp_eq_u32 s40, 0
    s_cbranch_scc1 L_tokspin4
    L_notokrd4:
    """)
    for i in range(8):
        a(f"s_waitcnt vmcnt(0)")
        tr2(4*i)
        a("s_barrier")
        tr2(4*i+1)
        prio(3)
        for st8 in range(8): rd_k(i, st8)
        if i + 1 < 8: issue_v(i + 1)
        qk(i, 0)
        tr2(4*i+2)
        prio(2)
        softmax_max(f"L_A{i}", first=(i == 0))
        softmax_half(0); softmax_half(1)
        prio(0)
        for f in range(8):
            a(f"s_waitcnt lgkmcnt({min(15, 2*(7-f))})")
            pv_mfma(f)
    tr2(32)
    a("s_barrier")
    a("s_branch L_merge")
    a.label("L_typeC")
    a(f"s_cmp_eq_u32 s{S_BLK}, 0")
    srd(a, 12, 56, 66, 4096*1024*2)
    a(f"""
    v_lshrrev_b32 v{V_DOFF+1}, 1, v{L}
    v_lshlrev_b32 v{V_DOFF+1}, 11, v{V_DOFF+1}
    v_and_b32 v{V_DOFF+2}, 1, v{L}
    v_lshlrev_b32 v{V_DOFF+2}, 7, v{V_DOFF+2}
    v_add_u32 v{V_DOFF+1}, v{V_DOFF+1}, v{V_DOFF+2}
    v_add_u32 v{V_DOFF+1}, 60, v{V_DOFF+1}
    s_lshl_b32 s45, s{S_G}, 10
    s_lshl_b32 s3, s{S_BP}, 8
    s_add_u32 s45, s45, s3
    s_lshl_b32 s3, s{S_KQ}, 6
    s_add_u32 s45, s45, s3
    s_lshl_b32 s45, s45, 11
    s_lshl_b32 s3, s{S_NT8}, 8
    s_add_u32 s45, s45, s3
    """)
    a(f"""
    s_cmp_eq_u32 s{S_W}, 8
    s_cbranch_scc0 L_notokrd
    v_mov_b32 v{V_DOFF}, 0
    s_mov_b32 s{S_CNT}, 0
    L_tokspin:
    buffer_load_dword v{V_DOFF+3}, v{V_DOFF}, s[16:19], 0 offen sc1
    s_waitcnt vmcnt(0)
    v_readfirstlane_b32 s40, v{V_DOFF+3}
    s_add_u32 s{S_CNT}, s{S_CNT}, 1
    s_cmp_lt_u32 s{S_CNT}, {SPIN_MAX}
    s_cbranch_scc0 L_notokrd
    s_cmp_eq_u32 s40, 0
    s_cbranch_scc1 L_tokspin
    L_notokrd:
    """)
    PF_AT = {}
    PF_AT.setdefault(OPT.get("pf0", 7), []).append(0)
    PF_AT.setdefault(OPT.get("pf1", 7), []).append(1)
    for i in range(9):
        tr2(4*i)
        a("s_barrier")
        tr2(4*i+1)
        prio(2)
        if i in PF_AT and OPT.get("wopf", 1) and OPT.get("pf_early", 1):
            for e in PF_AT[i]:
                a(f"s_add_u32 s3, s45, {e * 32 * 2048}")
                a(f"buffer_load_dwordx2 v[{V_DOFF+2}:{V_DOFF+3}], v{V_DOFF+1}, s[12:15], s3 offen {NTWO()}")
        if i == 0:
            for st8 in range(8): rd_k(0, st8)
        else:
            softmax_max(f"L_C{i}", first=(i == 1))
            softmax_half(0); softmax_half(1)
            if i in PF_AT and OPT.get("wopf", 1) and not OPT.get("pf_early", 1):
                for e in PF_AT[i]:
                    a(f"s_add_u32 s3, s45, {e * 32 * 2048}")
                    a(f"buffer_load_dwordx2 v[{V_DOFF+2}:{V_DOFF+3}], v{V_DOFF+1}, s[12:15], s3 offen {NTWO()}")
            pv_then_k(i if i < 8 else None)
        if i < 8:
            prio(1)
            qk(i, 0)
            a("s_waitcnt lgkmcnt(0)")
    def spin(label, load_lines, cmp_val, vreg, sleep=1):
        a(f"s_mov_b32 s{S_CNT}, 0")
        a.label(label)
        a(load_lines)
        a("s_waitcnt vmcnt(0)")
        a(f"v_cmp_ne_u32 vcc, s3, v{vreg}" if cmp_val is None else f"v_cmp_ne_u32 vcc, {cmp_val}, v{vreg}")
        a(f"s_cbranch_vccz {label}_ok")
        a(f"s_add_u32 s{S_CNT}, s{S_CNT}, 1")
        a(f"s_cmp_lt_u32 s{S_CNT}, {SPIN_MAX}")
        a(f"s_sleep {sleep}")
        a(f"s_cbranch_scc1 {label}")
        a.label(f"{label}_ok")

    def gen_tail():
        T_ACC, T_FR, T_AA, T_BA, T_DOFF, T_X = 0, 48, 112, 113, 114, 116
        S_WOB, S_OB, S_ST = 45, 46, 47
        NW, NO = 7, 4
        OB0 = NW * 16384
        OWN = 4 * 16384
        def ts(i):
            if OPT.get("lt") == 5: a(f"s_memtime s[{80+2*i}:{81+2*i}]")
            m = {1: 6, 2: 7, 3: 8, 5: 9, 6: 10}
            if i in m: mk(m[i])
        ts(0)
        a(f"s_cmp_eq_u32 s{S_BLK}, 0")
        srd(a, 12, 56, 66, 4096*1024*2)
        srd(a, 8, 68, 68, 8*48*2048*2, sel=False)
        a(f"""
        s_lshl_b32 s{S_WOB}, s{S_G}, 21
        s_lshl_b32 s3, s{S_NT8}, 8
        s_add_u32 s{S_WOB}, s{S_WOB}, s3
        s_mul_i32 s{S_OB}, s{S_G1}, {192*1024}
        s_add_u32 s{S_OB}, s{S_OB}, {O_OFF}
        s_lshl_b32 s74, s{S_HP}, 2
        s_cmp_ge_u32 s{S_W}, 8
        s_cbranch_scc1 L_t_compute
        s_cmp_ge_u32 s{S_W}, 4
        s_cbranch_scc1 L_t_oload
        """)
        WR = 0
        LD, LX = 150, 152
        a(f"""
        v_lshrrev_b32 v{LX}, 4, v{L}
        v_and_b32 v{LX+1}, 15, v{L}
        v_lshlrev_b32 v{LX+2}, 2, v{LX}
        v_xor_b32 v{LX+2}, v{LX+2}, v{LX+1}
        v_lshlrev_b32 v{LX+2}, 4, v{LX+2}
        v_lshlrev_b32 v{LX}, 11, v{LX}
        v_add_u32 v{LD}, v{LX}, v{LX+2}
        s_lshl_b32 s{S_T0}, s{S_W}, 15
        s_add_u32 s{S_WOB}, s{S_WOB}, s{S_T0}
        s_lshl_b32 s{S_T2}, s{S_W}, 12
        v_lshlrev_b32 v{LD+1}, 4, v{L}
        v_add_u32 v{LD+1}, s{S_T2}, v{LD+1}
        """)
        def wo_addr(st):
            a(f"s_add_u32 s3, s74, {st}")
            a(f"s_and_b32 s3, s3, 15")
            a(f"s_lshl_b32 s76, s3, 17")
            a(f"s_add_u32 s76, s76, s{S_WOB}")
        NREG = OPT.get("wo_reg", 0)
        def issue_wo(st):
            wo_addr(st)
            for q in range(4):
                if q: a(f"s_add_u32 s76, s76, {4*2048}")
                if NW <= st < NW + NREG:
                    r = WR + ((st - NW)*4 + q)*4
                    a(f"buffer_load_dwordx4 v[{r}:{r+3}], v{LD}, s[12:15], s76 offen")
                else:
                    a(f"s_add_u32 m0, s{S_T2}, {(st % NW)*16384 + q*1024}")
                    a(f"buffer_load_dwordx4 v{LD}, s[12:15], s76 offen lds")
        NE = OPT.get("wo_early", 2)
        for st in range(NE): issue_wo(st)
        a(f"s_waitcnt vmcnt({4*NE})")
        ts(1)
        a("s_barrier")
        a(f"s_sleep {OPT.get('wo_delay', 12)}")
        for st in range(NE, NW + NREG): issue_wo(st)
        ts(2)
        issued = list(range(NW + NREG))
        for st in range(16):
            if not (NW <= st < NW + NREG):
                a(f"s_waitcnt vmcnt({4 * (len(issued) - 1 - issued.index(st))})")
            a("s_waitcnt lgkmcnt(0)")
            a("s_barrier")
            k = st + NW - 2
            if st >= 2 and k <= 15:
                if NW <= k < NW + NREG:
                    a(f"s_waitcnt vmcnt({4 * (len(issued) - 1 - issued.index(k))})")
                    off = (k % NW) * 16384
                    if off + 3072 > 65535:
                        a(f"v_add_u32 v{LD+2}, {off}, v{LD+1}")
                    for q in range(4):
                        r = WR + ((k - NW)*4 + q)*4
                        if off + 3072 > 65535:
                            a(f"ds_write_b128 v{LD+2}, v[{r}:{r+3}] offset:{q*1024}")
                        else:
                            a(f"ds_write_b128 v{LD+1}, v[{r}:{r+3}] offset:{off + q*1024}")
                else:
                    issue_wo(k); issued.append(k)
        ts(3)
        a("s_branch L_t_join")
        a.label("L_t_oload")
        a(f"s_cmp_eq_u32 s{S_W}, 4")
        a("s_cbranch_scc1 L_t_oload1")
        a("s_waitcnt vmcnt(0)")
        ts(1)
        a("s_barrier")
        ts(2)
        for st in range(16): a("s_barrier")
        ts(3)
        a("s_branch L_t_join")
        a.label("L_t_oload1")
        a(f"""
        v_lshlrev_b32 v{T_DOFF+1}, 4, v{L}
        v_and_b32 v{T_X+2}, 7, v{L}
        v_lshlrev_b32 v{T_X+2}, 2, v{T_X+2}
        v_mov_b32 v{T_X+1}, 0
        s_lshl_b32 s{S_T0}, s{S_G1}, 7
        s_add_u32 s{S_T0}, s{S_T0}, {FLAG_OFF}
        s_waitcnt vmcnt(0)
        """)
        POLL = f"buffer_load_dword v{T_X+1}, v{T_X+2}, s[24:27], s{S_T0} offen sc1"
        def check():
            a(f"v_cmp_eq_u32 vcc, s40, v{T_X+1}")
            a(f"s_and_b32 s77, vcc_lo, s79")
            a(f"s_cmp_eq_u32 s77, s79")
        def issue_o(st):
            if st % 4 == 0:
                lab = f"L_og{st}"
                a(f"s_add_u32 s3, s74, {st}")
                a(f"s_and_b32 s3, s3, 15")
                a(f"s_lshr_b32 s3, s3, 2")
                a(f"s_lshl_b32 s79, 0x11, s3")
                if st:
                    a("s_waitcnt vmcnt(24)")
                    check()
                    a(f"s_cbranch_scc1 {lab}_ok")
                a(f"s_mov_b32 s{S_CNT}, 0")
                a.label(lab)
                a(POLL)
                a("s_waitcnt vmcnt(0)")
                check()
                a(f"s_cbranch_scc1 {lab}_ok")
                a(f"s_add_u32 s{S_CNT}, s{S_CNT}, 1")
                a(f"s_cmp_lt_u32 s{S_CNT}, {SPIN_MAX}")
                a(f"s_sleep {OPT.get('psleep', 2)}")
                a(f"s_cbranch_scc1 {lab}")
                a.label(f"{lab}_ok")
                m11({0: 2, 4: 5, 8: 7, 12: 9}[st])
            a(f"s_add_u32 s3, s74, {st}")
            a(f"s_and_b32 s3, s3, 15")
            a(f"s_mul_i32 s76, s3, 12288")
            a(f"s_add_u32 s76, s76, s{S_OB}")
            for g4 in range(3):
                a(f"s_mov_b32 m0, {OB0 + (st % NO)*12288 + g4*4096}")
                if g4: a(f"s_add_u32 s76, s76, 4096")
                for q in range(4):
                    a(f"buffer_load_dwordx4 v{T_DOFF+1}, s[24:27], s76 offen offset:{q*1024} {OSC()}lds")
            if st % 4 == 1 and st < 12: a(POLL)
        def m11(i):
            if OPT.get("lt") == 11: a(f"s_memtime s[{80+2*i}:{81+2*i}]")
        ts(1)
        m11(0)
        a("s_barrier")
        m11(1)
        if OPT.get("pdelay", 0): a(f"s_sleep {OPT.get('pdelay', 0)}")
        for st in range(NO): issue_o(st)
        ts(2)
        m11(3)
        for st in range(16):
            last = min(15, max(NO - 1, st + NO - 3))
            a(f"s_waitcnt vmcnt({12 * (last - st)})")
            a("s_barrier")
            if st in (0, 4, 8, 15): m11({0: 4, 4: 6, 8: 8, 15: 10}[st])
            if st >= 2 and st + NO - 2 <= 15 and not OPT.get("t_noo"): issue_o(st + NO - 2)
        ts(3)
        a("s_branch L_t_join")
        a.label("L_t_compute")
        a(f"""
        v_lshrrev_b32 v{T_X}, 5, v{L}
        v_lshlrev_b32 v{T_X}, 3, v{T_X}
        v_bfe_u32 v{T_X+1}, v{L}, 2, 2
        v_add_u32 v{T_X}, v{T_X}, v{T_X+1}
        v_lshlrev_b32 v{T_X}, 8, v{T_X}
        v_bfe_u32 v{T_X+2}, v{L}, 4, 1
        v_lshlrev_b32 v{T_X+2}, 5, v{T_X+2}
        v_add_u32 v{T_X}, v{T_X}, v{T_X+2}
        v_and_b32 v{T_X+2}, 3, v{L}
        v_lshlrev_b32 v{T_X+2}, 3, v{T_X+2}
        v_add_u32 v{T_X}, v{T_X}, v{T_X+2}
        v_xor_b32 v{T_X+2}, s{S_KQ}, v{T_X+1}
        v_lshlrev_b32 v{T_X+2}, 6, v{T_X+2}
        v_add_u32 v{T_AA}, v{T_X}, v{T_X+2}
        v_lshlrev_b32 v{T_BA}, 4, v{L}
        v_add_u32 v{T_BA}, {OB0}, v{T_BA}
        """)
        for i in range(48):
            a(f"v_mov_b32 v{T_ACC+i}, 0")
        a("s_waitcnt vmcnt(0)")
        ts(1)
        a("s_barrier")
        a(f"s_cmp_eq_u32 s{S_W}, 8")
        a("s_cbranch_scc0 L_t_nopoll1")
        a("s_setprio 3")
        a(f"""
        s_lshl_b32 s3, s{S_G1}, 7
        s_add_u32 s76, s3, {FLAG_OFF}
        s_lshl_b32 s3, s{S_NT8}, 2
        s_add_u32 s77, s76, s3
        v_mov_b32 v{T_X}, 0
        v_mov_b32 v{T_X+1}, s40
        s_mov_b64 exec, 1
        buffer_store_dword v{T_X+1}, v{T_X}, s[24:27], s77 offen sc1
        s_mov_b64 exec, -1
        """)
        a("s_setprio 0")
        a.label("L_t_nopoll1")
        ts(2)
        def rd_list(j):
            b = T_FR + 16*j
            out = []
            for hf in range(2):
                out.append(f"ds_read_b64_tr_b16 v[{b+2*hf}:{b+2*hf+1}], v{T_AA} offset:{j*4096 + hf*1024}")
            for m in range(3):
                out.append(f"ds_read_b128 v[{b+4+4*m}:{b+7+4*m}], v{T_BA} offset:{(j*3+m)*1024}")
            return out
        def mm_list(j):
            b = T_FR + 16*j
            return [f"v_mfma_f32_32x32x16_bf16 v[{T_ACC+16*m}:{T_ACC+16*m+15}], v[{b}:{b+3}], v[{b+4+4*m}:{b+7+4*m}], v[{T_ACC+16*m}:{T_ACC+16*m+15}]" for m in range(3)]
        def mm3(j):
            for x in mm_list(j): a(x)
        def weave(mm, rd):
            if OPT.get("t_nord"): rd = ["s_nop 0"] * 5
            if OPT.get("t_nomm"): mm = ["s_nop 0"] * 3
            groups = [rd[0:3], rd[3:4], rd[4:5]]
            for x, g in zip(mm, groups):
                a(x)
                for y in g: a(y)
        a(f"s_mov_b32 s{S_ST}, 0")
        a(f"s_mov_b32 s{S_SLOT}, 0")
        a.label("L_t_loop")
        if OPT.get("lt") == 6:
            for k, st in enumerate(LT6):
                a(f"s_cmp_eq_u32 s{S_ST}, {st}")
                a(f"s_cbranch_scc0 L_lt6_{k}")
                a(f"s_memtime s[{80+2*k}:{81+2*k}]")
                a.label(f"L_lt6_{k}")
        a("s_barrier")
        a(f"s_cmp_eq_u32 s{S_ST}, 0")
        a("s_cbranch_scc0 L_t_left")
        for y in rd_list(0) + rd_list(1): a(y)
        a("s_branch L_t_skip")
        a.label("L_t_left")
        a("s_waitcnt lgkmcnt(5)")
        weave(mm_list(2), rd_list(0))
        a("s_waitcnt lgkmcnt(5)")
        weave(mm_list(3), rd_list(1))
        a.label("L_t_skip")
        a("s_waitcnt lgkmcnt(5)")
        weave(mm_list(0), rd_list(2))
        a("s_waitcnt lgkmcnt(5)")
        weave(mm_list(1), rd_list(3))
        a(f"""
        s_add_u32 s{S_SLOT}, s{S_SLOT}, 1
        s_cmp_eq_u32 s{S_SLOT}, {NW}
        s_cselect_b32 s{S_SLOT}, 0, s{S_SLOT}
        s_mov_b32 s3, 16384
        s_cselect_b32 s3, {(-(NW-1)*16384) & 0xffffffff}, s3
        v_add_u32 v{T_AA}, s3, v{T_AA}
        s_add_u32 s{S_ST}, s{S_ST}, 1
        s_and_b32 s3, s{S_ST}, 3
        s_mov_b32 s3, 12288
        s_cselect_b32 s3, s3, {(-3*12288) & 0xffffffff}
        v_add_u32 v{T_BA}, s3, v{T_BA}
        s_cmp_lt_u32 s{S_ST}, 16
        s_cbranch_scc1 L_t_loop
        s_waitcnt lgkmcnt(0)
        """)
        mm3(2); mm3(3)
        ts(3)
        a(f"s_cmp_eq_u32 s{S_KQ}, s{S_G}")
        a("s_cbranch_scc0 L_t_pub")
        a(f"v_lshlrev_b32 v{T_X}, 4, v{L}")
        a(f"v_add_u32 v{T_X}, {OWN}, v{T_X}")
        for m in range(3):
            for rq in range(4):
                r = T_ACC + 16*m + 4*rq
                a(f"ds_write_b128 v{T_X}, v[{r}:{r+3}] offset:{(m*4+rq)*1024}")
        a("s_waitcnt lgkmcnt(0)")
        a("s_branch L_t_join")
        a.label("L_t_pub")
        a(f"""
        s_lshl_b32 s3, s{S_G2}, 2
        s_add_u32 s3, s3, s{S_KQ}
        s_lshl_b32 s3, s3, 2
        s_add_u32 s3, s3, s{S_G}
        s_mul_i32 s76, s3, 6144
        s_add_u32 s76, s76, {PART_OFF}
        v_lshlrev_b32 v{T_X}, 3, v{L}
        """)
        for m in range(3):
            for rq in range(4):
                r = T_ACC + 16*m + 4*rq
                d = T_FR + 2*(m*4+rq)
                a(f"v_cvt_pk_bf16_f32 v{d}, v{r}, v{r+1}")
                a(f"v_cvt_pk_bf16_f32 v{d+1}, v{r+2}, v{r+3}")
        for m in range(3):
            for rq in range(4):
                d = T_FR + 2*(m*4+rq)
                off = (m*4+rq)*512
                if off == 4096: a("s_add_u32 s76, s76, 4096")
                a(f"buffer_store_dwordx2 v[{d}:{d+1}], v{T_X}, s[24:27], s76 offen offset:{off % 4096} sc1")
        a("s_waitcnt vmcnt(0)")
        a.label("L_t_join")
        ts(4)
        a("s_barrier")
        a(f"s_cmp_eq_u32 s{S_W}, 8")
        a("s_cbranch_scc0 L_t_nopoll2")
        a(f"""
        s_lshl_b32 s3, s{S_G2}, 7
        s_add_u32 s76, s3, {FLAG_OFF + 8192}
        s_lshl_b32 s3, s{S_G}, 2
        s_add_u32 s77, s76, s3
        v_mov_b32 v{T_X}, 0
        v_mov_b32 v{T_X+1}, s40
        s_mov_b64 exec, 1
        buffer_store_dword v{T_X+1}, v{T_X}, s[24:27], s77 offen sc1
        s_mov_b64 exec, -1
        v_and_b32 v{T_X+2}, 3, v{L}
        v_lshlrev_b32 v{T_X+2}, 2, v{T_X+2}
        s_mov_b32 s3, s40
        """)
        spin("L_spin_b", f"buffer_load_dword v{T_X+1}, v{T_X+2}, s[24:27], s76 offen sc1", None, T_X+1)
        a.label("L_t_nopoll2")
        a("s_barrier")
        ts(5)
        a(f"""
        s_lshl_b32 s3, s{S_G2}, 2
        s_add_u32 s3, s3, s{S_G}
        s_mul_i32 s76, s3, {4*6144}
        s_lshl_b32 s3, s{S_W}, 9
        s_add_u32 s76, s76, s3
        s_add_u32 s76, s76, {PART_OFF}
        v_lshlrev_b32 v{T_X}, 3, v{L}
        """)
        for d in range(1, 4):
            a(f"s_add_u32 s3, s{S_G}, {d}")
            a(f"s_and_b32 s3, s3, 3")
            a(f"s_mul_i32 s3, s3, 6144")
            a(f"s_add_u32 s77, s76, s3")
            a(f"buffer_load_dwordx2 v[{18+2*d}:{19+2*d}], v{T_X}, s[24:27], s77 offen sc1")
        a(f"""
        s_lshl_b32 s3, s{S_W}, 10
        s_add_u32 s3, s3, {OWN}
        v_lshlrev_b32 v{T_X+3}, 4, v{L}
        v_add_u32 v{T_X+3}, s3, v{T_X+3}
        ds_read_b128 v[16:19], v{T_X+3}
        s_mul_i32 s3, s{S_BP}, 96
        s_lshl_b32 s77, s{S_QT}, 5
        s_add_u32 s3, s3, s77
        s_lshl_b32 s3, s3, 12
        s_lshl_b32 s77, s{S_BLK}, 11
        s_add_u32 s3, s3, s77
        s_lshl_b32 s77, s{S_NT8}, 8
        s_add_u32 s3, s3, s77
        s_lshl_b32 s77, s{S_G}, 6
        s_add_u32 s3, s3, s77
        s_lshl_b32 s77, s{S_KQ}, 4
        s_add_u32 s3, s3, s77
        v_and_b32 v{T_X+1}, 31, v{L}
        v_lshlrev_b32 v{T_X+1}, 12, v{T_X+1}
        v_lshrrev_b32 v{T_X+2}, 5, v{L}
        v_lshlrev_b32 v{T_X+2}, 3, v{T_X+2}
        v_add_u32 v{T_X+1}, v{T_X+1}, v{T_X+2}
        s_waitcnt lgkmcnt(0)
        """)
        for d in range(1, 4):
            a(f"s_waitcnt vmcnt({3-d})")
            lo, hi = 18 + 2*d, 19 + 2*d
            a(f"v_lshlrev_b32 v28, 16, v{lo}")
            a(f"v_and_b32 v29, 0xffff0000, v{lo}")
            a(f"v_lshlrev_b32 v30, 16, v{hi}")
            a(f"v_and_b32 v31, 0xffff0000, v{hi}")
            for i in range(4): a(f"v_add_f32 v{16+i}, v{16+i}, v{28+i}")
        a("v_cvt_pk_bf16_f32 v20, v16, v17")
        a("v_cvt_pk_bf16_f32 v21, v18, v19")
        a(f"buffer_store_dwordx2 v[20:21], v{T_X+1}, s[8:11], s3 offen {OUTF()}")
        ts(6)

    a.label("L_merge")
    prio(0)
    stamp(a, 2)
    tr2(40)
    F = V_F
    def mt(i):
        if OPT.get("lt") == 4: a(f"s_memtime s[{80+2*i}:{81+2*i}]")
    mt(0)
    a(f"""
    v_mov_b32 v{V_T0}, v{V_L}
    v_mov_b32 v{V_T1}, v{V_L}
    s_mul_i32 s76, s{S_KQ}, {AREA}
    v_lshlrev_b32 v{V_T2}, 4, v{L}
    v_permlane32_swap_b32 v{V_T0}, v{V_T1}
    s_mul_i32 s3, s{S_QT}, 12288
    s_add_u32 s77, s76, s3
    v_add_f32 v{V_L}, v{V_T0}, v{V_T1}
    v_add_u32 v{V_T1}, s77, v{V_T2}
    """)
    for j in range(1, 4):
        for rq in range(4):
            r = V_O + 16*j + 4*rq
            a(f"ds_write_b128 v{V_T1}, v[{r}:{r+3}] offset:{(j-1)*4096 + rq*1024}")
    mt(1)
    a(f"""
    v_and_b32 v{V_T0}, 31, v{L}
    v_lshlrev_b32 v{V_T0}, 3, v{V_T0}
    s_lshl_b32 s3, s{S_QT}, 8
    s_add_u32 s3, s3, 36864
    v_add_u32 v{V_T0}, s3, v{V_T0}
    v_add_u32 v{V_T1}, s76, v{V_T0}
    ds_write_b64 v{V_T1}, v[{V_M}:{V_L}]
    """)
    for j in range(1, 4):
        a(f"s_sub_u32 s3, s{S_KQ}, {j}")
        a(f"s_and_b32 s3, s3, 3")
        a(f"s_mul_i32 s76, s3, {AREA}")
        a(f"v_add_u32 v{V_Q+j}, s76, v{V_T0}")
        a(f"s_mul_i32 s3, s{S_QT}, 12288")
        a(f"s_add_u32 s76, s76, s3")
        a(f"v_add_u32 v{V_Q+4+j}, s76, v{V_T2}")
    A0, A1, A2, A3 = V_Q+8, V_Q+9, V_Q+10, V_Q+11
    a(f"""
    v_and_b32 v{A1}, 31, v{L}
    s_lshl_b32 s3, s{S_QT}, 5
    v_add_u32 v{A1}, s3, v{A1}
    v_cmp_le_u32 vcc, 48, v{A1}
    v_subrev_u32 v{A2}, 48, v{A1}
    v_mov_b32 v{A0}, 0
    v_mov_b32 v{A3}, {8*3072}
    v_cndmask_b32 v{A1}, v{A1}, v{A2}, vcc
    v_cndmask_b32 v{A0}, v{A0}, v{A3}, vcc
    s_and_b32 s3, s{S_B}, 1
    s_mul_i32 s3, s3, 48
    v_add_u32 v{A1}, s3, v{A1}
    v_lshrrev_b32 v{A2}, 5, v{A1}
    v_lshlrev_b32 v{A2}, 10, v{A2}
    v_add_u32 v{A0}, v{A0}, v{A2}
    v_and_b32 v{A1}, 31, v{A1}
    v_lshlrev_b32 v{A1}, 4, v{A1}
    v_add_u32 v{A0}, v{A0}, v{A1}
    v_lshrrev_b32 v{A1}, 5, v{L}
    v_lshlrev_b32 v{A1}, 3, v{A1}
    v_add_u32 v{A0}, v{A0}, v{A1}
    s_lshl_b32 s3, s{S_HP}, 4
    s_lshl_b32 s76, s{S_KQ}, 1
    s_add_u32 s3, s3, s76
    s_mul_i32 s3, s3, 3072
    s_mul_i32 s79, s{S_G1}, {192*1024}
    s_add_u32 s79, s79, s3
    s_add_u32 s79, s79, {O_OFF}
    """)
    mt(2)
    a("s_waitcnt lgkmcnt(0)")
    mt(3)
    a("s_barrier")
    mt(4)
    mk(5)
    for j in range(1, 4):
        a(f"ds_read_b64 v[{F+2*j}:{F+2*j+1}], v{V_Q+j}")
    for j in range(1, 4):
        for rq in range(4):
            r = V_O + 16*j + 4*rq
            a(f"ds_read_b128 v[{r}:{r+3}], v{V_Q+4+j} offset:{(j-1)*4096 + rq*1024}")
    a("s_waitcnt lgkmcnt(12)")
    mt(5)
    a(f"""
    v_max3_f32 v{F+8}, v{V_M}, v{F+2}, v{F+4}
    v_max_f32 v{F+8}, v{F+8}, v{F+6}
    v_sub_f32 v{F+10}, v{V_M}, v{F+8}
    v_sub_f32 v{F+12}, v{F+2}, v{F+8}
    v_sub_f32 v{F+14}, v{F+4}, v{F+8}
    v_sub_f32 v{F+16}, v{F+6}, v{F+8}
    v_exp_f32 v{F+10}, v{F+10}
    v_exp_f32 v{F+12}, v{F+12}
    v_exp_f32 v{F+14}, v{F+14}
    v_exp_f32 v{F+16}, v{F+16}
    v_mul_f32 v{F+18}, v{F+10}, v{V_L}
    v_fma_f32 v{F+18}, v{F+12}, v{F+3}, v{F+18}
    v_fma_f32 v{F+18}, v{F+14}, v{F+5}, v{F+18}
    v_fma_f32 v{F+18}, v{F+16}, v{F+7}, v{F+18}
    v_rcp_f32 v{F+18}, v{F+18}
    v_mul_f32 v{F+10}, v{F+10}, v{F+18}
    v_mul_f32 v{F+12}, v{F+12}, v{F+18}
    v_mul_f32 v{F+14}, v{F+14}, v{F+18}
    v_mul_f32 v{F+16}, v{F+16}, v{F+18}
    """)
    mt(6)
    for i in range(0, 16, 2):
        a(f"v_pk_mul_f32 v[{V_O+i}:{V_O+i+1}], v[{V_O+i}:{V_O+i+1}], v[{F+10}:{F+11}] op_sel_hi:[1,0]")
    for j in range(1, 4):
        a(f"s_waitcnt lgkmcnt({12 - 4*j})")
        for i in range(0, 16, 2):
            a(f"v_pk_fma_f32 v[{V_O+i}:{V_O+i+1}], v[{V_O+16*j+i}:{V_O+16*j+i+1}], v[{F+10+2*j}:{F+11+2*j}], v[{V_O+i}:{V_O+i+1}] op_sel_hi:[1,0,1]")
    mt(7)
    for rq in range(4):
        a(f"v_cvt_pk_bf16_f32 v{F+20+2*rq}, v{V_O+4*rq}, v{V_O+4*rq+1}")
        a(f"v_cvt_pk_bf16_f32 v{F+20+2*rq+1}, v{V_O+4*rq+2}, v{V_O+4*rq+3}")
    for rq in range(4):
        a(f"buffer_store_dwordx2 v[{F+20+2*rq}:{F+20+2*rq+1}], v{A0}, s[24:27], s79 offen offset:{(rq & 1)*512} sc1" if rq < 2 else
          f"buffer_store_dwordx2 v[{F+20+2*rq}:{F+20+2*rq+1}], v{A0}, s[24:27], s79 offen offset:{3072 + (rq & 1)*512} sc1")
    a("s_barrier")
    gen_tail()
    stamp(a, 3)
    if OPT.get("pad"):
        a(f"""
        L_pad:
        s_memrealtime s[76:77]
        s_waitcnt lgkmcnt(0)
        s_sub_u32 s76, s76, s80
        s_cmp_lt_u32 s76, {OPT["pad"]}
        s_cbranch_scc1 L_pad
        """)
    tr2(41)
    trace_dump(a, 167, 100, S_W, V_LANE, 1)
    if OPT.get("lt"):
        a("s_waitcnt lgkmcnt(0)")
        a(f"s_lshl_b32 s3, s2, 4")
        a(f"s_add_u32 s3, s3, s{S_W}")
        a(f"s_lshl_b32 s3, s3, 8")
        a(f"s_add_u32 s3, s3, {(56 << 20) + (1 << 20)}")
        a("v_mov_b32 v102, s3")
        for i in range(11):
            a(f"v_mov_b32 v100, s{80+2*i}")
            a(f"buffer_store_dword v100, v102, s[24:27], 0 offen offset:{4*i}")
            a("s_waitcnt vmcnt(0)")
    if OPT["stamps"]: a("s_memtime s[90:91]")
    if OPT.get("dbgclk"):
        a(f"""
        s_waitcnt lgkmcnt(0)
        s_cmp_eq_u32 s2, {OPT.get("dbgwg", 77)}
        s_cbranch_scc0 L_nodbg
        s_cmp_eq_u32 s{S_W}, 0
        s_cbranch_scc0 L_nodbg
        s_sub_u32 s90, s90, s88
        s_sub_u32 s82, s82, s80
        s_sub_u32 s84, s84, s80
        s_sub_u32 s86, s86, s80
        v_mov_b32 v100, s90
        v_mov_b32 v101, s82
        v_mov_b32 v102, s84
        v_mov_b32 v103, s86
        v_mov_b32 v104, 0
        s_mov_b32 s16, s70
        s_mov_b32 s17, s71
        s_mov_b32 s18, 256
        s_mov_b32 s19, 0x00020000
        s_mov_b64 exec, 1
        buffer_store_dwordx4 v[100:103], v104, s[16:19], 0 offen offset:16
        s_mov_b64 exec, -1
        L_nodbg:
        """)
    else:
        stamp_flush(a, 6, 100, S_W, 0)
    a("s_endpgm")
    a.label("L_slow_first")
    a(f"v_cndmask_b32 v{V_M}, v{V_M}, v{V_T0}, vcc")
    a(f"s_mov_b64 s[{S_SLOW}:{S_SLOW+1}], -1")
    a(f"v_add_f32 v{V_THR}, s{S_TC}, v{V_M}")
    a("s_branch L_slow_sub")
    a.label("L_slow")
    a("s_cbranch_vccz L_slow_sub")
    a(f"v_max_f32 v{V_T1}, v{V_M}, v{V_T0}")
    a(f"v_cndmask_b32 v{V_T1}, v{V_M}, v{V_T1}, vcc")
    a.label("L_slow_upd")
    a(f"""
    s_mov_b64 s[{S_SLOW}:{S_SLOW+1}], -1
    v_sub_f32 v{V_T2}, v{V_M}, v{V_T1}
    v_exp_f32 v{V_T2}, v{V_T2}
    v_mov_b32 v{V_M}, v{V_T1}
    v_add_f32 v{V_THR}, s{S_TC}, v{V_T1}
    v_mul_f32 v{V_L}, v{V_L}, v{V_T2}
    """)
    for i in range(64):
        a(f"v_mul_f32 v{V_O+i}, v{V_T2}, v{V_O+i}")
    a.label("L_slow_sub")
    for i in range(16):
        a(f"v_sub_f32 v{V_S+i}, v{V_S+i}, v{V_M}")
    a("s_nop 1")
    a(f"s_setpc_b64 s[{S_RET}:{S_RET+1}]")
    a.label("L_k1_end")
    a("s_endpgm")
    return a

def build():
    k1 = gen_k1().finalize()
    h1, d1 = kernel_text("gqa_fused_kernel", k1, 168)
    hdr = open("concat_heads__gqa_block_cached__gqa_block_cached__near_ridge.s.ref").read().split("; Override")[0]
    txt = hdr
    he = de = ""
    e = OPT.get("empty")
    if e:
        he, de = kernel_text("empty_kernel", "    s_endpgm\n", 168 if e in (2, 4) else 8, sgpr=16)
        de = ".p2align 6\n" + de
        line = "; @launch kernel=empty_kernel grid=(256,1,1) block=(768,1,1) lds=163840\n" if e in (2, 4) else "; @launch kernel=empty_kernel grid=(256,1,1) block=(64,1,1) lds=0\n"
    if e in (1, 2): txt += line
    txt += "; @launch kernel=gqa_fused_kernel grid=(256,1,1) block=(768,1,1) lds=163840\n"
    if e in (3, 4): txt += line
    txt += '.amdgcn_target "amdgcn-amd-amdhsa--gfx950"\n.text\n' + h1 + he
    txt += '.section .rodata,"a"\n.p2align 6\n' + d1 + de
    return txt

if __name__ == "__main__":
    out = sys.argv[1]
    for kv in sys.argv[2:]:
        k, v = kv.split("=")
        OPT[k] = int(v, 0)
    open(out, "w").write(build())
    print("wrote", out)
```

```python
import sys, math, struct
from asmlib import *
import gen as G1
G1.OPT["stamp_off"] = 48 << 20
from gen import f2u, load_ptrs, srd, AREA, C_SCALE, T_LOG2

OPT = G1.OPT
stamp, stamp_flush, trace, trace_dump = G1.stamp, G1.stamp_flush, G1.trace, G1.trace_dump
NT = G1.NT

NTQ = lambda: 'nt ' if OPT.get('nt_wq') else ''
NTX = lambda: 'nt ' if OPT.get('nt_x') else ''
NTKV = lambda: 'nt ' if OPT.get('nt_kv') else ''
NTWO = lambda: 'nt ' if OPT.get('nt_wo') else ''
OSC = lambda: '' if OPT.get('o_plain') else 'sc1 '
LT6 = (0, 1, 2, 3, 4, 6, 8, 10, 12, 14, 15)
OUTF = lambda: {0: '', 1: 'sc1', 2: 'nt', 3: 'sc0 sc1'}[OPT.get('outf', 0)]
O_OFF = 0
FLAG_OFF = 8 << 20
PART_OFF = 16 << 20
TOK_A, TOK_B = 0x5EED0A01, 0x5EED0B02
SPIN_MAX = 1 << 18

def emit_tile(a, dst, s_cnt, phi, m1, m3, win, r, t0, t1, t2):
    sc = f"s{s_cnt}" if isinstance(s_cnt, int) else str(s_cnt[1])
    a(f"s_add_u32 s{t0}, s{phi}, {win}")
    a(f"s_sub_u32 s{t1}, {win}, s{phi}")
    a(f"s_mov_b32 s{t2}, s{m3}")
    a(f"s_cmp_lt_u32 {sc}, s{t0}" if isinstance(s_cnt, int) else f"s_cmp_gt_u32 s{t0}, {sc}")
    a(f"s_cselect_b32 s{t0}, s{phi}, s{t0}")
    a(f"s_cselect_b32 s{t1}, {win}, s{t1}")
    a(f"s_cselect_b32 s{t2}, {256 // win}, s{t2}")
    a(f"s_cmp_lt_u32 {sc}, s{phi}" if isinstance(s_cnt, int) else f"s_cmp_gt_u32 s{phi}, {sc}")
    a(f"s_cselect_b32 s{t0}, 0, s{t0}")
    a(f"s_cselect_b32 s{t1}, s{phi}, s{t1}")
    a(f"s_cselect_b32 s{t2}, s{m1}, s{t2}")
    a(f"s_sub_u32 s{dst}, {sc}, s{t0}")
    a(f"s_add_u32 s{dst}, s{dst}, s{r}")
    a(f"s_mul_i32 s{t2}, s{dst}, s{t2}")
    a(f"s_lshr_b32 s{t2}, s{t2}, 8")
    a(f"s_mul_i32 s{t2}, s{t2}, s{t1}")
    a(f"s_sub_u32 s{dst}, s{dst}, s{t2}")
    a(f"s_add_u32 s{dst}, s{dst}, s{t0}")

def gen_k1():
    a = Asm()
    def mk(i):
        if OPT.get('lt') == 9: a(f"{'s_memrealtime' if OPT.get('rt') else 's_memtime'} s[{80+2*i}:{81+2*i}]")
    S_PHI, S_M1, S_M3, S_P2 = 4, 5, 6, 7
    S_BP, S_NT8, S_G1, S_G2 = 54, 55, 58, 59
    S_W, S_BLK, S_G, S_B, S_HP, S_KQ, S_QT = 28, 29, 30, 31, 32, 33, 34
    S_C, S_NC, S_TC = 35, 36, 37
    S_RET = 38
    S_SLOW = 50
    T_HI, T_LO = 16.0, 64.0
    S_T0, S_T1, S_T2, S_T3 = 41, 42, 43, 44
    S_WQB, S_XB, S_KVB = 45, 46, 47
    S_CNT, S_SLOT = 75, 78
    V_O, V_Q, V_S, V_F, V_KA, V_VA = 0, 64, 96, 112, 144, 152
    V_M, V_L, V_NMC, V_THR, V_T0, V_T1, V_T2, V_LANE, V_DOFF = 156, 157, 158, 159, 160, 161, 162, 163, 164
    L = V_LANE

    def group_ids():
        a(f"""
        s_lshr_b32 s{S_BP}, s{S_B}, 1
        s_and_b32 s{S_NT8}, s{S_B}, 1
        s_lshl_b32 s{S_NT8}, s{S_NT8}, 2
        s_add_u32 s{S_NT8}, s{S_NT8}, s{S_HP}
        s_lshl_b32 s{S_G1}, s{S_BLK}, 2
        s_add_u32 s{S_G1}, s{S_G1}, s{S_G}
        s_lshl_b32 s{S_G1}, s{S_G1}, 2
        s_add_u32 s{S_G1}, s{S_G1}, s{S_BP}
        s_lshl_b32 s{S_G2}, s{S_BLK}, 2
        s_add_u32 s{S_G2}, s{S_G2}, s{S_BP}
        s_lshl_b32 s{S_G2}, s{S_G2}, 3
        s_add_u32 s{S_G2}, s{S_G2}, s{S_NT8}
        """)
    a("s_cmp_ge_u32 s2, 256")
    a("s_cbranch_scc1 L_k1_end")
    stamp(a, 0)
    if OPT["stamps"]: a("s_memtime s[88:89]")
    if OPT.get("lt") == 7: a("s_memtime s[80:81]")
    mk(0)
    if OPT.get("lt") == 8: a("s_memtime s[80:81]")
    load_ptrs(a)
    if OPT.get("trace"):
        a("v_mov_b32 v120, 0")
        a("v_mov_b32 v167, 0")
        trace(a, 120, idx_imm=63)
    a(f"""
    v_lshrrev_b32 v1, 6, v0
    v_and_b32 v{L}, 63, v0
    s_and_b32 s3, s2, 7
    v_readfirstlane_b32 s{S_W}, v1
    s_lshr_b32 s{S_BLK}, s3, 2
    s_and_b32 s{S_G}, s3, 3
    s_lshr_b32 s3, s2, 3
    s_lshr_b32 s{S_B}, s3, 2
    s_and_b32 s{S_HP}, s3, 3
    s_and_b32 s{S_KQ}, s{S_W}, 3
    s_lshr_b32 s{S_QT}, s{S_W}, 2
    s_lshl_b32 s{S_WQB}, s{S_G}, 11
    s_lshl_b32 s3, s{S_HP}, 9
    s_add_u32 s{S_WQB}, s{S_WQB}, s3
    s_mul_i32 s{S_XB}, s{S_B}, {48*2048}
    s_cmp_ge_u32 s{S_W}, 8
    s_cbranch_scc1 L_p1_compute
    """)
    a(f"""
    v_lshrrev_b32 v5, 5, v{L}
    v_and_b32 v6, 31, v{L}
    s_and_b32 s{S_T1}, s{S_W}, 1
    s_lshl_b32 s{S_T1}, s{S_T1}, 2
    v_or_b32 v7, s{S_T1}, v5
    v_lshlrev_b32 v8, 1, v7
    v_xor_b32 v8, v8, v6
    v_lshlrev_b32 v8, 4, v8
    v_lshlrev_b32 v9, 13, v5
    v_add_u32 v2, v9, v8
    v_xor_b32 v8, 64, v8
    v_add_u32 v3, v9, v8
    s_mul_i32 s{S_T1}, s{S_W}, 6
    v_lshrrev_b32 v5, 3, v{L}
    v_add_u32 v5, s{S_T1}, v5
    v_lshrrev_b32 v6, 1, v5
    v_xor_b32 v6, v6, v{L}
    v_and_b32 v6, 7, v6
    v_lshlrev_b32 v6, 4, v6
    v_lshlrev_b32 v5, 11, v5
    v_add_u32 v4, v5, v6
    s_lshl_b32 s{S_T2}, s{S_W}, 16
    s_add_u32 s{S_WQB}, s{S_WQB}, s{S_T2}
    s_lshl_b32 s{S_T2}, s{S_W}, 12
    s_mul_i32 s{S_T3}, s{S_W}, 768
    s_add_u32 s{S_T3}, s{S_T3}, 32768
    """)
    if OPT.get("stag1", 0) == 1:
        a(f"""
        s_add_u32 s{S_PHI}, s{S_HP}, 1
        s_lshl_b32 s3, s{S_HP}, 3
        s_lshr_b32 s{S_M1}, 0x3f557fff, s3
        s_and_b32 s{S_M1}, s{S_M1}, 0xff
        s_add_u32 s{S_M1}, s{S_M1}, 1
        s_lshr_b32 s{S_M3}, 0x40342b25, s3
        s_and_b32 s{S_M3}, s{S_M3}, 0xff
        """)
    else:
        pa, pb = OPT.get("phiA", 8), OPT.get("phiB", 4)
        Mt = lambda n: -(-256 // n) if n else 1
        a(f"""
        s_cmp_eq_u32 s{S_BLK}, 0
        s_mov_b32 s{S_PHI}, {pb}
        s_cselect_b32 s{S_PHI}, {pa}, s{S_PHI}
        s_mov_b32 s{S_M1}, {Mt(pb)}
        s_cselect_b32 s{S_M1}, {Mt(pa)}, s{S_M1}
        s_mov_b32 s{S_M3}, {Mt(8-pb)}
        s_cselect_b32 s{S_M3}, {Mt(8-pa)}, s{S_M3}
        """)
    a(f"""
    s_cmp_eq_u32 s{S_BLK}, 0
    s_waitcnt lgkmcnt(0)
    """)
    if OPT.get("lt") == 7: a("s_memtime s[82:83]")
    srd(a, 8, 48, 58, 8*48*1024*2)
    srd(a, 12, 54, 64, 1024*4096*2)
    def prep_tile():
        if OPT.get("stag1", 0):
            emit_tile(a, 3, S_CNT, S_PHI, S_M1, S_M3, 8, S_B, 76, 77, 79)
        else:
            a(f"""
            s_add_u32 s3, s{S_CNT}, s{S_B}
            s_and_b32 s3, s3, 7
            s_and_b32 s76, s{S_CNT}, 8
            s_or_b32 s3, s3, s76
            """)
        a(f"""
        s_lshl_b32 s76, s3, 19
        s_add_u32 s76, s76, s{S_WQB}
        s_add_u32 s77, s{S_SLOT}, s{S_T2}
        s_lshl_b32 s79, s3, 7
        s_add_u32 s79, s79, s{S_XB}
        s_add_u32 s74, s{S_SLOT}, s{S_T3}
        s_mov_b32 m0, s77
        """)
    def fire_tile():
        for q in range(4):
            if q:
                a(f"s_add_u32 m0, s77, {q*1024}")
                a(f"s_add_u32 s76, s76, {2*8192}")
            a(f"buffer_load_dwordx4 v{2 + (q & 1)}, s[12:15], s76 offen {NTQ()}lds")
        a(f"""
        s_mov_b32 m0, s74
        s_mov_b32 exec_hi, 0xffff
        buffer_load_dwordx4 v4, s[8:11], s79 offen {NTX()}lds
        s_mov_b32 exec_hi, -1
        """)
    def issue_tile():
        prep_tile(); fire_tile()
    a(f"s_mov_b32 s{S_CNT}, 0")
    a(f"s_mov_b32 s{S_SLOT}, 0")
    issue_tile()
    a(f"""
    s_or_b32 s3, s2, s{S_W}
    s_cmp_eq_u32 s3, 0
    s_cbranch_scc0 L_notok
    s_memrealtime s[76:77]
    s_mov_b32 s16, s70
    s_mov_b32 s17, s71
    s_mov_b32 s18, 256
    s_mov_b32 s19, 0x00020000
    v_mov_b32 v10, 0
    s_waitcnt lgkmcnt(0)
    s_or_b32 s76, s76, 1
    v_mov_b32 v11, s76
    s_mov_b64 exec, 1
    buffer_store_dword v11, v10, s[16:19], 0 offen sc1
    s_mov_b64 exec, -1
    L_notok:
    """)
    if OPT.get("tlbw", 0):
        a(f"s_cmp_eq_u32 s{S_W}, {OPT.get('tlbw_wave', 0)}")
        a("s_cbranch_scc0 L_notlb")
        a(f"""
        v_lshlrev_b32 v10, 21, v{L}
        s_mov_b64 exec, 0xf
        buffer_load_dword v11, v10, s[12:15], 0 offen
        s_cmp_eq_u32 s{S_BLK}, 0
        """)
        srd(a, 16, 50, 60, 8*4*1024*128*2)
        srd(a, 20, 52, 62, 8*4*1024*128*2)
        a(f"""
        s_lshl_b32 s3, s{S_B}, 2
        s_add_u32 s3, s3, s{S_G}
        s_lshl_b32 s3, s3, 18
        s_mov_b64 exec, 1
        v_mov_b32 v10, 0
        buffer_load_dword v11, v10, s[16:19], s3 offen
        buffer_load_dword v11, v10, s[20:23], s3 offen
        s_cmp_eq_u32 s{S_BLK}, 0
        s_cselect_b32 s16, s56, s66
        s_cselect_b32 s17, s57, s67
        s_mov_b32 s18, {4096*1024*2}
        s_lshl_b32 s3, s{S_G}, 21
        buffer_load_dword v11, v10, s[16:19], s3 offen
        s_mov_b32 s16, s72
        s_mov_b32 s17, s73
        s_mov_b32 s18, {1 << 28}
        s_mov_b64 exec, -1
        v_lshlrev_b32 v10, 21, v{L}
        s_mov_b64 exec, 0x7fff
        buffer_load_dword v11, v10, s[16:19], 0 offen
        s_mov_b32 s16, s68
        s_mov_b32 s17, s69
        s_mov_b32 s18, {8*48*2048*2}
        s_mov_b64 exec, 1
        v_mov_b32 v10, 0
        buffer_load_dword v11, v10, s[16:19], 0 offen
        s_mov_b64 exec, -1
        L_notlb:
        """)
    if OPT.get("b01", 0): a("s_barrier")
    a(f"s_mov_b32 s{S_CNT}, 1")
    a(f"s_mov_b32 s{S_SLOT}, {AREA}")
    issue_tile()
    a(f"s_mov_b32 s{S_CNT}, 2")
    a(f"s_mov_b32 s{S_SLOT}, {2*AREA}")
    if OPT.get("lt") == 7: a("s_memtime s[84:85]")
    a(f"s_cmp_eq_u32 s{S_BLK}, 0")
    srd(a, 16, 50, 60, 8*4*1024*128*2)
    srd(a, 20, 52, 62, 8*4*1024*128*2)
    srd(a, 24, 72, 72, 1 << 28, sel=False)
    group_ids()
    a(f"""
    s_lshl_b32 s3, s{S_B}, 2
    s_add_u32 s3, s3, s{S_G}
    s_lshl_b32 s{S_KVB}, s3, 18
    s_lshl_b32 s3, s{S_KQ}, 16
    s_add_u32 s{S_KVB}, s{S_KVB}, s3
    v_lshrrev_b32 v5, 4, v{L}
    v_and_b32 v6, 15, v{L}
    v_lshlrev_b32 v7, 8, v5
    v_xor_b32 v8, v6, v5
    v_lshlrev_b32 v9, 4, v8
    v_add_u32 v{V_DOFF}, v7, v9
    v_xor_b32 v9, 64, v9
    v_add_u32 v{V_DOFF+1}, v7, v9
    v_xor_b32 v9, 0xc0, v9
    v_add_u32 v{V_DOFF+2}, v7, v9
    v_xor_b32 v9, 64, v9
    v_add_u32 v{V_DOFF+3 if not OPT.get("trace") else V_T2}, v7, v9
    s_cmp_eq_u32 s{S_QT}, 0
    s_cbranch_scc1 L_voff_done
    v_lshlrev_b32 v8, 2, v5
    v_xor_b32 v8, v8, v6
    v_lshlrev_b32 v8, 4, v8
    v_add_u32 v{V_DOFF}, v7, v8
    L_voff_done:
    """)
    a(f"""
    s_and_b32 s3, s{S_B}, 3
    s_add_u32 s60, s3, 1
    s_lshl_b32 s3, s3, 3
    s_lshr_b32 s61, 0x3f557fff, s3
    s_and_b32 s61, s61, 0xff
    s_add_u32 s61, s61, 1
    s_lshr_b32 s62, 0x00ff7f55, s3
    s_and_b32 s62, s62, 0xff
    s_add_u32 s62, s62, 1
    s_mov_b32 s{S_P2}, 0
    """)
    for i in range(8):
        if OPT.get("stag2", 0):
            emit_tile(a, 63, ("imm", i), 60, 61, 62, 4, S_HP, 64, 65, 79)
        else:
            R2 = OPT.get("rot2", 4)
            a(f"s_add_u32 s63, s{S_HP}, {i}")
            a(f"s_and_b32 s63, s63, {R2 - 1}")
            a(f"s_or_b32 s63, s63, {i & ~(R2 - 1)}")
            if OPT.get("kvoff"):
                a(f"s_add_u32 s63, s63, s{S_B}")
                a(f"s_and_b32 s63, s63, 7")
        a(f"s_lshl_b32 s63, s63, {4*i}")
        a(f"s_or_b32 s{S_P2}, s{S_P2}, s63")
    if OPT.get("lt") == 8:
        LT8 = (0, 1, 2, 3, 4, 6, 8, 9, 10, 13)
        for st in range(14):
            prep_tile()
            a("s_waitcnt vmcnt(5)")
            a("s_barrier")
            if st in LT8: a(f"s_memtime s[{82+2*LT8.index(st)}:{83+2*LT8.index(st)}]")
            fire_tile()
            a(f"""
            s_add_u32 s{S_SLOT}, s{S_SLOT}, {AREA}
            s_cmp_eq_u32 s{S_SLOT}, {3*AREA}
            s_cselect_b32 s{S_SLOT}, 0, s{S_SLOT}
            s_add_u32 s{S_CNT}, s{S_CNT}, 1
            """)
    else:
        a.label("L_p1_ld_loop")
        prep_tile()
        a("s_waitcnt vmcnt(5)")
        trace(a, 120, idx_sreg=S_CNT)
        if OPT.get("lt") == 7:
            for k, cnt in enumerate((2, 3, 4, 9, 10, 11, 15)):
                a(f"s_cmp_eq_u32 s{S_CNT}, {cnt}")
                a(f"s_cbranch_scc0 L_lt7_{k}")
                a(f"s_memtime s[{86+2*k}:{87+2*k}]")
                a.label(f"L_lt7_{k}")
        a("s_barrier")
        if OPT.get("trace"): a(f"s_add_u32 s94, s{S_CNT}, 16")
        trace(a, 120, idx_sreg=94)
        fire_tile()
        if OPT.get("trace"): a(f"s_add_u32 s94, s{S_CNT}, 32")
        trace(a, 120, idx_sreg=94)
        a(f"""
        s_add_u32 s{S_SLOT}, s{S_SLOT}, {AREA}
        s_cmp_eq_u32 s{S_SLOT}, {3*AREA}
        s_cselect_b32 s{S_SLOT}, 0, s{S_SLOT}
        s_add_u32 s{S_CNT}, s{S_CNT}, 1
        s_cmp_lt_u32 s{S_CNT}, 16
        s_cbranch_scc1 L_p1_ld_loop
        """)

    def tile_soff(step, dst):
        a(f"""
        s_bfe_u32 s{dst}, s{S_P2}, {(4 << 16) | (4*step)}
        s_lshl_b32 s{dst}, s{dst}, 13
        s_add_u32 s{dst}, s{dst}, s{S_KVB}
        """)
    def dma8(step, lds_off, voff_fn, srdb):
        ntk = "nt " if (OPT.get("nt_kv") or (OPT.get("ntf_kv") and step % OPT.get("rot2", 4) == 0)) else ""
        tile_soff(step, 76)
        a(f"s_mul_i32 s77, s{S_KQ}, {AREA}")
        a(f"s_add_u32 m0, s77, {lds_off}")
        for q in range(8):
            if q == 4:
                a(f"s_add_u32 m0, s77, {lds_off + 4096}")
                a(f"s_add_u32 s76, s76, 4096")
            a(f"buffer_load_dwordx4 v{voff_fn(q)}, s[{srdb}:{srdb+3}], s76 offen offset:{(q & 3) * 1024} {ntk}lds")
    def issue_k(step):
        if OPT.get("trace"):
            a(f"v_xor_b32 v{V_T2}, 64, v{V_DOFF+2}")
            dma8(step, (step % 3) * 8192, lambda q: (V_DOFF + (q & 3)) if (q & 3) != 3 else V_T2, 16)
        else:
            dma8(step, (step % 3) * 8192, lambda q: V_DOFF + (q & 3), 16)
    def issue_v(step): dma8(step, 24576 + (step % 2) * 8192, lambda q: V_DOFF, 20)
    def call_early_if(kq):
        lab = a.newlabel("L_ne")
        a(f"s_cmp_eq_u32 s{S_KQ}, {kq}")
        a(f"s_cbranch_scc0 {lab}")
        a(f"s_call_b64 s[{S_RET}:{S_RET+1}], L_early")
        a.label(lab)
    a("s_waitcnt vmcnt(5)")
    a("s_barrier")
    a(f"""
    s_and_b32 s3, s{S_KQ}, 1
    s_cmp_eq_u32 s3, 1
    s_cbranch_scc1 L_w15_early
    s_waitcnt vmcnt(0)
    s_branch L_w15_done
    L_w15_early:
    s_call_b64 s[{S_RET}:{S_RET+1}], L_early
    s_waitcnt vmcnt(8)
    L_w15_done:
    """)
    a("s_barrier")
    call_early_if(2)
    a("s_barrier")
    call_early_if(0)
    a("s_branch L_p1_join")
    a.label("L_early")
    a(f"s_cmp_eq_u32 s{S_QT}, 0")
    a("s_cbranch_scc0 L_early_v")
    issue_k(0)
    a(f"s_setpc_b64 s[{S_RET}:{S_RET+1}]")
    a.label("L_early_v")
    issue_v(0)
    a(f"s_setpc_b64 s[{S_RET}:{S_RET+1}]")

    a.label("L_p1_compute")
    P_ACC, P_A, P_B, P_WA, P_XA = 0, 48, 80, 104, 108
    a(f"""
    v_lshrrev_b32 v110, 4, v{L}
    v_and_b32 v111, 15, v{L}
    v_lshrrev_b32 v112, 2, v111
    v_and_b32 v113, 3, v111
    v_lshlrev_b32 v114, 3, v110
    v_add_u32 v114, v114, v112
    v_lshlrev_b32 v114, 9, v114
    v_lshlrev_b32 v113, 3, v113
    v_add_u32 v114, v114, v113
    v_and_b32 v115, 1, v110
    v_lshlrev_b32 v115, 2, v115
    v_or_b32 v115, v115, v112
    s_lshl_b32 s{S_T0}, s{S_KQ}, 2
    """)
    for dt in range(4):
        a(f"s_add_u32 s{S_T1}, s{S_T0}, {dt}")
        a(f"v_xor_b32 v116, s{S_T1}, v115")
        a(f"v_lshlrev_b32 v116, 5, v116")
        a(f"v_add_u32 v{P_WA+dt}, v114, v116")
    a(f"""
    v_lshrrev_b32 v112, 1, v111
    v_xor_b32 v112, v112, v110
    v_lshlrev_b32 v112, 4, v112
    v_lshlrev_b32 v113, 7, v111
    v_add_u32 v112, v112, v113
    v_add_u32 v{P_XA}, 32768, v112
    v_xor_b32 v{P_XA+1}, 64, v{P_XA}
    """)
    for i in range(48):
        a(f"v_mov_b32 v{P_ACC+i}, 0")
    for i in range(4):
        a(f"v_mov_b32 v{V_DOFF+i}, 0")
    a(f"s_waitcnt lgkmcnt(0)")
    srd(a, 24, 72, 72, 1 << 28, sel=False)
    a(f"s_cmp_eq_u32 s{S_BLK}, 0")
    srd(a, 16, 50, 60, 8*4*1024*128*2)
    srd(a, 20, 52, 62, 8*4*1024*128*2)
    if OPT.get("b01", 0) and OPT.get("xpf_late"): a("s_barrier")
    if OPT.get("xpf", 0):
        a(f"s_cmp_eq_u32 s{S_BLK}, 0")
        srd(a, 8, 48, 58, 8*48*1024*2)
        a(f"""
        s_cmp_eq_u32 s{S_KQ}, 3
        s_cbranch_scc1 L_noxpf
        s_mul_i32 s3, s{S_HP}, 24576
        s_add_u32 s3, s3, s{S_XB}
        s_lshl_b32 s76, s{S_KQ}, 13
        s_add_u32 s3, s3, s76
        v_lshlrev_b32 v126, 7, v{L}
        v_add_u32 v126, 60, v126
        buffer_load_dwordx2 v[128:129], v126, s[8:11], s3 offen
        L_noxpf:
        """)
    if OPT.get("b01", 0) and not OPT.get("xpf_late"): a("s_barrier")
    group_ids()
    a(f"""
    s_mov_b32 s16, s70
    s_mov_b32 s17, s71
    s_mov_b32 s18, 256
    s_mov_b32 s19, 0x00020000
    s_mov_b32 s40, 0
    v_mov_b32 v126, 0
    v_mov_b32 v127, 1
    """)
    a(f"s_mov_b32 s{S_KVB}, 0")
    a(f"s_mov_b32 s{S_CNT}, 0")
    a(f"s_mov_b32 s{S_SLOT}, 0")
    def rd_ks(ks):
        if OPT.get("nocomp"): return
        for dt in range(4):
            for hf in range(2):
                r = P_A + ks*16 + dt*4 + hf*2
                a(f"ds_read_b64_tr_b16 v[{r}:{r+1}], v{P_WA+dt} offset:{ks*16384 + hf*2048}")
    def rd_x(ks):
        if OPT.get("nocomp"): return
        for st in range(3):
            r = P_B + ks*12 + st*4
            a(f"ds_read_b128 v[{r}:{r+3}], v{P_XA+ks} offset:{st*2048}")
    def mm(ks):
        if OPT.get("nocomp"): return
        for dt in range(4):
            for st in range(3):
                ac = P_ACC + (dt*3+st)*4
                ra = P_A + ks*16 + dt*4; rb = P_B + ks*12 + st*4
                a(f"v_mfma_f32_16x16x32_bf16 v[{ac}:{ac+3}], v[{ra}:{ra+3}], v[{rb}:{rb+3}], v[{ac}:{ac+3}]")
    a.label("L_p1_c_loop")
    trace(a, 120, idx_sreg=S_CNT)
    a("s_barrier")

    if OPT.get("trace"): a(f"s_add_u32 s94, s{S_CNT}, 16")
    trace(a, 120, idx_sreg=94)
    rd_x(0); rd_ks(0)
    a(f"s_cmp_eq_u32 s{S_CNT}, 0")
    a("s_cbranch_scc1 L_p1_c_skip")
    mm(1)
    a.label("L_p1_c_skip")
    rd_x(1); rd_ks(1)
    a("s_waitcnt lgkmcnt(11)")
    mm(0)
    a(f"""
    s_add_u32 s{S_SLOT}, s{S_SLOT}, 1
    s_cmp_eq_u32 s{S_SLOT}, 3
    s_cselect_b32 s{S_SLOT}, 0, s{S_SLOT}
    s_mov_b32 s3, {AREA}
    s_cselect_b32 s3, {(-2*AREA) & 0xffffffff}, s3
    """)
    for r in list(range(P_WA, P_WA+4)) + [P_XA, P_XA+1]:
        a(f"v_add_u32 v{r}, s3, v{r}")
    a(f"""
    s_add_u32 s{S_CNT}, s{S_CNT}, 1
    s_cmp_lt_u32 s{S_CNT}, 16
    s_waitcnt lgkmcnt(0)
    s_cbranch_scc1 L_p1_c_loop
    s_barrier
    """)
    mm(1)
    a(f"""
    s_mov_b32 s{S_C}, {f2u(C_SCALE)}
    v_lshrrev_b32 v110, 4, v{L}
    v_and_b32 v111, 15, v{L}
    v_lshlrev_b32 v112, 8, v111
    v_and_b32 v113, 1, v110
    v_lshlrev_b32 v113, 3, v113
    v_add_u32 v112, v112, v113
    v_lshrrev_b32 v113, 1, v110
    s_and_b32 s{S_T0}, s{S_KQ}, 1
    s_lshl_b32 s{S_T0}, s{S_T0}, 3
    v_add_u32 v113, s{S_T0}, v113
    s_lshr_b32 s{S_T1}, s{S_KQ}, 1
    s_cmp_eq_u32 s{S_T1}, 0
    s_mov_b32 s76, {2*AREA+16384+4096}
    s_mov_b32 s77, {3*AREA+16384}
    s_mov_b32 s78, {3*AREA+16384+4096}
    s_cselect_b32 s76, {1*AREA+16384}, s76
    s_cselect_b32 s77, {1*AREA+16384+4096}, s77
    s_cselect_b32 s78, {2*AREA+16384}, s78
    """)
    for dt in range(4):
        a(f"v_add_u32 v114, {2*dt}, v113")
        a(f"v_xor_b32 v114, v114, v111")
        a(f"v_lshlrev_b32 v114, 4, v114")
        a(f"v_add_u32 v114, v114, v112")
        for st in range(3):
            ac = P_ACC + (dt*3+st)*4
            t = 116 + 2*(st & 1)
            for e in range(4): a(f"v_mul_f32 v{ac+e}, s{S_C}, v{ac+e}")
            a(f"v_cvt_pk_bf16_f32 v{t}, v{ac}, v{ac+1}")
            a(f"v_cvt_pk_bf16_f32 v{t+1}, v{ac+2}, v{ac+3}")
            a(f"v_add_u32 v{123+st}, s{76+st}, v114")
            a(f"ds_write_b64 v{123+st}, v[{t}:{t+1}]")
    a("s_waitcnt lgkmcnt(0)")

    a.label("L_p1_join")
    trace(a, 120, idx_imm=60)
    if OPT.get("lt") == 7: a("s_memtime s[100:101]")
    a("s_barrier")
    mk(1)
    trace(a, 120, idx_imm=61)
    trace_dump(a, 120, 121, S_W, V_LANE, 0)
    if OPT.get("trace"): a("v_mov_b32 v167, 0")
    stamp(a, 1)
    a(f"""
    s_mov_b32 s{S_TC}, {f2u(T_HI)}
    s_mov_b32 s{S_NC}, {f2u(-T_LO)}
    s_mov_b64 s[{S_SLOW}:{S_SLOW+1}], 0
    v_and_b32 v{V_T0}, 31, v{L}
    v_lshlrev_b32 v{V_T0}, 8, v{V_T0}
    v_lshrrev_b32 v{V_T1}, 5, v{L}
    v_and_b32 v{V_T2}, 15, v{L}
    v_xor_b32 v{V_T1}, v{V_T1}, v{V_T2}
    v_lshlrev_b32 v{V_T1}, 4, v{V_T1}
    v_add_u32 v{V_T0}, v{V_T0}, v{V_T1}
    s_add_u32 s3, s{S_QT}, 1
    s_mul_i32 s3, s3, {AREA}
    s_add_u32 s3, s3, 16384
    s_mul_i32 s76, s{S_KQ}, {AREA}
    """)
    for st8 in range(8):
        a(f"v_xor_b32 v{V_T1}, {st8 << 5}, v{V_T0}")
        a(f"v_add_u32 v{V_F+st8}, s3, v{V_T1}")
        a(f"v_add_u32 v{V_KA+st8}, s76, v{V_T1}")
        a(f"ds_read_b128 v[{V_Q+4*st8}:{V_Q+4*st8+3}], v{V_F+st8}")
    a(f"""
    v_lshrrev_b32 v{V_T0}, 5, v{L}
    v_lshlrev_b32 v{V_T0}, 2, v{V_T0}
    v_bfe_u32 v{V_T1}, v{L}, 2, 2
    v_add_u32 v{V_T0}, v{V_T0}, v{V_T1}
    v_lshlrev_b32 v{V_T0}, 8, v{V_T0}
    v_bfe_u32 v{V_T2}, v{L}, 4, 1
    v_lshlrev_b32 v{V_T2}, 5, v{V_T2}
    v_add_u32 v{V_T0}, v{V_T0}, v{V_T2}
    v_and_b32 v{V_T2}, 3, v{L}
    v_lshlrev_b32 v{V_T2}, 3, v{V_T2}
    v_add_u32 v{V_T0}, v{V_T0}, v{V_T2}
    s_add_u32 s76, s76, 24576
    v_add_u32 v{V_T0}, s76, v{V_T0}
    """)
    for j in range(4):
        a(f"s_add_u32 s3, s{S_KQ}, {j}")
        a(f"s_and_b32 s3, s3, 3")
        a(f"v_xor_b32 v{V_T2}, s3, v{V_T1}")
        a(f"v_lshlrev_b32 v{V_T2}, 6, v{V_T2}")
        a(f"v_add_u32 v{V_VA+j}, v{V_T0}, v{V_T2}")
    for i in range(64):
        a(f"v_mov_b32 v{V_O+i}, 0")
    a(f"""
    v_mov_b32 v{V_M}, 0
    v_mov_b32 v{V_THR}, s{S_TC}
    v_mov_b32 v{V_L}, 0
    s_waitcnt lgkmcnt(0)
    """)

    S = V_S
    def tr2(idx):
        lt = OPT.get("lt")
        if lt == 9:
            if idx == 1: mk(2)
            if idx == 17: mk(3)
            if idx == 40: mk(4)
            return
        if lt and idx < 36:
            i, k = idx // 4, idx % 4
            if (lt == 1 and k == 1) or (lt == 2 and k == 0) or (lt == 3 and k == 2):
                a(f"s_memtime s[{80+2*i}:{81+2*i}]")
        if lt and lt not in (6, 7, 8, 11) and idx == 41: a("s_memtime s[98:99]")
        if lt and lt not in (6, 7, 8, 11) and idx == 40: a("s_memtime s[100:101]")
        if not OPT.get("trace"): return
        trace(a, 120 if False else 167, idx_imm=idx)
    def rd_k(step, st8):
        a(f"ds_read_b128 v[{V_F+4*st8}:{V_F+4*st8+3}], v{V_KA+st8} offset:{(step % 3) * 8192}")
    def rd_v(step, f):
        t, j = f // 4, f % 4
        for hf in range(2):
            r = V_F + 4*f + 2*hf
            a(f"ds_read_b64_tr_b16 v[{r}:{r+1}], v{V_VA+j} offset:{(step % 2) * 8192 + (16*t + 8*hf)*256}")
    def qk(step, pending_k):
        for st8 in range(8):
            a(f"s_waitcnt lgkmcnt({7 - st8 if st8 < 2 else min(15, 7 - st8 + 2*(st8-1))})")
            c = "0" if st8 == 0 else f"v[{S}:{S+15}]"
            a(f"v_mfma_f32_32x32x16_bf16 v[{S}:{S+15}], v[{V_F+4*st8}:{V_F+4*st8+3}], v[{V_Q+4*st8}:{V_Q+4*st8+3}], {c}")
            if st8 >= 1: rd_v(step, st8 - 1)
        rd_v(step, 7)
    def softmax_half(half):
        for i in range(8*half, 8*half+8):
            a(f"v_exp_f32 v{S+i}, v{S+i}")
        for i in range(8*half, 8*half+8):
            a(f"v_add_f32 v{V_L}, v{V_L}, v{S+i}")
        for j in range(4*half, 4*half+4):
            a(f"v_cvt_pk_bf16_f32 v{S+j}, v{S+2*j}, v{S+2*j+1}")
    def softmax_max(lab, first=False):
        a(f"v_max3_f32 v{V_T0}, v{S}, v{S+1}, v{S+2}")
        a(f"v_max3_f32 v{V_T1}, v{S+3}, v{S+4}, v{S+5}")
        a(f"v_max3_f32 v{V_T0}, v{V_T0}, v{S+6}, v{S+7}")
        a(f"v_max3_f32 v{V_T1}, v{V_T1}, v{S+8}, v{S+9}")
        a(f"v_max3_f32 v{V_T0}, v{V_T0}, v{S+10}, v{S+11}")
        a(f"v_max3_f32 v{V_T1}, v{V_T1}, v{S+12}, v{S+13}")
        a(f"v_max3_f32 v{V_T0}, v{V_T0}, v{S+14}, v{S+15}")
        a(f"v_max_f32 v{V_T0}, v{V_T0}, v{V_T1}")
        a(f"v_mov_b32 v{V_T1}, v{V_T0}")
        a(f"v_permlane32_swap_b32 v{V_T0}, v{V_T1}")
        a(f"v_max_f32 v{V_T0}, v{V_T0}, v{V_T1}")
        a(f"v_cmp_gt_f32 vcc, v{V_T0}, v{V_THR}")
        if first:
            a(f"v_cmp_gt_f32 s[52:53], s{S_NC}, v{V_T0}")
            a(f"s_or_b64 vcc, vcc, s[52:53]")
        a(f"s_or_b64 s[52:53], vcc, s[{S_SLOW}:{S_SLOW+1}]")
        a(f"s_cbranch_scc0 {lab}")
        a(f"s_call_b64 s[{S_RET}:{S_RET+1}], L_slow{'_first' if first else ''}")
        a.label(lab)
    def pv_mfma(f):
        t, j = f // 4, f % 4
        o = V_O + 16*j
        a(f"v_mfma_f32_32x32x16_bf16 v[{o}:{o+15}], v[{V_F+4*f}:{V_F+4*f+3}], v[{S+4*t}:{S+4*t+3}], v[{o}:{o+15}]")
    def pv_then_k(next_step):
        for f in range(8):
            pv_mfma(f)
            if next_step is not None and f >= 1: rd_k(next_step, f - 1)
        if next_step is not None: rd_k(next_step, 7)

    PR = OPT.get("prio", 1)
    def prio(p):
        if PR: a(f"s_setprio {p}")
    a(f"s_cmp_eq_u32 s{S_QT}, 1")
    a("s_cbranch_scc1 L_typeA")
    a(f"s_cmp_eq_u32 s{S_QT}, 2")
    a("s_cbranch_scc1 L_typeC")
    for i in range(8):
        a(f"s_waitcnt vmcnt({8 if 0 < i < 7 else 0})")
        tr2(4*i)
        a("s_barrier")
        tr2(4*i+1)
        prio(1)
        if i == 0:
            for st8 in range(8): rd_k(0, st8)
        else:
            pv_then_k(i)
        if i == 0: issue_k(1)
        if i + 2 < 8: issue_k(i + 2)
        qk(i, 0)
        tr2(4*i+2)
        prio(2)
        softmax_max(f"L_D{i}", first=(i == 0))
        softmax_half(0); softmax_half(1)
        a("s_waitcnt lgkmcnt(0)")
    tr2(32)
    a("s_barrier")
    pv_then_k(None)
    a("s_branch L_merge")
    a.label("L_typeA")
    a(f"""
    s_cmp_eq_u32 s{S_W}, 4
    s_cbranch_scc0 L_notokrd4
    s_mov_b32 s8, s70
    s_mov_b32 s9, s71
    s_mov_b32 s10, 256
    s_mov_b32 s11, 0x00020000
    v_mov_b32 v{V_T0}, 0
    s_mov_b32 s{S_CNT}, 0
    L_tokspin4:
    buffer_load_dword v{V_T1}, v{V_T0}, s[8:11], 0 offen sc1
    s_waitcnt vmcnt(0)
    v_readfirstlane_b32 s40, v{V_T1}
    s_add_u32 s{S_CNT}, s{S_CNT}, 1
    s_cmp_lt_u32 s{S_CNT}, {SPIN_MAX}
    s_cbranch_scc0 L_notokrd4
    s_cmp_eq_u32 s40, 0
    s_cbranch_scc1 L_tokspin4
    L_notokrd4:
    """)
    for i in range(8):
        a(f"s_waitcnt vmcnt(0)")
        tr2(4*i)
        a("s_barrier")
        tr2(4*i+1)
        prio(3)
        for st8 in range(8): rd_k(i, st8)
        if i + 1 < 8: issue_v(i + 1)
        qk(i, 0)
        tr2(4*i+2)
        prio(2)
        softmax_max(f"L_A{i}", first=(i == 0))
        softmax_half(0); softmax_half(1)
        prio(0)
        for f in range(8):
            a(f"s_waitcnt lgkmcnt({min(15, 2*(7-f))})")
            pv_mfma(f)
    tr2(32)
    a("s_barrier")
    a("s_branch L_merge")
    a.label("L_typeC")
    a(f"s_cmp_eq_u32 s{S_BLK}, 0")
    srd(a, 12, 56, 66, 4096*1024*2)
    a(f"""
    v_lshrrev_b32 v{V_DOFF+1}, 1, v{L}
    v_lshlrev_b32 v{V_DOFF+1}, 11, v{V_DOFF+1}
    v_and_b32 v{V_DOFF+2}, 1, v{L}
    v_lshlrev_b32 v{V_DOFF+2}, 7, v{V_DOFF+2}
    v_add_u32 v{V_DOFF+1}, v{V_DOFF+1}, v{V_DOFF+2}
    v_add_u32 v{V_DOFF+1}, 60, v{V_DOFF+1}
    s_lshl_b32 s45, s{S_G}, 10
    s_lshl_b32 s3, s{S_BP}, 8
    s_add_u32 s45, s45, s3
    s_lshl_b32 s3, s{S_KQ}, 6
    s_add_u32 s45, s45, s3
    s_lshl_b32 s45, s45, 11
    s_lshl_b32 s3, s{S_NT8}, 8
    s_add_u32 s45, s45, s3
    """)
    a(f"""
    s_cmp_eq_u32 s{S_W}, 8
    s_cbranch_scc0 L_notokrd
    v_mov_b32 v{V_DOFF}, 0
    s_mov_b32 s{S_CNT}, 0
    L_tokspin:
    buffer_load_dword v{V_DOFF+3}, v{V_DOFF}, s[16:19], 0 offen sc1
    s_waitcnt vmcnt(0)
    v_readfirstlane_b32 s40, v{V_DOFF+3}
    s_add_u32 s{S_CNT}, s{S_CNT}, 1
    s_cmp_lt_u32 s{S_CNT}, {SPIN_MAX}
    s_cbranch_scc0 L_notokrd
    s_cmp_eq_u32 s40, 0
    s_cbranch_scc1 L_tokspin
    L_notokrd:
    """)
    PF_AT = {}
    PF_AT.setdefault(OPT.get("pf0", 7), []).append(0)
    PF_AT.setdefault(OPT.get("pf1", 7), []).append(1)
    for i in range(9):
        tr2(4*i)
        a("s_barrier")
        tr2(4*i+1)
        prio(2)
        if i in PF_AT and OPT.get("wopf", 1) and OPT.get("pf_early", 1):
            for e in PF_AT[i]:
                a(f"s_add_u32 s3, s45, {e * 32 * 2048}")
                a(f"buffer_load_dwordx2 v[{V_DOFF+2}:{V_DOFF+3}], v{V_DOFF+1}, s[12:15], s3 offen {NTWO()}")
        if i == 0:
            for st8 in range(8): rd_k(0, st8)
        else:
            softmax_max(f"L_C{i}", first=(i == 1))
            softmax_half(0); softmax_half(1)
            if i in PF_AT and OPT.get("wopf", 1) and not OPT.get("pf_early", 1):
                for e in PF_AT[i]:
                    a(f"s_add_u32 s3, s45, {e * 32 * 2048}")
                    a(f"buffer_load_dwordx2 v[{V_DOFF+2}:{V_DOFF+3}], v{V_DOFF+1}, s[12:15], s3 offen {NTWO()}")
            pv_then_k(i if i < 8 else None)
        if i < 8:
            prio(1)
            qk(i, 0)
            a("s_waitcnt lgkmcnt(0)")
    def spin(label, load_lines, cmp_val, vreg, sleep=1):
        a(f"s_mov_b32 s{S_CNT}, 0")
        a.label(label)
        a(load_lines)
        a("s_waitcnt vmcnt(0)")
        a(f"v_cmp_ne_u32 vcc, s3, v{vreg}" if cmp_val is None else f"v_cmp_ne_u32 vcc, {cmp_val}, v{vreg}")
        a(f"s_cbranch_vccz {label}_ok")
        a(f"s_add_u32 s{S_CNT}, s{S_CNT}, 1")
        a(f"s_cmp_lt_u32 s{S_CNT}, {SPIN_MAX}")
        a(f"s_sleep {sleep}")
        a(f"s_cbranch_scc1 {label}")
        a.label(f"{label}_ok")

    def gen_tail():
        T_ACC, T_FR, T_AA, T_BA, T_DOFF, T_X = 0, 48, 112, 113, 114, 116
        S_WOB, S_OB, S_ST = 45, 46, 47
        NW, NO = 7, 4
        OB0 = NW * 16384
        OWN = 4 * 16384
        def ts(i):
            if OPT.get("lt") == 5: a(f"s_memtime s[{80+2*i}:{81+2*i}]")
            m = {1: 6, 2: 7, 3: 8, 5: 9, 6: 10}
            if i in m: mk(m[i])
        ts(0)
        a(f"s_cmp_eq_u32 s{S_BLK}, 0")
        srd(a, 12, 56, 66, 4096*1024*2)
        srd(a, 8, 68, 68, 8*48*2048*2, sel=False)
        a(f"""
        s_lshl_b32 s{S_WOB}, s{S_G}, 21
        s_lshl_b32 s3, s{S_NT8}, 8
        s_add_u32 s{S_WOB}, s{S_WOB}, s3
        s_mul_i32 s{S_OB}, s{S_G1}, {192*1024}
        s_add_u32 s{S_OB}, s{S_OB}, {O_OFF}
        s_lshl_b32 s74, s{S_HP}, 2
        s_cmp_ge_u32 s{S_W}, 8
        s_cbranch_scc1 L_t_compute
        s_cmp_ge_u32 s{S_W}, 4
        s_cbranch_scc1 L_t_oload
        """)
        WR = 0
        LD, LX = 150, 152
        a(f"""
        v_lshrrev_b32 v{LX}, 4, v{L}
        v_and_b32 v{LX+1}, 15, v{L}
        v_lshlrev_b32 v{LX+2}, 2, v{LX}
        v_xor_b32 v{LX+2}, v{LX+2}, v{LX+1}
        v_lshlrev_b32 v{LX+2}, 4, v{LX+2}
        v_lshlrev_b32 v{LX}, 11, v{LX}
        v_add_u32 v{LD}, v{LX}, v{LX+2}
        s_lshl_b32 s{S_T0}, s{S_W}, 15
        s_add_u32 s{S_WOB}, s{S_WOB}, s{S_T0}
        s_lshl_b32 s{S_T2}, s{S_W}, 12
        v_lshlrev_b32 v{LD+1}, 4, v{L}
        v_add_u32 v{LD+1}, s{S_T2}, v{LD+1}
        """)
        def wo_addr(st):
            a(f"s_add_u32 s3, s74, {st}")
            a(f"s_and_b32 s3, s3, 15")
            a(f"s_lshl_b32 s76, s3, 17")
            a(f"s_add_u32 s76, s76, s{S_WOB}")
        NREG = OPT.get("wo_reg", 0)
        def issue_wo(st):
            wo_addr(st)
            for q in range(4):
                if q: a(f"s_add_u32 s76, s76, {4*2048}")
                if NW <= st < NW + NREG:
                    r = WR + ((st - NW)*4 + q)*4
                    a(f"buffer_load_dwordx4 v[{r}:{r+3}], v{LD}, s[12:15], s76 offen")
                else:
                    a(f"s_add_u32 m0, s{S_T2}, {(st % NW)*16384 + q*1024}")
                    a(f"buffer_load_dwordx4 v{LD}, s[12:15], s76 offen lds")
        NE = OPT.get("wo_early", 2)
        for st in range(NE): issue_wo(st)
        a(f"s_waitcnt vmcnt({4*NE})")
        ts(1)
        a("s_barrier")
        a(f"s_sleep {OPT.get('wo_delay', 12)}")
        for st in range(NE, NW + NREG): issue_wo(st)
        ts(2)
        issued = list(range(NW + NREG))
        for st in range(16):
            if not (NW <= st < NW + NREG):
                a(f"s_waitcnt vmcnt({4 * (len(issued) - 1 - issued.index(st))})")
            a("s_waitcnt lgkmcnt(0)")
            a("s_barrier")
            k = st + NW - 2
            if st >= 2 and k <= 15:
                if NW <= k < NW + NREG:
                    a(f"s_waitcnt vmcnt({4 * (len(issued) - 1 - issued.index(k))})")
                    off = (k % NW) * 16384
                    if off + 3072 > 65535:
                        a(f"v_add_u32 v{LD+2}, {off}, v{LD+1}")
                    for q in range(4):
                        r = WR + ((k - NW)*4 + q)*4
                        if off + 3072 > 65535:
                            a(f"ds_write_b128 v{LD+2}, v[{r}:{r+3}] offset:{q*1024}")
                        else:
                            a(f"ds_write_b128 v{LD+1}, v[{r}:{r+3}] offset:{off + q*1024}")
                else:
                    issue_wo(k); issued.append(k)
        ts(3)
        a("s_branch L_t_join")
        a.label("L_t_oload")
        a(f"s_cmp_eq_u32 s{S_W}, 4")
        a("s_cbranch_scc1 L_t_oload1")
        a("s_waitcnt vmcnt(0)")
        ts(1)
        a("s_barrier")
        ts(2)
        for st in range(16): a("s_barrier")
        ts(3)
        a("s_branch L_t_join")
        a.label("L_t_oload1")
        a(f"""
        v_lshlrev_b32 v{T_DOFF+1}, 4, v{L}
        v_and_b32 v{T_X+2}, 7, v{L}
        v_lshlrev_b32 v{T_X+2}, 2, v{T_X+2}
        v_mov_b32 v{T_X+1}, 0
        s_lshl_b32 s{S_T0}, s{S_G1}, 7
        s_add_u32 s{S_T0}, s{S_T0}, {FLAG_OFF}
        s_waitcnt vmcnt(0)
        """)
        POLL = f"buffer_load_dword v{T_X+1}, v{T_X+2}, s[24:27], s{S_T0} offen sc1"
        def check():
            a(f"v_cmp_eq_u32 vcc, s40, v{T_X+1}")
            a(f"s_and_b32 s77, vcc_lo, s79")
            a(f"s_cmp_eq_u32 s77, s79")
        def issue_o(st):
            if st % 4 == 0:
                lab = f"L_og{st}"
                a(f"s_add_u32 s3, s74, {st}")
                a(f"s_and_b32 s3, s3, 15")
                a(f"s_lshr_b32 s3, s3, 2")
                a(f"s_lshl_b32 s79, 0x11, s3")
                if st:
                    a("s_waitcnt vmcnt(24)")
                    check()
                    a(f"s_cbranch_scc1 {lab}_ok")
                a(f"s_mov_b32 s{S_CNT}, 0")
                a.label(lab)
                a(POLL)
                a("s_waitcnt vmcnt(0)")
                check()
                a(f"s_cbranch_scc1 {lab}_ok")
                a(f"s_add_u32 s{S_CNT}, s{S_CNT}, 1")
                a(f"s_cmp_lt_u32 s{S_CNT}, {SPIN_MAX}")
                a(f"s_sleep {OPT.get('psleep', 2)}")
                a(f"s_cbranch_scc1 {lab}")
                a.label(f"{lab}_ok")
                m11({0: 2, 4: 5, 8: 7, 12: 9}[st])
            a(f"s_add_u32 s3, s74, {st}")
            a(f"s_and_b32 s3, s3, 15")
            a(f"s_mul_i32 s76, s3, 12288")
            a(f"s_add_u32 s76, s76, s{S_OB}")
            for g4 in range(3):
                a(f"s_mov_b32 m0, {OB0 + (st % NO)*12288 + g4*4096}")
                if g4: a(f"s_add_u32 s76, s76, 4096")
                for q in range(4):
                    a(f"buffer_load_dwordx4 v{T_DOFF+1}, s[24:27], s76 offen offset:{q*1024} {OSC()}lds")
            if st % 4 == 1 and st < 12: a(POLL)
        def m11(i):
            if OPT.get("lt") == 11: a(f"s_memtime s[{80+2*i}:{81+2*i}]")
        ts(1)
        m11(0)
        a("s_barrier")
        m11(1)
        if OPT.get("pdelay", 0): a(f"s_sleep {OPT.get('pdelay', 0)}")
        for st in range(NO): issue_o(st)
        ts(2)
        m11(3)
        for st in range(16):
            last = min(15, max(NO - 1, st + NO - 3))
            a(f"s_waitcnt vmcnt({12 * (last - st)})")
            a("s_barrier")
            if st in (0, 4, 8, 15): m11({0: 4, 4: 6, 8: 8, 15: 10}[st])
            if st >= 2 and st + NO - 2 <= 15 and not OPT.get("t_noo"): issue_o(st + NO - 2)
        ts(3)
        a("s_branch L_t_join")
        a.label("L_t_compute")
        a(f"""
        v_lshrrev_b32 v{T_X}, 5, v{L}
        v_lshlrev_b32 v{T_X}, 3, v{T_X}
        v_bfe_u32 v{T_X+1}, v{L}, 2, 2
        v_add_u32 v{T_X}, v{T_X}, v{T_X+1}
        v_lshlrev_b32 v{T_X}, 8, v{T_X}
        v_bfe_u32 v{T_X+2}, v{L}, 4, 1
        v_lshlrev_b32 v{T_X+2}, 5, v{T_X+2}
        v_add_u32 v{T_X}, v{T_X}, v{T_X+2}
        v_and_b32 v{T_X+2}, 3, v{L}
        v_lshlrev_b32 v{T_X+2}, 3, v{T_X+2}
        v_add_u32 v{T_X}, v{T_X}, v{T_X+2}
        v_xor_b32 v{T_X+2}, s{S_KQ}, v{T_X+1}
        v_lshlrev_b32 v{T_X+2}, 6, v{T_X+2}
        v_add_u32 v{T_AA}, v{T_X}, v{T_X+2}
        v_lshlrev_b32 v{T_BA}, 4, v{L}
        v_add_u32 v{T_BA}, {OB0}, v{T_BA}
        """)
        for i in range(48):
            a(f"v_mov_b32 v{T_ACC+i}, 0")
        a("s_waitcnt vmcnt(0)")
        ts(1)
        a("s_barrier")
        a(f"s_cmp_eq_u32 s{S_W}, 8")
        a("s_cbranch_scc0 L_t_nopoll1")
        a("s_setprio 3")
        a(f"""
        s_lshl_b32 s3, s{S_G1}, 7
        s_add_u32 s76, s3, {FLAG_OFF}
        s_lshl_b32 s3, s{S_NT8}, 2
        s_add_u32 s77, s76, s3
        v_mov_b32 v{T_X}, 0
        v_mov_b32 v{T_X+1}, s40
        s_mov_b64 exec, 1
        buffer_store_dword v{T_X+1}, v{T_X}, s[24:27], s77 offen sc1
        s_mov_b64 exec, -1
        """)
        a("s_setprio 0")
        a.label("L_t_nopoll1")
        ts(2)
        def rd_list(j):
            b = T_FR + 16*j
            out = []
            for hf in range(2):
                out.append(f"ds_read_b64_tr_b16 v[{b+2*hf}:{b+2*hf+1}], v{T_AA} offset:{j*4096 + hf*1024}")
            for m in range(3):
                out.append(f"ds_read_b128 v[{b+4+4*m}:{b+7+4*m}], v{T_BA} offset:{(j*3+m)*1024}")
            return out
        def mm_list(j):
            b = T_FR + 16*j
            return [f"v_mfma_f32_32x32x16_bf16 v[{T_ACC+16*m}:{T_ACC+16*m+15}], v[{b}:{b+3}], v[{b+4+4*m}:{b+7+4*m}], v[{T_ACC+16*m}:{T_ACC+16*m+15}]" for m in range(3)]
        def mm3(j):
            for x in mm_list(j): a(x)
        def weave(mm, rd):
            if OPT.get("t_nord"): rd = ["s_nop 0"] * 5
            if OPT.get("t_nomm"): mm = ["s_nop 0"] * 3
            groups = [rd[0:3], rd[3:4], rd[4:5]]
            for x, g in zip(mm, groups):
                a(x)
                for y in g: a(y)
        a(f"s_mov_b32 s{S_ST}, 0")
        a(f"s_mov_b32 s{S_SLOT}, 0")
        a.label("L_t_loop")
        if OPT.get("lt") == 6:
            for k, st in enumerate(LT6):
                a(f"s_cmp_eq_u32 s{S_ST}, {st}")
                a(f"s_cbranch_scc0 L_lt6_{k}")
                a(f"s_memtime s[{80+2*k}:{81+2*k}]")
                a.label(f"L_lt6_{k}")
        a("s_barrier")
        a(f"s_cmp_eq_u32 s{S_ST}, 0")
        a("s_cbranch_scc0 L_t_left")
        for y in rd_list(0) + rd_list(1): a(y)
        a("s_branch L_t_skip")
        a.label("L_t_left")
        a("s_waitcnt lgkmcnt(5)")
        weave(mm_list(2), rd_list(0))
        a("s_waitcnt lgkmcnt(5)")
        weave(mm_list(3), rd_list(1))
        a.label("L_t_skip")
        a("s_waitcnt lgkmcnt(5)")
        weave(mm_list(0), rd_list(2))
        a("s_waitcnt lgkmcnt(5)")
        weave(mm_list(1), rd_list(3))
        a(f"""
        s_add_u32 s{S_SLOT}, s{S_SLOT}, 1
        s_cmp_eq_u32 s{S_SLOT}, {NW}
        s_cselect_b32 s{S_SLOT}, 0, s{S_SLOT}
        s_mov_b32 s3, 16384
        s_cselect_b32 s3, {(-(NW-1)*16384) & 0xffffffff}, s3
        v_add_u32 v{T_AA}, s3, v{T_AA}
        s_add_u32 s{S_ST}, s{S_ST}, 1
        s_and_b32 s3, s{S_ST}, 3
        s_mov_b32 s3, 12288
        s_cselect_b32 s3, s3, {(-3*12288) & 0xffffffff}
        v_add_u32 v{T_BA}, s3, v{T_BA}
        s_cmp_lt_u32 s{S_ST}, 16
        s_cbranch_scc1 L_t_loop
        s_waitcnt lgkmcnt(0)
        """)
        mm3(2); mm3(3)
        ts(3)
        a(f"s_cmp_eq_u32 s{S_KQ}, s{S_G}")
        a("s_cbranch_scc0 L_t_pub")
        a(f"v_lshlrev_b32 v{T_X}, 4, v{L}")
        a(f"v_add_u32 v{T_X}, {OWN}, v{T_X}")
        for m in range(3):
            for rq in range(4):
                r = T_ACC + 16*m + 4*rq
                a(f"ds_write_b128 v{T_X}, v[{r}:{r+3}] offset:{(m*4+rq)*1024}")
        a("s_waitcnt lgkmcnt(0)")
        a("s_branch L_t_join")
        a.label("L_t_pub")
        a(f"""
        s_lshl_b32 s3, s{S_G2}, 2
        s_add_u32 s3, s3, s{S_KQ}
        s_lshl_b32 s3, s3, 2
        s_add_u32 s3, s3, s{S_G}
        s_mul_i32 s76, s3, 6144
        s_add_u32 s76, s76, {PART_OFF}
        v_lshlrev_b32 v{T_X}, 3, v{L}
        """)
        for m in range(3):
            for rq in range(4):
                r = T_ACC + 16*m + 4*rq
                d = T_FR + 2*(m*4+rq)
                a(f"v_cvt_pk_bf16_f32 v{d}, v{r}, v{r+1}")
                a(f"v_cvt_pk_bf16_f32 v{d+1}, v{r+2}, v{r+3}")
        for m in range(3):
            for rq in range(4):
                d = T_FR + 2*(m*4+rq)
                off = (m*4+rq)*512
                if off == 4096: a("s_add_u32 s76, s76, 4096")
                a(f"buffer_store_dwordx2 v[{d}:{d+1}], v{T_X}, s[24:27], s76 offen offset:{off % 4096} sc1")
        a("s_waitcnt vmcnt(0)")
        a.label("L_t_join")
        ts(4)
        a("s_barrier")
        a(f"s_cmp_eq_u32 s{S_W}, 8")
        a("s_cbranch_scc0 L_t_nopoll2")
        a(f"""
        s_lshl_b32 s3, s{S_G2}, 7
        s_add_u32 s76, s3, {FLAG_OFF + 8192}
        s_lshl_b32 s3, s{S_G}, 2
        s_add_u32 s77, s76, s3
        v_mov_b32 v{T_X}, 0
        v_mov_b32 v{T_X+1}, s40
        s_mov_b64 exec, 1
        buffer_store_dword v{T_X+1}, v{T_X}, s[24:27], s77 offen sc1
        s_mov_b64 exec, -1
        v_and_b32 v{T_X+2}, 3, v{L}
        v_lshlrev_b32 v{T_X+2}, 2, v{T_X+2}
        s_mov_b32 s3, s40
        """)
        spin("L_spin_b", f"buffer_load_dword v{T_X+1}, v{T_X+2}, s[24:27], s76 offen sc1", None, T_X+1)
        a.label("L_t_nopoll2")
        a("s_barrier")
        ts(5)
        a(f"""
        s_lshl_b32 s3, s{S_G2}, 2
        s_add_u32 s3, s3, s{S_G}
        s_mul_i32 s76, s3, {4*6144}
        s_lshl_b32 s3, s{S_W}, 9
        s_add_u32 s76, s76, s3
        s_add_u32 s76, s76, {PART_OFF}
        v_lshlrev_b32 v{T_X}, 3, v{L}
        """)
        for d in range(1, 4):
            a(f"s_add_u32 s3, s{S_G}, {d}")
            a(f"s_and_b32 s3, s3, 3")
            a(f"s_mul_i32 s3, s3, 6144")
            a(f"s_add_u32 s77, s76, s3")
            a(f"buffer_load_dwordx2 v[{18+2*d}:{19+2*d}], v{T_X}, s[24:27], s77 offen sc1")
        a(f"""
        s_lshl_b32 s3, s{S_W}, 10
        s_add_u32 s3, s3, {OWN}
        v_lshlrev_b32 v{T_X+3}, 4, v{L}
        v_add_u32 v{T_X+3}, s3, v{T_X+3}
        ds_read_b128 v[16:19], v{T_X+3}
        s_mul_i32 s3, s{S_BP}, 96
        s_lshl_b32 s77, s{S_QT}, 5
        s_add_u32 s3, s3, s77
        s_lshl_b32 s3, s3, 12
        s_lshl_b32 s77, s{S_BLK}, 11
        s_add_u32 s3, s3, s77
        s_lshl_b32 s77, s{S_NT8}, 8
        s_add_u32 s3, s3, s77
        s_lshl_b32 s77, s{S_G}, 6
        s_add_u32 s3, s3, s77
        s_lshl_b32 s77, s{S_KQ}, 4
        s_add_u32 s3, s3, s77
        v_and_b32 v{T_X+1}, 31, v{L}
        v_lshlrev_b32 v{T_X+1}, 12, v{T_X+1}
        v_lshrrev_b32 v{T_X+2}, 5, v{L}
        v_lshlrev_b32 v{T_X+2}, 3, v{T_X+2}
        v_add_u32 v{T_X+1}, v{T_X+1}, v{T_X+2}
        s_waitcnt lgkmcnt(0)
        """)
        for d in range(1, 4):
            a(f"s_waitcnt vmcnt({3-d})")
            lo, hi = 18 + 2*d, 19 + 2*d
            a(f"v_lshlrev_b32 v28, 16, v{lo}")
            a(f"v_and_b32 v29, 0xffff0000, v{lo}")
            a(f"v_lshlrev_b32 v30, 16, v{hi}")
            a(f"v_and_b32 v31, 0xffff0000, v{hi}")
            for i in range(4): a(f"v_add_f32 v{16+i}, v{16+i}, v{28+i}")
        a("v_cvt_pk_bf16_f32 v20, v16, v17")
        a("v_cvt_pk_bf16_f32 v21, v18, v19")
        a(f"buffer_store_dwordx2 v[20:21], v{T_X+1}, s[8:11], s3 offen {OUTF()}")
        ts(6)

    a.label("L_merge")
    prio(0)
    stamp(a, 2)
    tr2(40)
    F = V_F
    def mt(i):
        if OPT.get("lt") == 4: a(f"s_memtime s[{80+2*i}:{81+2*i}]")
    mt(0)
    a(f"""
    v_mov_b32 v{V_T0}, v{V_L}
    v_mov_b32 v{V_T1}, v{V_L}
    s_mul_i32 s76, s{S_KQ}, {AREA}
    v_lshlrev_b32 v{V_T2}, 4, v{L}
    v_permlane32_swap_b32 v{V_T0}, v{V_T1}
    s_mul_i32 s3, s{S_QT}, 12288
    s_add_u32 s77, s76, s3
    v_add_f32 v{V_L}, v{V_T0}, v{V_T1}
    v_add_u32 v{V_T1}, s77, v{V_T2}
    """)
    for j in range(1, 4):
        for rq in range(4):
            r = V_O + 16*j + 4*rq
            a(f"ds_write_b128 v{V_T1}, v[{r}:{r+3}] offset:{(j-1)*4096 + rq*1024}")
    mt(1)
    a(f"""
    v_and_b32 v{V_T0}, 31, v{L}
    v_lshlrev_b32 v{V_T0}, 3, v{V_T0}
    s_lshl_b32 s3, s{S_QT}, 8
    s_add_u32 s3, s3, 36864
    v_add_u32 v{V_T0}, s3, v{V_T0}
    v_add_u32 v{V_T1}, s76, v{V_T0}
    ds_write_b64 v{V_T1}, v[{V_M}:{V_L}]
    """)
    for j in range(1, 4):
        a(f"s_sub_u32 s3, s{S_KQ}, {j}")
        a(f"s_and_b32 s3, s3, 3")
        a(f"s_mul_i32 s76, s3, {AREA}")
        a(f"v_add_u32 v{V_Q+j}, s76, v{V_T0}")
        a(f"s_mul_i32 s3, s{S_QT}, 12288")
        a(f"s_add_u32 s76, s76, s3")
        a(f"v_add_u32 v{V_Q+4+j}, s76, v{V_T2}")
    A0, A1, A2, A3 = V_Q+8, V_Q+9, V_Q+10, V_Q+11
    a(f"""
    v_and_b32 v{A1}, 31, v{L}
    s_lshl_b32 s3, s{S_QT}, 5
    v_add_u32 v{A1}, s3, v{A1}
    v_cmp_le_u32 vcc, 48, v{A1}
    v_subrev_u32 v{A2}, 48, v{A1}
    v_mov_b32 v{A0}, 0
    v_mov_b32 v{A3}, {8*3072}
    v_cndmask_b32 v{A1}, v{A1}, v{A2}, vcc
    v_cndmask_b32 v{A0}, v{A0}, v{A3}, vcc
    s_and_b32 s3, s{S_B}, 1
    s_mul_i32 s3, s3, 48
    v_add_u32 v{A1}, s3, v{A1}
    v_lshrrev_b32 v{A2}, 5, v{A1}
    v_lshlrev_b32 v{A2}, 10, v{A2}
    v_add_u32 v{A0}, v{A0}, v{A2}
    v_and_b32 v{A1}, 31, v{A1}
    v_lshlrev_b32 v{A1}, 4, v{A1}
    v_add_u32 v{A0}, v{A0}, v{A1}
    v_lshrrev_b32 v{A1}, 5, v{L}
    v_lshlrev_b32 v{A1}, 3, v{A1}
    v_add_u32 v{A0}, v{A0}, v{A1}
    s_lshl_b32 s3, s{S_HP}, 4
    s_lshl_b32 s76, s{S_KQ}, 1
    s_add_u32 s3, s3, s76
    s_mul_i32 s3, s3, 3072
    s_mul_i32 s79, s{S_G1}, {192*1024}
    s_add_u32 s79, s79, s3
    s_add_u32 s79, s79, {O_OFF}
    """)
    mt(2)
    a("s_waitcnt lgkmcnt(0)")
    mt(3)
    a("s_barrier")
    mt(4)
    mk(5)
    for j in range(1, 4):
        a(f"ds_read_b64 v[{F+2*j}:{F+2*j+1}], v{V_Q+j}")
    for j in range(1, 4):
        for rq in range(4):
            r = V_O + 16*j + 4*rq
            a(f"ds_read_b128 v[{r}:{r+3}], v{V_Q+4+j} offset:{(j-1)*4096 + rq*1024}")
    a("s_waitcnt lgkmcnt(12)")
    mt(5)
    a(f"""
    v_max3_f32 v{F+8}, v{V_M}, v{F+2}, v{F+4}
    v_max_f32 v{F+8}, v{F+8}, v{F+6}
    v_sub_f32 v{F+10}, v{V_M}, v{F+8}
    v_sub_f32 v{F+12}, v{F+2}, v{F+8}
    v_sub_f32 v{F+14}, v{F+4}, v{F+8}
    v_sub_f32 v{F+16}, v{F+6}, v{F+8}
    v_exp_f32 v{F+10}, v{F+10}
    v_exp_f32 v{F+12}, v{F+12}
    v_exp_f32 v{F+14}, v{F+14}
    v_exp_f32 v{F+16}, v{F+16}
    v_mul_f32 v{F+18}, v{F+10}, v{V_L}
    v_fma_f32 v{F+18}, v{F+12}, v{F+3}, v{F+18}
    v_fma_f32 v{F+18}, v{F+14}, v{F+5}, v{F+18}
    v_fma_f32 v{F+18}, v{F+16}, v{F+7}, v{F+18}
    v_rcp_f32 v{F+18}, v{F+18}
    v_mul_f32 v{F+10}, v{F+10}, v{F+18}
    v_mul_f32 v{F+12}, v{F+12}, v{F+18}
    v_mul_f32 v{F+14}, v{F+14}, v{F+18}
    v_mul_f32 v{F+16}, v{F+16}, v{F+18}
    """)
    mt(6)
    for i in range(0, 16, 2):
        a(f"v_pk_mul_f32 v[{V_O+i}:{V_O+i+1}], v[{V_O+i}:{V_O+i+1}], v[{F+10}:{F+11}] op_sel_hi:[1,0]")
    for j in range(1, 4):
        a(f"s_waitcnt lgkmcnt({12 - 4*j})")
        for i in range(0, 16, 2):
            a(f"v_pk_fma_f32 v[{V_O+i}:{V_O+i+1}], v[{V_O+16*j+i}:{V_O+16*j+i+1}], v[{F+10+2*j}:{F+11+2*j}], v[{V_O+i}:{V_O+i+1}] op_sel_hi:[1,0,1]")
    mt(7)
    for rq in range(4):
        a(f"v_cvt_pk_bf16_f32 v{F+20+2*rq}, v{V_O+4*rq}, v{V_O+4*rq+1}")
        a(f"v_cvt_pk_bf16_f32 v{F+20+2*rq+1}, v{V_O+4*rq+2}, v{V_O+4*rq+3}")
    for rq in range(4):
        a(f"buffer_store_dwordx2 v[{F+20+2*rq}:{F+20+2*rq+1}], v{A0}, s[24:27], s79 offen offset:{(rq & 1)*512} sc1" if rq < 2 else
          f"buffer_store_dwordx2 v[{F+20+2*rq}:{F+20+2*rq+1}], v{A0}, s[24:27], s79 offen offset:{3072 + (rq & 1)*512} sc1")
    a("s_barrier")
    gen_tail()
    stamp(a, 3)
    if OPT.get("padstamp") is not None:
        i = OPT["padstamp"]
        a(f"""
        s_waitcnt lgkmcnt(0)
        s_sub_u32 s78, s{80+2*i}, s80
        L_pads:
        s_memrealtime s[76:77]
        s_waitcnt lgkmcnt(0)
        s_sub_u32 s76, s76, s80
        s_sub_u32 s76, s76, s78
        s_cmp_lt_u32 s76, 6000
        s_cbranch_scc1 L_pads
        """)
    if OPT.get("pad"):
        a(f"""
        L_pad:
        s_memrealtime s[76:77]
        s_waitcnt lgkmcnt(0)
        s_sub_u32 s76, s76, s80
        s_cmp_lt_u32 s76, {OPT["pad"]}
        s_cbranch_scc1 L_pad
        """)
    tr2(41)
    trace_dump(a, 167, 100, S_W, V_LANE, 1)
    if OPT.get("lt"):
        a("s_waitcnt lgkmcnt(0)")
        a(f"s_lshl_b32 s3, s2, 4")
        a(f"s_add_u32 s3, s3, s{S_W}")
        a(f"s_lshl_b32 s3, s3, 8")
        a(f"s_add_u32 s3, s3, {(56 << 20) + (1 << 20)}")
        a("v_mov_b32 v102, s3")
        for i in range(11):
            a(f"v_mov_b32 v100, s{80+2*i}")
            a(f"buffer_store_dword v100, v102, s[24:27], 0 offen offset:{4*i}")
            a("s_waitcnt vmcnt(0)")
    if OPT["stamps"]: a("s_memtime s[90:91]")
    if OPT.get("dbgclk"):
        a(f"""
        s_waitcnt lgkmcnt(0)
        s_cmp_eq_u32 s2, {OPT.get("dbgwg", 77)}
        s_cbranch_scc0 L_nodbg
        s_cmp_eq_u32 s{S_W}, 0
        s_cbranch_scc0 L_nodbg
        s_sub_u32 s90, s90, s88
        s_sub_u32 s82, s82, s80
        s_sub_u32 s84, s84, s80
        s_sub_u32 s86, s86, s80
        v_mov_b32 v100, s90
        v_mov_b32 v101, s82
        v_mov_b32 v102, s84
        v_mov_b32 v103, s86
        v_mov_b32 v104, 0
        s_mov_b32 s16, s70
        s_mov_b32 s17, s71
        s_mov_b32 s18, 256
        s_mov_b32 s19, 0x00020000
        s_mov_b64 exec, 1
        buffer_store_dwordx4 v[100:103], v104, s[16:19], 0 offen offset:16
        s_mov_b64 exec, -1
        L_nodbg:
        """)
    else:
        stamp_flush(a, 6, 100, S_W, 0)
    a("s_endpgm")
    a.label("L_slow_first")
    a(f"v_cndmask_b32 v{V_M}, v{V_M}, v{V_T0}, vcc")
    a(f"s_mov_b64 s[{S_SLOW}:{S_SLOW+1}], -1")
    a(f"v_add_f32 v{V_THR}, s{S_TC}, v{V_M}")
    a("s_branch L_slow_sub")
    a.label("L_slow")
    a("s_cbranch_vccz L_slow_sub")
    a(f"v_max_f32 v{V_T1}, v{V_M}, v{V_T0}")
    a(f"v_cndmask_b32 v{V_T1}, v{V_M}, v{V_T1}, vcc")
    a.label("L_slow_upd")
    a(f"""
    s_mov_b64 s[{S_SLOW}:{S_SLOW+1}], -1
    v_sub_f32 v{V_T2}, v{V_M}, v{V_T1}
    v_exp_f32 v{V_T2}, v{V_T2}
    v_mov_b32 v{V_M}, v{V_T1}
    v_add_f32 v{V_THR}, s{S_TC}, v{V_T1}
    v_mul_f32 v{V_L}, v{V_L}, v{V_T2}
    """)
    for i in range(64):
        a(f"v_mul_f32 v{V_O+i}, v{V_T2}, v{V_O+i}")
    a.label("L_slow_sub")
    for i in range(16):
        a(f"v_sub_f32 v{V_S+i}, v{V_S+i}, v{V_M}")
    a("s_nop 1")
    a(f"s_setpc_b64 s[{S_RET}:{S_RET+1}]")
    a.label("L_k1_end")
    a("s_endpgm")
    return a

def build():
    k1 = gen_k1().finalize()
    h1, d1 = kernel_text("gqa_fused_kernel", k1, 168)
    hdr = open("concat_heads__gqa_block_cached__gqa_block_cached__near_ridge.s.ref").read().split("; Override")[0]
    txt = hdr
    he = de = ""
    e = OPT.get("empty")
    if e:
        he, de = kernel_text("empty_kernel", "    s_endpgm\n", 168 if e in (2, 4) else 8, sgpr=16)
        de = ".p2align 6\n" + de
        line = "; @launch kernel=empty_kernel grid=(256,1,1) block=(768,1,1) lds=163840\n" if e in (2, 4) else "; @launch kernel=empty_kernel grid=(256,1,1) block=(64,1,1) lds=0\n"
    if e in (1, 2): txt += line
    txt += "; @launch kernel=gqa_fused_kernel grid=(256,1,1) block=(768,1,1) lds=163840\n"
    if e in (3, 4): txt += line
    txt += '.amdgcn_target "amdgcn-amd-amdhsa--gfx950"\n.text\n' + h1 + he
    txt += '.section .rodata,"a"\n.p2align 6\n' + d1 + de
    return txt

if __name__ == "__main__":
    out = sys.argv[1]
    for kv in sys.argv[2:]:
        k, v = kv.split("=")
        OPT[k] = int(v, 0)
    open(out, "w").write(build())
    print("wrote", out)
```

```python
import sys, math, struct
from asmlib import *
import gen as G1
G1.OPT["stamp_off"] = 48 << 20
from gen import f2u, load_ptrs, srd, AREA, C_SCALE, T_LOG2

OPT = G1.OPT
stamp, stamp_flush, trace, trace_dump = G1.stamp, G1.stamp_flush, G1.trace, G1.trace_dump
NT = G1.NT

NTQ = lambda: 'nt ' if OPT.get('nt_wq') else ''
NTX = lambda: 'nt ' if OPT.get('nt_x') else ''
NTKV = lambda: 'nt ' if OPT.get('nt_kv') else ''
NTWO = lambda: 'nt ' if OPT.get('nt_wo') else ''
OSC = lambda: '' if OPT.get('o_plain') else 'sc1 '
O_OFF = 0
FLAG_OFF = 8 << 20
PART_OFF = 16 << 20
TOK_A, TOK_B = 0x5EED0A01, 0x5EED0B02
SPIN_MAX = 1 << 18

def emit_tile(a, dst, s_cnt, phi, m1, m3, win, r, t0, t1, t2):
    sc = f"s{s_cnt}" if isinstance(s_cnt, int) else str(s_cnt[1])
    a(f"s_add_u32 s{t0}, s{phi}, {win}")
    a(f"s_sub_u32 s{t1}, {win}, s{phi}")
    a(f"s_mov_b32 s{t2}, s{m3}")
    a(f"s_cmp_lt_u32 {sc}, s{t0}" if isinstance(s_cnt, int) else f"s_cmp_gt_u32 s{t0}, {sc}")
    a(f"s_cselect_b32 s{t0}, s{phi}, s{t0}")
    a(f"s_cselect_b32 s{t1}, {win}, s{t1}")
    a(f"s_cselect_b32 s{t2}, {256 // win}, s{t2}")
    a(f"s_cmp_lt_u32 {sc}, s{phi}" if isinstance(s_cnt, int) else f"s_cmp_gt_u32 s{phi}, {sc}")
    a(f"s_cselect_b32 s{t0}, 0, s{t0}")
    a(f"s_cselect_b32 s{t1}, s{phi}, s{t1}")
    a(f"s_cselect_b32 s{t2}, s{m1}, s{t2}")
    a(f"s_sub_u32 s{dst}, {sc}, s{t0}")
    a(f"s_add_u32 s{dst}, s{dst}, s{r}")
    a(f"s_mul_i32 s{t2}, s{dst}, s{t2}")
    a(f"s_lshr_b32 s{t2}, s{t2}, 8")
    a(f"s_mul_i32 s{t2}, s{t2}, s{t1}")
    a(f"s_sub_u32 s{dst}, s{dst}, s{t2}")
    a(f"s_add_u32 s{dst}, s{dst}, s{t0}")

def gen_k1():
    a = Asm()
    S_PHI, S_M1, S_M3, S_P2 = 4, 5, 6, 7
    S_BP, S_NT8, S_G1, S_G2 = 54, 55, 58, 59
    S_W, S_BLK, S_G, S_B, S_HP, S_KQ, S_QT = 28, 29, 30, 31, 32, 33, 34
    S_C, S_NC, S_TC = 35, 36, 37
    S_RET = 38
    S_SLOW = 50
    T_HI, T_LO = 16.0, 64.0
    S_T0, S_T1, S_T2, S_T3 = 41, 42, 43, 44
    S_WQB, S_XB, S_KVB = 45, 46, 47
    S_CNT, S_SLOT = 75, 78
    V_O, V_Q, V_S, V_F, V_KA, V_VA = 0, 64, 96, 112, 144, 152
    V_M, V_L, V_NMC, V_THR, V_T0, V_T1, V_T2, V_LANE, V_DOFF = 156, 157, 158, 159, 160, 161, 162, 163, 164
    L = V_LANE

    def group_ids():
        a(f"""
        s_lshr_b32 s{S_BP}, s{S_B}, 1
        s_and_b32 s{S_NT8}, s{S_B}, 1
        s_lshl_b32 s{S_NT8}, s{S_NT8}, 2
        s_add_u32 s{S_NT8}, s{S_NT8}, s{S_HP}
        s_lshl_b32 s{S_G1}, s{S_BLK}, 2
        s_add_u32 s{S_G1}, s{S_G1}, s{S_G}
        s_lshl_b32 s{S_G1}, s{S_G1}, 2
        s_add_u32 s{S_G1}, s{S_G1}, s{S_BP}
        s_lshl_b32 s{S_G2}, s{S_BLK}, 2
        s_add_u32 s{S_G2}, s{S_G2}, s{S_BP}
        s_lshl_b32 s{S_G2}, s{S_G2}, 3
        s_add_u32 s{S_G2}, s{S_G2}, s{S_NT8}
        """)
    a("s_cmp_ge_u32 s2, 256")
    a("s_cbranch_scc1 L_k1_end")
    stamp(a, 0)
    if OPT["stamps"]: a("s_memtime s[88:89]")
    if OPT.get("lt") == 7: a("s_memtime s[80:81]")
    load_ptrs(a)
    if OPT.get("trace"):
        a("v_mov_b32 v120, 0")
        a("v_mov_b32 v167, 0")
        trace(a, 120, idx_imm=63)
    a(f"""
    v_lshrrev_b32 v1, 6, v0
    v_and_b32 v{L}, 63, v0
    s_and_b32 s3, s2, 7
    v_readfirstlane_b32 s{S_W}, v1
    s_lshr_b32 s{S_BLK}, s3, 2
    s_and_b32 s{S_G}, s3, 3
    s_lshr_b32 s3, s2, 3
    s_lshr_b32 s{S_B}, s3, 2
    s_and_b32 s{S_HP}, s3, 3
    s_and_b32 s{S_KQ}, s{S_W}, 3
    s_lshr_b32 s{S_QT}, s{S_W}, 2
    s_lshl_b32 s{S_WQB}, s{S_G}, 11
    s_lshl_b32 s3, s{S_HP}, 9
    s_add_u32 s{S_WQB}, s{S_WQB}, s3
    s_mul_i32 s{S_XB}, s{S_B}, {48*2048}
    s_cmp_ge_u32 s{S_W}, 8
    s_cbranch_scc1 L_p1_compute
    """)
    a(f"""
    v_lshrrev_b32 v5, 5, v{L}
    v_and_b32 v6, 31, v{L}
    s_and_b32 s{S_T1}, s{S_W}, 1
    s_lshl_b32 s{S_T1}, s{S_T1}, 2
    v_or_b32 v7, s{S_T1}, v5
    v_lshlrev_b32 v8, 1, v7
    v_xor_b32 v8, v8, v6
    v_lshlrev_b32 v8, 4, v8
    v_lshlrev_b32 v9, 13, v5
    v_add_u32 v2, v9, v8
    v_xor_b32 v8, 64, v8
    v_add_u32 v3, v9, v8
    s_mul_i32 s{S_T1}, s{S_W}, 6
    v_lshrrev_b32 v5, 3, v{L}
    v_add_u32 v5, s{S_T1}, v5
    v_lshrrev_b32 v6, 1, v5
    v_xor_b32 v6, v6, v{L}
    v_and_b32 v6, 7, v6
    v_lshlrev_b32 v6, 4, v6
    v_lshlrev_b32 v5, 11, v5
    v_add_u32 v4, v5, v6
    s_lshl_b32 s{S_T2}, s{S_W}, 16
    s_add_u32 s{S_WQB}, s{S_WQB}, s{S_T2}
    s_lshl_b32 s{S_T2}, s{S_W}, 12
    s_mul_i32 s{S_T3}, s{S_W}, 768
    s_add_u32 s{S_T3}, s{S_T3}, 32768
    """)
    if OPT.get("stag1", 2) == 1:
        a(f"""
        s_add_u32 s{S_PHI}, s{S_HP}, 1
        s_lshl_b32 s3, s{S_HP}, 3
        s_lshr_b32 s{S_M1}, 0x3f557fff, s3
        s_and_b32 s{S_M1}, s{S_M1}, 0xff
        s_add_u32 s{S_M1}, s{S_M1}, 1
        s_lshr_b32 s{S_M3}, 0x40342b25, s3
        s_and_b32 s{S_M3}, s{S_M3}, 0xff
        """)
    else:
        pa, pb = OPT.get("phiA", 8), OPT.get("phiB", 4)
        Mt = lambda n: -(-256 // n) if n else 1
        a(f"""
        s_cmp_eq_u32 s{S_BLK}, 0
        s_mov_b32 s{S_PHI}, {pb}
        s_cselect_b32 s{S_PHI}, {pa}, s{S_PHI}
        s_mov_b32 s{S_M1}, {Mt(pb)}
        s_cselect_b32 s{S_M1}, {Mt(pa)}, s{S_M1}
        s_mov_b32 s{S_M3}, {Mt(8-pb)}
        s_cselect_b32 s{S_M3}, {Mt(8-pa)}, s{S_M3}
        """)
    a(f"""
    s_cmp_eq_u32 s{S_BLK}, 0
    s_waitcnt lgkmcnt(0)
    """)
    if OPT.get("lt") == 7: a("s_memtime s[82:83]")
    srd(a, 8, 48, 58, 8*48*1024*2)
    srd(a, 12, 54, 64, 1024*4096*2)
    def issue_tile():
        if OPT.get("stag1", 2):
            emit_tile(a, 3, S_CNT, S_PHI, S_M1, S_M3, 8, S_B, 76, 77, 79)
        else:
            a(f"""
            s_add_u32 s3, s{S_CNT}, s{S_B}
            s_and_b32 s3, s3, 7
            s_and_b32 s76, s{S_CNT}, 8
            s_or_b32 s3, s3, s76
            """)
        a(f"""
        s_lshl_b32 s76, s3, 19
        s_add_u32 s76, s76, s{S_WQB}
        s_add_u32 s77, s{S_SLOT}, s{S_T2}
        """)
        def wq4(nt):
            for q in range(4):
                a(f"s_add_u32 m0, s77, {q*1024}")
                if q: a(f"s_add_u32 s76, s76, {2*8192}")
                a(f"buffer_load_dwordx4 v{2 + (q & 1)}, s[12:15], s76 offen {nt}lds")
        if OPT.get("ntf_wq"):
            l1, l2 = a.newlabel("L_wqn"), a.newlabel("L_wqd")
            a(f"s_and_b32 s79, s{S_CNT}, 7")
            a(f"s_cbranch_scc1 {l1}")
            wq4("nt ")
            a(f"s_branch {l2}")
            a.label(l1)
            wq4("")
            a.label(l2)
        else:
            wq4(NTQ())
        a(f"""
        s_lshl_b32 s76, s3, 7
        s_add_u32 s76, s76, s{S_XB}
        s_add_u32 m0, s{S_SLOT}, s{S_T3}
        s_mov_b32 exec_hi, {'0xffff' if not OPT.get('xfull') else '-1'}
        buffer_load_dwordx4 v4, s[8:11], s76 offen {NTX()}lds
        s_mov_b32 exec_hi, -1
        """)
    a(f"s_mov_b32 s{S_CNT}, 0")
    a(f"s_mov_b32 s{S_SLOT}, 0")
    issue_tile()
    a(f"s_cmp_eq_u32 s{S_W}, 0")
    a("s_cbranch_scc0 L_noclr")
    srd(a, 24, 72, 72, 1 << 28, sel=False)
    a(f"""
    s_lshr_b32 s76, s{S_B}, 1
    s_and_b32 s77, s{S_B}, 1
    s_lshl_b32 s77, s77, 2
    s_add_u32 s77, s77, s{S_HP}
    s_lshl_b32 s3, s{S_BLK}, 2
    s_add_u32 s3, s3, s{S_G}
    s_lshl_b32 s3, s3, 2
    s_add_u32 s3, s3, s76
    s_lshl_b32 s3, s3, 7
    s_lshl_b32 s79, s77, 2
    s_add_u32 s3, s3, s79
    s_add_u32 s3, s3, {FLAG_OFF}
    s_lshl_b32 s79, s{S_BLK}, 2
    s_add_u32 s79, s79, s76
    s_lshl_b32 s79, s79, 3
    s_add_u32 s79, s79, s77
    s_lshl_b32 s79, s79, 7
    s_lshl_b32 s76, s{S_G}, 2
    s_add_u32 s79, s79, s76
    s_add_u32 s79, s79, {FLAG_OFF + 8192}
    v_mov_b32 v10, 0
    s_mov_b64 exec, 1
    buffer_store_dword v10, v10, s[24:27], s3 offen sc1
    buffer_store_dword v10, v10, s[24:27], s79 offen sc1
    s_mov_b64 exec, -1
    L_noclr:
    """)
    if OPT.get("tlbw", 1):
        a(f"s_cmp_eq_u32 s{S_W}, {OPT.get('tlbw_wave', 0)}")
        a("s_cbranch_scc0 L_notlb")
        a(f"""
        v_lshlrev_b32 v10, 21, v{L}
        s_mov_b64 exec, 0xf
        buffer_load_dword v11, v10, s[12:15], 0 offen
        s_cmp_eq_u32 s{S_BLK}, 0
        """)
        srd(a, 16, 50, 60, 8*4*1024*128*2)
        srd(a, 20, 52, 62, 8*4*1024*128*2)
        a(f"""
        s_lshl_b32 s3, s{S_B}, 2
        s_add_u32 s3, s3, s{S_G}
        s_lshl_b32 s3, s3, 18
        s_mov_b64 exec, 1
        v_mov_b32 v10, 0
        buffer_load_dword v11, v10, s[16:19], s3 offen
        buffer_load_dword v11, v10, s[20:23], s3 offen
        s_cmp_eq_u32 s{S_BLK}, 0
        s_cselect_b32 s16, s56, s66
        s_cselect_b32 s17, s57, s67
        s_mov_b32 s18, {4096*1024*2}
        s_lshl_b32 s3, s{S_G}, 21
        buffer_load_dword v11, v10, s[16:19], s3 offen
        s_mov_b32 s16, s72
        s_mov_b32 s17, s73
        s_mov_b32 s18, {1 << 28}
        s_mov_b64 exec, -1
        v_lshlrev_b32 v10, 21, v{L}
        s_mov_b64 exec, 0x7fff
        buffer_load_dword v11, v10, s[16:19], 0 offen
        s_mov_b32 s16, s68
        s_mov_b32 s17, s69
        s_mov_b32 s18, {8*48*2048*2}
        s_mov_b64 exec, 1
        v_mov_b32 v10, 0
        buffer_load_dword v11, v10, s[16:19], 0 offen
        s_mov_b64 exec, -1
        L_notlb:
        """)
    if OPT.get("b01", 1): a("s_barrier")
    a(f"s_mov_b32 s{S_CNT}, 1")
    a(f"s_mov_b32 s{S_SLOT}, {AREA}")
    issue_tile()
    a(f"s_mov_b32 s{S_CNT}, 2")
    a(f"s_mov_b32 s{S_SLOT}, {2*AREA}")
    if OPT.get("lt") == 7: a("s_memtime s[84:85]")
    a(f"s_cmp_eq_u32 s{S_BLK}, 0")
    srd(a, 16, 50, 60, 8*4*1024*128*2)
    srd(a, 20, 52, 62, 8*4*1024*128*2)
    srd(a, 24, 72, 72, 1 << 28, sel=False)
    group_ids()
    a(f"""
    s_lshl_b32 s3, s{S_B}, 2
    s_add_u32 s3, s3, s{S_G}
    s_lshl_b32 s{S_KVB}, s3, 18
    s_lshl_b32 s3, s{S_KQ}, 16
    s_add_u32 s{S_KVB}, s{S_KVB}, s3
    v_lshrrev_b32 v5, 4, v{L}
    v_and_b32 v6, 15, v{L}
    v_lshlrev_b32 v7, 8, v5
    v_xor_b32 v8, v6, v5
    v_lshlrev_b32 v9, 4, v8
    v_add_u32 v{V_DOFF}, v7, v9
    v_xor_b32 v9, 64, v9
    v_add_u32 v{V_DOFF+1}, v7, v9
    v_xor_b32 v9, 0xc0, v9
    v_add_u32 v{V_DOFF+2}, v7, v9
    v_xor_b32 v9, 64, v9
    v_add_u32 v{V_DOFF+3 if not OPT.get("trace") else V_T2}, v7, v9
    s_cmp_eq_u32 s{S_QT}, 0
    s_cbranch_scc1 L_voff_done
    v_lshlrev_b32 v8, 2, v5
    v_xor_b32 v8, v8, v6
    v_lshlrev_b32 v8, 4, v8
    v_add_u32 v{V_DOFF}, v7, v8
    L_voff_done:
    """)
    a(f"""
    s_and_b32 s3, s{S_B}, 3
    s_add_u32 s60, s3, 1
    s_lshl_b32 s3, s3, 3
    s_lshr_b32 s61, 0x3f557fff, s3
    s_and_b32 s61, s61, 0xff
    s_add_u32 s61, s61, 1
    s_lshr_b32 s62, 0x00ff7f55, s3
    s_and_b32 s62, s62, 0xff
    s_add_u32 s62, s62, 1
    s_mov_b32 s{S_P2}, 0
    """)
    for i in range(8):
        if OPT.get("stag2", 1):
            emit_tile(a, 63, ("imm", i), 60, 61, 62, 4, S_HP, 64, 65, 79)
        else:
            R2 = OPT.get("rot2", 4)
            a(f"s_add_u32 s63, s{S_HP}, {i}")
            a(f"s_and_b32 s63, s63, {R2 - 1}")
            a(f"s_or_b32 s63, s63, {i & ~(R2 - 1)}")
            if OPT.get("kvoff"):
                a(f"s_add_u32 s63, s63, s{S_B}")
                a(f"s_and_b32 s63, s63, 7")
        a(f"s_lshl_b32 s63, s63, {4*i}")
        a(f"s_or_b32 s{S_P2}, s{S_P2}, s63")
    a.label("L_p1_ld_loop")
    a("s_waitcnt vmcnt(5)")
    trace(a, 120, idx_sreg=S_CNT)
    if OPT.get("lt") == 7:
        for k, cnt in enumerate((2, 3, 4, 9, 10, 11, 15)):
            a(f"s_cmp_eq_u32 s{S_CNT}, {cnt}")
            a(f"s_cbranch_scc0 L_lt7_{k}")
            a(f"s_memtime s[{86+2*k}:{87+2*k}]")
            a.label(f"L_lt7_{k}")
    a("s_barrier")
    if OPT.get("trace"): a(f"s_add_u32 s94, s{S_CNT}, 16")
    trace(a, 120, idx_sreg=94)
    issue_tile()
    if OPT.get("trace"): a(f"s_add_u32 s94, s{S_CNT}, 32")
    trace(a, 120, idx_sreg=94)
    a(f"""
    s_add_u32 s{S_SLOT}, s{S_SLOT}, {AREA}
    s_cmp_eq_u32 s{S_SLOT}, {3*AREA}
    s_cselect_b32 s{S_SLOT}, 0, s{S_SLOT}
    s_add_u32 s{S_CNT}, s{S_CNT}, 1
    s_cmp_lt_u32 s{S_CNT}, 16
    s_cbranch_scc1 L_p1_ld_loop
    """)
    def tile_soff(step, dst):
        a(f"""
        s_bfe_u32 s{dst}, s{S_P2}, {(4 << 16) | (4*step)}
        s_lshl_b32 s{dst}, s{dst}, 13
        s_add_u32 s{dst}, s{dst}, s{S_KVB}
        """)
    def dma8(step, lds_off, voff_fn, srdb):
        ntk = "nt " if (OPT.get("nt_kv") or (OPT.get("ntf_kv") and step % OPT.get("rot2", 4) == 0)) else ""
        tile_soff(step, 76)
        a(f"s_mul_i32 s77, s{S_KQ}, {AREA}")
        a(f"s_add_u32 m0, s77, {lds_off}")
        for q in range(8):
            if q == 4:
                a(f"s_add_u32 m0, s77, {lds_off + 4096}")
                a(f"s_add_u32 s76, s76, 4096")
            a(f"buffer_load_dwordx4 v{voff_fn(q)}, s[{srdb}:{srdb+3}], s76 offen offset:{(q & 3) * 1024} {ntk}lds")
    def issue_k(step):
        if OPT.get("trace"):
            a(f"v_xor_b32 v{V_T2}, 64, v{V_DOFF+2}")
            dma8(step, (step % 3) * 8192, lambda q: (V_DOFF + (q & 3)) if (q & 3) != 3 else V_T2, 16)
        else:
            dma8(step, (step % 3) * 8192, lambda q: V_DOFF + (q & 3), 16)
    def issue_v(step): dma8(step, 24576 + (step % 2) * 8192, lambda q: V_DOFF, 20)
    def call_early_if(kq):
        lab = a.newlabel("L_ne")
        a(f"s_cmp_eq_u32 s{S_KQ}, {kq}")
        a(f"s_cbranch_scc0 {lab}")
        a(f"s_call_b64 s[{S_RET}:{S_RET+1}], L_early")
        a.label(lab)
    a("s_waitcnt vmcnt(5)")
    call_early_if(3)
    a("s_barrier")
    call_early_if(1)
    a(f"""
    s_and_b32 s3, s{S_KQ}, 1
    s_cmp_eq_u32 s3, 1
    s_cbranch_scc1 L_w15_early
    s_waitcnt vmcnt(0)
    s_branch L_w15_done
    L_w15_early:
    s_cmp_eq_u32 s{S_QT}, 0
    s_cbranch_scc1 L_w15_k
    s_waitcnt vmcnt(8)
    s_branch L_w15_done
    L_w15_k:
    s_waitcnt vmcnt(16)
    L_w15_done:
    """)
    a("s_barrier")
    call_early_if(2)
    a("s_barrier")
    call_early_if(0)
    a("s_branch L_p1_join")
    a.label("L_early")
    a(f"s_cmp_eq_u32 s{S_QT}, 0")
    a("s_cbranch_scc0 L_early_v")
    issue_k(0)
    issue_k(1)
    a(f"s_setpc_b64 s[{S_RET}:{S_RET+1}]")
    a.label("L_early_v")
    issue_v(0)
    a(f"s_setpc_b64 s[{S_RET}:{S_RET+1}]")

    a.label("L_p1_compute")
    P_ACC, P_A, P_B, P_WA, P_XA = 0, 48, 80, 104, 108
    a(f"""
    v_lshrrev_b32 v110, 4, v{L}
    v_and_b32 v111, 15, v{L}
    v_lshrrev_b32 v112, 2, v111
    v_and_b32 v113, 3, v111
    v_lshlrev_b32 v114, 3, v110
    v_add_u32 v114, v114, v112
    v_lshlrev_b32 v114, 9, v114
    v_lshlrev_b32 v113, 3, v113
    v_add_u32 v114, v114, v113
    v_and_b32 v115, 1, v110
    v_lshlrev_b32 v115, 2, v115
    v_or_b32 v115, v115, v112
    s_lshl_b32 s{S_T0}, s{S_KQ}, 2
    """)
    for dt in range(4):
        a(f"s_add_u32 s{S_T1}, s{S_T0}, {dt}")
        a(f"v_xor_b32 v116, s{S_T1}, v115")
        a(f"v_lshlrev_b32 v116, 5, v116")
        a(f"v_add_u32 v{P_WA+dt}, v114, v116")
    a(f"""
    v_lshrrev_b32 v112, 1, v111
    v_xor_b32 v112, v112, v110
    v_lshlrev_b32 v112, 4, v112
    v_lshlrev_b32 v113, 7, v111
    v_add_u32 v112, v112, v113
    v_add_u32 v{P_XA}, 32768, v112
    v_xor_b32 v{P_XA+1}, 64, v{P_XA}
    """)
    for i in range(48):
        a(f"v_mov_b32 v{P_ACC+i}, 0")
    for i in range(4):
        a(f"v_mov_b32 v{V_DOFF+i}, 0")
    a(f"s_waitcnt lgkmcnt(0)")
    srd(a, 24, 72, 72, 1 << 28, sel=False)
    a(f"s_cmp_eq_u32 s{S_BLK}, 0")
    srd(a, 16, 50, 60, 8*4*1024*128*2)
    srd(a, 20, 52, 62, 8*4*1024*128*2)
    if OPT.get("b01", 1) and OPT.get("xpf_late"): a("s_barrier")
    if OPT.get("xpf", 1):
        a(f"s_cmp_eq_u32 s{S_BLK}, 0")
        srd(a, 8, 48, 58, 8*48*1024*2)
        a(f"""
        s_cmp_eq_u32 s{S_KQ}, 3
        s_cbranch_scc1 L_noxpf
        s_mul_i32 s3, s{S_HP}, 24576
        s_add_u32 s3, s3, s{S_XB}
        s_lshl_b32 s76, s{S_KQ}, 13
        s_add_u32 s3, s3, s76
        v_lshlrev_b32 v126, 7, v{L}
        buffer_load_dword v128, v126, s[8:11], s3 offen
        L_noxpf:
        """)
    if OPT.get("b01", 1) and not OPT.get("xpf_late"): a("s_barrier")
    group_ids()
    a(f"""
    s_mov_b32 s16, s70
    s_mov_b32 s17, s71
    s_mov_b32 s18, 256
    s_mov_b32 s19, 0x00020000
    s_lshr_b32 s40, s2, 3
    s_and_b32 s40, s40, 7
    s_add_u32 s40, s40, 4
    v_mov_b32 v126, 0
    v_mov_b32 v127, 1
    """)
    a(f"s_mov_b32 s{S_KVB}, 0")
    a(f"s_mov_b32 s{S_CNT}, 0")
    a(f"s_mov_b32 s{S_SLOT}, 0")
    def rd_ks(ks):
        if OPT.get("nocomp"): return
        for dt in range(4):
            for hf in range(2):
                r = P_A + ks*16 + dt*4 + hf*2
                a(f"ds_read_b64_tr_b16 v[{r}:{r+1}], v{P_WA+dt} offset:{ks*16384 + hf*2048}")
    def rd_x(ks):
        if OPT.get("nocomp"): return
        for st in range(3):
            r = P_B + ks*12 + st*4
            a(f"ds_read_b128 v[{r}:{r+3}], v{P_XA+ks} offset:{st*2048}")
    def mm(ks):
        if OPT.get("nocomp"): return
        for dt in range(4):
            for st in range(3):
                ac = P_ACC + (dt*3+st)*4
                ra = P_A + ks*16 + dt*4; rb = P_B + ks*12 + st*4
                a(f"v_mfma_f32_16x16x32_bf16 v[{ac}:{ac+3}], v[{ra}:{ra+3}], v[{rb}:{rb+3}], v[{ac}:{ac+3}]")
    a.label("L_p1_c_loop")
    trace(a, 120, idx_sreg=S_CNT)
    a("s_barrier")

    if OPT.get("trace"): a(f"s_add_u32 s94, s{S_CNT}, 16")
    trace(a, 120, idx_sreg=94)
    rd_x(0); rd_ks(0)
    a(f"s_cmp_eq_u32 s{S_CNT}, 0")
    a("s_cbranch_scc1 L_p1_c_skip")
    mm(1)
    a.label("L_p1_c_skip")
    rd_x(1); rd_ks(1)
    a("s_waitcnt lgkmcnt(11)")
    mm(0)
    a(f"""
    s_add_u32 s{S_SLOT}, s{S_SLOT}, 1
    s_cmp_eq_u32 s{S_SLOT}, 3
    s_cselect_b32 s{S_SLOT}, 0, s{S_SLOT}
    s_mov_b32 s3, {AREA}
    s_cselect_b32 s3, {(-2*AREA) & 0xffffffff}, s3
    """)
    for r in list(range(P_WA, P_WA+4)) + [P_XA, P_XA+1]:
        a(f"v_add_u32 v{r}, s3, v{r}")
    a(f"""
    s_add_u32 s{S_CNT}, s{S_CNT}, 1
    s_cmp_lt_u32 s{S_CNT}, 16
    s_waitcnt lgkmcnt(0)
    s_cbranch_scc1 L_p1_c_loop
    s_barrier
    """)
    mm(1)
    a(f"""
    s_mov_b32 s{S_C}, {f2u(C_SCALE)}
    v_lshrrev_b32 v110, 4, v{L}
    v_and_b32 v111, 15, v{L}
    v_lshlrev_b32 v112, 8, v111
    v_and_b32 v113, 1, v110
    v_lshlrev_b32 v113, 3, v113
    v_add_u32 v112, v112, v113
    v_lshrrev_b32 v113, 1, v110
    s_and_b32 s{S_T0}, s{S_KQ}, 1
    s_lshl_b32 s{S_T0}, s{S_T0}, 3
    v_add_u32 v113, s{S_T0}, v113
    s_lshr_b32 s{S_T1}, s{S_KQ}, 1
    s_cmp_eq_u32 s{S_T1}, 0
    s_mov_b32 s76, {2*AREA+16384+4096}
    s_mov_b32 s77, {3*AREA+16384}
    s_mov_b32 s78, {3*AREA+16384+4096}
    s_cselect_b32 s76, {1*AREA+16384}, s76
    s_cselect_b32 s77, {1*AREA+16384+4096}, s77
    s_cselect_b32 s78, {2*AREA+16384}, s78
    """)
    for dt in range(4):
        a(f"v_add_u32 v114, {2*dt}, v113")
        a(f"v_xor_b32 v114, v114, v111")
        a(f"v_lshlrev_b32 v114, 4, v114")
        a(f"v_add_u32 v114, v114, v112")
        for st in range(3):
            ac = P_ACC + (dt*3+st)*4
            t = 116 + 2*(st & 1)
            for e in range(4): a(f"v_mul_f32 v{ac+e}, s{S_C}, v{ac+e}")
            a(f"v_cvt_pk_bf16_f32 v{t}, v{ac}, v{ac+1}")
            a(f"v_cvt_pk_bf16_f32 v{t+1}, v{ac+2}, v{ac+3}")
            a(f"v_add_u32 v{123+st}, s{76+st}, v114")
            a(f"ds_write_b64 v{123+st}, v[{t}:{t+1}]")
    a("s_waitcnt lgkmcnt(0)")

    a.label("L_p1_join")
    trace(a, 120, idx_imm=60)
    if OPT.get("lt") == 7: a("s_memtime s[100:101]")
    a("s_barrier")
    trace(a, 120, idx_imm=61)
    trace_dump(a, 120, 121, S_W, V_LANE, 0)
    if OPT.get("trace"): a("v_mov_b32 v167, 0")
    stamp(a, 1)
    a(f"""
    s_mov_b32 s{S_TC}, {f2u(T_HI)}
    s_mov_b32 s{S_NC}, {f2u(-T_LO)}
    s_mov_b64 s[{S_SLOW}:{S_SLOW+1}], 0
    v_and_b32 v{V_T0}, 31, v{L}
    v_lshlrev_b32 v{V_T0}, 8, v{V_T0}
    v_lshrrev_b32 v{V_T1}, 5, v{L}
    v_and_b32 v{V_T2}, 15, v{L}
    v_xor_b32 v{V_T1}, v{V_T1}, v{V_T2}
    v_lshlrev_b32 v{V_T1}, 4, v{V_T1}
    v_add_u32 v{V_T0}, v{V_T0}, v{V_T1}
    s_add_u32 s3, s{S_QT}, 1
    s_mul_i32 s3, s3, {AREA}
    s_add_u32 s3, s3, 16384
    s_mul_i32 s76, s{S_KQ}, {AREA}
    """)
    for st8 in range(8):
        a(f"v_xor_b32 v{V_T1}, {st8 << 5}, v{V_T0}")
        a(f"v_add_u32 v{V_F+st8}, s3, v{V_T1}")
        a(f"v_add_u32 v{V_KA+st8}, s76, v{V_T1}")
        a(f"ds_read_b128 v[{V_Q+4*st8}:{V_Q+4*st8+3}], v{V_F+st8}")
    a(f"""
    v_lshrrev_b32 v{V_T0}, 5, v{L}
    v_lshlrev_b32 v{V_T0}, 2, v{V_T0}
    v_bfe_u32 v{V_T1}, v{L}, 2, 2
    v_add_u32 v{V_T0}, v{V_T0}, v{V_T1}
    v_lshlrev_b32 v{V_T0}, 8, v{V_T0}
    v_bfe_u32 v{V_T2}, v{L}, 4, 1
    v_lshlrev_b32 v{V_T2}, 5, v{V_T2}
    v_add_u32 v{V_T0}, v{V_T0}, v{V_T2}
    v_and_b32 v{V_T2}, 3, v{L}
    v_lshlrev_b32 v{V_T2}, 3, v{V_T2}
    v_add_u32 v{V_T0}, v{V_T0}, v{V_T2}
    s_add_u32 s76, s76, 24576
    v_add_u32 v{V_T0}, s76, v{V_T0}
    """)
    for j in range(4):
        a(f"s_add_u32 s3, s{S_KQ}, {j}")
        a(f"s_and_b32 s3, s3, 3")
        a(f"v_xor_b32 v{V_T2}, s3, v{V_T1}")
        a(f"v_lshlrev_b32 v{V_T2}, 6, v{V_T2}")
        a(f"v_add_u32 v{V_VA+j}, v{V_T0}, v{V_T2}")
    for i in range(64):
        a(f"v_mov_b32 v{V_O+i}, 0")
    a(f"""
    v_mov_b32 v{V_M}, 0
    v_mov_b32 v{V_THR}, s{S_TC}
    v_mov_b32 v{V_L}, 0
    s_waitcnt lgkmcnt(0)
    """)

    S = V_S
    def tr2(idx):
        lt = OPT.get("lt")
        if lt and idx < 36:
            i, k = idx // 4, idx % 4
            if (lt == 1 and k == 1) or (lt == 2 and k == 0) or (lt == 3 and k == 2):
                a(f"s_memtime s[{80+2*i}:{81+2*i}]")
        if lt and lt != 7 and idx == 41: a("s_memtime s[98:99]")
        if lt and lt != 7 and idx == 40: a("s_memtime s[100:101]")
        if not OPT.get("trace"): return
        trace(a, 120 if False else 167, idx_imm=idx)
    def rd_k(step, st8):
        a(f"ds_read_b128 v[{V_F+4*st8}:{V_F+4*st8+3}], v{V_KA+st8} offset:{(step % 3) * 8192}")
    def rd_v(step, f):
        t, j = f // 4, f % 4
        for hf in range(2):
            r = V_F + 4*f + 2*hf
            a(f"ds_read_b64_tr_b16 v[{r}:{r+1}], v{V_VA+j} offset:{(step % 2) * 8192 + (16*t + 8*hf)*256}")
    def qk(step, pending_k):
        for st8 in range(8):
            a(f"s_waitcnt lgkmcnt({7 - st8 if st8 < 2 else min(15, 7 - st8 + 2*(st8-1))})")
            c = "0" if st8 == 0 else f"v[{S}:{S+15}]"
            a(f"v_mfma_f32_32x32x16_bf16 v[{S}:{S+15}], v[{V_F+4*st8}:{V_F+4*st8+3}], v[{V_Q+4*st8}:{V_Q+4*st8+3}], {c}")
            if st8 >= 1: rd_v(step, st8 - 1)
        rd_v(step, 7)
    def softmax_half(half):
        for i in range(8*half, 8*half+8):
            a(f"v_exp_f32 v{S+i}, v{S+i}")
        for i in range(8*half, 8*half+8):
            a(f"v_add_f32 v{V_L}, v{V_L}, v{S+i}")
        for j in range(4*half, 4*half+4):
            a(f"v_cvt_pk_bf16_f32 v{S+j}, v{S+2*j}, v{S+2*j+1}")
    def softmax_max(lab, first=False):
        a(f"v_max3_f32 v{V_T0}, v{S}, v{S+1}, v{S+2}")
        a(f"v_max3_f32 v{V_T1}, v{S+3}, v{S+4}, v{S+5}")
        a(f"v_max3_f32 v{V_T0}, v{V_T0}, v{S+6}, v{S+7}")
        a(f"v_max3_f32 v{V_T1}, v{V_T1}, v{S+8}, v{S+9}")
        a(f"v_max3_f32 v{V_T0}, v{V_T0}, v{S+10}, v{S+11}")
        a(f"v_max3_f32 v{V_T1}, v{V_T1}, v{S+12}, v{S+13}")
        a(f"v_max3_f32 v{V_T0}, v{V_T0}, v{S+14}, v{S+15}")
        a(f"v_max_f32 v{V_T0}, v{V_T0}, v{V_T1}")
        a(f"v_mov_b32 v{V_T1}, v{V_T0}")
        a(f"v_permlane32_swap_b32 v{V_T0}, v{V_T1}")
        a(f"v_max_f32 v{V_T0}, v{V_T0}, v{V_T1}")
        a(f"v_cmp_gt_f32 vcc, v{V_T0}, v{V_THR}")
        if first:
            a(f"v_cmp_gt_f32 s[52:53], s{S_NC}, v{V_T0}")
            a(f"s_or_b64 vcc, vcc, s[52:53]")
        a(f"s_or_b64 s[52:53], vcc, s[{S_SLOW}:{S_SLOW+1}]")
        a(f"s_cbranch_scc0 {lab}")
        a(f"s_call_b64 s[{S_RET}:{S_RET+1}], L_slow{'_first' if first else ''}")
        a.label(lab)
    def pv_mfma(f):
        t, j = f // 4, f % 4
        o = V_O + 16*j
        a(f"v_mfma_f32_32x32x16_bf16 v[{o}:{o+15}], v[{V_F+4*f}:{V_F+4*f+3}], v[{S+4*t}:{S+4*t+3}], v[{o}:{o+15}]")
    def pv_then_k(next_step):
        for f in range(8):
            pv_mfma(f)
            if next_step is not None and f >= 1: rd_k(next_step, f - 1)
        if next_step is not None: rd_k(next_step, 7)

    PR = OPT.get("prio", 1)
    def prio(p):
        if PR: a(f"s_setprio {p}")
    a(f"s_cmp_eq_u32 s{S_QT}, 1")
    a("s_cbranch_scc1 L_typeA")
    a(f"s_cmp_eq_u32 s{S_QT}, 2")
    a("s_cbranch_scc1 L_typeC")
    for i in range(8):
        a(f"s_waitcnt vmcnt({8 if i < 7 else 0})")
        tr2(4*i)
        a("s_barrier")
        tr2(4*i+1)
        prio(1)
        if i == 0:
            for st8 in range(8): rd_k(0, st8)
        else:
            pv_then_k(i)
        if i + 2 < 8: issue_k(i + 2)
        qk(i, 0)
        tr2(4*i+2)
        prio(2)
        softmax_max(f"L_D{i}", first=(i == 0))
        softmax_half(0); softmax_half(1)
        a("s_waitcnt lgkmcnt(0)")
    tr2(32)
    a("s_barrier")
    pv_then_k(None)
    a("s_branch L_merge")
    a.label("L_typeA")
    for i in range(8):
        a(f"s_waitcnt vmcnt(0)")
        tr2(4*i)
        a("s_barrier")
        tr2(4*i+1)
        prio(3)
        for st8 in range(8): rd_k(i, st8)
        if i + 1 < 8: issue_v(i + 1)
        qk(i, 0)
        tr2(4*i+2)
        prio(2)
        softmax_max(f"L_A{i}", first=(i == 0))
        softmax_half(0); softmax_half(1)
        prio(0)
        for f in range(8):
            a(f"s_waitcnt lgkmcnt({min(15, 2*(7-f))})")
            pv_mfma(f)
    tr2(32)
    a("s_barrier")
    a("s_branch L_merge")
    a.label("L_typeC")
    a(f"s_cmp_eq_u32 s{S_BLK}, 0")
    srd(a, 12, 56, 66, 4096*1024*2)
    a(f"""
    v_lshrrev_b32 v{V_DOFF+1}, 1, v{L}
    v_lshlrev_b32 v{V_DOFF+1}, 11, v{V_DOFF+1}
    v_and_b32 v{V_DOFF+2}, 1, v{L}
    v_lshlrev_b32 v{V_DOFF+2}, 7, v{V_DOFF+2}
    v_add_u32 v{V_DOFF+1}, v{V_DOFF+1}, v{V_DOFF+2}
    s_lshl_b32 s45, s{S_G}, 10
    s_lshl_b32 s3, s{S_BP}, 8
    s_add_u32 s45, s45, s3
    s_lshl_b32 s3, s{S_KQ}, 6
    s_add_u32 s45, s45, s3
    s_lshl_b32 s45, s45, 11
    s_lshl_b32 s3, s{S_NT8}, 8
    s_add_u32 s45, s45, s3
    """)
    PF_AT = {}
    PF_AT.setdefault(OPT.get("pf0", 7), []).append(0)
    PF_AT.setdefault(OPT.get("pf1", 7), []).append(1)
    for i in range(9):
        tr2(4*i)
        a("s_barrier")
        tr2(4*i+1)
        prio(2)
        if i in PF_AT and OPT.get("wopf", 1) and OPT.get("pf_early"):
            for e in PF_AT[i]:
                a(f"s_add_u32 s3, s45, {e * 32 * 2048}")
                a(f"buffer_load_dword v{V_DOFF+2}, v{V_DOFF+1}, s[12:15], s3 offen {NTWO()}")
        if i == 0:
            for st8 in range(8): rd_k(0, st8)
        else:
            softmax_max(f"L_C{i}", first=(i == 1))
            softmax_half(0); softmax_half(1)
            if i == OPT.get("arr_at", 6):
                a(f"""
                s_cmp_eq_u32 s{S_W}, 8
                s_cbranch_scc0 L_noarr
                s_and_b32 s3, s2, 15
                s_lshl_b32 s3, s3, 2
                s_add_u32 s3, s3, 128
                v_mov_b32 v{V_DOFF}, 0
                v_mov_b32 v{V_DOFF+3}, 1
                s_mov_b64 exec, 1
                buffer_atomic_add v{V_DOFF+3}, v{V_DOFF}, s[16:19], s3 offen sc1
                s_mov_b64 exec, -1
                L_noarr:
                """)
            if i in PF_AT and OPT.get("wopf", 1) and not OPT.get("pf_early"):
                for e in PF_AT[i]:
                    a(f"s_add_u32 s3, s45, {e * 32 * 2048}")
                    a(f"buffer_load_dword v{V_DOFF+2}, v{V_DOFF+1}, s[12:15], s3 offen {NTWO()}")
            pv_then_k(i if i < 8 else None)
        if i < 8:
            prio(1)
            qk(i, 0)
            a("s_waitcnt lgkmcnt(0)")
    def spin(label, load_lines, cmp_val, vreg):
        a(f"s_mov_b32 s{S_CNT}, 0")
        a.label(label)
        a(load_lines)
        a("s_waitcnt vmcnt(0)")
        a(f"v_cmp_ne_u32 vcc, s3, v{vreg}" if cmp_val is None else f"v_cmp_ne_u32 vcc, {cmp_val}, v{vreg}")
        a(f"s_cbranch_vccz {label}_ok")
        a(f"s_add_u32 s{S_CNT}, s{S_CNT}, 1")
        a(f"s_cmp_lt_u32 s{S_CNT}, {SPIN_MAX}")
        a("s_sleep 1")
        a(f"s_cbranch_scc1 {label}")
        a.label(f"{label}_ok")

    def gen_tail():
        T_ACC, T_FR, T_AA, T_BA, T_DOFF, T_X = 0, 48, 112, 113, 114, 116
        S_WOB, S_OB, S_ST = 45, 46, 47
        def ts(i):
            if OPT.get("lt") == 5: a(f"s_memtime s[{80+2*i}:{81+2*i}]")
        ts(0)
        a(f"s_cmp_eq_u32 s{S_BLK}, 0")
        srd(a, 12, 56, 66, 4096*1024*2)
        srd(a, 8, 68, 68, 8*48*2048*2, sel=False)
        a(f"""
        s_mov_b32 s16, s70
        s_mov_b32 s17, s71
        s_mov_b32 s18, 256
        s_mov_b32 s19, 0x00020000
        s_lshl_b32 s{S_WOB}, s{S_G}, 21
        s_lshl_b32 s3, s{S_NT8}, 8
        s_add_u32 s{S_WOB}, s{S_WOB}, s3
        s_mul_i32 s{S_OB}, s{S_G1}, {192*1024}
        s_add_u32 s{S_OB}, s{S_OB}, {O_OFF}
        s_cmp_ge_u32 s{S_W}, 8
        s_cbranch_scc1 L_t_compute
        """)
        a(f"""
        v_lshrrev_b32 v{T_X}, 4, v{L}
        v_and_b32 v{T_X+1}, 15, v{L}
        v_lshlrev_b32 v{T_X+2}, 2, v{T_X}
        v_xor_b32 v{T_X+2}, v{T_X+2}, v{T_X+1}
        v_lshlrev_b32 v{T_X+2}, 4, v{T_X+2}
        v_lshlrev_b32 v{T_X}, 11, v{T_X}
        v_add_u32 v{T_DOFF}, v{T_X}, v{T_X+2}
        v_lshlrev_b32 v{T_DOFF+1}, 4, v{L}
        s_lshl_b32 s{S_T0}, s{S_W}, 15
        s_add_u32 s{S_WOB}, s{S_WOB}, s{S_T0}
        s_lshl_b32 s{S_T2}, s{S_W}, 12
        s_mul_i32 s{S_T3}, s{S_W}, 3072
        s_add_u32 s{S_OB}, s{S_OB}, s{S_T3}
        """)
        def issue_wo(st_sreg_or_imm, slot):
            if isinstance(st_sreg_or_imm, int):
                a(f"s_add_u32 s3, s{S_NT8}, {st_sreg_or_imm}")
            a(f"s_and_b32 s3, s3, 7")
            a(f"s_lshl_b32 s76, s3, 18")
            a(f"s_add_u32 s76, s76, s{S_WOB}")
            a(f"s_add_u32 s77, s{S_T2}, {slot*32768}")
            for q in range(4):
                a(f"s_add_u32 m0, s77, {q*1024}")
                if q: a(f"s_add_u32 s76, s76, {4*2048}")
                a(f"buffer_load_dwordx4 v{T_DOFF}, s[12:15], s76 offen lds")
        def issue_o(st, slot):
            a(f"s_add_u32 s3, s{S_NT8}, {st}")
            a(f"s_and_b32 s3, s3, 7")
            a(f"s_mul_i32 s76, s3, 24576")
            a(f"s_add_u32 s76, s76, s{S_OB}")
            a(f"s_add_u32 m0, s{S_T3}, {98304 + slot*24576}")
            for q in range(3):
                a(f"buffer_load_dwordx4 v{T_DOFF+1}, s[24:27], s76 offen offset:{q*1024} {OSC()}lds")
        a("s_waitcnt vmcnt(0)")
        ts(1)
        a("s_barrier")
        a("s_sleep 1")
        for st in range(3): issue_wo(st, st)
        a("s_barrier")
        ts(2)
        issue_o(0, 0); issue_o(1, 1)
        for st in range(8):
            n = 3 if st == 0 else (0 if st in (1, 7) else 4)
            a(f"s_waitcnt vmcnt({n})")
            if OPT.get("lt") == 6: a(f"s_memtime s[{80+2*st}:{81+2*st}]")
            a("s_barrier")
            if st >= 1:
                if st + 1 <= 7: issue_o(st + 1, (st + 1) % 2)
                if st + 2 <= 7: issue_wo(st + 2, (st + 2) % 3)
        ts(3)
        a("s_branch L_t_join")
        a.label("L_t_compute")
        a(f"""
        v_lshrrev_b32 v{T_X}, 5, v{L}
        v_lshlrev_b32 v{T_X}, 3, v{T_X}
        v_bfe_u32 v{T_X+1}, v{L}, 2, 2
        v_add_u32 v{T_X}, v{T_X}, v{T_X+1}
        v_lshlrev_b32 v{T_X}, 8, v{T_X}
        v_bfe_u32 v{T_X+2}, v{L}, 4, 1
        v_lshlrev_b32 v{T_X+2}, 5, v{T_X+2}
        v_add_u32 v{T_X}, v{T_X}, v{T_X+2}
        v_and_b32 v{T_X+2}, 3, v{L}
        v_lshlrev_b32 v{T_X+2}, 3, v{T_X+2}
        v_add_u32 v{T_X}, v{T_X}, v{T_X+2}
        v_xor_b32 v{T_X+2}, s{S_KQ}, v{T_X+1}
        v_lshlrev_b32 v{T_X+2}, 6, v{T_X+2}
        v_add_u32 v{T_AA}, v{T_X}, v{T_X+2}
        v_lshlrev_b32 v{T_BA}, 4, v{L}
        v_add_u32 v{T_BA}, 98304, v{T_BA}
        """)
        for i in range(48):
            a(f"v_mov_b32 v{T_ACC+i}, 0")
        a("s_waitcnt vmcnt(0)")
        ts(1)
        a("s_barrier")
        a(f"s_cmp_eq_u32 s{S_W}, 8")
        a("s_cbranch_scc0 L_t_nopoll1")
        a("s_setprio 3")
        a(f"""
        s_lshl_b32 s3, s{S_G1}, 7
        s_add_u32 s76, s3, {FLAG_OFF}
        s_lshl_b32 s3, s{S_NT8}, 2
        s_add_u32 s77, s76, s3
        v_mov_b32 v{T_X}, 0
        v_mov_b32 v{T_X+1}, {TOK_A}
        s_mov_b64 exec, 1
        buffer_store_dword v{T_X+1}, v{T_X}, s[24:27], s77 offen sc1
        s_mov_b64 exec, -1
        v_and_b32 v{T_X}, 15, v{L}
        v_lshlrev_b32 v{T_X}, 2, v{T_X}
        v_and_b32 v{T_X+2}, 7, v{L}
        v_lshlrev_b32 v{T_X+2}, 2, v{T_X+2}
        """)
        spin("L_spin_dbg", f"buffer_load_dword v{T_X+1}, v{T_X}, s[16:19], 0 offen offset:128 sc1", 16, T_X+1)
        a(f"s_mov_b32 s3, {TOK_A}")
        spin("L_spin_a", f"buffer_load_dword v{T_X+1}, v{T_X+2}, s[24:27], s76 offen sc1", None, T_X+1)
        a("s_setprio 0")
        a.label("L_t_nopoll1")
        a("s_barrier")
        ts(2)
        def rd_list(j):
            b = T_FR + 16*(j % 4)
            out = []
            for hf in range(2):
                out.append(f"ds_read_b64_tr_b16 v[{b+2*hf}:{b+2*hf+1}], v{T_AA} offset:{j*4096 + hf*1024}")
            for m in range(3):
                out.append(f"ds_read_b128 v[{b+4+4*m}:{b+7+4*m}], v{T_BA} offset:{(j*3+m)*1024}")
            return out
        def mm_list(j):
            b = T_FR + 16*(j % 4)
            return [f"v_mfma_f32_32x32x16_bf16 v[{T_ACC+16*m}:{T_ACC+16*m+15}], v[{b}:{b+3}], v[{b+4+4*m}:{b+7+4*m}], v[{T_ACC+16*m}:{T_ACC+16*m+15}]" for m in range(3)]
        def mm3(j):
            for x in mm_list(j): a(x)
        def weave(mm, rd):
            groups = [rd[0:3], rd[3:4], rd[4:5]]
            for x, g in zip(mm, groups):
                a(x)
                for y in g: a(y)
        a(f"s_mov_b32 s{S_ST}, 0")
        a(f"s_mov_b32 s{S_SLOT}, 0")
        a.label("L_t_loop")
        if OPT.get("lt") == 6:
            for st in range(8):
                a(f"s_cmp_eq_u32 s{S_ST}, {st}")
                a(f"s_cbranch_scc0 L_lt6_{st}")
                a(f"s_memtime s[{80+2*st}:{81+2*st}]")
                a.label(f"L_lt6_{st}")
        a("s_barrier")
        a(f"s_cmp_eq_u32 s{S_ST}, 0")
        a("s_cbranch_scc0 L_t_left")
        for y in rd_list(0) + rd_list(1): a(y)
        a("s_branch L_t_skip")
        a.label("L_t_left")
        weave(mm_list(6), rd_list(0))
        weave(mm_list(7), rd_list(1))
        a.label("L_t_skip")
        for j in range(6):
            a("s_waitcnt lgkmcnt(5)")
            weave(mm_list(j), rd_list(j + 2))
        a(f"""
        s_add_u32 s{S_SLOT}, s{S_SLOT}, 1
        s_cmp_eq_u32 s{S_SLOT}, 3
        s_cselect_b32 s{S_SLOT}, 0, s{S_SLOT}
        s_mov_b32 s3, 32768
        s_cselect_b32 s3, {(-65536) & 0xffffffff}, s3
        v_add_u32 v{T_AA}, s3, v{T_AA}
        s_bitcmp1_b32 s{S_ST}, 0
        s_mov_b32 s3, 24576
        s_cselect_b32 s3, {(-24576) & 0xffffffff}, s3
        v_add_u32 v{T_BA}, s3, v{T_BA}
        s_add_u32 s{S_ST}, s{S_ST}, 1
        s_cmp_lt_u32 s{S_ST}, 8
        s_waitcnt lgkmcnt(0)
        s_cbranch_scc1 L_t_loop
        """)
        mm3(6); mm3(7)
        ts(3)
        a(f"""
        s_lshl_b32 s3, s{S_G2}, 2
        s_add_u32 s3, s3, s{S_KQ}
        s_lshl_b32 s3, s3, 2
        s_add_u32 s3, s3, s{S_G}
        s_mul_i32 s76, s3, 12288
        s_add_u32 s76, s76, {PART_OFF}
        v_lshlrev_b32 v{T_X}, 4, v{L}
        """)
        for m in range(3):
            for rq in range(4):
                r = T_ACC + 16*m + 4*rq
                a(f"buffer_store_dwordx4 v[{r}:{r+3}], v{T_X}, s[24:27], s76 offen offset:{rq*1024} sc1")
            if m < 2: a(f"s_add_u32 s76, s76, 4096")
        a("s_waitcnt vmcnt(0)")
        a.label("L_t_join")
        ts(4)
        a("s_barrier")
        a(f"s_cmp_eq_u32 s{S_W}, 8")
        a("s_cbranch_scc0 L_t_nopoll2")
        a(f"""
        s_lshl_b32 s3, s{S_G2}, 7
        s_add_u32 s76, s3, {FLAG_OFF + 8192}
        s_lshl_b32 s3, s{S_G}, 2
        s_add_u32 s77, s76, s3
        v_mov_b32 v{T_X}, 0
        v_mov_b32 v{T_X+1}, {TOK_B}
        s_mov_b64 exec, 1
        buffer_store_dword v{T_X+1}, v{T_X}, s[24:27], s77 offen sc1
        s_mov_b64 exec, -1
        v_and_b32 v{T_X+2}, 3, v{L}
        v_lshlrev_b32 v{T_X+2}, 2, v{T_X+2}
        s_mov_b32 s3, {TOK_B}
        """)
        spin("L_spin_b", f"buffer_load_dword v{T_X+1}, v{T_X+2}, s[24:27], s76 offen sc1", None, T_X+1)
        a.label("L_t_nopoll2")
        a("s_barrier")
        ts(5)
        a(f"""
        s_lshl_b32 s3, s{S_G2}, 2
        s_add_u32 s3, s3, s{S_G}
        s_mul_i32 s76, s3, {4*12288}
        s_lshl_b32 s3, s{S_W}, 10
        s_add_u32 s76, s76, s3
        s_add_u32 s76, s76, {PART_OFF}
        v_lshlrev_b32 v{T_X}, 4, v{L}
        """)
        for src in range(4):
            a(f"buffer_load_dwordx4 v[{16+4*src}:{19+4*src}], v{T_X}, s[24:27], s76 offen sc1")
            if src < 3: a(f"s_add_u32 s76, s76, 12288")
        a(f"""
        s_mul_i32 s3, s{S_BP}, 96
        s_lshl_b32 s77, s{S_QT}, 5
        s_add_u32 s3, s3, s77
        s_lshl_b32 s3, s3, 12
        s_lshl_b32 s77, s{S_BLK}, 11
        s_add_u32 s3, s3, s77
        s_lshl_b32 s77, s{S_NT8}, 8
        s_add_u32 s3, s3, s77
        s_lshl_b32 s77, s{S_G}, 6
        s_add_u32 s3, s3, s77
        s_lshl_b32 s77, s{S_KQ}, 4
        s_add_u32 s3, s3, s77
        v_and_b32 v{T_X+1}, 31, v{L}
        v_lshlrev_b32 v{T_X+1}, 12, v{T_X+1}
        v_lshrrev_b32 v{T_X+2}, 5, v{L}
        v_lshlrev_b32 v{T_X+2}, 3, v{T_X+2}
        v_add_u32 v{T_X+1}, v{T_X+1}, v{T_X+2}
        s_waitcnt vmcnt(0)
        """)
        for i in range(4):
            a(f"v_add_f32 v{16+i}, v{16+i}, v{20+i}")
            a(f"v_add_f32 v{24+i}, v{24+i}, v{28+i}")
        for i in range(4):
            a(f"v_add_f32 v{16+i}, v{16+i}, v{24+i}")
        a("v_cvt_pk_bf16_f32 v20, v16, v17")
        a("v_cvt_pk_bf16_f32 v21, v18, v19")
        a(f"buffer_store_dwordx2 v[20:21], v{T_X+1}, s[8:11], s3 offen")
        ts(6)

    a.label("L_merge")
    prio(0)
    stamp(a, 2)
    tr2(40)
    F = V_F
    def mt(i):
        if OPT.get("lt") == 4: a(f"s_memtime s[{80+2*i}:{81+2*i}]")
    mt(0)
    a(f"""
    v_mov_b32 v{V_T0}, v{V_L}
    v_mov_b32 v{V_T1}, v{V_L}
    s_mul_i32 s76, s{S_KQ}, {AREA}
    v_lshlrev_b32 v{V_T2}, 4, v{L}
    v_permlane32_swap_b32 v{V_T0}, v{V_T1}
    s_mul_i32 s3, s{S_QT}, 12288
    s_add_u32 s77, s76, s3
    v_add_f32 v{V_L}, v{V_T0}, v{V_T1}
    v_add_u32 v{V_T1}, s77, v{V_T2}
    """)
    for j in range(1, 4):
        for rq in range(4):
            r = V_O + 16*j + 4*rq
            a(f"ds_write_b128 v{V_T1}, v[{r}:{r+3}] offset:{(j-1)*4096 + rq*1024}")
    mt(1)
    a(f"""
    v_and_b32 v{V_T0}, 31, v{L}
    v_lshlrev_b32 v{V_T0}, 3, v{V_T0}
    s_lshl_b32 s3, s{S_QT}, 8
    s_add_u32 s3, s3, 36864
    v_add_u32 v{V_T0}, s3, v{V_T0}
    v_add_u32 v{V_T1}, s76, v{V_T0}
    ds_write_b64 v{V_T1}, v[{V_M}:{V_L}]
    """)
    for j in range(1, 4):
        a(f"s_sub_u32 s3, s{S_KQ}, {j}")
        a(f"s_and_b32 s3, s3, 3")
        a(f"s_mul_i32 s76, s3, {AREA}")
        a(f"v_add_u32 v{V_Q+j}, s76, v{V_T0}")
        a(f"s_mul_i32 s3, s{S_QT}, 12288")
        a(f"s_add_u32 s76, s76, s3")
        a(f"v_add_u32 v{V_Q+4+j}, s76, v{V_T2}")
    A0, A1, A2, A3 = V_Q+8, V_Q+9, V_Q+10, V_Q+11
    a(f"""
    v_and_b32 v{A1}, 31, v{L}
    s_lshl_b32 s3, s{S_QT}, 5
    v_add_u32 v{A1}, s3, v{A1}
    v_cmp_le_u32 vcc, 48, v{A1}
    v_subrev_u32 v{A2}, 48, v{A1}
    v_mov_b32 v{A0}, 0
    v_mov_b32 v{A3}, {8*3072}
    v_cndmask_b32 v{A1}, v{A1}, v{A2}, vcc
    v_cndmask_b32 v{A0}, v{A0}, v{A3}, vcc
    s_and_b32 s3, s{S_B}, 1
    s_mul_i32 s3, s3, 48
    v_add_u32 v{A1}, s3, v{A1}
    v_lshrrev_b32 v{A2}, 5, v{A1}
    v_lshlrev_b32 v{A2}, 10, v{A2}
    v_add_u32 v{A0}, v{A0}, v{A2}
    v_and_b32 v{A1}, 31, v{A1}
    v_lshlrev_b32 v{A1}, 4, v{A1}
    v_add_u32 v{A0}, v{A0}, v{A1}
    v_lshrrev_b32 v{A1}, 5, v{L}
    v_lshlrev_b32 v{A1}, 3, v{A1}
    v_add_u32 v{A0}, v{A0}, v{A1}
    s_lshl_b32 s3, s{S_HP}, 4
    s_lshl_b32 s76, s{S_KQ}, 1
    s_add_u32 s3, s3, s76
    s_mul_i32 s3, s3, 3072
    s_mul_i32 s79, s{S_G1}, {192*1024}
    s_add_u32 s79, s79, s3
    s_add_u32 s79, s79, {O_OFF}
    """)
    mt(2)
    a("s_waitcnt lgkmcnt(0)")
    mt(3)
    a("s_barrier")
    mt(4)
    for j in range(1, 4):
        a(f"ds_read_b64 v[{F+2*j}:{F+2*j+1}], v{V_Q+j}")
    for j in range(1, 4):
        for rq in range(4):
            r = V_O + 16*j + 4*rq
            a(f"ds_read_b128 v[{r}:{r+3}], v{V_Q+4+j} offset:{(j-1)*4096 + rq*1024}")
    a("s_waitcnt lgkmcnt(12)")
    mt(5)
    a(f"""
    v_max3_f32 v{F+8}, v{V_M}, v{F+2}, v{F+4}
    v_max_f32 v{F+8}, v{F+8}, v{F+6}
    v_sub_f32 v{F+10}, v{V_M}, v{F+8}
    v_sub_f32 v{F+12}, v{F+2}, v{F+8}
    v_sub_f32 v{F+14}, v{F+4}, v{F+8}
    v_sub_f32 v{F+16}, v{F+6}, v{F+8}
    v_exp_f32 v{F+10}, v{F+10}
    v_exp_f32 v{F+12}, v{F+12}
    v_exp_f32 v{F+14}, v{F+14}
    v_exp_f32 v{F+16}, v{F+16}
    v_mul_f32 v{F+18}, v{F+10}, v{V_L}
    v_fma_f32 v{F+18}, v{F+12}, v{F+3}, v{F+18}
    v_fma_f32 v{F+18}, v{F+14}, v{F+5}, v{F+18}
    v_fma_f32 v{F+18}, v{F+16}, v{F+7}, v{F+18}
    v_rcp_f32 v{F+18}, v{F+18}
    v_mul_f32 v{F+10}, v{F+10}, v{F+18}
    v_mul_f32 v{F+12}, v{F+12}, v{F+18}
    v_mul_f32 v{F+14}, v{F+14}, v{F+18}
    v_mul_f32 v{F+16}, v{F+16}, v{F+18}
    """)
    mt(6)
    for i in range(0, 16, 2):
        a(f"v_pk_mul_f32 v[{V_O+i}:{V_O+i+1}], v[{V_O+i}:{V_O+i+1}], v[{F+10}:{F+11}] op_sel_hi:[1,0]")
    for j in range(1, 4):
        a(f"s_waitcnt lgkmcnt({12 - 4*j})")
        if j == 3: a("s_barrier")
        for i in range(0, 16, 2):
            a(f"v_pk_fma_f32 v[{V_O+i}:{V_O+i+1}], v[{V_O+16*j+i}:{V_O+16*j+i+1}], v[{F+10+2*j}:{F+11+2*j}], v[{V_O+i}:{V_O+i+1}] op_sel_hi:[1,0,1]")
    mt(7)
    for rq in range(4):
        a(f"v_cvt_pk_bf16_f32 v{F+20+2*rq}, v{V_O+4*rq}, v{V_O+4*rq+1}")
        a(f"v_cvt_pk_bf16_f32 v{F+20+2*rq+1}, v{V_O+4*rq+2}, v{V_O+4*rq+3}")
    for rq in range(4):
        a(f"buffer_store_dwordx2 v[{F+20+2*rq}:{F+20+2*rq+1}], v{A0}, s[24:27], s79 offen offset:{(rq & 1)*512} sc1" if rq < 2 else
          f"buffer_store_dwordx2 v[{F+20+2*rq}:{F+20+2*rq+1}], v{A0}, s[24:27], s79 offen offset:{3072 + (rq & 1)*512} sc1")
    gen_tail()
    stamp(a, 3)
    tr2(41)
    trace_dump(a, 167, 100, S_W, V_LANE, 1)
    if OPT.get("lt"):
        a("s_waitcnt lgkmcnt(0)")
        a(f"s_lshl_b32 s3, s2, 4")
        a(f"s_add_u32 s3, s3, s{S_W}")
        a(f"s_lshl_b32 s3, s3, 8")
        a(f"s_add_u32 s3, s3, {(56 << 20) + (1 << 20)}")
        a("v_mov_b32 v102, s3")
        for i in range(11):
            a(f"v_mov_b32 v100, s{80+2*i}")
            a(f"buffer_store_dword v100, v102, s[24:27], 0 offen offset:{4*i}")
            a("s_waitcnt vmcnt(0)")
    if OPT["stamps"]: a("s_memtime s[90:91]")
    if OPT.get("dbgclk"):
        a(f"""
        s_waitcnt lgkmcnt(0)
        s_cmp_eq_u32 s2, {OPT.get("dbgwg", 77)}
        s_cbranch_scc0 L_nodbg
        s_cmp_eq_u32 s{S_W}, 0
        s_cbranch_scc0 L_nodbg
        s_sub_u32 s90, s90, s88
        s_sub_u32 s82, s82, s80
        s_sub_u32 s84, s84, s80
        s_sub_u32 s86, s86, s80
        v_mov_b32 v100, s90
        v_mov_b32 v101, s82
        v_mov_b32 v102, s84
        v_mov_b32 v103, s86
        v_mov_b32 v104, 0
        s_mov_b64 exec, 1
        buffer_store_dwordx4 v[100:103], v104, s[16:19], 0 offen
        s_mov_b64 exec, -1
        L_nodbg:
        """)
    else:
        stamp_flush(a, 6, 100, S_W, 0)
    a("s_endpgm")
    a.label("L_slow_first")
    a(f"v_cndmask_b32 v{V_M}, v{V_M}, v{V_T0}, vcc")
    a(f"s_mov_b64 s[{S_SLOW}:{S_SLOW+1}], -1")
    a(f"v_add_f32 v{V_THR}, s{S_TC}, v{V_M}")
    a("s_branch L_slow_sub")
    a.label("L_slow")
    a("s_cbranch_vccz L_slow_sub")
    a(f"v_max_f32 v{V_T1}, v{V_M}, v{V_T0}")
    a(f"v_cndmask_b32 v{V_T1}, v{V_M}, v{V_T1}, vcc")
    a.label("L_slow_upd")
    a(f"""
    s_mov_b64 s[{S_SLOW}:{S_SLOW+1}], -1
    v_sub_f32 v{V_T2}, v{V_M}, v{V_T1}
    v_exp_f32 v{V_T2}, v{V_T2}
    v_mov_b32 v{V_M}, v{V_T1}
    v_add_f32 v{V_THR}, s{S_TC}, v{V_T1}
    v_mul_f32 v{V_L}, v{V_L}, v{V_T2}
    """)
    for i in range(64):
        a(f"v_mul_f32 v{V_O+i}, v{V_T2}, v{V_O+i}")
    a.label("L_slow_sub")
    for i in range(16):
        a(f"v_sub_f32 v{V_S+i}, v{V_S+i}, v{V_M}")
    a("s_nop 1")
    a(f"s_setpc_b64 s[{S_RET}:{S_RET+1}]")
    a.label("L_k1_end")
    a("s_endpgm")
    return a

def build():
    k1 = gen_k1().finalize()
    h1, d1 = kernel_text("gqa_fused_kernel", k1, 168)
    hdr = open("concat_heads__gqa_block_cached__gqa_block_cached__near_ridge.s.ref").read().split("; Override")[0]
    txt = hdr
    txt += "; @launch kernel=gqa_fused_kernel grid=(256,1,1) block=(768,1,1) lds=163840\n"
    txt += '.amdgcn_target "amdgcn-amd-amdhsa--gfx950"\n.text\n' + h1
    txt += '.section .rodata,"a"\n.p2align 6\n' + d1
    return txt

if __name__ == "__main__":
    out = sys.argv[1]
    for kv in sys.argv[2:]:
        k, v = kv.split("=")
        OPT[k] = int(v, 0)
    open(out, "w").write(build())
    print("wrote", out)
```

```python
import sys, math, struct
from asmlib import *
import gen as G1
G1.OPT["stamp_off"] = 48 << 20
from gen import f2u, load_ptrs, srd, AREA, C_SCALE, T_LOG2

OPT = G1.OPT
stamp, stamp_flush, trace, trace_dump = G1.stamp, G1.stamp_flush, G1.trace, G1.trace_dump
NT = G1.NT

NTQ = lambda: 'nt ' if OPT.get('nt_wq') else ''
NTX = lambda: 'nt ' if OPT.get('nt_x') else ''
NTKV = lambda: 'nt ' if OPT.get('nt_kv') else ''
NTWO = lambda: 'nt ' if OPT.get('nt_wo') else ''
OSC = lambda: '' if OPT.get('o_plain') else 'sc1 '
O_OFF = 0
FLAG_OFF = 8 << 20
PART_OFF = 16 << 20
TOK_A, TOK_B = 0x5EED0A01, 0x5EED0B02
SPIN_MAX = 1 << 18

def emit_tile(a, dst, s_cnt, phi, m1, m3, win, r, t0, t1, t2):
    sc = f"s{s_cnt}" if isinstance(s_cnt, int) else str(s_cnt[1])
    a(f"s_add_u32 s{t0}, s{phi}, {win}")
    a(f"s_sub_u32 s{t1}, {win}, s{phi}")
    a(f"s_mov_b32 s{t2}, s{m3}")
    a(f"s_cmp_lt_u32 {sc}, s{t0}" if isinstance(s_cnt, int) else f"s_cmp_gt_u32 s{t0}, {sc}")
    a(f"s_cselect_b32 s{t0}, s{phi}, s{t0}")
    a(f"s_cselect_b32 s{t1}, {win}, s{t1}")
    a(f"s_cselect_b32 s{t2}, {256 // win}, s{t2}")
    a(f"s_cmp_lt_u32 {sc}, s{phi}" if isinstance(s_cnt, int) else f"s_cmp_gt_u32 s{phi}, {sc}")
    a(f"s_cselect_b32 s{t0}, 0, s{t0}")
    a(f"s_cselect_b32 s{t1}, s{phi}, s{t1}")
    a(f"s_cselect_b32 s{t2}, s{m1}, s{t2}")
    a(f"s_sub_u32 s{dst}, {sc}, s{t0}")
    a(f"s_add_u32 s{dst}, s{dst}, s{r}")
    a(f"s_mul_i32 s{t2}, s{dst}, s{t2}")
    a(f"s_lshr_b32 s{t2}, s{t2}, 8")
    a(f"s_mul_i32 s{t2}, s{t2}, s{t1}")
    a(f"s_sub_u32 s{dst}, s{dst}, s{t2}")
    a(f"s_add_u32 s{dst}, s{dst}, s{t0}")

def gen_k1():
    a = Asm()
    S_PHI, S_M1, S_M3, S_P2 = 4, 5, 6, 7
    S_BP, S_NT8, S_G1, S_G2 = 54, 55, 58, 59
    S_W, S_BLK, S_G, S_B, S_HP, S_KQ, S_QT = 28, 29, 30, 31, 32, 33, 34
    S_C, S_NC, S_TC = 35, 36, 37
    S_RET = 38
    S_SLOW = 50
    T_HI, T_LO = 16.0, 64.0
    S_T0, S_T1, S_T2, S_T3 = 41, 42, 43, 44
    S_WQB, S_XB, S_KVB = 45, 46, 47
    S_CNT, S_SLOT = 75, 78
    V_O, V_Q, V_S, V_F, V_KA, V_VA = 0, 64, 96, 112, 144, 152
    V_M, V_L, V_NMC, V_THR, V_T0, V_T1, V_T2, V_LANE, V_DOFF = 156, 157, 158, 159, 160, 161, 162, 163, 164
    L = V_LANE

    def group_ids():
        a(f"""
        s_lshr_b32 s{S_BP}, s{S_B}, 1
        s_and_b32 s{S_NT8}, s{S_B}, 1
        s_lshl_b32 s{S_NT8}, s{S_NT8}, 2
        s_add_u32 s{S_NT8}, s{S_NT8}, s{S_HP}
        s_lshl_b32 s{S_G1}, s{S_BLK}, 2
        s_add_u32 s{S_G1}, s{S_G1}, s{S_G}
        s_lshl_b32 s{S_G1}, s{S_G1}, 2
        s_add_u32 s{S_G1}, s{S_G1}, s{S_BP}
        s_lshl_b32 s{S_G2}, s{S_BLK}, 2
        s_add_u32 s{S_G2}, s{S_G2}, s{S_BP}
        s_lshl_b32 s{S_G2}, s{S_G2}, 3
        s_add_u32 s{S_G2}, s{S_G2}, s{S_NT8}
        """)
    a("s_cmp_ge_u32 s2, 256")
    a("s_cbranch_scc1 L_k1_end")
    stamp(a, 0)
    if OPT["stamps"]: a("s_memtime s[88:89]")
    if OPT.get("lt") == 7: a("s_memtime s[80:81]")
    load_ptrs(a)
    if OPT.get("trace"):
        a("v_mov_b32 v120, 0")
        a("v_mov_b32 v167, 0")
        trace(a, 120, idx_imm=63)
    a(f"""
    v_lshrrev_b32 v1, 6, v0
    v_and_b32 v{L}, 63, v0
    s_and_b32 s3, s2, 7
    v_readfirstlane_b32 s{S_W}, v1
    s_lshr_b32 s{S_BLK}, s3, 2
    s_and_b32 s{S_G}, s3, 3
    s_lshr_b32 s3, s2, 3
    s_lshr_b32 s{S_B}, s3, 2
    s_and_b32 s{S_HP}, s3, 3
    s_and_b32 s{S_KQ}, s{S_W}, 3
    s_lshr_b32 s{S_QT}, s{S_W}, 2
    s_lshl_b32 s{S_WQB}, s{S_G}, 11
    s_lshl_b32 s3, s{S_HP}, 9
    s_add_u32 s{S_WQB}, s{S_WQB}, s3
    s_mul_i32 s{S_XB}, s{S_B}, {48*2048}
    s_cmp_ge_u32 s{S_W}, 8
    s_cbranch_scc1 L_p1_compute
    """)
    a(f"""
    v_lshrrev_b32 v5, 5, v{L}
    v_and_b32 v6, 31, v{L}
    s_and_b32 s{S_T1}, s{S_W}, 1
    s_lshl_b32 s{S_T1}, s{S_T1}, 2
    v_or_b32 v7, s{S_T1}, v5
    v_lshlrev_b32 v8, 1, v7
    v_xor_b32 v8, v8, v6
    v_lshlrev_b32 v8, 4, v8
    v_lshlrev_b32 v9, 13, v5
    v_add_u32 v2, v9, v8
    v_xor_b32 v8, 64, v8
    v_add_u32 v3, v9, v8
    s_mul_i32 s{S_T1}, s{S_W}, 6
    v_lshrrev_b32 v5, 3, v{L}
    v_add_u32 v5, s{S_T1}, v5
    v_lshrrev_b32 v6, 1, v5
    v_xor_b32 v6, v6, v{L}
    v_and_b32 v6, 7, v6
    v_lshlrev_b32 v6, 4, v6
    v_lshlrev_b32 v5, 11, v5
    v_add_u32 v4, v5, v6
    s_lshl_b32 s{S_T2}, s{S_W}, 16
    s_add_u32 s{S_WQB}, s{S_WQB}, s{S_T2}
    s_lshl_b32 s{S_T2}, s{S_W}, 12
    s_mul_i32 s{S_T3}, s{S_W}, 768
    s_add_u32 s{S_T3}, s{S_T3}, 32768
    """)
    if OPT.get("stag1", 2) == 1:
        a(f"""
        s_add_u32 s{S_PHI}, s{S_HP}, 1
        s_lshl_b32 s3, s{S_HP}, 3
        s_lshr_b32 s{S_M1}, 0x3f557fff, s3
        s_and_b32 s{S_M1}, s{S_M1}, 0xff
        s_add_u32 s{S_M1}, s{S_M1}, 1
        s_lshr_b32 s{S_M3}, 0x40342b25, s3
        s_and_b32 s{S_M3}, s{S_M3}, 0xff
        """)
    else:
        pa, pb = OPT.get("phiA", 8), OPT.get("phiB", 4)
        Mt = lambda n: -(-256 // n) if n else 1
        a(f"""
        s_cmp_eq_u32 s{S_BLK}, 0
        s_mov_b32 s{S_PHI}, {pb}
        s_cselect_b32 s{S_PHI}, {pa}, s{S_PHI}
        s_mov_b32 s{S_M1}, {Mt(pb)}
        s_cselect_b32 s{S_M1}, {Mt(pa)}, s{S_M1}
        s_mov_b32 s{S_M3}, {Mt(8-pb)}
        s_cselect_b32 s{S_M3}, {Mt(8-pa)}, s{S_M3}
        """)
    a(f"""
    s_cmp_eq_u32 s{S_BLK}, 0
    s_waitcnt lgkmcnt(0)
    """)
    if OPT.get("lt") == 7: a("s_memtime s[82:83]")
    srd(a, 8, 48, 58, 8*48*1024*2)
    srd(a, 12, 54, 64, 1024*4096*2)
    def issue_tile():
        if OPT.get("stag1", 2):
            emit_tile(a, 3, S_CNT, S_PHI, S_M1, S_M3, 8, S_B, 76, 77, 79)
        else:
            a(f"""
            s_add_u32 s3, s{S_CNT}, s{S_B}
            s_and_b32 s3, s3, 7
            s_and_b32 s76, s{S_CNT}, 8
            s_or_b32 s3, s3, s76
            """)
        a(f"""
        s_lshl_b32 s76, s3, 19
        s_add_u32 s76, s76, s{S_WQB}
        s_add_u32 s77, s{S_SLOT}, s{S_T2}
        """)
        def wq4(nt):
            for q in range(4):
                a(f"s_add_u32 m0, s77, {q*1024}")
                if q: a(f"s_add_u32 s76, s76, {2*8192}")
                a(f"buffer_load_dwordx4 v{2 + (q & 1)}, s[12:15], s76 offen {nt}lds")
        if OPT.get("ntf_wq"):
            l1, l2 = a.newlabel("L_wqn"), a.newlabel("L_wqd")
            a(f"s_and_b32 s79, s{S_CNT}, 7")
            a(f"s_cbranch_scc1 {l1}")
            wq4("nt ")
            a(f"s_branch {l2}")
            a.label(l1)
            wq4("")
            a.label(l2)
        else:
            wq4(NTQ())
        a(f"""
        s_lshl_b32 s76, s3, 7
        s_add_u32 s76, s76, s{S_XB}
        s_add_u32 m0, s{S_SLOT}, s{S_T3}
        s_mov_b32 exec_hi, {'0xffff' if not OPT.get('xfull') else '-1'}
        buffer_load_dwordx4 v4, s[8:11], s76 offen {NTX()}lds
        s_mov_b32 exec_hi, -1
        """)
    a(f"s_mov_b32 s{S_CNT}, 0")
    a(f"s_mov_b32 s{S_SLOT}, 0")
    issue_tile()
    a(f"s_cmp_eq_u32 s{S_W}, 0")
    a("s_cbranch_scc0 L_noclr")
    srd(a, 24, 72, 72, 1 << 28, sel=False)
    a(f"""
    s_lshr_b32 s76, s{S_B}, 1
    s_and_b32 s77, s{S_B}, 1
    s_lshl_b32 s77, s77, 2
    s_add_u32 s77, s77, s{S_HP}
    s_lshl_b32 s3, s{S_BLK}, 2
    s_add_u32 s3, s3, s{S_G}
    s_lshl_b32 s3, s3, 2
    s_add_u32 s3, s3, s76
    s_lshl_b32 s3, s3, 7
    s_lshl_b32 s79, s77, 2
    s_add_u32 s3, s3, s79
    s_add_u32 s3, s3, {FLAG_OFF}
    s_lshl_b32 s79, s{S_BLK}, 2
    s_add_u32 s79, s79, s76
    s_lshl_b32 s79, s79, 3
    s_add_u32 s79, s79, s77
    s_lshl_b32 s79, s79, 7
    s_lshl_b32 s76, s{S_G}, 2
    s_add_u32 s79, s79, s76
    s_add_u32 s79, s79, {FLAG_OFF + 8192}
    v_mov_b32 v10, 0
    s_mov_b64 exec, 1
    buffer_store_dword v10, v10, s[24:27], s3 offen sc1
    buffer_store_dword v10, v10, s[24:27], s79 offen sc1
    s_mov_b64 exec, -1
    L_noclr:
    """)
    if OPT.get("tlbw", 1):
        a(f"s_cmp_eq_u32 s{S_W}, {OPT.get('tlbw_wave', 0)}")
        a("s_cbranch_scc0 L_notlb")
        a(f"""
        v_lshlrev_b32 v10, 21, v{L}
        s_mov_b64 exec, 0xf
        buffer_load_dword v11, v10, s[12:15], 0 offen
        s_cmp_eq_u32 s{S_BLK}, 0
        """)
        srd(a, 16, 50, 60, 8*4*1024*128*2)
        srd(a, 20, 52, 62, 8*4*1024*128*2)
        a(f"""
        s_lshl_b32 s3, s{S_B}, 2
        s_add_u32 s3, s3, s{S_G}
        s_lshl_b32 s3, s3, 18
        s_mov_b64 exec, 1
        v_mov_b32 v10, 0
        buffer_load_dword v11, v10, s[16:19], s3 offen
        buffer_load_dword v11, v10, s[20:23], s3 offen
        s_cmp_eq_u32 s{S_BLK}, 0
        s_cselect_b32 s16, s56, s66
        s_cselect_b32 s17, s57, s67
        s_mov_b32 s18, {4096*1024*2}
        s_lshl_b32 s3, s{S_G}, 21
        buffer_load_dword v11, v10, s[16:19], s3 offen
        s_mov_b32 s16, s72
        s_mov_b32 s17, s73
        s_mov_b32 s18, {1 << 28}
        s_mov_b64 exec, -1
        v_lshlrev_b32 v10, 21, v{L}
        s_mov_b64 exec, 0x7fff
        buffer_load_dword v11, v10, s[16:19], 0 offen
        s_mov_b32 s16, s68
        s_mov_b32 s17, s69
        s_mov_b32 s18, {8*48*2048*2}
        s_mov_b64 exec, 1
        v_mov_b32 v10, 0
        buffer_load_dword v11, v10, s[16:19], 0 offen
        s_mov_b64 exec, -1
        L_notlb:
        """)
    if OPT.get("b01", 1): a("s_barrier")
    a(f"s_mov_b32 s{S_CNT}, 1")
    a(f"s_mov_b32 s{S_SLOT}, {AREA}")
    issue_tile()
    a(f"s_mov_b32 s{S_CNT}, 2")
    a(f"s_mov_b32 s{S_SLOT}, {2*AREA}")
    if OPT.get("lt") == 7: a("s_memtime s[84:85]")
    a(f"s_cmp_eq_u32 s{S_BLK}, 0")
    srd(a, 16, 50, 60, 8*4*1024*128*2)
    srd(a, 20, 52, 62, 8*4*1024*128*2)
    srd(a, 24, 72, 72, 1 << 28, sel=False)
    group_ids()
    a(f"""
    s_lshl_b32 s3, s{S_B}, 2
    s_add_u32 s3, s3, s{S_G}
    s_lshl_b32 s{S_KVB}, s3, 18
    s_lshl_b32 s3, s{S_KQ}, 16
    s_add_u32 s{S_KVB}, s{S_KVB}, s3
    v_lshrrev_b32 v5, 4, v{L}
    v_and_b32 v6, 15, v{L}
    v_lshlrev_b32 v7, 8, v5
    v_xor_b32 v8, v6, v5
    v_lshlrev_b32 v9, 4, v8
    v_add_u32 v{V_DOFF}, v7, v9
    v_xor_b32 v9, 64, v9
    v_add_u32 v{V_DOFF+1}, v7, v9
    v_xor_b32 v9, 0xc0, v9
    v_add_u32 v{V_DOFF+2}, v7, v9
    v_xor_b32 v9, 64, v9
    v_add_u32 v{V_DOFF+3 if not OPT.get("trace") else V_T2}, v7, v9
    s_cmp_eq_u32 s{S_QT}, 0
    s_cbranch_scc1 L_voff_done
    v_lshlrev_b32 v8, 2, v5
    v_xor_b32 v8, v8, v6
    v_lshlrev_b32 v8, 4, v8
    v_add_u32 v{V_DOFF}, v7, v8
    L_voff_done:
    """)
    a(f"""
    s_and_b32 s3, s{S_B}, 3
    s_add_u32 s60, s3, 1
    s_lshl_b32 s3, s3, 3
    s_lshr_b32 s61, 0x3f557fff, s3
    s_and_b32 s61, s61, 0xff
    s_add_u32 s61, s61, 1
    s_lshr_b32 s62, 0x00ff7f55, s3
    s_and_b32 s62, s62, 0xff
    s_add_u32 s62, s62, 1
    s_mov_b32 s{S_P2}, 0
    """)
    for i in range(8):
        if OPT.get("stag2", 1):
            emit_tile(a, 63, ("imm", i), 60, 61, 62, 4, S_HP, 64, 65, 79)
        else:
            R2 = OPT.get("rot2", 4)
            a(f"s_add_u32 s63, s{S_HP}, {i}")
            a(f"s_and_b32 s63, s63, {R2 - 1}")
            a(f"s_or_b32 s63, s63, {i & ~(R2 - 1)}")
            if OPT.get("kvoff"):
                a(f"s_add_u32 s63, s63, s{S_B}")
                a(f"s_and_b32 s63, s63, 7")
        a(f"s_lshl_b32 s63, s63, {4*i}")
        a(f"s_or_b32 s{S_P2}, s{S_P2}, s63")
    a.label("L_p1_ld_loop")
    a("s_waitcnt vmcnt(5)")
    trace(a, 120, idx_sreg=S_CNT)
    if OPT.get("lt") == 7:
        for k, cnt in enumerate((2, 3, 4, 9, 10, 11, 15)):
            a(f"s_cmp_eq_u32 s{S_CNT}, {cnt}")
            a(f"s_cbranch_scc0 L_lt7_{k}")
            a(f"s_memtime s[{86+2*k}:{87+2*k}]")
            a.label(f"L_lt7_{k}")
    a("s_barrier")
    if OPT.get("trace"): a(f"s_add_u32 s94, s{S_CNT}, 16")
    trace(a, 120, idx_sreg=94)
    issue_tile()
    if OPT.get("trace"): a(f"s_add_u32 s94, s{S_CNT}, 32")
    trace(a, 120, idx_sreg=94)
    a(f"""
    s_add_u32 s{S_SLOT}, s{S_SLOT}, {AREA}
    s_cmp_eq_u32 s{S_SLOT}, {3*AREA}
    s_cselect_b32 s{S_SLOT}, 0, s{S_SLOT}
    s_add_u32 s{S_CNT}, s{S_CNT}, 1
    s_cmp_lt_u32 s{S_CNT}, 16
    s_cbranch_scc1 L_p1_ld_loop
    """)
    def tile_soff(step, dst):
        a(f"""
        s_bfe_u32 s{dst}, s{S_P2}, {(4 << 16) | (4*step)}
        s_lshl_b32 s{dst}, s{dst}, 13
        s_add_u32 s{dst}, s{dst}, s{S_KVB}
        """)
    def dma8(step, lds_off, voff_fn, srdb):
        ntk = "nt " if (OPT.get("nt_kv") or (OPT.get("ntf_kv") and step % OPT.get("rot2", 4) == 0)) else ""
        tile_soff(step, 76)
        a(f"s_mul_i32 s77, s{S_KQ}, {AREA}")
        a(f"s_add_u32 m0, s77, {lds_off}")
        for q in range(8):
            if q == 4:
                a(f"s_add_u32 m0, s77, {lds_off + 4096}")
                a(f"s_add_u32 s76, s76, 4096")
            a(f"buffer_load_dwordx4 v{voff_fn(q)}, s[{srdb}:{srdb+3}], s76 offen offset:{(q & 3) * 1024} {ntk}lds")
    def issue_k(step):
        if OPT.get("trace"):
            a(f"v_xor_b32 v{V_T2}, 64, v{V_DOFF+2}")
            dma8(step, (step % 3) * 8192, lambda q: (V_DOFF + (q & 3)) if (q & 3) != 3 else V_T2, 16)
        else:
            dma8(step, (step % 3) * 8192, lambda q: V_DOFF + (q & 3), 16)
    def issue_v(step): dma8(step, 24576 + (step % 2) * 8192, lambda q: V_DOFF, 20)
    def call_early_if(kq):
        lab = a.newlabel("L_ne")
        a(f"s_cmp_eq_u32 s{S_KQ}, {kq}")
        a(f"s_cbranch_scc0 {lab}")
        a(f"s_call_b64 s[{S_RET}:{S_RET+1}], L_early")
        a.label(lab)
    a("s_waitcnt vmcnt(5)")
    call_early_if(3)
    a("s_barrier")
    call_early_if(1)
    a(f"""
    s_and_b32 s3, s{S_KQ}, 1
    s_cmp_eq_u32 s3, 1
    s_cbranch_scc1 L_w15_early
    s_waitcnt vmcnt(0)
    s_branch L_w15_done
    L_w15_early:
    s_cmp_eq_u32 s{S_QT}, 0
    s_cbranch_scc1 L_w15_k
    s_waitcnt vmcnt(8)
    s_branch L_w15_done
    L_w15_k:
    s_waitcnt vmcnt(16)
    L_w15_done:
    """)
    a("s_barrier")
    call_early_if(2)
    a("s_barrier")
    call_early_if(0)
    a("s_branch L_p1_join")
    a.label("L_early")
    a(f"s_cmp_eq_u32 s{S_QT}, 0")
    a("s_cbranch_scc0 L_early_v")
    issue_k(0)
    issue_k(1)
    a(f"s_setpc_b64 s[{S_RET}:{S_RET+1}]")
    a.label("L_early_v")
    issue_v(0)
    a(f"s_setpc_b64 s[{S_RET}:{S_RET+1}]")

    a.label("L_p1_compute")
    P_ACC, P_A, P_B, P_WA, P_XA = 0, 48, 80, 104, 108
    a(f"""
    v_lshrrev_b32 v110, 4, v{L}
    v_and_b32 v111, 15, v{L}
    v_lshrrev_b32 v112, 2, v111
    v_and_b32 v113, 3, v111
    v_lshlrev_b32 v114, 3, v110
    v_add_u32 v114, v114, v112
    v_lshlrev_b32 v114, 9, v114
    v_lshlrev_b32 v113, 3, v113
    v_add_u32 v114, v114, v113
    v_and_b32 v115, 1, v110
    v_lshlrev_b32 v115, 2, v115
    v_or_b32 v115, v115, v112
    s_lshl_b32 s{S_T0}, s{S_KQ}, 2
    """)
    for dt in range(4):
        a(f"s_add_u32 s{S_T1}, s{S_T0}, {dt}")
        a(f"v_xor_b32 v116, s{S_T1}, v115")
        a(f"v_lshlrev_b32 v116, 5, v116")
        a(f"v_add_u32 v{P_WA+dt}, v114, v116")
    a(f"""
    v_lshrrev_b32 v112, 1, v111
    v_xor_b32 v112, v112, v110
    v_lshlrev_b32 v112, 4, v112
    v_lshlrev_b32 v113, 7, v111
    v_add_u32 v112, v112, v113
    v_add_u32 v{P_XA}, 32768, v112
    v_xor_b32 v{P_XA+1}, 64, v{P_XA}
    """)
    for i in range(48):
        a(f"v_mov_b32 v{P_ACC+i}, 0")
    for i in range(4):
        a(f"v_mov_b32 v{V_DOFF+i}, 0")
    a(f"s_waitcnt lgkmcnt(0)")
    srd(a, 24, 72, 72, 1 << 28, sel=False)
    a(f"s_cmp_eq_u32 s{S_BLK}, 0")
    srd(a, 16, 50, 60, 8*4*1024*128*2)
    srd(a, 20, 52, 62, 8*4*1024*128*2)
    if OPT.get("b01", 1) and OPT.get("xpf_late"): a("s_barrier")
    if OPT.get("xpf", 1):
        a(f"s_cmp_eq_u32 s{S_BLK}, 0")
        srd(a, 8, 48, 58, 8*48*1024*2)
        a(f"""
        s_cmp_eq_u32 s{S_KQ}, 3
        s_cbranch_scc1 L_noxpf
        s_mul_i32 s3, s{S_HP}, 24576
        s_add_u32 s3, s3, s{S_XB}
        s_lshl_b32 s76, s{S_KQ}, 13
        s_add_u32 s3, s3, s76
        v_lshlrev_b32 v126, 7, v{L}
        buffer_load_dword v128, v126, s[8:11], s3 offen
        L_noxpf:
        """)
    if OPT.get("b01", 1) and not OPT.get("xpf_late"): a("s_barrier")
    group_ids()
    a(f"""
    s_mov_b32 s16, s70
    s_mov_b32 s17, s71
    s_mov_b32 s18, 256
    s_mov_b32 s19, 0x00020000
    s_lshr_b32 s40, s2, 3
    s_and_b32 s40, s40, 7
    s_add_u32 s40, s40, 4
    v_mov_b32 v126, 0
    v_mov_b32 v127, 1
    """)
    a(f"s_mov_b32 s{S_KVB}, 0")
    a(f"s_mov_b32 s{S_CNT}, 0")
    a(f"s_mov_b32 s{S_SLOT}, 0")
    def rd_ks(ks):
        if OPT.get("nocomp"): return
        for dt in range(4):
            for hf in range(2):
                r = P_A + ks*16 + dt*4 + hf*2
                a(f"ds_read_b64_tr_b16 v[{r}:{r+1}], v{P_WA+dt} offset:{ks*16384 + hf*2048}")
    def rd_x(ks):
        if OPT.get("nocomp"): return
        for st in range(3):
            r = P_B + ks*12 + st*4
            a(f"ds_read_b128 v[{r}:{r+3}], v{P_XA+ks} offset:{st*2048}")
    def mm(ks):
        if OPT.get("nocomp"): return
        for dt in range(4):
            for st in range(3):
                ac = P_ACC + (dt*3+st)*4
                ra = P_A + ks*16 + dt*4; rb = P_B + ks*12 + st*4
                a(f"v_mfma_f32_16x16x32_bf16 v[{ac}:{ac+3}], v[{ra}:{ra+3}], v[{rb}:{rb+3}], v[{ac}:{ac+3}]")
    a.label("L_p1_c_loop")
    trace(a, 120, idx_sreg=S_CNT)
    a("s_barrier")
    a(f"""
    s_cmp_eq_u32 s{S_CNT}, s40
    s_cbranch_scc0 L_noarr
    s_cmp_eq_u32 s{S_W}, 8
    s_cbranch_scc0 L_noarr
    s_and_b32 s3, s2, 15
    s_lshl_b32 s3, s3, 2
    s_add_u32 s3, s3, 128
    s_mov_b64 exec, 1
    buffer_atomic_add v127, v126, s[16:19], s3 offen sc1
    s_mov_b64 exec, -1
    L_noarr:
    """)
    if OPT.get("trace"): a(f"s_add_u32 s94, s{S_CNT}, 16")
    trace(a, 120, idx_sreg=94)
    rd_x(0); rd_ks(0)
    a(f"s_cmp_eq_u32 s{S_CNT}, 0")
    a("s_cbranch_scc1 L_p1_c_skip")
    mm(1)
    a.label("L_p1_c_skip")
    rd_x(1); rd_ks(1)
    a("s_waitcnt lgkmcnt(11)")
    mm(0)
    a(f"""
    s_add_u32 s{S_SLOT}, s{S_SLOT}, 1
    s_cmp_eq_u32 s{S_SLOT}, 3
    s_cselect_b32 s{S_SLOT}, 0, s{S_SLOT}
    s_mov_b32 s3, {AREA}
    s_cselect_b32 s3, {(-2*AREA) & 0xffffffff}, s3
    """)
    for r in list(range(P_WA, P_WA+4)) + [P_XA, P_XA+1]:
        a(f"v_add_u32 v{r}, s3, v{r}")
    a(f"""
    s_add_u32 s{S_CNT}, s{S_CNT}, 1
    s_cmp_lt_u32 s{S_CNT}, 16
    s_waitcnt lgkmcnt(0)
    s_cbranch_scc1 L_p1_c_loop
    s_barrier
    """)
    mm(1)
    a(f"""
    s_mov_b32 s{S_C}, {f2u(C_SCALE)}
    v_lshrrev_b32 v110, 4, v{L}
    v_and_b32 v111, 15, v{L}
    v_lshlrev_b32 v112, 8, v111
    v_and_b32 v113, 1, v110
    v_lshlrev_b32 v113, 3, v113
    v_add_u32 v112, v112, v113
    v_lshrrev_b32 v113, 1, v110
    s_and_b32 s{S_T0}, s{S_KQ}, 1
    s_lshl_b32 s{S_T0}, s{S_T0}, 3
    v_add_u32 v113, s{S_T0}, v113
    s_lshr_b32 s{S_T1}, s{S_KQ}, 1
    s_cmp_eq_u32 s{S_T1}, 0
    s_mov_b32 s76, {2*AREA+16384+4096}
    s_mov_b32 s77, {3*AREA+16384}
    s_mov_b32 s78, {3*AREA+16384+4096}
    s_cselect_b32 s76, {1*AREA+16384}, s76
    s_cselect_b32 s77, {1*AREA+16384+4096}, s77
    s_cselect_b32 s78, {2*AREA+16384}, s78
    """)
    for dt in range(4):
        a(f"v_add_u32 v114, {2*dt}, v113")
        a(f"v_xor_b32 v114, v114, v111")
        a(f"v_lshlrev_b32 v114, 4, v114")
        a(f"v_add_u32 v114, v114, v112")
        for st in range(3):
            ac = P_ACC + (dt*3+st)*4
            t = 116 + 2*(st & 1)
            for e in range(4): a(f"v_mul_f32 v{ac+e}, s{S_C}, v{ac+e}")
            a(f"v_cvt_pk_bf16_f32 v{t}, v{ac}, v{ac+1}")
            a(f"v_cvt_pk_bf16_f32 v{t+1}, v{ac+2}, v{ac+3}")
            a(f"v_add_u32 v{123+st}, s{76+st}, v114")
            a(f"ds_write_b64 v{123+st}, v[{t}:{t+1}]")
    a("s_waitcnt lgkmcnt(0)")

    a.label("L_p1_join")
    trace(a, 120, idx_imm=60)
    if OPT.get("lt") == 7: a("s_memtime s[100:101]")
    a("s_barrier")
    trace(a, 120, idx_imm=61)
    trace_dump(a, 120, 121, S_W, V_LANE, 0)
    if OPT.get("trace"): a("v_mov_b32 v167, 0")
    stamp(a, 1)
    a(f"""
    s_mov_b32 s{S_TC}, {f2u(T_HI)}
    s_mov_b32 s{S_NC}, {f2u(-T_LO)}
    s_mov_b64 s[{S_SLOW}:{S_SLOW+1}], 0
    v_and_b32 v{V_T0}, 31, v{L}
    v_lshlrev_b32 v{V_T0}, 8, v{V_T0}
    v_lshrrev_b32 v{V_T1}, 5, v{L}
    v_and_b32 v{V_T2}, 15, v{L}
    v_xor_b32 v{V_T1}, v{V_T1}, v{V_T2}
    v_lshlrev_b32 v{V_T1}, 4, v{V_T1}
    v_add_u32 v{V_T0}, v{V_T0}, v{V_T1}
    s_add_u32 s3, s{S_QT}, 1
    s_mul_i32 s3, s3, {AREA}
    s_add_u32 s3, s3, 16384
    s_mul_i32 s76, s{S_KQ}, {AREA}
    """)
    for st8 in range(8):
        a(f"v_xor_b32 v{V_T1}, {st8 << 5}, v{V_T0}")
        a(f"v_add_u32 v{V_F+st8}, s3, v{V_T1}")
        a(f"v_add_u32 v{V_KA+st8}, s76, v{V_T1}")
        a(f"ds_read_b128 v[{V_Q+4*st8}:{V_Q+4*st8+3}], v{V_F+st8}")
    a(f"""
    v_lshrrev_b32 v{V_T0}, 5, v{L}
    v_lshlrev_b32 v{V_T0}, 2, v{V_T0}
    v_bfe_u32 v{V_T1}, v{L}, 2, 2
    v_add_u32 v{V_T0}, v{V_T0}, v{V_T1}
    v_lshlrev_b32 v{V_T0}, 8, v{V_T0}
    v_bfe_u32 v{V_T2}, v{L}, 4, 1
    v_lshlrev_b32 v{V_T2}, 5, v{V_T2}
    v_add_u32 v{V_T0}, v{V_T0}, v{V_T2}
    v_and_b32 v{V_T2}, 3, v{L}
    v_lshlrev_b32 v{V_T2}, 3, v{V_T2}
    v_add_u32 v{V_T0}, v{V_T0}, v{V_T2}
    s_add_u32 s76, s76, 24576
    v_add_u32 v{V_T0}, s76, v{V_T0}
    """)
    for j in range(4):
        a(f"s_add_u32 s3, s{S_KQ}, {j}")
        a(f"s_and_b32 s3, s3, 3")
        a(f"v_xor_b32 v{V_T2}, s3, v{V_T1}")
        a(f"v_lshlrev_b32 v{V_T2}, 6, v{V_T2}")
        a(f"v_add_u32 v{V_VA+j}, v{V_T0}, v{V_T2}")
    for i in range(64):
        a(f"v_mov_b32 v{V_O+i}, 0")
    a(f"""
    v_mov_b32 v{V_M}, 0
    v_mov_b32 v{V_THR}, s{S_TC}
    v_mov_b32 v{V_L}, 0
    s_waitcnt lgkmcnt(0)
    """)

    S = V_S
    def tr2(idx):
        lt = OPT.get("lt")
        if lt and idx < 36:
            i, k = idx // 4, idx % 4
            if (lt == 1 and k == 1) or (lt == 2 and k == 0) or (lt == 3 and k == 2):
                a(f"s_memtime s[{80+2*i}:{81+2*i}]")
        if lt and lt != 7 and idx == 41: a("s_memtime s[98:99]")
        if lt and lt != 7 and idx == 40: a("s_memtime s[100:101]")
        if not OPT.get("trace"): return
        trace(a, 120 if False else 167, idx_imm=idx)
    def rd_k(step, st8):
        a(f"ds_read_b128 v[{V_F+4*st8}:{V_F+4*st8+3}], v{V_KA+st8} offset:{(step % 3) * 8192}")
    def rd_v(step, f):
        t, j = f // 4, f % 4
        for hf in range(2):
            r = V_F + 4*f + 2*hf
            a(f"ds_read_b64_tr_b16 v[{r}:{r+1}], v{V_VA+j} offset:{(step % 2) * 8192 + (16*t + 8*hf)*256}")
    def qk(step, pending_k):
        for st8 in range(8):
            a(f"s_waitcnt lgkmcnt({7 - st8 if st8 < 2 else min(15, 7 - st8 + 2*(st8-1))})")
            c = "0" if st8 == 0 else f"v[{S}:{S+15}]"
            a(f"v_mfma_f32_32x32x16_bf16 v[{S}:{S+15}], v[{V_F+4*st8}:{V_F+4*st8+3}], v[{V_Q+4*st8}:{V_Q+4*st8+3}], {c}")
            if st8 >= 1: rd_v(step, st8 - 1)
        rd_v(step, 7)
    def softmax_half(half):
        for i in range(8*half, 8*half+8):
            a(f"v_exp_f32 v{S+i}, v{S+i}")
        for i in range(8*half, 8*half+8):
            a(f"v_add_f32 v{V_L}, v{V_L}, v{S+i}")
        for j in range(4*half, 4*half+4):
            a(f"v_cvt_pk_bf16_f32 v{S+j}, v{S+2*j}, v{S+2*j+1}")
    def softmax_max(lab, first=False):
        a(f"v_max3_f32 v{V_T0}, v{S}, v{S+1}, v{S+2}")
        a(f"v_max3_f32 v{V_T1}, v{S+3}, v{S+4}, v{S+5}")
        a(f"v_max3_f32 v{V_T0}, v{V_T0}, v{S+6}, v{S+7}")
        a(f"v_max3_f32 v{V_T1}, v{V_T1}, v{S+8}, v{S+9}")
        a(f"v_max3_f32 v{V_T0}, v{V_T0}, v{S+10}, v{S+11}")
        a(f"v_max3_f32 v{V_T1}, v{V_T1}, v{S+12}, v{S+13}")
        a(f"v_max3_f32 v{V_T0}, v{V_T0}, v{S+14}, v{S+15}")
        a(f"v_max_f32 v{V_T0}, v{V_T0}, v{V_T1}")
        a(f"v_mov_b32 v{V_T1}, v{V_T0}")
        a(f"v_permlane32_swap_b32 v{V_T0}, v{V_T1}")
        a(f"v_max_f32 v{V_T0}, v{V_T0}, v{V_T1}")
        a(f"v_cmp_gt_f32 vcc, v{V_T0}, v{V_THR}")
        if first:
            a(f"v_cmp_gt_f32 s[52:53], s{S_NC}, v{V_T0}")
            a(f"s_or_b64 vcc, vcc, s[52:53]")
        a(f"s_or_b64 s[52:53], vcc, s[{S_SLOW}:{S_SLOW+1}]")
        a(f"s_cbranch_scc0 {lab}")
        a(f"s_call_b64 s[{S_RET}:{S_RET+1}], L_slow{'_first' if first else ''}")
        a.label(lab)
    def pv_mfma(f):
        t, j = f // 4, f % 4
        o = V_O + 16*j
        a(f"v_mfma_f32_32x32x16_bf16 v[{o}:{o+15}], v[{V_F+4*f}:{V_F+4*f+3}], v[{S+4*t}:{S+4*t+3}], v[{o}:{o+15}]")
    def pv_then_k(next_step):
        for f in range(8):
            pv_mfma(f)
            if next_step is not None and f >= 1: rd_k(next_step, f - 1)
        if next_step is not None: rd_k(next_step, 7)

    PR = OPT.get("prio", 1)
    def prio(p):
        if PR: a(f"s_setprio {p}")
    a(f"s_cmp_eq_u32 s{S_QT}, 1")
    a("s_cbranch_scc1 L_typeA")
    a(f"s_cmp_eq_u32 s{S_QT}, 2")
    a("s_cbranch_scc1 L_typeC")
    for i in range(8):
        a(f"s_waitcnt vmcnt({8 if i < 7 else 0})")
        tr2(4*i)
        a("s_barrier")
        tr2(4*i+1)
        prio(1)
        if i == 0:
            for st8 in range(8): rd_k(0, st8)
        else:
            pv_then_k(i)
        if i + 2 < 8: issue_k(i + 2)
        qk(i, 0)
        tr2(4*i+2)
        prio(2)
        softmax_max(f"L_D{i}", first=(i == 0))
        softmax_half(0); softmax_half(1)
        a("s_waitcnt lgkmcnt(0)")
    tr2(32)
    a("s_barrier")
    pv_then_k(None)
    a("s_branch L_merge")
    a.label("L_typeA")
    for i in range(8):
        a(f"s_waitcnt vmcnt(0)")
        tr2(4*i)
        a("s_barrier")
        tr2(4*i+1)
        prio(3)
        for st8 in range(8): rd_k(i, st8)
        if i + 1 < 8: issue_v(i + 1)
        qk(i, 0)
        tr2(4*i+2)
        prio(2)
        softmax_max(f"L_A{i}", first=(i == 0))
        softmax_half(0); softmax_half(1)
        prio(0)
        for f in range(8):
            a(f"s_waitcnt lgkmcnt({min(15, 2*(7-f))})")
            pv_mfma(f)
    tr2(32)
    a("s_barrier")
    a("s_branch L_merge")
    a.label("L_typeC")
    a(f"s_cmp_eq_u32 s{S_BLK}, 0")
    srd(a, 12, 56, 66, 4096*1024*2)
    a(f"""
    v_lshrrev_b32 v{V_DOFF+1}, 1, v{L}
    v_lshlrev_b32 v{V_DOFF+1}, 11, v{V_DOFF+1}
    v_and_b32 v{V_DOFF+2}, 1, v{L}
    v_lshlrev_b32 v{V_DOFF+2}, 7, v{V_DOFF+2}
    v_add_u32 v{V_DOFF+1}, v{V_DOFF+1}, v{V_DOFF+2}
    s_lshl_b32 s45, s{S_G}, 10
    s_lshl_b32 s3, s{S_BP}, 8
    s_add_u32 s45, s45, s3
    s_lshl_b32 s3, s{S_KQ}, 6
    s_add_u32 s45, s45, s3
    s_lshl_b32 s45, s45, 11
    s_lshl_b32 s3, s{S_NT8}, 8
    s_add_u32 s45, s45, s3
    """)
    PF_AT = {}
    PF_AT.setdefault(OPT.get("pf0", 7), []).append(0)
    PF_AT.setdefault(OPT.get("pf1", 7), []).append(1)
    for i in range(9):
        tr2(4*i)
        a("s_barrier")
        tr2(4*i+1)
        prio(2)
        if i in PF_AT and OPT.get("wopf", 1) and OPT.get("pf_early"):
            for e in PF_AT[i]:
                a(f"s_add_u32 s3, s45, {e * 32 * 2048}")
                a(f"buffer_load_dword v{V_DOFF+2}, v{V_DOFF+1}, s[12:15], s3 offen {NTWO()}")
        if i == 0:
            for st8 in range(8): rd_k(0, st8)
        else:
            softmax_max(f"L_C{i}", first=(i == 1))
            softmax_half(0); softmax_half(1)
            if i in PF_AT and OPT.get("wopf", 1) and not OPT.get("pf_early"):
                for e in PF_AT[i]:
                    a(f"s_add_u32 s3, s45, {e * 32 * 2048}")
                    a(f"buffer_load_dword v{V_DOFF+2}, v{V_DOFF+1}, s[12:15], s3 offen {NTWO()}")
            pv_then_k(i if i < 8 else None)
        if i < 8:
            prio(1)
            qk(i, 0)
            a("s_waitcnt lgkmcnt(0)")
    def spin(label, load_lines, cmp_val, vreg):
        a(f"s_mov_b32 s{S_CNT}, 0")
        a.label(label)
        a(load_lines)
        a("s_waitcnt vmcnt(0)")
        a(f"v_cmp_ne_u32 vcc, s3, v{vreg}" if cmp_val is None else f"v_cmp_ne_u32 vcc, {cmp_val}, v{vreg}")
        a(f"s_cbranch_vccz {label}_ok")
        a(f"s_add_u32 s{S_CNT}, s{S_CNT}, 1")
        a(f"s_cmp_lt_u32 s{S_CNT}, {SPIN_MAX}")
        a("s_sleep 1")
        a(f"s_cbranch_scc1 {label}")
        a.label(f"{label}_ok")

    def gen_tail():
        T_ACC, T_FR, T_AA, T_BA, T_DOFF, T_X = 0, 48, 112, 113, 114, 116
        S_WOB, S_OB, S_ST = 45, 46, 47
        def ts(i):
            if OPT.get("lt") == 5: a(f"s_memtime s[{80+2*i}:{81+2*i}]")
        ts(0)
        a(f"s_cmp_eq_u32 s{S_BLK}, 0")
        srd(a, 12, 56, 66, 4096*1024*2)
        srd(a, 8, 68, 68, 8*48*2048*2, sel=False)
        a(f"""
        s_mov_b32 s16, s70
        s_mov_b32 s17, s71
        s_mov_b32 s18, 256
        s_mov_b32 s19, 0x00020000
        s_lshl_b32 s{S_WOB}, s{S_G}, 21
        s_lshl_b32 s3, s{S_NT8}, 8
        s_add_u32 s{S_WOB}, s{S_WOB}, s3
        s_mul_i32 s{S_OB}, s{S_G1}, {192*1024}
        s_add_u32 s{S_OB}, s{S_OB}, {O_OFF}
        s_cmp_ge_u32 s{S_W}, 8
        s_cbranch_scc1 L_t_compute
        """)
        a(f"""
        v_lshrrev_b32 v{T_X}, 4, v{L}
        v_and_b32 v{T_X+1}, 15, v{L}
        v_lshlrev_b32 v{T_X+2}, 2, v{T_X}
        v_xor_b32 v{T_X+2}, v{T_X+2}, v{T_X+1}
        v_lshlrev_b32 v{T_X+2}, 4, v{T_X+2}
        v_lshlrev_b32 v{T_X}, 11, v{T_X}
        v_add_u32 v{T_DOFF}, v{T_X}, v{T_X+2}
        v_lshlrev_b32 v{T_DOFF+1}, 4, v{L}
        s_lshl_b32 s{S_T0}, s{S_W}, 15
        s_add_u32 s{S_WOB}, s{S_WOB}, s{S_T0}
        s_lshl_b32 s{S_T2}, s{S_W}, 12
        s_mul_i32 s{S_T3}, s{S_W}, 3072
        s_add_u32 s{S_OB}, s{S_OB}, s{S_T3}
        """)
        def issue_wo(st_sreg_or_imm, slot):
            if isinstance(st_sreg_or_imm, int):
                a(f"s_add_u32 s3, s{S_NT8}, {st_sreg_or_imm}")
            a(f"s_and_b32 s3, s3, 7")
            a(f"s_lshl_b32 s76, s3, 18")
            a(f"s_add_u32 s76, s76, s{S_WOB}")
            a(f"s_add_u32 s77, s{S_T2}, {slot*32768}")
            for q in range(4):
                a(f"s_add_u32 m0, s77, {q*1024}")
                if q: a(f"s_add_u32 s76, s76, {4*2048}")
                a(f"buffer_load_dwordx4 v{T_DOFF}, s[12:15], s76 offen lds")
        def issue_o(st, slot):
            a(f"s_add_u32 s3, s{S_NT8}, {st}")
            a(f"s_and_b32 s3, s3, 7")
            a(f"s_mul_i32 s76, s3, 24576")
            a(f"s_add_u32 s76, s76, s{S_OB}")
            a(f"s_add_u32 m0, s{S_T3}, {98304 + slot*24576}")
            for q in range(3):
                a(f"buffer_load_dwordx4 v{T_DOFF+1}, s[24:27], s76 offen offset:{q*1024} {OSC()}lds")
        a("s_waitcnt vmcnt(0)")
        ts(1)
        a("s_barrier")
        a("s_sleep 1")
        for st in range(3): issue_wo(st, st)
        a("s_barrier")
        ts(2)
        issue_o(0, 0); issue_o(1, 1)
        for st in range(8):
            n = 3 if st == 0 else (0 if st in (1, 7) else 4)
            a(f"s_waitcnt vmcnt({n})")
            if OPT.get("lt") == 6: a(f"s_memtime s[{80+2*st}:{81+2*st}]")
            a("s_barrier")
            if st >= 1:
                if st + 1 <= 7: issue_o(st + 1, (st + 1) % 2)
                if st + 2 <= 7: issue_wo(st + 2, (st + 2) % 3)
        ts(3)
        a("s_branch L_t_join")
        a.label("L_t_compute")
        a(f"""
        v_lshrrev_b32 v{T_X}, 5, v{L}
        v_lshlrev_b32 v{T_X}, 3, v{T_X}
        v_bfe_u32 v{T_X+1}, v{L}, 2, 2
        v_add_u32 v{T_X}, v{T_X}, v{T_X+1}
        v_lshlrev_b32 v{T_X}, 8, v{T_X}
        v_bfe_u32 v{T_X+2}, v{L}, 4, 1
        v_lshlrev_b32 v{T_X+2}, 5, v{T_X+2}
        v_add_u32 v{T_X}, v{T_X}, v{T_X+2}
        v_and_b32 v{T_X+2}, 3, v{L}
        v_lshlrev_b32 v{T_X+2}, 3, v{T_X+2}
        v_add_u32 v{T_X}, v{T_X}, v{T_X+2}
        v_xor_b32 v{T_X+2}, s{S_KQ}, v{T_X+1}
        v_lshlrev_b32 v{T_X+2}, 6, v{T_X+2}
        v_add_u32 v{T_AA}, v{T_X}, v{T_X+2}
        v_lshlrev_b32 v{T_BA}, 4, v{L}
        v_add_u32 v{T_BA}, 98304, v{T_BA}
        """)
        for i in range(48):
            a(f"v_mov_b32 v{T_ACC+i}, 0")
        a("s_waitcnt vmcnt(0)")
        ts(1)
        a("s_barrier")
        a(f"s_cmp_eq_u32 s{S_W}, 8")
        a("s_cbranch_scc0 L_t_nopoll1")
        a("s_setprio 3")
        a(f"""
        s_lshl_b32 s3, s{S_G1}, 7
        s_add_u32 s76, s3, {FLAG_OFF}
        s_lshl_b32 s3, s{S_NT8}, 2
        s_add_u32 s77, s76, s3
        v_mov_b32 v{T_X}, 0
        v_mov_b32 v{T_X+1}, {TOK_A}
        s_mov_b64 exec, 1
        buffer_store_dword v{T_X+1}, v{T_X}, s[24:27], s77 offen sc1
        s_mov_b64 exec, -1
        v_and_b32 v{T_X}, 15, v{L}
        v_lshlrev_b32 v{T_X}, 2, v{T_X}
        v_and_b32 v{T_X+2}, 7, v{L}
        v_lshlrev_b32 v{T_X+2}, 2, v{T_X+2}
        """)
        spin("L_spin_dbg", f"buffer_load_dword v{T_X+1}, v{T_X}, s[16:19], 0 offen offset:128 sc1", 16, T_X+1)
        a(f"s_mov_b32 s3, {TOK_A}")
        spin("L_spin_a", f"buffer_load_dword v{T_X+1}, v{T_X+2}, s[24:27], s76 offen sc1", None, T_X+1)
        a("s_setprio 0")
        a.label("L_t_nopoll1")
        a("s_barrier")
        ts(2)
        def rd_list(j):
            b = T_FR + 16*(j % 4)
            out = []
            for hf in range(2):
                out.append(f"ds_read_b64_tr_b16 v[{b+2*hf}:{b+2*hf+1}], v{T_AA} offset:{j*4096 + hf*1024}")
            for m in range(3):
                out.append(f"ds_read_b128 v[{b+4+4*m}:{b+7+4*m}], v{T_BA} offset:{(j*3+m)*1024}")
            return out
        def mm_list(j):
            b = T_FR + 16*(j % 4)
            return [f"v_mfma_f32_32x32x16_bf16 v[{T_ACC+16*m}:{T_ACC+16*m+15}], v[{b}:{b+3}], v[{b+4+4*m}:{b+7+4*m}], v[{T_ACC+16*m}:{T_ACC+16*m+15}]" for m in range(3)]
        def mm3(j):
            for x in mm_list(j): a(x)
        def weave(mm, rd):
            groups = [rd[0:3], rd[3:4], rd[4:5]]
            for x, g in zip(mm, groups):
                a(x)
                for y in g: a(y)
        a(f"s_mov_b32 s{S_ST}, 0")
        a(f"s_mov_b32 s{S_SLOT}, 0")
        a.label("L_t_loop")
        if OPT.get("lt") == 6:
            for st in range(8):
                a(f"s_cmp_eq_u32 s{S_ST}, {st}")
                a(f"s_cbranch_scc0 L_lt6_{st}")
                a(f"s_memtime s[{80+2*st}:{81+2*st}]")
                a.label(f"L_lt6_{st}")
        a("s_barrier")
        a(f"s_cmp_eq_u32 s{S_ST}, 0")
        a("s_cbranch_scc0 L_t_left")
        for y in rd_list(0) + rd_list(1): a(y)
        a("s_branch L_t_skip")
        a.label("L_t_left")
        weave(mm_list(6), rd_list(0))
        weave(mm_list(7), rd_list(1))
        a.label("L_t_skip")
        for j in range(6):
            a("s_waitcnt lgkmcnt(5)")
            weave(mm_list(j), rd_list(j + 2))
        a(f"""
        s_add_u32 s{S_SLOT}, s{S_SLOT}, 1
        s_cmp_eq_u32 s{S_SLOT}, 3
        s_cselect_b32 s{S_SLOT}, 0, s{S_SLOT}
        s_mov_b32 s3, 32768
        s_cselect_b32 s3, {(-65536) & 0xffffffff}, s3
        v_add_u32 v{T_AA}, s3, v{T_AA}
        s_bitcmp1_b32 s{S_ST}, 0
        s_mov_b32 s3, 24576
        s_cselect_b32 s3, {(-24576) & 0xffffffff}, s3
        v_add_u32 v{T_BA}, s3, v{T_BA}
        s_add_u32 s{S_ST}, s{S_ST}, 1
        s_cmp_lt_u32 s{S_ST}, 8
        s_waitcnt lgkmcnt(0)
        s_cbranch_scc1 L_t_loop
        """)
        mm3(6); mm3(7)
        ts(3)
        a(f"""
        s_lshl_b32 s3, s{S_G2}, 2
        s_add_u32 s3, s3, s{S_KQ}
        s_lshl_b32 s3, s3, 2
        s_add_u32 s3, s3, s{S_G}
        s_mul_i32 s76, s3, 12288
        s_add_u32 s76, s76, {PART_OFF}
        v_lshlrev_b32 v{T_X}, 4, v{L}
        """)
        for m in range(3):
            for rq in range(4):
                r = T_ACC + 16*m + 4*rq
                a(f"buffer_store_dwordx4 v[{r}:{r+3}], v{T_X}, s[24:27], s76 offen offset:{rq*1024} sc1")
            if m < 2: a(f"s_add_u32 s76, s76, 4096")
        a("s_waitcnt vmcnt(0)")
        a.label("L_t_join")
        ts(4)
        a("s_barrier")
        a(f"s_cmp_eq_u32 s{S_W}, 8")
        a("s_cbranch_scc0 L_t_nopoll2")
        a(f"""
        s_lshl_b32 s3, s{S_G2}, 7
        s_add_u32 s76, s3, {FLAG_OFF + 8192}
        s_lshl_b32 s3, s{S_G}, 2
        s_add_u32 s77, s76, s3
        v_mov_b32 v{T_X}, 0
        v_mov_b32 v{T_X+1}, {TOK_B}
        s_mov_b64 exec, 1
        buffer_store_dword v{T_X+1}, v{T_X}, s[24:27], s77 offen sc1
        s_mov_b64 exec, -1
        v_and_b32 v{T_X+2}, 3, v{L}
        v_lshlrev_b32 v{T_X+2}, 2, v{T_X+2}
        s_mov_b32 s3, {TOK_B}
        """)
        spin("L_spin_b", f"buffer_load_dword v{T_X+1}, v{T_X+2}, s[24:27], s76 offen sc1", None, T_X+1)
        a.label("L_t_nopoll2")
        a("s_barrier")
        ts(5)
        a(f"""
        s_lshl_b32 s3, s{S_G2}, 2
        s_add_u32 s3, s3, s{S_G}
        s_mul_i32 s76, s3, {4*12288}
        s_lshl_b32 s3, s{S_W}, 10
        s_add_u32 s76, s76, s3
        s_add_u32 s76, s76, {PART_OFF}
        v_lshlrev_b32 v{T_X}, 4, v{L}
        """)
        for src in range(4):
            a(f"buffer_load_dwordx4 v[{16+4*src}:{19+4*src}], v{T_X}, s[24:27], s76 offen sc1")
            if src < 3: a(f"s_add_u32 s76, s76, 12288")
        a(f"""
        s_mul_i32 s3, s{S_BP}, 96
        s_lshl_b32 s77, s{S_QT}, 5
        s_add_u32 s3, s3, s77
        s_lshl_b32 s3, s3, 12
        s_lshl_b32 s77, s{S_BLK}, 11
        s_add_u32 s3, s3, s77
        s_lshl_b32 s77, s{S_NT8}, 8
        s_add_u32 s3, s3, s77
        s_lshl_b32 s77, s{S_G}, 6
        s_add_u32 s3, s3, s77
        s_lshl_b32 s77, s{S_KQ}, 4
        s_add_u32 s3, s3, s77
        v_and_b32 v{T_X+1}, 31, v{L}
        v_lshlrev_b32 v{T_X+1}, 12, v{T_X+1}
        v_lshrrev_b32 v{T_X+2}, 5, v{L}
        v_lshlrev_b32 v{T_X+2}, 3, v{T_X+2}
        v_add_u32 v{T_X+1}, v{T_X+1}, v{T_X+2}
        s_waitcnt vmcnt(0)
        """)
        for i in range(4):
            a(f"v_add_f32 v{16+i}, v{16+i}, v{20+i}")
            a(f"v_add_f32 v{24+i}, v{24+i}, v{28+i}")
        for i in range(4):
            a(f"v_add_f32 v{16+i}, v{16+i}, v{24+i}")
        a("v_cvt_pk_bf16_f32 v20, v16, v17")
        a("v_cvt_pk_bf16_f32 v21, v18, v19")
        a(f"buffer_store_dwordx2 v[20:21], v{T_X+1}, s[8:11], s3 offen")
        ts(6)

    a.label("L_merge")
    prio(0)
    stamp(a, 2)
    tr2(40)
    F = V_F
    def mt(i):
        if OPT.get("lt") == 4: a(f"s_memtime s[{80+2*i}:{81+2*i}]")
    mt(0)
    a(f"""
    v_mov_b32 v{V_T0}, v{V_L}
    v_mov_b32 v{V_T1}, v{V_L}
    s_mul_i32 s76, s{S_KQ}, {AREA}
    v_lshlrev_b32 v{V_T2}, 4, v{L}
    v_permlane32_swap_b32 v{V_T0}, v{V_T1}
    s_mul_i32 s3, s{S_QT}, 12288
    s_add_u32 s77, s76, s3
    v_add_f32 v{V_L}, v{V_T0}, v{V_T1}
    v_add_u32 v{V_T1}, s77, v{V_T2}
    """)
    for j in range(1, 4):
        for rq in range(4):
            r = V_O + 16*j + 4*rq
            a(f"ds_write_b128 v{V_T1}, v[{r}:{r+3}] offset:{(j-1)*4096 + rq*1024}")
    mt(1)
    a(f"""
    v_and_b32 v{V_T0}, 31, v{L}
    v_lshlrev_b32 v{V_T0}, 3, v{V_T0}
    s_lshl_b32 s3, s{S_QT}, 8
    s_add_u32 s3, s3, 36864
    v_add_u32 v{V_T0}, s3, v{V_T0}
    v_add_u32 v{V_T1}, s76, v{V_T0}
    ds_write_b64 v{V_T1}, v[{V_M}:{V_L}]
    """)
    for j in range(1, 4):
        a(f"s_sub_u32 s3, s{S_KQ}, {j}")
        a(f"s_and_b32 s3, s3, 3")
        a(f"s_mul_i32 s76, s3, {AREA}")
        a(f"v_add_u32 v{V_Q+j}, s76, v{V_T0}")
        a(f"s_mul_i32 s3, s{S_QT}, 12288")
        a(f"s_add_u32 s76, s76, s3")
        a(f"v_add_u32 v{V_Q+4+j}, s76, v{V_T2}")
    A0, A1, A2, A3 = V_Q+8, V_Q+9, V_Q+10, V_Q+11
    a(f"""
    v_and_b32 v{A1}, 31, v{L}
    s_lshl_b32 s3, s{S_QT}, 5
    v_add_u32 v{A1}, s3, v{A1}
    v_cmp_le_u32 vcc, 48, v{A1}
    v_subrev_u32 v{A2}, 48, v{A1}
    v_mov_b32 v{A0}, 0
    v_mov_b32 v{A3}, {8*3072}
    v_cndmask_b32 v{A1}, v{A1}, v{A2}, vcc
    v_cndmask_b32 v{A0}, v{A0}, v{A3}, vcc
    s_and_b32 s3, s{S_B}, 1
    s_mul_i32 s3, s3, 48
    v_add_u32 v{A1}, s3, v{A1}
    v_lshrrev_b32 v{A2}, 5, v{A1}
    v_lshlrev_b32 v{A2}, 10, v{A2}
    v_add_u32 v{A0}, v{A0}, v{A2}
    v_and_b32 v{A1}, 31, v{A1}
    v_lshlrev_b32 v{A1}, 4, v{A1}
    v_add_u32 v{A0}, v{A0}, v{A1}
    v_lshrrev_b32 v{A1}, 5, v{L}
    v_lshlrev_b32 v{A1}, 3, v{A1}
    v_add_u32 v{A0}, v{A0}, v{A1}
    s_lshl_b32 s3, s{S_HP}, 4
    s_lshl_b32 s76, s{S_KQ}, 1
    s_add_u32 s3, s3, s76
    s_mul_i32 s3, s3, 3072
    s_mul_i32 s79, s{S_G1}, {192*1024}
    s_add_u32 s79, s79, s3
    s_add_u32 s79, s79, {O_OFF}
    """)
    mt(2)
    a("s_waitcnt lgkmcnt(0)")
    mt(3)
    a("s_barrier")
    mt(4)
    for j in range(1, 4):
        a(f"ds_read_b64 v[{F+2*j}:{F+2*j+1}], v{V_Q+j}")
    for j in range(1, 4):
        for rq in range(4):
            r = V_O + 16*j + 4*rq
            a(f"ds_read_b128 v[{r}:{r+3}], v{V_Q+4+j} offset:{(j-1)*4096 + rq*1024}")
    a("s_waitcnt lgkmcnt(12)")
    mt(5)
    a(f"""
    v_max3_f32 v{F+8}, v{V_M}, v{F+2}, v{F+4}
    v_max_f32 v{F+8}, v{F+8}, v{F+6}
    v_sub_f32 v{F+10}, v{V_M}, v{F+8}
    v_sub_f32 v{F+12}, v{F+2}, v{F+8}
    v_sub_f32 v{F+14}, v{F+4}, v{F+8}
    v_sub_f32 v{F+16}, v{F+6}, v{F+8}
    v_exp_f32 v{F+10}, v{F+10}
    v_exp_f32 v{F+12}, v{F+12}
    v_exp_f32 v{F+14}, v{F+14}
    v_exp_f32 v{F+16}, v{F+16}
    v_mul_f32 v{F+18}, v{F+10}, v{V_L}
    v_fma_f32 v{F+18}, v{F+12}, v{F+3}, v{F+18}
    v_fma_f32 v{F+18}, v{F+14}, v{F+5}, v{F+18}
    v_fma_f32 v{F+18}, v{F+16}, v{F+7}, v{F+18}
    v_rcp_f32 v{F+18}, v{F+18}
    v_mul_f32 v{F+10}, v{F+10}, v{F+18}
    v_mul_f32 v{F+12}, v{F+12}, v{F+18}
    v_mul_f32 v{F+14}, v{F+14}, v{F+18}
    v_mul_f32 v{F+16}, v{F+16}, v{F+18}
    """)
    mt(6)
    for i in range(0, 16, 2):
        a(f"v_pk_mul_f32 v[{V_O+i}:{V_O+i+1}], v[{V_O+i}:{V_O+i+1}], v[{F+10}:{F+11}] op_sel_hi:[1,0]")
    for j in range(1, 4):
        a(f"s_waitcnt lgkmcnt({12 - 4*j})")
        if j == 3: a("s_barrier")
        for i in range(0, 16, 2):
            a(f"v_pk_fma_f32 v[{V_O+i}:{V_O+i+1}], v[{V_O+16*j+i}:{V_O+16*j+i+1}], v[{F+10+2*j}:{F+11+2*j}], v[{V_O+i}:{V_O+i+1}] op_sel_hi:[1,0,1]")
    mt(7)
    for rq in range(4):
        a(f"v_cvt_pk_bf16_f32 v{F+20+2*rq}, v{V_O+4*rq}, v{V_O+4*rq+1}")
        a(f"v_cvt_pk_bf16_f32 v{F+20+2*rq+1}, v{V_O+4*rq+2}, v{V_O+4*rq+3}")
    for rq in range(4):
        a(f"buffer_store_dwordx2 v[{F+20+2*rq}:{F+20+2*rq+1}], v{A0}, s[24:27], s79 offen offset:{(rq & 1)*512} sc1" if rq < 2 else
          f"buffer_store_dwordx2 v[{F+20+2*rq}:{F+20+2*rq+1}], v{A0}, s[24:27], s79 offen offset:{3072 + (rq & 1)*512} sc1")
    gen_tail()
    stamp(a, 3)
    tr2(41)
    trace_dump(a, 167, 100, S_W, V_LANE, 1)
    if OPT.get("lt"):
        a("s_waitcnt lgkmcnt(0)")
        a(f"s_lshl_b32 s3, s2, 4")
        a(f"s_add_u32 s3, s3, s{S_W}")
        a(f"s_lshl_b32 s3, s3, 8")
        a(f"s_add_u32 s3, s3, {(56 << 20) + (1 << 20)}")
        a("v_mov_b32 v102, s3")
        for i in range(11):
            a(f"v_mov_b32 v100, s{80+2*i}")
            a(f"buffer_store_dword v100, v102, s[24:27], 0 offen offset:{4*i}")
            a("s_waitcnt vmcnt(0)")
    if OPT["stamps"]: a("s_memtime s[90:91]")
    if OPT.get("dbgclk"):
        a(f"""
        s_waitcnt lgkmcnt(0)
        s_cmp_eq_u32 s2, {OPT.get("dbgwg", 77)}
        s_cbranch_scc0 L_nodbg
        s_cmp_eq_u32 s{S_W}, 0
        s_cbranch_scc0 L_nodbg
        s_sub_u32 s90, s90, s88
        s_sub_u32 s82, s82, s80
        s_sub_u32 s84, s84, s80
        s_sub_u32 s86, s86, s80
        v_mov_b32 v100, s90
        v_mov_b32 v101, s82
        v_mov_b32 v102, s84
        v_mov_b32 v103, s86
        v_mov_b32 v104, 0
        s_mov_b64 exec, 1
        buffer_store_dwordx4 v[100:103], v104, s[16:19], 0 offen
        s_mov_b64 exec, -1
        L_nodbg:
        """)
    else:
        stamp_flush(a, 6, 100, S_W, 0)
    a("s_endpgm")
    a.label("L_slow_first")
    a(f"v_cndmask_b32 v{V_M}, v{V_M}, v{V_T0}, vcc")
    a(f"s_mov_b64 s[{S_SLOW}:{S_SLOW+1}], -1")
    a(f"v_add_f32 v{V_THR}, s{S_TC}, v{V_M}")
    a("s_branch L_slow_sub")
    a.label("L_slow")
    a("s_cbranch_vccz L_slow_sub")
    a(f"v_max_f32 v{V_T1}, v{V_M}, v{V_T0}")
    a(f"v_cndmask_b32 v{V_T1}, v{V_M}, v{V_T1}, vcc")
    a.label("L_slow_upd")
    a(f"""
    s_mov_b64 s[{S_SLOW}:{S_SLOW+1}], -1
    v_sub_f32 v{V_T2}, v{V_M}, v{V_T1}
    v_exp_f32 v{V_T2}, v{V_T2}
    v_mov_b32 v{V_M}, v{V_T1}
    v_add_f32 v{V_THR}, s{S_TC}, v{V_T1}
    v_mul_f32 v{V_L}, v{V_L}, v{V_T2}
    """)
    for i in range(64):
        a(f"v_mul_f32 v{V_O+i}, v{V_T2}, v{V_O+i}")
    a.label("L_slow_sub")
    for i in range(16):
        a(f"v_sub_f32 v{V_S+i}, v{V_S+i}, v{V_M}")
    a("s_nop 1")
    a(f"s_setpc_b64 s[{S_RET}:{S_RET+1}]")
    a.label("L_k1_end")
    a("s_endpgm")
    return a

def build():
    k1 = gen_k1().finalize()
    h1, d1 = kernel_text("gqa_fused_kernel", k1, 168)
    hdr = open("concat_heads__gqa_block_cached__gqa_block_cached__near_ridge.s.ref").read().split("; Override")[0]
    txt = hdr
    txt += "; @launch kernel=gqa_fused_kernel grid=(256,1,1) block=(768,1,1) lds=163840\n"
    txt += '.amdgcn_target "amdgcn-amd-amdhsa--gfx950"\n.text\n' + h1
    txt += '.section .rodata,"a"\n.p2align 6\n' + d1
    return txt

if __name__ == "__main__":
    out = sys.argv[1]
    for kv in sys.argv[2:]:
        k, v = kv.split("=")
        OPT[k] = int(v, 0)
    open(out, "w").write(build())
    print("wrote", out)
```
